```python
import torch

def _softmax(x, axis=-1):
    return torch.softmax(x, dim=axis)
def _gelu(x):
    return torch.nn.functional.gelu(x, approximate="tanh")
def _silu(x):
    return torch.nn.functional.silu(x)
def _sigmoid(x):
    return torch.sigmoid(x)
def _layernorm(x, axis=-1, eps=1e-5):
    m = x.mean(dim=axis, keepdim=True)
    v = x.var(dim=axis, keepdim=True, unbiased=False)
    return (x - m) / torch.sqrt(v + eps)
def _scatter_add(tgt, idx, src, axis=0):
    return tgt.clone().index_add_(axis, idx, src)
def _segment_sum(src, seg, n):
    out = torch.zeros((n,) + src.shape[1:], dtype=src.dtype)
    return out.index_add_(0, seg, src)
def _pad(x, pw):
    flat = tuple(v for pair in reversed(pw) for v in pair)
    return torch.nn.functional.pad(x, flat)

kernel_name = 'interleave_layers__compressed_kv_cla__glu_gated_geglu__decode'

def setup_inputs():

    _w = (lambda a: (lambda t: t.to(torch.bfloat16) if t.is_floating_point() else t)(torch.as_tensor(a)))
    def _A_setup():
        B, H, Sq, Sk, D, M = 2, 32, 1, 4096, 128, 512
        Dc = 4 * D
        return {
            "x": _w((lambda *s: torch.randn(*s, dtype=torch.bfloat16) * 0.05)(B, Sq, M)),
            "c_kv": _w((lambda *s: torch.randn(*s, dtype=torch.bfloat16) * 0.8)(B, Sk, Dc)),
            "w_q": _w((lambda *s: torch.randn(*s, dtype=torch.bfloat16) * 1.6)(M, H, D) * (M ** -0.5)),
            "w_uk": _w((lambda *s: torch.randn(*s, dtype=torch.bfloat16) * 1.6)(Dc, H, D) * (Dc ** -0.5)),
            "w_uv": _w((lambda *s: torch.randn(*s, dtype=torch.bfloat16) * 0.8)(Dc, H, D) * (Dc ** -0.5)),
            "w_o": _w((lambda *s: torch.randn(*s, dtype=torch.bfloat16) * 0.8)(H, D, M) * ((H * D) ** -0.5)),
        }
    _A_in = _A_setup()

    def _B_setup():
        B, S, Dm, Df = 2, 1, 512, 1376
        return {
            "x": _w((lambda *s: torch.randn(*s, dtype=torch.bfloat16) * 0.05)(B, S, Dm)),
            "w_gate": _w((lambda *s: torch.randn(*s, dtype=torch.bfloat16) * 0.4)(Dm, Df) * (Dm ** -0.5)),
            "w_up": _w((lambda *s: torch.randn(*s, dtype=torch.bfloat16) * 0.4)(Dm, Df) * (Dm ** -0.5)),
            "w_down": _w((lambda *s: torch.randn(*s, dtype=torch.bfloat16) * 0.4)(Df, Dm) * (Df ** -0.5)),
        }
    _B_in = _B_setup()

    return {
        "A_x": _A_in["x"],
        "A_c_kv": _A_in["c_kv"],
        "A_w_q": _A_in["w_q"],
        "A_w_uk": _A_in["w_uk"],
        "A_w_uv": _A_in["w_uv"],
        "A_w_o": _A_in["w_o"],
        "B_x": _B_in["x"],
        "B_w_gate": _B_in["w_gate"],
        "B_w_up": _B_in["w_up"],
        "B_w_down": _B_in["w_down"],
    }

def reference(A_x, A_c_kv, A_w_q, A_w_uk, A_w_uv, A_w_o, B_x, B_w_gate, B_w_up, B_w_down):
    def _A_ref(x, c_kv, w_q, w_uk, w_uv, w_o):
        B, Sq, M = x.shape[0], x.shape[1], x.shape[2]
        Sk = c_kv.shape[1]
        H, D = w_q.shape[1], w_q.shape[2]
        q = torch.einsum("bqm,mhd->bhqd", x, w_q)
        k = torch.einsum("bkc,chd->bhkd", c_kv, w_uk)
        v = torch.einsum("bkc,chd->bhkd", c_kv, w_uv)
        scores = torch.einsum("bhqd,bhkd->bhqk", q, k) * (D ** -0.5)
        off = Sk - Sq
        qi = torch.arange(Sq)[:, None]
        kj = torch.arange(Sk)[None, :]
        cmask = kj <= (qi + off)
        scores = torch.where(cmask[None, None], scores, -1e9)
        p = _softmax(scores, axis=-1)
        ctx = torch.einsum("bhqk,bhkd->bhqd", p, v)
        return torch.einsum("bhqd,hdm->bqm", ctx, w_o)

    def _B_ref(x, w_gate, w_up, w_down):
        g = torch.einsum("bsd,df->bsf", x, w_gate)
        u = torch.einsum("bsd,df->bsf", x, w_up)
        h = _gelu(g) * u
        return torch.einsum("bsf,fd->bsd", h, w_down)

    x = A_x
    x = x + _A_ref(_layernorm(x, axis=-1), A_c_kv, A_w_q, A_w_uk, A_w_uv, A_w_o)
    x = x + _B_ref(_layernorm(x, axis=-1), B_w_gate, B_w_up, B_w_down)
    x = x + _A_ref(_layernorm(x, axis=-1), A_c_kv, A_w_q, A_w_uk, A_w_uv, A_w_o)
    x = x + _B_ref(_layernorm(x, axis=-1), B_w_gate, B_w_up, B_w_down)
    return x
```

```python
import sys
NAME = "interleave_layers__compressed_kv_cla__glu_gated_geglu__decode"
L = []
def e(s): L.append(s)
uid = [0]
def lab(p):
    uid[0] += 1; return f"L_{p}_{uid[0]}"
def srd(base, slot, size):
    e(f"s_load_dwordx2 s[{base}:{base+1}], s[0:1], {slot*8}")
    return (base, size)
def srd_fin(s):
    e(f"s_mov_b32 s{s[0]+2}, {s[1]}\ns_mov_b32 s{s[0]+3}, 0x20000")
def kd(name, lds=0):
    return f""".amdhsa_kernel {name}
  .amdhsa_next_free_vgpr 128
  .amdhsa_next_free_sgpr 102
  .amdhsa_accum_offset 128
  .amdhsa_group_segment_fixed_size 0
  .amdhsa_kernarg_size 104
  .amdhsa_user_sgpr_count 2
  .amdhsa_user_sgpr_kernarg_segment_ptr 1
  .amdhsa_system_sgpr_workgroup_id_x 1
.end_amdhsa_kernel"""
def bar(): e("s_waitcnt vmcnt(0) lgkmcnt(0)\ns_barrier")
def block_reduce(v, op, tmp_lds):
    e(f"v_lshlrev_b32 v60, 2, v0\nds_write_b32 v60, {v} offset:{tmp_lds}")
    bar()
    e(f"v_mov_b32 v60, 0\ns_mov_b32 s20, 0")
    l = lab("red")
    e(f"ds_read_b32 {v}, v60 offset:{tmp_lds}\ns_waitcnt lgkmcnt(0)\ns_mov_b32 s20, 1")
    e(f"{l}:\ns_lshl_b32 s21, s20, 2\nv_mov_b32 v60, s21\nds_read_b32 v61, v60 offset:{tmp_lds}\ns_waitcnt lgkmcnt(0)\n{op} {v}, {v}, v61")
    e(f"s_add_u32 s20, s20, 1\ns_cmp_lt_u32 s20, 256\ns_cbranch_scc1 {l}")
    bar()
def layernorm(XN, TMP):
    e("v_add_f32 v12, v10, v11")
    block_reduce("v12", "v_add_f32", TMP)
    e("v_mul_f32 v12, 0x3b000000, v12")
    e("v_sub_f32 v13, v10, v12\nv_sub_f32 v14, v11, v12\nv_mul_f32 v15, v13, v13\nv_fmac_f32 v15, v14, v14")
    block_reduce("v15", "v_add_f32", TMP)
    e("v_mul_f32 v15, 0x3b000000, v15\nv_add_f32 v15, 0x3727c5ac, v15\nv_rsq_f32 v15, v15\ns_nop 1")
    e("v_mul_f32 v13, v13, v15\nv_mul_f32 v14, v14, v15")
    e(f"v_lshlrev_b32 v60, 3, v0\nds_write_b64 v60, v[13:14] offset:{XN}".replace("v[13:14]", "v[16:17]").replace("v_lshlrev_b32 v60, 3, v0", "v_mov_b32 v16, v13\nv_mov_b32 v17, v14\nv_lshlrev_b32 v60, 3, v0"))
    bar()
def gemv_col(acc, nacc, srdb, voff, rowstride, n, vec_lds, width, U=8):
    l = lab("gv")
    for j in range(nacc): e(f"v_mov_b32 v{acc+j}, 0")
    e("s_mov_b32 s20, 0\ns_mov_b32 s21, 0")
    e(f"{l}:")
    for u in range(U):
        e(f"s_add_u32 s22, s21, {u*rowstride}")
        e(f"buffer_load_{'ushort' if width==1 else 'dword'} v{70+u}, {voff}, s[{srdb}:{srdb+3}], s22 offen")
    e("s_lshl_b32 s22, s20, 2\nv_mov_b32 v60, s22")
    for u in range(0, U, 4): e(f"ds_read_b128 v[{80+u}:{83+u}], v60 offset:{vec_lds+4*u}")
    e("s_waitcnt vmcnt(0) lgkmcnt(0)")
    for u in range(U):
        e(f"v_lshlrev_b32 v61, 16, v{70+u}\nv_fmac_f32 v{acc}, v61, v{80+u}")
        if width == 2: e(f"v_and_b32 v61, 0xffff0000, v{70+u}\nv_fmac_f32 v{acc+1}, v61, v{80+u}")
    e(f"s_add_u32 s20, s20, {U}\ns_add_u32 s21, s21, {U*rowstride}\ns_cmp_lt_u32 s20, {n}\ns_cbranch_scc1 {l}")
def gemv_row(acc, srdb, voff, n, vec_lds):
    l = lab("gr")
    e(f"v_mov_b32 v{acc}, 0\ns_mov_b32 s20, 0")
    e(f"{l}:\ns_lshl_b32 s21, s20, 1")
    for u in range(4): e(f"buffer_load_dwordx4 v[{64+4*u}:{67+4*u}], {voff}, s[{srdb}:{srdb+3}], s21 offen offset:{16*u}")
    e("s_lshl_b32 s22, s20, 2\nv_mov_b32 v60, s22")
    for u in range(8): e(f"ds_read_b128 v[{80+4*u}:{83+4*u}], v60 offset:{vec_lds+16*u}")
    e("s_waitcnt vmcnt(0) lgkmcnt(0)")
    for u in range(16):
        e(f"v_lshlrev_b32 v61, 16, v{64+u}\nv_fmac_f32 v{acc}, v61, v{80+2*u}\nv_and_b32 v61, 0xffff0000, v{64+u}\nv_fmac_f32 v{acc}, v61, v{81+2*u}")
    e(f"s_add_u32 s20, s20, 32\ns_cmp_lt_u32 s20, {n}\ns_cbranch_scc1 {l}")
WS_PART = 0x100000; WS_X = 0x200000
def load_x(layer, bsg):
    if layer == 0:
        e(f"s_lshl_b32 s22, {bsg}, 10\nv_lshlrev_b32 v60, 2, v0\nbuffer_load_dword v12, v60, s[24:27], s22 offen\ns_waitcnt vmcnt(0)")
        e("v_lshlrev_b32 v10, 16, v12\nv_and_b32 v11, 0xffff0000, v12")
    else:
        e(f"s_lshl_b32 s22, {bsg}, 11\ns_add_u32 s22, s22, {WS_X}\nv_lshlrev_b32 v60, 3, v0\nbuffer_load_dwordx2 v[10:11], v60, s[8:11], s22 offen\ns_waitcnt vmcnt(0)")
def kA(layer):
    name = f"ka{layer}_kernel"
    e(f".globl {name}\n.p2align 8\n.type {name},@function\n{name}:")
    end = lab("end")
    e(f"s_cmp_ge_u32 s2, 64\ns_cbranch_scc1 {end}")
    S = [srd(8, 12, 0x10000000), srd(24, 0, 2048), srd(28, 1, 8 << 20), srd(32, 2, 4 << 20), srd(36, 3, 4 << 20), srd(40, 4, 4 << 20), srd(44, 5, 4 << 20)]
    e("s_waitcnt lgkmcnt(0)")
    for s in S: srd_fin(s)
    e("s_lshr_b32 s4, s2, 5\ns_and_b32 s5, s2, 31")
    XN, Q, QA, SC, TMP, CC, CT = 0, 2048, 2560, 4608, 20992, 22016, 24064
    load_x(layer, "s4")
    layernorm(XN, TMP)
    e("v_and_b32 v20, 127, v0\nv_lshlrev_b32 v20, 1, v20\ns_lshl_b32 s6, s5, 8\nv_add_u32 v20, s6, v20")
    gemv_col(30, 1, 32, "v20", 8192, 512, XN, 1)
    e(f"v_and_b32 v60, 127, v0\nv_lshlrev_b32 v60, 2, v60\nds_write_b32 v60, v30 offset:{Q}")
    bar()
    for i in range(2):
        e(f"v_add_u32 v21, {256*i}, v0\nv_lshlrev_b32 v21, 13, v21\nv_add_u32 v21, s6, v21")
        gemv_row(30, 36, "v21", 128, Q)
        e(f"v_mul_f32 v30, 0x3e0293ee, v30")
        e(f"v_lshlrev_b32 v60, 2, v0\nds_write_b32 v60, v30 offset:{QA+1024*i}")
    bar()
    e("s_lshl_b32 s7, s4, 22")
    for i in range(16):
        e(f"v_add_u32 v21, {256*i}, v0\nv_lshlrev_b32 v21, 10, v21\nv_add_u32 v21, s7, v21")
        gemv_row(32 + i, 28, "v21", 512, QA)
    e("v_mov_b32 v30, v32")
    for i in range(1, 16): e(f"v_max_f32 v30, v30, v{32+i}")
    block_reduce("v30", "v_max_f32", TMP)
    e("v_mov_b32 v31, 0")
    for i in range(16):
        e(f"v_sub_f32 v{32+i}, v{32+i}, v30\nv_exp_f32 v{32+i}, v{32+i}\ns_nop 1\nv_add_f32 v31, v31, v{32+i}")
        e(f"v_lshlrev_b32 v60, 2, v0\nds_write_b32 v60, v{32+i} offset:{SC+1024*i}")
    block_reduce("v31", "v_add_f32", TMP)
    e("v_rcp_f32 v29, v31")
    e("v_lshlrev_b32 v21, 2, v0\nv_add_u32 v21, s7, v21")
    gemv_col(30, 2, 28, "v21", 1024, 4096, SC, 2)
    e(f"v_mul_f32 v30, v30, v29\nv_mul_f32 v31, v31, v29\nv_lshlrev_b32 v60, 3, v0\nds_write_b64 v60, v[30:31] offset:{CC}")
    bar()
    gemv_col(30, 1, 40, "v20", 8192, 512, CC, 1)
    e(f"v_and_b32 v60, 127, v0\nv_lshlrev_b32 v60, 2, v60\nds_write_b32 v60, v30 offset:{CT}")
    bar()
    e("s_lshl_b32 s7, s5, 17\nv_lshlrev_b32 v21, 2, v0\nv_add_u32 v21, s7, v21")
    gemv_col(30, 2, 44, "v21", 1024, 128, CT, 2)
    e(f"s_lshl_b32 s7, s2, 11\ns_add_u32 s7, s7, {WS_PART}\nv_lshlrev_b32 v60, 3, v0\nbuffer_store_dwordx2 v[30:31], v60, s[8:11], s7 offen")
    e(f"{end}:\ns_endpgm")
    return name
def kB(layer):
    name = f"kb{layer}_kernel"
    e(f".globl {name}\n.p2align 8\n.type {name},@function\n{name}:")
    end = lab("end")
    e(f"s_cmp_ge_u32 s2, 2\ns_cbranch_scc1 {end}")
    S = [srd(8, 12, 0x10000000), srd(24, 0, 2048), srd(28, 7, 1409024), srd(32, 8, 1409024), srd(36, 9, 1409024), srd(40, 10, 2048)]
    e("s_waitcnt lgkmcnt(0)")
    for s in S: srd_fin(s)
    XN, TMP, HH = 0, 2048, 3072
    load_x(layer, "s2")
    e(f"s_lshl_b32 s7, s2, 16\ns_add_u32 s7, s7, {WS_PART}\nv_lshlrev_b32 v60, 3, v0")
    for h in range(32):
        e(f"s_add_u32 s22, s7, {h*2048}\nbuffer_load_dwordx2 v[12:13], v60, s[8:11], s22 offen\ns_waitcnt vmcnt(0)\nv_add_f32 v10, v10, v12\nv_add_f32 v11, v11, v13")
    layernorm(XN, TMP)
    for i in range(6):
        e(f"v_add_u32 v21, {256*i}, v0\nv_min_u32 v21, 1375, v21\nv_lshlrev_b32 v22, 2, v21\nv_lshlrev_b32 v21, 1, v21")
        gemv_col(30, 1, 28, "v21", 2752, 512, XN, 1)
        gemv_col(31, 1, 32, "v21", 2752, 512, XN, 1)
        e("v_mul_f32 v32, v30, v30\nv_mul_f32 v32, 0x3d372713, v32\nv_add_f32 v32, 1.0, v32\nv_mul_f32 v32, v32, v30")
        e("v_mul_f32 v32, 0xc0135761, v32\nv_exp_f32 v32, v32\ns_nop 1\nv_add_f32 v32, 1.0, v32\nv_rcp_f32 v32, v32\ns_nop 1")
        e(f"v_mul_f32 v32, v32, v30\nv_mul_f32 v32, v32, v31\nds_write_b32 v22, v32 offset:{HH}")
    bar()
    e("v_lshlrev_b32 v21, 2, v0")
    gemv_col(30, 2, 36, "v21", 1024, 1376, HH, 2)
    e("v_add_f32 v10, v10, v30\nv_add_f32 v11, v11, v31")
    if layer == 0:
        e(f"s_lshl_b32 s22, s2, 11\ns_add_u32 s22, s22, {WS_X}\nv_lshlrev_b32 v60, 3, v0\nbuffer_store_dwordx2 v[10:11], v60, s[8:11], s22 offen")
    else:
        e("v_cvt_pk_bf16_f32 v12, v10, v11\ns_lshl_b32 s22, s2, 10\nv_lshlrev_b32 v60, 2, v0\nbuffer_store_dword v12, v60, s[40:43], s22 offen")
    e(f"{end}:\ns_endpgm")
    return name
def gen(pre=None, pre_launch=None, pre_kd=None, npre=1, post=False):
    global L
    L = []
    hdr = []
    if pre and not post:
        for i in range(npre): hdr.append(pre_launch)
    for l in range(2):
        hdr.append(f"; @launch kernel=ka{l}_kernel grid=(64,1,1) block=(256,1,1) lds=32768")
        hdr.append(f"; @launch kernel=kb{l}_kernel grid=(2,1,1) block=(256,1,1) lds=16384")
    if pre and post:
        for i in range(npre): hdr.append(pre_launch)
    e('.amdgcn_target "amdgcn-amd-amdhsa--gfx950"\n.text')
    names = [kA(0), kB(0), kA(1), kB(1)]
    if pre: e(pre)
    e('.section .rodata,"a"')
    for n in names: e(".p2align 6\n" + kd(n))
    if pre: e(".p2align 6\n" + pre_kd)
    return "\n".join(hdr + L) + "\n"
if __name__ == "__main__":
    open("simple.s", "w").write(gen())
```

```python
import re, sys
sys.path.insert(0, "scratch")
import ldgen, simple_gen
src = open("ldrun.py").read()
defs = src[src.index("HEAD = "):src.index("n = 0\n")]
exec(defs)
def embed(groups, which, amp=1000, **kw):
    t = ldgen.gen(groups, **kw)
    body = t[t.index(".globl"):t.index('s_getreg_b32 s24')]
    body = body.replace(ldgen.NAME + "_kernel", "pre_kernel").replace("L_end", "L_pre_end")
    reg = {"karg": "s32"}.get(which, None) or f"s{64+2*which}"
    body += f"""s_waitcnt lgkmcnt(0)
s_sub_u32 s34, {reg}, s30
s_mul_i32 s34, s34, {amp}
s_memrealtime s[36:37]
s_waitcnt lgkmcnt(0)
s_mov_b32 s35, s36
L_spin:
s_sleep 32
s_memrealtime s[36:37]
s_waitcnt lgkmcnt(0)
s_sub_u32 s38, s36, s35
s_cmp_lt_u32 s38, s34
s_cbranch_scc1 L_spin
L_pre_end:
s_endpgm
"""
    kd = t[t.index(".amdhsa_kernel"):].replace(ldgen.NAME + "_kernel", "pre_kernel")
    return simple_gen.gen(pre=body, pre_launch="; @launch kernel=pre_kernel grid=(256,1,1) block=(256,1,1) lds=102400", pre_kd=kd)
triv = """.globl pre_kernel
.p2align 8
.type pre_kernel,@function
pre_kernel:
s_endpgm
"""
def trivial(n, grid=256):
    return simple_gen.gen(pre=triv, pre_launch=f"; @launch kernel=pre_kernel grid=({grid},1,1) block=(256,1,1) lds=0", pre_kd=simple_gen.kd("pre_kernel"), npre=n)
W = lambda n, s: open(f"scratch/{n}.s", "w").write(s)
W("p_triv200", trivial(200))
W("p_karg", embed([WQ1, WUK1], "karg"))
W("p_8mb", embed([WQ1, WUK1], 1))
W("p_8mb_nt", embed([WQ1, WUK1], 1, flags=" nt"))
W("p_wq", embed([WQ, WUK], 1))
W("p_wq_nt", embed([WQ, WUK], 1, flags=" nt"))
W("p_16mb", embed([WQ1, WUK1, CKV1], 2))
W("p_16mb_nt", embed([WQ1, WUK1, CKV1], 2, flags=" nt"))
W("p_all", embed([WQ, WUK, CKV, WUV, WO], 4))
W("p_all_nt", embed([WQ, WUK, CKV, WUV, WO], 4, flags=" nt"))
W("p_ckv", embed([CKV], 0))
W("p_x0", embed([X0], 0))
```

```python
import re

TRANS = ("v_exp_f32", "v_log_f32", "v_rcp_f32", "v_rsq_f32", "v_sqrt_f32", "v_sin_f32", "v_cos_f32")


def regs_of(tok):
    tok = tok.strip()
    tok = re.sub(r"^-|^abs\(|\)$|^\|", "", tok).rstrip("|")
    m = re.fullmatch(r"([vsa])\[(\d+):(\d+)\]", tok)
    if m:
        return {(m.group(1), i) for i in range(int(m.group(2)), int(m.group(3)) + 1)}
    m = re.fullmatch(r"([vsa])(\d+)", tok)
    if m:
        return {(m.group(1), int(m.group(2)))}
    if tok in ("vcc", "vcc_lo", "vcc_hi"):
        return {("x", "vcc")}
    if tok in ("exec", "exec_lo", "exec_hi"):
        return {("x", "exec")}
    if tok == "m0":
        return {("x", "m0")}
    return set()


class Ins:
    def __init__(self, text):
        self.text = text
        t = text.split(";")[0].strip()
        self.op = t.split()[0]
        rest = t[len(self.op):].strip()
        ops = [o.strip() for o in rest.split(",")] if rest else []
        if ops:
            parts = ops[-1].split()
            ops[-1] = parts[0] if parts else ""
            self.mods = " ".join(parts[1:])
        else:
            self.mods = ""
        self.ops = ops
        op = self.op
        R = [regs_of(o) for o in ops]
        U = lambda xs: set().union(*xs) if xs else set()
        self.kind = "other"
        self.w, self.r = set(), set()
        self.dpp = set()
        if op.startswith("v_mfma") or op.startswith("v_smfmac"):
            self.kind = "mfma"
            self.w = R[0]
            self.a, self.b = R[1], R[2]
            self.c = R[0] if op.startswith("v_smfmac") else R[3]
            if op.startswith("v_smfmac"):
                self.b = self.b | R[3]
            self.r = self.a | self.b | self.c
            self.passes = 8 if "32x32" in op else 4
        elif op.startswith("v_"):
            self.kind = "valu"
            if "swap" in op:
                self.w = R[0] | R[1]
                self.r = R[0] | R[1]
            elif re.match(r"v_(add|sub|subrev|addc|subb)_co_", op):
                self.w = R[0] | R[1]
                self.r = U(R[2:])
            else:
                self.w = R[0]
                self.r = U(R[1:])
                if op.startswith("v_fmac") or op.startswith("v_writelane") or "dpp" in op:
                    self.r = self.r | R[0]
            if "dpp" in op:
                self.dpp = R[1]
        elif op.startswith("ds_"):
            self.kind = "ds"
            if op.startswith(("ds_write", "ds_add_f32", "ds_max_f32")):
                self.r = U(R)
            else:
                self.w = R[0]
                self.r = U(R[1:])
        elif op.startswith("buffer_") or op.startswith("global_"):
            self.kind = "vmem"
            self.lds = " lds" in (" " + self.mods)
            if "store" in op:
                self.r = U(R)
                self.data = R[0] if op.startswith("buffer_") else R[1]
                self.wide = "x3" in op or "x4" in op
            elif self.lds:
                self.r = U(R) | {("x", "m0")}
            else:
                self.w = R[0]
                self.r = U(R[1:])
        elif op.startswith("s_"):
            self.kind = "salu"
            if op in ("s_nop", "s_waitcnt", "s_barrier", "s_sleep", "s_endpgm", "s_setprio") or op.startswith("s_cbranch") or op == "s_branch":
                pass
            elif op.startswith("s_cmp") or op.startswith("s_bitcmp"):
                self.r = U(R)
            else:
                self.w = R[0]
                self.r = U(R[1:])
                if "saveexec" in op:
                    self.w = self.w | {("x", "exec")}
        self.states = int(ops[0], 0) + 1 if op == "s_nop" else 1


def need(p, c):
    n = 0
    vw = {x for x in p.w if x[0] in "va"}
    sw = {x for x in p.w if x[0] == "s" or x == ("x", "vcc")}
    if p.kind == "valu":
        if c.kind == "mfma" and vw & c.r:
            n = max(n, 2)
        if c.kind == "valu":
            if vw & c.dpp:
                n = max(n, 2)
            if "permlane" in c.op and vw & c.r:
                n = max(n, 2)
            if c.op.startswith(("v_readlane", "v_readfirstlane")) and vw & c.r:
                n = max(n, 1)
            if p.op.replace("_e32", "").replace("_e64", "") in TRANS and vw & c.r and c.op not in TRANS:
                n = max(n, 1)
            if sw & c.r:
                n = max(n, 4 if c.op.startswith(("v_readlane", "v_writelane")) else 2)
        if c.kind == "vmem" and sw & c.r:
            n = max(n, 5)
        if c.kind == "salu" and sw & c.r:
            n = max(n, 1)
        if ("x", "exec") in p.w:
            n = max(n, 5)
    if p.kind == "mfma":
        big = {4: 8, 8: 12}[p.passes]
        if c.kind in ("valu", "ds", "vmem") and p.w & (c.r | c.w):
            n = max(n, big)
        if c.kind == "mfma":
            if p.w & (c.a | c.b):
                n = max(n, big)
            if p.w & c.c and p.w != c.c:
                n = max(n, big - 2)
        if c.kind == "valu" and p.c & c.w:
            n = max(n, {4: 3, 8: 7}[p.passes])
    if p.kind == "salu" and ("x", "m0") in p.w and c.kind == "vmem" and c.lds:
        n = max(n, 1)
    if p.kind == "vmem" and "store" in p.op and p.wide and p.data & c.w:
        n = max(n, 2 if c.kind == "valu" else 1)
    return n


def hazard_pass(lines):
    out, hist = [], []
    lg = 0
    for ln in lines:
        s = ln.strip()
        if not s or s.startswith((";", ".")) or s.endswith(":"):
            out.append(ln)
            continue
        c = Ins(s)
        if c.op == "s_waitcnt":
            mm = re.search(r"lgkmcnt\((\d+)\)", s)
            if mm:
                lg = min(lg, int(mm.group(1)))
        inc = 1 if c.kind == "ds" else 2 if c.op.startswith(("s_load", "s_memrealtime", "s_memtime")) else 0
        if inc and lg + inc > 14:
            out.append("s_waitcnt lgkmcnt(8)")
            hist.append(Ins("s_waitcnt lgkmcnt(8)"))
            lg = 8
        lg += inc
        dist, pad = 0, 0
        for p in reversed(hist):
            pad = max(pad, need(p, c) - dist)
            dist += p.states
            if dist >= 20:
                break
        while pad > 0:
            k = min(pad, 16)
            out.append(f"s_nop {k-1}")
            hist.append(Ins(f"s_nop {k-1}"))
            pad -= k
        out.append(ln)
        hist.append(c)
        hist = hist[-24:]
    return out
```

```python
import sys, math, struct
sys.path.insert(0, "scratch")
from asmlib import hazard_pass

NAME = "interleave_layers__compressed_kv_cla__glu_gated_geglu__decode"
f32 = lambda x: "0x%08x" % struct.unpack("<I", struct.pack("<f", x))[0]

CAN = 0x1000
PRET = 0x2000
I0S = lambda L: 0x4000 + L * 0x4000
LSE = lambda L: 0xC000 + L * 0x4000
S3R = lambda L: 0x18000 + L * 0x4000
S1R = lambda L: 0x20000 + L * 0x10000
S45 = lambda L: 0x40000 + L * 0x18000
I1R = lambda L: 0x70000 + L * 0x20000
COLS = 0xB0000
I0R = lambda L: 0x100000 + L * 0x80000
S2R = lambda L: 0x201000 + L * 0x201000
PRET2 = (0x200000, 0x401000, 0x602000)
STAMP = 0xE000000
OOB = 0x7FFFFF00
A_WQ = 0
A_OS = 0
A_XR = 18432
A_WUK = 34048
A_WUV = 67840
A_WO = 101632
A_Q = 134400
A_WW = A_Q + 512
A_CC = A_WW + 256
A_CT = A_CC + 512
A_RR = A_CT + 2048
A_XS = A_RR + 2048
A_DUM = A_XS + 256
B_CKV = 0
B_QA = 135168
B_MX = 152064
B_LS = B_MX + 512
B_P = B_LS + 512
B_ONES = B_P + 4608
B_DUM = B_ONES + 256
LDS_BYTES = B_DUM + 1024
B_FG = 0
B_FU = 32768
B_FD = 65536
B_XP = 98304
B_RB = B_XP + 2048
B_ST = B_RB + 6144
B_H = B_ST + 128

S_WS, S_X, S_CKV, S_WQ, S_WUK, S_WUV, S_WO, S_WG, S_WU, S_WD, S_OUT, S_DBG = [4 + 4 * k for k in range(12)]
sJ, sI, sW, sT, sP, sKLO, sKHI, sM, sFF, sSEL, sGUARD, sPLAIN = ["s%d" % (52 + k) for k in range(12)]
sA, sB, sC, sD = "s64", "s65", "s66", "s67"
sH, sCS = "s68", "s69"
sMASK = "s[70:71]"
sXC = "s[72:75]"
sXCC = "s76"
sE8 = "s77"
STAMP0 = 78
srd = lambda b: f"s[{b}:{b+3}]"
vL, vC, vG, vT, vP = "v1", "v2", "v3", "v4", "v5"


def R(a, n=1):
    return f"v{a}" if n == 1 else f"v[{a}:{a+n-1}]"


class Gen:
    def __init__(self, **o):
        self.o = dict(stamps=False, bdelay=30, adelay=12, d_s1=0, d_s2=0, d_s3=0, d_s45=0, force_sc1=False, guard=0x400000)
        self.o.update(o)
        self.L = []
        self.uid = 0
        self.nst = 0

    def e(self, s):
        for ln in s.split("\n"):
            self.L.append(ln)

    def lab(self, p):
        self.uid += 1
        return f"L_{p}_{self.uid}"

    def stamp(self, k):
        if self.o["stamps"]:
            self.e(f"s_memrealtime s[{STAMP0+2*k}:{STAMP0+2*k+1}]")

    def dump_stamps(self):
        if not self.o["stamps"]:
            return
        e = self.e
        e("s_waitcnt lgkmcnt(0)")
        for k in range(12):
            e(f"v_mov_b32 v{8+k}, s{STAMP0+2*k}")
        e(f"s_lshl_b32 {sA}, s2, 9\ns_lshl_b32 {sB}, {sW}, 6\ns_add_u32 {sA}, {sA}, {sB}\ns_add_u32 {sA}, {sA}, {STAMP}")
        e(f"v_mov_b32 v6, {OOB}\nv_cmp_eq_u32 vcc, 0, {vL}\nv_cndmask_b32 v6, v6, v7, vcc".replace("v_cndmask_b32 v6, v6, v7, vcc", "v_cndmask_b32 v6, v6, " + vL + ", vcc"))
        e(f"v_mov_b32 v20, {sGUARD}\nv_mov_b32 v21, {sT}\nv_mov_b32 v22, {sPLAIN}\nv_mov_b32 v23, s3")
        for k in range(4):
            e(f"buffer_store_dwordx4 v[{8+4*k}:{11+4*k}], v6, {srd(S_WS)}, {sA} offen offset:{16*k}")

    def mfma(self, d, a, b, c=None):
        self.e(f"v_mfma_f32_16x16x32_bf16 {R(d,4)}, {R(a,4)}, {R(b,4)}, {'0' if c is None else R(c,4)}")

    def bar(self):
        self.e("s_waitcnt lgkmcnt(0)\ns_barrier")

    def guard(self):
        if self.o["stamps"]:
            self.nst += 1
            self.e(f"s_movk_i32 s3, {self.nst}")
        self.e(f"s_sub_u32 {sGUARD}, {sGUARD}, 1\ns_cbranch_scc1 {'L_bail' if self.o['stamps'] else 'L_end'}")

    def sel(self, dst, cond, a, b):
        self.e(cond)
        self.e(f"v_cndmask_b32 {dst}, {a}, {b}, vcc")

    def check(self, regs, pat, mask, acc):
        e = self.e
        e(f"v_xor_b32 {acc}, {pat}, v{regs[0]}")
        for r in regs[1:]:
            e(f"v_bitop3_b32 {acc}, v{r}, {pat}, {acc} bitop3:0xbe")
        e(f"v_and_b32 {acc}, {mask}, {acc}")
        e(f"v_cmp_ne_u32 vcc, 0, {acc}")

    def packtag(self, dst, lo, hi, t0, t1):
        e = self.e
        e(f"v_add_u32 {t0}, {sKLO}, {lo}\nv_add_u32 {t1}, {sKHI}, {hi}")
        e(f"v_perm_b32 {t0}, {t1}, {t0}, {sSEL}")
        e(f"v_bfi_b32 {dst}, {sM}, {vP}, {t0}")

    def allred(self, regs, op, tmps, steps):
        e = self.e
        dp = {1: "quad_perm:[1,0,3,2]", 2: "quad_perm:[2,3,0,1]", 4: "row_half_mirror", 8: "row_ror:8"}
        for s in steps:
            if s in dp:
                for r in regs:
                    e(f"{op}_dpp {r}, {r}, {r} {dp[s]} row_mask:0xf bank_mask:0xf")
            else:
                for r, t in zip(regs, tmps):
                    e(f"v_mov_b32 {t}, {r}")
                for r, t in zip(regs, tmps):
                    e(f"v_permlane{s}_swap_b32 {r}, {t}")
                for r, t in zip(regs, tmps):
                    e(f"{op} {r}, {r}, {t}")

    def canary_wait(self, idx, delay):
        e = self.e
        l = self.lab("can")
        e(f"s_mov_b32 {sA}, {CAN + idx*128}\nv_mov_b32 v7, 0")
        e(f"{l}:")
        self.guard()
        e(f"s_sleep 1\nbuffer_load_dword v6, v7, {srd(S_WS)}, {sA} offen sc1\ns_waitcnt vmcnt(0)")
        e(f"v_cmp_ne_u32 vcc, v6, {vT}\ns_cbranch_vccnz {l}")
        if delay:
            e(f"s_sleep {delay}")

    def canary_set(self, idx, vcan):
        self.e(f"s_mov_b32 {sA}, {idx*128}\nbuffer_store_dword {vT}, {vcan}, {srd(S_WS)}, {sA} offen sc1")

    def store_intra(self, ins):
        e = self.e
        if self.o["force_sc1"]:
            e(ins + " sc1")
            return
        l1, l2 = self.lab("sc"), self.lab("sd")
        e(f"s_cmp_eq_u32 {sPLAIN}, 0\ns_cbranch_scc1 {l1}\n{ins}\ns_branch {l2}\n{l1}:\n{ins} sc1\n{l2}:")

    def tags(self):
        e = self.e
        e(f"s_add_u32 {sT}, {sT}, 1")
        e(f"s_and_b32 {sA}, {sT}, 1\ns_lshr_b32 {sB}, {sT}, 1\ns_and_b32 {sB}, {sB}, 1")
        e(f"s_lshl_b32 {sP}, {sB}, 16\ns_or_b32 {sP}, {sP}, {sA}")
        e(f"s_xor_b32 {sA}, {sA}, 1\ns_lshl_b32 {sKLO}, {sA}, 16\ns_xor_b32 {sB}, {sB}, 1\ns_lshl_b32 {sKHI}, {sB}, 16")
        e(f"v_mov_b32 {vT}, {sT}\nv_mov_b32 {vP}, {sP}")

    def build(self):
        e = self.e
        K = NAME + "_kernel"
        e(f"; @launch grid=(256,1,1) block=(512,1,1) lds={LDS_BYTES}")
        e('.amdgcn_target "amdgcn-amd-amdhsa--gfx950"\n.text')
        e(f".globl {K}\n.p2align 8\n.type {K},@function\n{K}:")
        self.stamp(0)
        e("s_cmp_ge_u32 s2, 256\ns_cbranch_scc1 L_end")
        e(f"s_load_dwordx2 s[{S_WS}:{S_WS+1}], s[0:1], 96")
        e(f"s_lshr_b32 {sI}, s2, 3\ns_cmp_ge_u32 {sI}, 16\ns_cbranch_scc1 L_roleB")
        self.roleA()
        e("L_roleB:")
        self.roleB()
        if self.o["stamps"]:
            e("s_endpgm\nL_bail:\ns_mov_b64 exec, -1")
            e(f"s_lshl_b32 {sA}, s2, 14\ns_add_u32 {sA}, {sA}, 0xC000000\nv_lshlrev_b32 v6, 5, v0\nbuffer_store_dwordx4 v[8:11], v6, {srd(S_WS)}, {sA} offen\nbuffer_store_dwordx4 v[12:15], v6, {srd(S_WS)}, {sA} offen offset:16\ns_waitcnt vmcnt(0)")
            self.dump_stamps()
        e("L_end:\ns_endpgm\nL_code_end:")
        body = hazard_pass(self.L)
        body.append(f""".section .rodata,"a"
.p2align 6
.amdhsa_kernel {K}
  .amdhsa_next_free_vgpr 256
  .amdhsa_next_free_sgpr 102
  .amdhsa_accum_offset 256
  .amdhsa_group_segment_fixed_size 0
  .amdhsa_kernarg_size 104
  .amdhsa_user_sgpr_count 2
  .amdhsa_user_sgpr_kernarg_segment_ptr 1
  .amdhsa_system_sgpr_workgroup_id_x 1
.end_amdhsa_kernel""")
        return "\n".join(body) + "\n"

    def common_ids(self):
        e = self.e
        e(f"s_and_b32 {sJ}, s2, 7")
        e(f"v_lshrrev_b32 v6, 6, v0\nv_and_b32 {vL}, 63, v0\nv_and_b32 {vC}, 15, v0\nv_bfe_u32 {vG}, v0, 4, 2")
        e(f"v_readfirstlane_b32 {sW}, v6")
        e(f"s_mov_b32 {sM}, 0x00010001\ns_mov_b32 {sFF}, 0xff\ns_mov_b32 {sSEL}, 0x07060302\ns_mov_b32 {sGUARD}, {self.o['guard']}")

    def fin_srd(self, b, size):
        self.e(f"s_mov_b32 s{b+2}, {size}\ns_mov_b32 s{b+3}, 0x20000")

    def roleA(self):
        e, o = self.e, self.o
        WQ, WUK, WUV, WO, XOP, SEL0, SEL4 = 32, 48, 112, 128, 144, 148, 152
        vCS, vX8a, vX8b = "v156", "v157", "v158"
        (aXOFF, aWROW, aI0ST0, aI0ST1, aI0LD, aCSLD, aSTLD, aSTST, aQW, aQR, aS1ST, aS2LD, aOSW, aLSE, aWW, aWA0, aWA1,
         aOTR, aCCW, aCCR, aI1ST, aI1LD, aCTW, aCTR, aRRW, aRRR, aS3ST, aXLD, aXRW, aXTR, aXSW, aXSR, aCAN, aOUT) = ["v%d" % (160 + k) for k in range(34)]
        for b, slot in ((S_X, 0), (S_WQ, 2), (S_WUK, 3), (S_WUV, 4), (S_WO, 5), (S_OUT, 10), (S_DBG, 11)):
            e(f"s_load_dwordx2 s[{b}:{b+1}], s[0:1], {slot*8}")
        self.common_ids()
        e(f"s_getreg_b32 {sXCC}, hwreg(HW_REG_XCC_ID)\ns_and_b32 {sXCC}, {sXCC}, 15\ns_or_b32 {sXCC}, {sXCC}, 0x80")
        e(f"s_and_b32 {sA}, {sI}, 3\ns_lshl_b32 {sH}, {sJ}, 2\ns_add_u32 {sH}, {sH}, {sA}\ns_lshr_b32 {sCS}, {sI}, 2")
        sPA = sE8
        e(f"s_lshl_b32 {sPA}, {sJ}, 4\ns_add_u32 {sPA}, {sPA}, {sI}")
        e(f"v_bfe_u32 v6, {vC}, 2, 1\nv_lshlrev_b32 v6, 10, v6\nv_lshl_add_u32 v6, {vG}, 2, v6\ns_lshl_b32 {sA}, {sI}, 6\nv_add_u32 {aXOFF}, {sA}, v6")
        e(f"v_lshlrev_b32 v7, 4, {vL}")
        e(f"v_and_b32 v8, 1, {vG}\nv_lshlrev_b32 v8, 10, v8\nv_lshl_add_u32 v8, {vC}, 1, v8\nv_add_u32 v8, {sA}, v8")
        e(f"s_lshl_b32 {sA}, {sI}, 18\ns_lshl_b32 {sB}, {sW}, 15\ns_add_u32 {sA}, {sA}, {sB}\ns_lshl_b32 {sB}, {sJ}, 10\ns_add_u32 {sA}, {sA}, {sB}\nv_add_u32 v9, {sA}, v7")
        e(f"s_mul_i32 {sC}, {sW}, 4224\ns_lshr_b32 {sB}, {sW}, 2\ns_lshl_b32 {sB}, {sB}, 7\ns_add_u32 {sC}, {sC}, {sB}")
        e(f"v_mov_b32 v10, {OOB}\nv_mov_b32 v11, {sPA}\nv_cmp_eq_u32 vcc, 0, v0\nv_cndmask_b32 v10, v10, v11, vcc\nv_mov_b32 v11, {sXCC}\nv_mov_b32 v12, {PRET}")
        e("s_waitcnt lgkmcnt(0)")
        self.stamp(1)
        e(f"s_load_dword {sT}, s[{S_WS}:{S_WS+1}], 0")
        for b, sz in ((S_X, 2048), (S_WQ, 4 << 20), (S_DBG, 256), (S_WS, 0x10000000), (S_WUK, 4 << 20), (S_WUV, 4 << 20), (S_WO, 4 << 20), (S_OUT, 2048)):
            self.fin_srd(b, sz)
        e(f"buffer_store_byte v11, v10, {srd(S_DBG)}, 0 offen sc1")
        e(f"buffer_load_dwordx4 v[16:19], v7, {srd(S_X)}, 0 offen\nbuffer_load_dwordx4 v[20:23], v7, {srd(S_X)}, 0 offen offset:1024")
        for k, off in enumerate((0, 32, 16, 48)):
            e(f"buffer_load_dword v{24+k}, {aXOFF}, {srd(S_X)}, 0 offen offset:{off}")
        e(f"buffer_load_ushort v28, v8, {srd(S_X)}, 0 offen\nbuffer_load_ushort v29, v8, {srd(S_X)}, 0 offen offset:32")
        e(f"buffer_load_dword v30, v12, {srd(S_WS)}, 0 offen")
        for q in range(4):
            e(f"s_mov_b32 {sA}, {q*8192}\ns_add_u32 m0, {sC}, {A_WQ + q*1056}\nbuffer_load_dwordx4 v9, {srd(S_WQ)}, {sA} offen lds")
        e("s_barrier")
        e(f"s_lshl_b32 {sA}, {sCS}, 20\ns_lshl_b32 {sB}, {sW}, 17\ns_add_u32 {sA}, {sA}, {sB}\ns_lshl_b32 {sB}, {sH}, 8\ns_add_u32 {sA}, {sA}, {sB}")
        e(f"v_lshlrev_b32 v6, 13, {vG}\nv_lshl_add_u32 v6, {vC}, 4, v6\nv_add_u32 {aWROW}, {sA}, v6")
        e(f"s_mul_i32 {sC}, {sW}, 4224")
        for q in range(4):
            e(f"s_mov_b32 {sA}, {q*32768}\ns_add_u32 m0, {sC}, {A_WUK + q*1056}\nbuffer_load_dwordx4 {aWROW}, {srd(S_WUK)}, {sA} offen lds")
        vr, vq = "v14", "v15"
        e(f"v_bfe_u32 {vr}, {vL}, 2, 2\nv_and_b32 {vq}, 3, {vL}")
        e(f"v_mov_b32 v13, {OOB}")
        e(f"s_lshl_b32 {sA}, {sPA}, 12\ns_lshl_b32 {sB}, {sW}, 9\ns_add_u32 {sA}, {sA}, {sB}\ns_add_u32 {sA}, {sA}, {I0R(0)}\nv_add_u32 v6, {sA}, v7")
        self.sel(aI0ST1, f"v_cmp_gt_u32 vcc, 32, {vL}", "v13", "v6")
        e(f"s_lshl_b32 {sA}, {sPA}, 11\ns_lshl_b32 {sB}, {sW}, 8\ns_add_u32 {sA}, {sA}, {sB}\ns_add_u32 {sA}, {sA}, {COLS - 512}\nv_add_u32 v6, {sA}, v7")
        self.sel(aI0ST0, f"v_cmp_eq_u32 vcc, 2, {vG}", aI0ST1, "v6")
        e(f"v_lshrrev_b32 v8, 3, {vL}\nv_and_b32 v9, 7, {vL}\nv_lshlrev_b32 v9, 4, v9")
        e(f"s_lshl_b32 {sA}, {sJ}, 16\ns_and_b32 {sB}, {sI}, 3\ns_lshl_b32 {sC}, {sB}, 10\ns_add_u32 {sA}, {sA}, {sC}\ns_lshl_b32 {sC}, {sW}, 7\ns_add_u32 {sA}, {sA}, {sC}")
        e(f"v_lshl_add_u32 v6, v8, 12, v9\nv_add_u32 {aI0LD}, {sA}, v6")
        e(f"s_lshl_b32 {sA}, {sJ}, 15\ns_lshl_b32 {sC}, {sB}, 9\ns_add_u32 {sA}, {sA}, {sC}\ns_lshr_b32 {sC}, {sW}, 2\ns_lshl_b32 {sC}, {sC}, 8\ns_add_u32 {sA}, {sA}, {sC}")
        e(f"s_and_b32 {sC}, {sW}, 1\ns_lshl_b32 {sC}, {sC}, 7\ns_add_u32 {sA}, {sA}, {sC}\ns_add_u32 {sA}, {sA}, {COLS}")
        e(f"v_lshl_add_u32 v6, v8, 11, v9\nv_add_u32 {aCSLD}, {sA}, v6")
        e(f"s_lshl_b32 {sA}, {sJ}, 11\ns_bfe_u32 {sB}, {sW}, 0x10001\ns_lshl_b32 {sC}, {sB}, 4\ns_add_u32 {sA}, {sA}, {sC}\ns_add_u32 {sA}, {sA}, {I0S(1)}")
        e(f"v_lshlrev_b32 v6, 7, {vC}\nv_add_u32 {aSTLD}, {sA}, v6")
        e(f"s_lshl_b32 {sA}, {sPA}, 7\ns_add_u32 {sA}, {sA}, {I0S(1)}\nv_lshlrev_b32 v6, 2, v0\nv_add_u32 v6, {sA}, v6\nv_and_b32 v10, 0xfffffffb, v0")
        self.sel(aSTST, "v_cmp_eq_u32 vcc, 0, v10", "v13", "v6")
        e(f"s_lshl_b32 {sA}, {sB}, 8\ns_lshr_b32 {sC}, {sW}, 2\ns_lshl_b32 {sC}, {sC}, 7\ns_add_u32 {sA}, {sA}, {sC}\ns_and_b32 {sC}, {sW}, 1\ns_lshl_b32 {sC}, {sC}, 4\ns_add_u32 {sA}, {sA}, {sC}\ns_add_u32 {sA}, {sA}, {A_Q}")
        e(f"v_lshrrev_b32 v6, 3, v9\nv_lshl_add_u32 v6, {vG}, 5, v6\nv_add_u32 {aQW}, {sA}, v6")
        e(f"v_bfe_u32 v10, {vC}, 2, 1\nv_lshlrev_b32 v11, 4, {vG}")
        e(f"v_lshl_add_u32 v6, v10, 8, v11\nv_add_u32 {aQR}, {A_Q}, v6\nv_add_u32 {aCCR}, {A_CC}, v6")
        e(f"s_lshl_b32 {sA}, {sH}, 10\ns_lshl_b32 {sC}, {sCS}, 8\ns_add_u32 {sA}, {sA}, {sC}\ns_lshl_b32 {sC}, {sW}, 7\ns_add_u32 {sA}, {sA}, {sC}")
        e(f"v_lshlrev_b32 v6, 15, {vG}\nv_lshl_add_u32 v6, {vC}, 3, v6\nv_add_u32 v6, {sA}, v6")
        self.sel(aS1ST, f"v_cmp_gt_u32 vcc, 32, {vL}", "v13", "v6")
        e(f"s_lshl_b32 {sA}, {sH}, 2\ns_add_u32 {sA}, {sA}, {sCS}\ns_lshl_b32 {sA}, {sA}, 14\ns_lshl_b32 {sC}, {sW}, 11\ns_add_u32 {sA}, {sA}, {sC}\nv_add_u32 {aS2LD}, {sA}, v7")
        e(f"s_mul_i32 {sA}, {sW}, {8*288}\nv_mul_u32_u24 v6, 288, {vG}\nv_lshl_add_u32 v6, {vC}, 4, v6\nv_add_u32 {aOSW}, {sA}, v6")
        e(f"s_lshr_b32 {sA}, {sJ}, 2\ns_lshl_b32 {sA}, {sA}, 12\ns_and_b32 {sC}, {sH}, 15\ns_lshl_b32 {sC}, {sC}, 3\ns_add_u32 {sA}, {sA}, {sC}")
        e(f"v_lshrrev_b32 v6, 5, {vL}\nv_and_b32 v12, 31, {vL}\nv_lshlrev_b32 v12, 7, v12\nv_lshl_add_u32 v12, v6, 13, v12\nv_add_u32 {aLSE}, {sA}, v12")
        e(f"v_lshlrev_b32 v6, 6, v6\nv_lshl_add_u32 v6, {vr}, 4, v6\nv_and_b32 v12, 1, {vG}\nv_lshl_add_u32 v6, v12, 3, v6\nv_lshl_add_u32 v6, {vq}, 1, v6\nv_add_u32 {aWW}, {A_WW}, v6")
        e(f"v_add_u32 v6, {A_WW}, v11\nv_add_u32 v12, {A_WW+128}, v11")
        self.sel(aWA0, f"v_cmp_eq_u32 vcc, 0, {vC}", "v12", "v6")
        e("v_add_u32 v6, 64, v6")
        self.sel(aWA1, f"v_cmp_eq_u32 vcc, 4, {vC}", "v12", "v6")
        e(f"v_lshrrev_b32 v12, 2, {vL}")
        e(f"s_lshl_b32 {sA}, {sW}, 5\nv_mul_u32_u24 v6, 288, v12\nv_lshl_add_u32 v6, {vq}, 3, v6\nv_add_u32 {aOTR}, {sA}, v6")
        e(f"v_mul_u32_u24 v6, 160, v12\nv_lshl_add_u32 v6, {vq}, 3, v6\nv_add_u32 {aXTR}, {A_XR}, v6")
        e(f"s_add_u32 {sA}, {sA}, {A_CC}\nv_lshlrev_b32 v6, 8, {vG}\nv_lshl_add_u32 v6, {vC}, 1, v6\nv_add_u32 v6, {sA}, v6\nv_mov_b32 v12, {A_DUM}")
        self.sel(aCCW, f"v_cmp_gt_u32 vcc, 32, {vL}", "v12", "v6")
        e(f"s_lshl_b32 {sA}, {sW}, 8\ns_add_u32 {sB}, {sA}, {A_RR}\nv_lshlrev_b32 v6, 3, {vL}\nv_add_u32 v6, {sB}, v6\nv_cndmask_b32 {aRRW}, v12, v6, vcc")
        e(f"v_and_b32 v6, 31, {vL}\nv_lshlrev_b32 v6, 3, v6\nv_add_u32 {aRRR}, {A_RR}, v6")
        e(f"s_lshl_b32 {sB}, {sPA}, 10\ns_lshl_b32 {sC}, {sW}, 7\ns_add_u32 {sB}, {sB}, {sC}\nv_lshlrev_b32 v8, 2, {vL}\nv_add_u32 v6, {sB}, v8\nv_cndmask_b32 {aI1ST}, v13, v6, vcc")
        e(f"s_lshl_b32 {sB}, {sPA}, 7\nv_add_u32 v6, {sB}, v8\nv_cndmask_b32 {aS3ST}, v13, v6, vcc")
        e(f"s_lshl_b32 {sB}, {sJ}, 14\ns_lshl_b32 {sC}, {sW}, 9\ns_add_u32 {sB}, {sB}, {sC}")
        e(f"v_lshlrev_b32 v6, 12, {vG}\nv_lshl_add_u32 v6, {vC}, 4, v6\nv_add_u32 {aI1LD}, {sB}, v6")
        e(f"s_add_u32 {sA}, {sA}, {A_CT}\nv_lshlrev_b32 v6, 7, v10\nv_add_u32 v6, {sA}, v6\nv_add_u32 {aCTR}, v6, v11")
        e(f"v_lshrrev_b32 v8, 1, {vG}\nv_lshl_add_u32 v6, v8, 6, v6\nv_lshrrev_b32 v8, 3, {vC}\nv_lshl_add_u32 v6, v8, 5, v6\nv_lshl_add_u32 v6, {vq}, 3, v6\nv_and_b32 v8, 1, {vG}\nv_lshl_add_u32 {aCTW}, v8, 2, v6")
        e(f"v_lshrrev_b32 v8, 3, v0\nv_mul_u32_u24 v6, 160, v8\nv_add3_u32 {aXRW}, v6, v9, 0\nv_add_u32 {aXRW}, {A_XR}, {aXRW}")
        e(f"s_lshl_b32 {sA}, {sI}, 7\nv_lshl_add_u32 v6, v8, 11, v9\nv_add_u32 {aXLD}, {sA}, v6")
        e(f"v_cmp_gt_u32 {sMASK}, 43, v8\nv_lshrrev_b32 v8, 3, v8\nv_cmp_eq_u32 vcc, 6, v8\ns_or_b64 {sMASK}, {sMASK}, vcc")
        e(f"v_lshlrev_b32 v6, 7, v10\nv_lshl_add_u32 v6, {vG}, 3, v6\nv_add_u32 v6, {A_XS}, v6\nv_and_b32 v8, 11, {vC}")
        self.sel(aXSW, "v_cmp_eq_u32 vcc, 0, v8", "v12", "v6")
        e(f"v_cndmask_b32 {aOUT}, v13, {aXOFF}, vcc")
        e(f"v_and_b32 v6, 1, {vG}\nv_lshlrev_b32 v6, 7, v6\nv_lshl_add_u32 v6, {vC}, 2, v6\nv_add_u32 {aXSR}, {A_XS}, v6")
        e(f"s_lshl_b32 {sA}, s2, 9\nv_add_u32 v6, {sA}, v0\nv_mov_b32 v8, {CAN}")
        self.sel(aCAN, "v_cmp_eq_u32 vcc, 0, v6", "v13", "v8")
        e(f"v_mov_b32 v6, 0x3f803f80\nv_mov_b32 v8, 0")
        self.sel(R(SEL0), f"v_cmp_eq_u32 vcc, 0, {vC}", "v8", "v6")
        self.sel(R(SEL4), f"v_cmp_eq_u32 vcc, 4, {vC}", "v8", "v6")
        for k in range(1, 4):
            e(f"v_mov_b32 v{SEL0+k}, v{SEL0}\nv_mov_b32 v{SEL4+k}, v{SEL4}")
        e(f"v_lshlrev_b32 v6, 2, {vC}\nv_add_u32 v6, {A_WW+128}, v6\nds_write_b32 v6, v8")
        e(f"v_and_b32 v6, 1, {vr}\nv_mul_u32_u24 v6, {16*1056+128}, v6\nv_lshrrev_b32 v8, 1, {vr}\nv_lshl_add_u32 v8, {vG}, 1, v8\nv_mad_u32_u24 v6, v8, v8, v6".replace("v_mad_u32_u24 v6, v8, v8, v6", "v_mul_u32_u24 v8, 1056, v8\nv_add_u32 v6, v6, v8"))
        e(f"s_lshl_b32 {sA}, {sW}, 7\nv_lshl_add_u32 v6, {vq}, 3, v6\nv_add_u32 v31, {sA}, v6")
        e("s_waitcnt vmcnt(9)")
        X = list(range(208, 224))
        for b in range(2):
            for k in range(4):
                e(f"v_lshlrev_b32 v{X[8*b+2*k]}, 16, v{16+4*b+k}\nv_and_b32 v{X[8*b+2*k+1]}, 0xffff0000, v{16+4*b+k}")
        for b in range(2):
            e(f"v_add_f32 v{16+b}, v{X[8*b]}, v{X[8*b+1]}")
            for k in range(2, 8):
                e(f"v_add_f32 v{16+b}, v{16+b}, v{X[8*b+k]}")
        self.allred(["v16", "v17"], "v_add_f32", ["v18", "v19"], [1, 2, 4, 8, 16, 32])
        e(f"v_mul_f32 v16, {f32(1/512)}, v16\nv_mul_f32 v17, {f32(1/512)}, v17")
        for b in range(2):
            for k in range(8):
                e(f"v_sub_f32 v{X[8*b+k]}, v{X[8*b+k]}, v{16+b}")
            e(f"v_mul_f32 v{18+b}, v{X[8*b]}, v{X[8*b]}")
            for k in range(1, 8):
                e(f"v_fmac_f32 v{18+b}, v{X[8*b+k]}, v{X[8*b+k]}")
        self.allred(["v18", "v19"], "v_add_f32", ["v20", "v21"], [1, 2, 4, 8, 16, 32])
        e(f"v_cmp_eq_u32 vcc, 1, v10\nv_cndmask_b32 v16, v16, v17, vcc\nv_cndmask_b32 v18, v18, v19, vcc")
        e(f"v_mov_b32 v19, {f32(1e-5)}\nv_fmac_f32 v19, {f32(1/512)}, v18\nv_rsq_f32 v19, v19")
        for k in range(4):
            e(f"v_lshlrev_b32 v{X[2*k]}, 16, v{24+k}\nv_and_b32 v{X[2*k+1]}, 0xffff0000, v{24+k}")
        for k in range(8):
            e(f"v_sub_f32 v{X[k]}, v{X[k]}, v16\nv_mul_f32 v{X[k]}, v{X[k]}, v19")
        e(f"v_cvt_pk_bf16_f32 v20, v{X[0]}, v{X[2]}\nv_cvt_pk_bf16_f32 v21, v{X[1]}, v{X[3]}\nv_cvt_pk_bf16_f32 v22, v{X[4]}, v{X[6]}\nv_cvt_pk_bf16_f32 v23, v{X[5]}, v{X[7]}")
        e(f"v_mov_b32 v6, 0x3f803f80\nv_cmp_eq_u32 vcc, 8, {vC}")
        for k in range(4):
            e(f"v_cndmask_b32 v{XOP+k}, v{20+k}, v6, vcc")
        e(f"v_lshlrev_b32 v28, 16, v28\nv_lshlrev_b32 v29, 16, v29\nv_mul_f32 {vX8a}, 0.125, v28\nv_mul_f32 {vX8b}, 0.125, v29".replace("0.125", f32(0.125)))
        e("s_waitcnt lgkmcnt(0)")
        self.tags()
        e(f"s_lshl_b32 {sA}, {sJ}, 4\ns_load_dwordx4 {sXC}, s[{S_DBG}:{S_DBG+1}], {sA}")
        e(f"s_mul_i32 {sXCC}, {sXCC}, 0x01010101")
        e("s_waitcnt vmcnt(4)\ns_barrier")
        self.stamp(2)
        for t in range(4):
            e(f"ds_read_b64_tr_b16 {R(WQ+4*t,2)}, v31 offset:{A_WQ+32*t}\nds_read_b64_tr_b16 {R(WQ+4*t+2,2)}, v31 offset:{A_WQ+32*t+8448}")

        def plaincheck():
            e(f"s_mov_b32 {sPLAIN}, 0")
            l = self.lab("pc")
            for k in range(4):
                e(f"s_cmp_lg_u32 s{72+k}, {sXCC}\ns_cbranch_scc1 {l}")
            e(f"s_mov_b32 {sPLAIN}, 1\n{l}:")
        e("s_waitcnt lgkmcnt(0)")
        plaincheck()

        for L in range(2):
            for t in range(4):
                self.mfma(8 + 4 * t, XOP, WQ + 4 * t)
            if L == 1:
                for k in range(4):
                    e(f"v_lshlrev_b32 v{224+2*k}, 16, v{XOP+k}\nv_and_b32 v{225+2*k}, 0xffff0000, v{XOP+k}")
                e("v_add_f32 v232, v224, v225\nv_mul_f32 v233, v224, v224")
                for k in range(1, 8):
                    if k > 1:
                        e(f"v_add_f32 v232, v232, v{224+k}")
                    e(f"v_fmac_f32 v233, v{224+k}, v{224+k}")
            for t in range(4):
                e(f"v_bfi_b32 v{24+t}, {sFF}, {vT}, v{8+4*t}")
            if L == 0:
                self.store_intra(f"buffer_store_dwordx4 v[24:27], {aI0ST0}, {srd(S_WS)}, 0 offen")
            else:
                e(f"s_mov_b32 {sB}, {I0R(1)-I0R(0)}")
                self.store_intra(f"buffer_store_dwordx4 v[24:27], {aI0ST1}, {srd(S_WS)}, {sB} offen")
                self.allred(["v232", "v233"], "v_add_f32", ["v234", "v235"], [16, 32])
                e(f"v_mov_b32 v234, {vT}\nv_mov_b32 v235, {vT}")
                self.store_intra(f"buffer_store_dwordx4 v[232:235], {aSTST}, {srd(S_WS)}, 0 offen")
            self.stamp(3 if L == 0 else 8)
            if L == 0:
                l = self.lab("nk")
                e(f"s_waitcnt vmcnt(1)\ns_barrier\ns_cmp_ge_u32 {sW}, 2\ns_cbranch_scc1 {l}")
                e(f"s_mul_i32 {sA}, {sW}, {16*1056}\nv_mul_u32_u24 v6, 1056, {vC}\nv_lshl_add_u32 v6, {vG}, 4, v6\nv_add_u32 v6, {sA}, v6")
                for t in range(4):
                    for u in range(4):
                        e(f"ds_read_b128 {R(WUK+16*t+4*u,4)}, v6 offset:{A_WUK+t*256+u*64}")
                e(f"{l}:")
            l = self.lab("i0")
            e(f"s_mov_b32 {sA}, {I0R(L)}\ns_mov_b32 {sB}, {I0R(L)+32768}")
            e(f"{l}:")
            self.guard()
            e(f"buffer_load_dwordx4 v[8:11], {aI0LD}, {srd(S_WS)}, {sA} offen sc1\nbuffer_load_dwordx4 v[12:15], {aI0LD}, {srd(S_WS)}, {sB} offen sc1")
            if L == 1:
                e(f"buffer_load_dwordx4 v[16:19], {aSTLD}, {srd(S_WS)}, 0 offen sc1")
            e("s_waitcnt vmcnt(0)")
            if L == 1:
                e(f"v_xor_b32 v7, {vT}, v18\nv_bitop3_b32 v7, v19, {vT}, v7 bitop3:0xbe\nv_cmp_ne_u32 s[66:67], 0, v7")
            self.check(list(range(8, 16)), sT, sFF, "v6")
            if L == 1:
                e("s_or_b64 vcc, vcc, s[66:67]")
            e(f"s_cbranch_vccnz {l}")
            if L == 1:
                self.canary_set(1, aCAN)
            for k in range(4):
                e(f"v_add_f32 v{8+k}, v{8+k}, v{12+k}")
            if L == 1:
                self.allred(["v16", "v17"], "v_add_f32", [], [1, 2, 4, 8])
            e("v_permlane32_swap_b32 v8, v10\nv_permlane32_swap_b32 v9, v11\nv_add_f32 v8, v8, v10\nv_add_f32 v9, v9, v11")
            if L == 1:
                e(f"v_mul_f32 v16, {f32(1/512)}, v16\nv_mov_b32 v18, {f32(1e-5)}\nv_fmac_f32 v18, {f32(1/512)}, v17\nv_fma_f32 v18, -v16, v16, v18\nv_rsq_f32 v18, v18")
            e("v_permlane16_swap_b32 v8, v9\nv_add_f32 v8, v8, v9")
            e("v_add_f32_dpp v8, v8, v8 row_ror:8 row_mask:0xf bank_mask:0xf")
            if L == 1:
                e(f"v_fma_f32 v8, -v16, {vCS}, v8\nv_mul_f32 v8, v8, v18")
            e(f"v_cvt_pk_bf16_f32 v8, v8, v8\nds_write_b16 {aQW}, v8")
            self.bar()
            l = self.lab("p1b")
            e(f"s_cmp_ge_u32 {sW}, 2\ns_cbranch_scc1 {l}")
            for u in range(4):
                e(f"ds_read_b128 {R(8+4*u,4)}, {aQR} offset:{u*64}")
            e(f"s_mov_b32 {sA}, {S1R(L)}\ns_mov_b32 {sB}, {f32(128**-0.5*math.log2(math.e))}")
            for u in range(4):
                e(f"s_waitcnt lgkmcnt({3-u})")
                for t in range(4):
                    self.mfma(224 + 4 * t, 8 + 4 * u, WUK + 16 * t + 4 * u, None if u == 0 else 224 + 4 * t)
            for t in range(4):
                e(f"v_mul_f32 v{24+t}, {sB}, v{224+4*t}")
            self.packtag("v8", "v24", "v25", "v10", "v11")
            self.packtag("v9", "v26", "v27", "v12", "v13")
            e(f"buffer_store_dwordx2 v[8:9], {aS1ST}, {srd(S_WS)}, {sA} offen sc1")
            e(f"{l}:")
            self.stamp(4 if L == 0 else 9)
            if L == 0:
                e(f"v_mov_b32 v8, 0\nv_mov_b32 v9, 0\nv_mov_b32 v10, 0\nv_mov_b32 v11, 0\ns_mov_b64 exec, {sMASK}\ns_not_b64 exec, exec")
                e(f"ds_write_b128 {aXRW}, v[8:11]\ns_mov_b64 exec, -1")
                if o["adelay"]:
                    e(f"s_sleep {o['adelay']}")
                e(f"s_mul_i32 {sC}, {sW}, 4224")
                for q in range(4):
                    e(f"s_mov_b32 {sA}, {q*32768}\ns_add_u32 m0, {sC}, {A_WUV + q*1056}\nbuffer_load_dwordx4 {aWROW}, {srd(S_WUV)}, {sA} offen lds")
                e("s_barrier")
                e(f"s_lshl_b32 {sA}, {sJ}, 19\ns_lshl_b32 {sB}, {sW}, 16\ns_add_u32 {sA}, {sA}, {sB}\ns_lshl_b32 {sB}, {sI}, 6\ns_add_u32 {sA}, {sA}, {sB}")
                e(f"v_lshrrev_b32 v6, 2, {vL}\nv_lshlrev_b32 v6, 10, v6\nv_and_b32 v15, 3, {vL}\nv_lshl_add_u32 v6, v15, 4, v6\nv_add_u32 v6, {sA}, v6\ns_lshl_b32 {sC}, {sW}, 12")
                for q in range(4):
                    e(f"s_mov_b32 {sA}, {q*16384}\ns_add_u32 m0, {sC}, {A_WO + q*1024}\nbuffer_load_dwordx4 v6, {srd(S_WO)}, {sA} offen lds")
                for k in range(3):
                    e(f"v_mov_b32 v{8+k}, {PRET2[k]}\nbuffer_load_dword v{8+k}, v{8+k}, {srd(S_WS)}, 0 offen")
                e(f"s_lshl_b32 {sA}, {sJ}, 4\ns_load_dwordx4 {sXC}, s[{S_DBG}:{S_DBG+1}], {sA} glc")
                l = self.lab("cs")
                e(f"s_mov_b32 {sB}, 16384\n{l}:")
                self.guard()
                e(f"buffer_load_dwordx4 v[8:11], {aCSLD}, {srd(S_WS)}, 0 offen sc1\nbuffer_load_dwordx4 v[12:15], {aCSLD}, {srd(S_WS)}, {sB} offen sc1\ns_waitcnt vmcnt(0)")
                self.check(list(range(8, 16)), sT, sFF, "v6")
                e(f"s_cbranch_vccnz {l}")
                for k in range(4):
                    e(f"v_add_f32 v{8+k}, v{8+k}, v{12+k}")
                e("v_permlane32_swap_b32 v8, v10\nv_permlane32_swap_b32 v9, v11\nv_add_f32 v8, v8, v10\nv_add_f32 v9, v9, v11")
                e(f"v_permlane16_swap_b32 v8, v9\nv_add_f32 v8, v8, v9\nv_add_f32_dpp {vCS}, v8, v8 row_ror:8 row_mask:0xf bank_mask:0xf")
                e("s_waitcnt lgkmcnt(0)")
                l = self.lab("pk")
                e(f"s_cmp_eq_u32 {sPLAIN}, 1\ns_cbranch_scc1 {l}")
                plaincheck()
                e(f"{l}:\ns_barrier")
                e(f"v_and_b32 v15, 3, {vL}\nv_bfe_u32 v14, {vL}, 2, 2\nv_lshrrev_b32 v6, 1, {vG}\nv_lshl_add_u32 v6, v14, 2, v6\nv_mul_u32_u24 v6, 1056, v6\nv_and_b32 v7, 1, {vG}\nv_lshl_add_u32 v6, v7, 9, v6")
                e(f"s_lshl_b32 {sA}, {sW}, 5\ns_add_u32 {sA}, {sA}, {A_WUV}\nv_lshl_add_u32 v6, v15, 3, v6\nv_add_u32 v6, {sA}, v6")
                for u in range(4):
                    off = (16 * (u >> 1) + 2 * (u & 1)) * 1056
                    e(f"ds_read_b64_tr_b16 {R(WUV+4*u,2)}, v6 offset:{off}\nds_read_b64_tr_b16 {R(WUV+4*u+2,2)}, v6 offset:{off+256}")
                e(f"v_lshl_add_u32 v6, {vG}, 3, v14\nv_lshlrev_b32 v6, 6, v6\nv_lshl_add_u32 v6, v15, 3, v6\ns_lshl_b32 {sA}, {sW}, 12\ns_add_u32 {sA}, {sA}, {A_WO}\nv_add_u32 v6, {sA}, v6")
                for t in range(2):
                    for u in range(2):
                        off = u * 2048 + t * 32
                        e(f"ds_read_b64_tr_b16 {R(WO+8*t+4*u,2)}, v6 offset:{off}\nds_read_b64_tr_b16 {R(WO+8*t+4*u+2,2)}, v6 offset:{off+256}")
            else:
                e(f"ds_read_b32 {vX8a}, {aXSR}\nds_read_b32 {vX8b}, {aXSR} offset:64\ns_waitcnt lgkmcnt(0)")
                e(f"v_mul_f32 {vX8a}, {f32(0.125)}, {vX8a}\nv_mul_f32 {vX8b}, {f32(0.125)}, {vX8b}")
            self.canary_wait(2 + L, o["d_s2"])
            l, l0, l1 = self.lab("s2"), self.lab("s2w"), self.lab("s2x")
            e(f"s_mov_b32 {sA}, {S2R(L)}\ns_mov_b32 {sB}, {LSE(L)}\ns_cmp_eq_u32 {sW}, 0\ns_cbranch_scc1 {l0}")
            e(f"{l}:")
            self.guard()
            e(f"buffer_load_dwordx4 v[8:11], {aS2LD}, {srd(S_WS)}, {sA} offen sc1\nbuffer_load_dwordx4 v[12:15], {aS2LD}, {srd(S_WS)}, {sA} offen offset:1024 sc1\ns_waitcnt vmcnt(0)")
            self.check(list(range(8, 16)), sP, sM, "v6")
            e(f"s_cbranch_vccnz {l}")
            e(f"ds_write_b128 {aOSW}, v[8:11] offset:{A_OS}\nds_write_b128 {aOSW}, v[12:15] offset:{A_OS+4*288}\ns_branch {l1}")
            e(f"{l0}:")
            self.guard()
            e(f"buffer_load_dwordx2 v[16:17], {aLSE}, {srd(S_WS)}, {sB} offen sc1")
            e(f"buffer_load_dwordx4 v[8:11], {aS2LD}, {srd(S_WS)}, {sA} offen sc1\nbuffer_load_dwordx4 v[12:15], {aS2LD}, {srd(S_WS)}, {sA} offen offset:1024 sc1\ns_waitcnt vmcnt(0)")
            e(f"v_cmp_ne_u32 s[66:67], v17, {vT}")
            self.check(list(range(8, 16)), sP, sM, "v6")
            e(f"s_or_b64 vcc, vcc, s[66:67]\ns_cbranch_vccnz {l0}")
            e(f"ds_write_b128 {aOSW}, v[8:11] offset:{A_OS}\nds_write_b128 {aOSW}, v[12:15] offset:{A_OS+4*288}")
            e("v_mov_b32 v18, v16")
            self.allred(["v18"], "v_max_f32", ["v19"], [1, 2, 4, 8, 16])
            e("v_sub_f32 v16, v16, v18\nv_exp_f32 v16, v16\ns_nop 0\nv_mov_b32 v18, v16")
            self.allred(["v18"], "v_add_f32", ["v19"], [1, 2, 4, 8, 16])
            e(f"v_rcp_f32 v18, v18\ns_nop 0\nv_mul_f32 v16, v16, v18\nv_cvt_pk_bf16_f32 v16, v16, v16\nds_write_b16 {aWW}, v16")
            e(f"{l1}:")
            self.stamp(5 if L == 0 else 10)
            self.bar()
            e(f"ds_read_b128 v[8:11], {aWA0}\nds_read_b64_tr_b16 v[16:17], {aOTR} offset:{A_OS}\nds_read_b64_tr_b16 v[18:19], {aOTR} offset:{A_OS+4608}")
            e(f"ds_read_b128 v[12:15], {aWA1}\nds_read_b64_tr_b16 v[20:21], {aOTR} offset:{A_OS+9216}\nds_read_b64_tr_b16 v[22:23], {aOTR} offset:{A_OS+13824}")
            e("s_waitcnt lgkmcnt(3)")
            self.mfma(24, 8, 16)
            e("s_waitcnt lgkmcnt(0)")
            self.mfma(24, 12, 20, 24)
            e(f"s_mov_b32 {sB}, {I1R(L)}")
            e(f"v_cvt_pk_bf16_f32 v8, v24, v24\nds_write_b16 {aCCW}, v8")
            self.bar()
            for u in range(4):
                e(f"ds_read_b128 {R(8+4*u,4)}, {aCCR} offset:{u*64}")
            for u in range(4):
                e(f"s_waitcnt lgkmcnt({3-u})")
                self.mfma(24, 8 + 4 * u, WUV + 4 * u, None if u == 0 else 24)
            e(f"v_bfi_b32 v8, {sFF}, {vT}, v24")
            self.store_intra(f"buffer_store_dword v8, {aI1ST}, {srd(S_WS)}, {sB} offen")
            l = self.lab("i1")
            e(f"{l}:")
            self.guard()
            e(f"buffer_load_dwordx4 v[8:11], {aI1LD}, {srd(S_WS)}, {sB} offen sc1\nbuffer_load_dwordx4 v[12:15], {aI1LD}, {srd(S_WS)}, {sB} offen offset:256 sc1\ns_waitcnt vmcnt(0)")
            self.check(list(range(8, 16)), sT, sFF, "v6")
            e(f"s_cbranch_vccnz {l}")
            self.canary_set(4 + L, aCAN)
            for k in range(4):
                e(f"v_permlane32_swap_b32 v{8+k}, v{12+k}")
            for k in range(4):
                e(f"v_add_f32 v{8+k}, v{8+k}, v{12+k}")
            e("v_permlane16_swap_b32 v8, v10\nv_permlane16_swap_b32 v9, v11\nv_add_f32 v8, v8, v10\nv_add_f32 v9, v9, v11")
            e(f"v_cvt_pk_bf16_f32 v8, v8, v9\nds_write_b32 {aCTW}, v8\ns_waitcnt lgkmcnt(0)")
            e(f"ds_read_b128 v[8:11], {aCTR}\nds_read_b128 v[12:15], {aCTR} offset:64\ns_waitcnt lgkmcnt(1)")
            self.mfma(16, 8, WO)
            self.mfma(20, 8, WO + 8)
            e("s_waitcnt lgkmcnt(0)")
            self.mfma(16, 12, WO + 4, 16)
            self.mfma(20, 12, WO + 12, 20)
            e(f"v_mov_b32 v17, v20\nds_write_b64 {aRRW}, v[16:17]")
            self.bar()
            l = self.lab("fin")
            e(f"s_cmp_lg_u32 {sW}, 0\ns_cbranch_scc1 {l}")
            for k in range(8):
                e(f"ds_read_b64 {R(8+2*k,2)}, {aRRR} offset:{k*256}")
            e(f"s_mov_b32 {sA}, {S3R(L)}")
            for k in range(8):
                e(f"s_waitcnt lgkmcnt({7-k})")
                e(f"v_add_f32 v24, {vX8a if k == 0 else 'v24'}, v{8+2*k}\nv_add_f32 v25, {vX8b if k == 0 else 'v25'}, v{9+2*k}")
            self.packtag("v8", "v24", "v25", "v10", "v11")
            e(f"buffer_store_dword v8, {aS3ST}, {srd(S_WS)}, {sA} offen sc1")
            e(f"{l}:")
            self.stamp(6 if L == 0 else 11)
            if L == 1:
                l = self.lab("ex")
                e(f"s_and_b32 {sA}, {sI}, 7\ns_cmp_eq_u32 {sA}, {sJ}\ns_cbranch_scc1 {l}")
                self.dump_stamps()
                e(f"s_endpgm\n{l}:")
            e(f"s_mov_b32 {sB}, {S45(L)}\ns_cmp_eq_u32 {sW}, 6\ns_cselect_b32 {sB}, {S3R(L) - 48*2048}, {sB}")
            self.canary_wait(6 + L, o["d_s45"])
            l, l2 = self.lab("s45"), self.lab("s45n")
            e(f"s_mov_b64 exec, {sMASK}\ns_cbranch_execz {l2}")
            e(f"{l}:")
            self.guard()
            e(f"buffer_load_dwordx4 v[8:11], {aXLD}, {srd(S_WS)}, {sB} offen sc1\ns_waitcnt vmcnt(0)")
            self.check(list(range(8, 12)), sP, sM, "v6")
            e(f"s_cbranch_vccnz {l}")
            e(f"ds_write_b128 {aXRW}, v[8:11]")
            e(f"{l2}:\ns_mov_b64 exec, -1")
            if L == 0:
                self.stamp(7)
            self.bar()
            if L == 1:
                l = self.lab("ow")
                e(f"s_cmp_eq_u32 {sW}, 0\ns_cbranch_scc1 {l}")
                self.dump_stamps()
                e(f"s_endpgm\n{l}:")
            for u in range(2):
                for T in range(4):
                    off = u * 5120 + 32 * T
                    e(f"ds_read_b64_tr_b16 {R(208+16*u+4*T,2)}, {aXTR} offset:{off}\nds_read_b64_tr_b16 {R(210+16*u+4*T,2)}, {aXTR} offset:{off+2560}")
            n = 0
            for u in range(2):
                for T in range(4):
                    n += 1
                    e(f"s_waitcnt lgkmcnt({min(15, 16-2*n)})")
                    d = 24 + 4 * (T & 1)
                    self.mfma(d, 208 + 16 * u + 4 * T, SEL0 if T < 2 else SEL4, None if (u == 0 and T < 2) else d)
            if L == 0:
                for k in range(4):
                    e(f"v_cvt_pk_bf16_f32 v{XOP+k}, v{24+2*k}, v{25+2*k}")
                for hf in range(2):
                    for r in range(4):
                        e(f"ds_write_b32 {aXSW}, v{24+4*hf+r} offset:{(16*(r&1)+(r>>1)+8*hf)*4}")
            else:
                e("v_cvt_pk_bf16_f32 v8, v24, v26\nv_cvt_pk_bf16_f32 v9, v25, v27\nv_cvt_pk_bf16_f32 v10, v28, v30\nv_cvt_pk_bf16_f32 v11, v29, v31")
                for k, off in enumerate((0, 32, 16, 48)):
                    e(f"buffer_store_dword v{8+k}, {aOUT}, {srd(S_OUT)}, 0 offen offset:{off}")
                e(f"s_mov_b32 {sA}, {-CAN & 0xffffffff}\nv_add_u32 v6, {sA}, {aCAN}\nbuffer_store_dword {vT}, v6, {srd(S_WS)}, 0 offen sc1")
                self.dump_stamps()
                e("s_endpgm")

    def roleB(self):
        e, o = self.e, self.o
        CS_, CP, FG, FD = 32, 96, 160, 192
        (aS1LD, aQAW, aQAR, aMXW, aMXR, aPW, aPR, aBP, aS2ST, aLSEST, aCAN, aS3LD, aXPW, aXPR0, aXPR1, aRBW, aRBR, aRBC,
         aSTW, aSTR, aHW, aHR, aS45) = ["v%d" % (208 + k) for k in range(23)]
        vCG, vCU = "v231", "v232"
        ONE = 233
        sB_, sHG, sSP, sF = "s68", "s69", "s76", "s77"
        for b, slot in ((S_CKV, 1), (S_WG, 7), (S_WU, 8), (S_WD, 9)):
            e(f"s_load_dwordx2 s[{b}:{b+1}], s[0:1], {slot*8}")
        self.common_ids()
        e(f"s_sub_u32 {sI}, {sI}, 16\ns_sub_u32 {sF}, s2, 128")
        e(f"s_lshr_b32 {sB_}, {sJ}, 2\ns_and_b32 {sHG}, {sI}, 1\ns_and_b32 {sA}, {sJ}, 3\ns_lshl_b32 {sA}, {sA}, 3\ns_lshr_b32 {sSP}, {sI}, 1\ns_add_u32 {sSP}, {sSP}, {sA}")
        l = self.lab("np")
        e(f"s_cmp_lg_u32 {sI}, 0\ns_cbranch_scc1 {l}")
        e(f"s_getpc_b64 s[72:73]\nL_pc:\ns_sub_u32 s72, s72, L_pc-{NAME}_kernel\ns_subb_u32 s73, s73, 0")
        e(f"v_lshlrev_b32 v6, 6, v0\nv_min_u32 v6, L_code_end-{NAME}_kernel-4, v6\nglobal_load_dword v255, v6, s[72:73]")
        e(f"{l}:")
        e(f"v_lshlrev_b32 v7, 4, {vL}\nv_mov_b32 v13, {OOB}\nv_mov_b32 v12, {B_DUM}")
        vr, vq = "v14", "v15"
        e(f"v_bfe_u32 {vr}, {vL}, 2, 2\nv_and_b32 {vq}, 3, {vL}")
        e(f"s_lshl_b32 {sA}, {sB_}, 22\ns_lshl_b32 {sB}, {sSP}, 17\ns_add_u32 {sA}, {sA}, {sB}\ns_lshl_b32 {sB}, {sW}, 14\ns_add_u32 {sA}, {sA}, {sB}\nv_add_u32 v31, {sA}, v7")
        e("s_waitcnt lgkmcnt(0)")
        self.stamp(1)
        e(f"s_load_dword {sT}, s[{S_WS}:{S_WS+1}], 0")
        for b, sz in ((S_CKV, 8 << 20), (S_WS, 0x10000000), (S_WG, 1409024), (S_WU, 1409024), (S_WD, 1409024)):
            self.fin_srd(b, sz)
        for k, a in enumerate((PRET,) + PRET2):
            e(f"v_mov_b32 v{16+k}, {a}\nbuffer_load_dword v{16+k}, v{16+k}, {srd(S_WS)}, 0 offen")
        e(f"s_lshl_b32 {sA}, {sB_}, 15\ns_lshl_b32 {sB}, {sHG}, 14\ns_add_u32 {sA}, {sA}, {sB}\ns_lshl_b32 {sB}, {sW}, 11\ns_add_u32 {sA}, {sA}, {sB}\nv_add_u32 {aS1LD}, {sA}, v7")
        e(f"s_mul_i32 {sA}, {sW}, 2112\ns_add_u32 {sA}, {sA}, {B_QA}\nv_add_u32 {aQAW}, {sA}, v7")
        e(f"v_lshlrev_b32 v11, 4, {vG}\nv_mul_u32_u24 v6, 1056, {vC}\nv_add_u32 v6, v6, v11\nv_add_u32 {aQAR}, {B_QA}, v6")
        e(f"s_mul_i32 {sA}, {sW}, {16*1056}\nv_add_u32 v30, {sA}, v6")
        e(f"v_lshlrev_b32 v6, 5, {vC}\nv_add_u32 {aMXR}, {B_MX}, v6\ns_lshl_b32 {sA}, {sW}, 2\nv_add_u32 {aMXW}, {sA}, {aMXR}")
        e(f"v_mul_u32_u24 v6, 288, {vC}\nv_add3_u32 v6, v6, v11, 0\nv_add_u32 {aPR}, {B_P}, v6")
        e(f"s_lshr_b32 {sA}, {sW}, 1\ns_lshl_b32 {sA}, {sA}, 6\ns_and_b32 {sB}, {sW}, 1\ns_lshl_b32 {sC}, {sB}, 3\ns_add_u32 {sA}, {sA}, {sC}\nv_add_u32 {aPW}, {sA}, {aPR}")
        e(f"v_mov_b32 {aBP}, v11")
        e(f"s_lshl_b32 {sA}, {sHG}, 20\ns_lshr_b32 {sC}, {sW}, 1\ns_lshl_b32 {sC}, {sC}, 14\ns_add_u32 {sA}, {sA}, {sC}\ns_lshl_b32 {sC}, {sB_}, 13\ns_add_u32 {sA}, {sA}, {sC}")
        e(f"s_lshl_b32 {sC}, {sSP}, 8\ns_add_u32 {sA}, {sA}, {sC}\ns_lshl_b32 {sC}, {sB}, 7\ns_add_u32 {sA}, {sA}, {sC}")
        e(f"v_lshlrev_b32 v6, 18, {vG}\nv_lshl_add_u32 v6, {vC}, 3, v6\nv_add_u32 {aS2ST}, {sA}, v6")
        e(f"s_lshl_b32 {sA}, {sB_}, 1\ns_add_u32 {sA}, {sA}, {sHG}\ns_lshl_b32 {sA}, {sA}, 5\ns_add_u32 {sA}, {sA}, {sSP}\ns_lshl_b32 {sA}, {sA}, 7\nv_lshlrev_b32 v6, 3, v0\nv_add_u32 v6, {sA}, v6")
        self.sel(aLSEST, "v_cmp_gt_u32 vcc, 16, v0", "v13", "v6")
        e(f"s_lshl_b32 {sA}, {sF}, 9\nv_add_u32 v6, {sA}, v0\nv_mov_b32 v8, {CAN}")
        self.sel(aCAN, "v_cmp_eq_u32 vcc, 0, v6", "v13", "v8")
        e(f"s_lshl_b32 {sA}, {sW}, 8\nv_lshlrev_b32 v6, 11, {vG}\nv_lshl_add_u32 v6, {vC}, 4, v6\nv_add_u32 {aS3LD}, {sA}, v6")
        e(f"v_bfe_u32 v10, {vC}, 2, 1\ns_add_u32 {sB}, {sA}, {B_XP}\nv_lshlrev_b32 v6, 7, v10\nv_add_u32 v6, {sB}, v6\nv_add_u32 {aXPR1}, v6, v11")
        e(f"v_lshrrev_b32 v8, 3, {vC}\nv_lshl_add_u32 v6, v8, 6, v6\nv_lshl_add_u32 v6, {vq}, 4, v6\nv_lshl_add_u32 {aXPW}, {vG}, 2, v6")
        e(f"v_mov_b32 v6, {B_ONES}")
        self.sel(aXPR0, f"v_cmp_eq_u32 vcc, 8, {vC}", aXPR1, "v6")
        e(f"s_mul_i32 {sB}, {sW}, 768\ns_add_u32 {sB}, {sB}, {B_RB}\nv_add_u32 v6, {sB}, v7")
        self.sel(aRBW, f"v_cmp_gt_u32 vcc, 48, {vL}", "v12", "v6")
        e(f"v_and_b32 v8, 1, {vG}\nv_lshlrev_b32 v8, 3, v8\nv_lshl_add_u32 v8, {vC}, 4, v8\nv_add_u32 {aRBC}, {B_RB+512}, v8")
        e(f"v_lshrrev_b32 v9, 5, {vL}\nv_lshl_add_u32 v8, v9, 8, v8\nv_add_u32 {aRBR}, {B_RB}, v8")
        e(f"v_lshlrev_b32 v6, 6, v9\nv_add_u32 {aSTR}, {B_ST}, v6")
        e(f"s_lshl_b32 {sB}, {sW}, 3\ns_add_u32 {sB}, {sB}, {B_ST}\nv_lshlrev_b32 v6, 4, {vL}\nv_add_u32 v6, {sB}, v6\nv_and_b32 v8, 0xfffffffb, {vL}")
        self.sel(aSTW, "v_cmp_eq_u32 vcc, 0, v8", "v12", "v6")
        e(f"s_lshl_b32 {sB}, {sW}, 7\ns_add_u32 {sB}, {sB}, {B_H}\nv_lshlrev_b32 v6, 1, {vL}\nv_add_u32 {aHW}, {sB}, v6")
        e(f"v_lshl_add_u32 v6, v10, 6, v11\nv_add_u32 {aHR}, {sB}, v6")
        e(f"s_lshl_b32 {sB}, {sF}, 11\ns_add_u32 {sB}, {sB}, {sA}\nv_lshlrev_b32 v6, 2, {vL}\nv_add_u32 {aS45}, {sB}, v6")
        e(f"v_mov_b32 v8, 0x3f803f80\nv_add_u32 v6, {B_ONES}, v6\nds_write_b32 v6, v8")
        e(f"v_lshrrev_b32 v6, 2, {vL}\nv_mul_u32_u24 v6, 1056, v6\nv_lshl_add_u32 v6, {vq}, 3, v6\ns_lshl_b32 {sA}, {sW}, 7\nv_add_u32 v28, {sA}, v6\nv_add_u32 v29, {64*1056}, v28")
        e("s_waitcnt lgkmcnt(0)")
        self.tags()
        if o["bdelay"]:
            e(f"s_sleep {o['bdelay']}")
        e(f"s_mul_i32 {sC}, {sW}, {16*1056}\ns_lshl_b32 {sD}, {sHG}, 13")
        for q in range(16):
            if q == 8:
                e("s_barrier")
            e(f"s_add_u32 {sA}, {sD}, {q*1024}\ns_and_b32 {sA}, {sA}, 0x3fff\ns_add_u32 m0, {sC}, {B_CKV + q*1056}\nbuffer_load_dwordx4 v31, {srd(S_CKV)}, {sA} offen lds")
        self.stamp(2)
        for L in range(2):
            if L == 1:
                self.canary_wait(1, o["d_s1"])
            l = self.lab("s1")
            e(f"s_mov_b32 {sA}, {S1R(L)}")
            if L == 0:
                e(f"buffer_load_dwordx4 v[8:11], {aS1LD}, {srd(S_WS)}, {sA} offen sc1\nbuffer_load_dwordx4 v[12:15], {aS1LD}, {srd(S_WS)}, {sA} offen offset:1024 sc1\ns_waitcnt vmcnt(2)")
                self.stamp(3)
                for u in range(16):
                    e(f"ds_read_b128 {R(CS_+4*u,4)}, v30 offset:{B_CKV+u*64}")
                l2 = self.lab("s1f")
                e(f"s_branch {l2}")
            e(f"{l}:")
            self.guard()
            e(f"buffer_load_dwordx4 v[8:11], {aS1LD}, {srd(S_WS)}, {sA} offen sc1\nbuffer_load_dwordx4 v[12:15], {aS1LD}, {srd(S_WS)}, {sA} offen offset:1024 sc1")
            if L == 0:
                e(f"{l2}:")
            e("s_waitcnt vmcnt(0)")
            self.check(list(range(8, 16)), sP, sM, "v6")
            e(f"s_cbranch_vccnz {l}")
            e(f"ds_write_b128 {aQAW}, v[8:11]\nds_write_b128 {aQAW}, v[12:15] offset:1056")
            self.stamp(4 if L == 0 else 8)
            self.bar()
            for u in range(4):
                e(f"ds_read_b128 {R(8+4*u,4)}, {aQAR} offset:{u*64}")
            for u in range(16):
                e(f"s_waitcnt lgkmcnt({min(3, 15-u)})")
                self.mfma(24, CS_ + 4 * u, 8 + 4 * (u & 3), None if u == 0 else 24)
                if u + 4 < 16:
                    e(f"ds_read_b128 {R(8+4*(u&3),4)}, {aQAR} offset:{(u+4)*64}")
            if L == 0:
                for u in range(4):
                    for t in range(4):
                        base, off = ("v28", u * 32 * 1056) if u < 2 else ("v29", (u - 2) * 32 * 1056)
                        e(f"ds_read_b64_tr_b16 {R(CP+16*u+4*t,2)}, {base} offset:{off+32*t}\nds_read_b64_tr_b16 {R(CP+16*u+4*t+2,2)}, {base} offset:{off+32*t+16*1056}")
            e("v_max3_f32 v8, v24, v25, v26\nv_max_f32 v8, v8, v27")
            self.allred(["v8"], "v_max_f32", ["v9"], [16, 32])
            e(f"ds_write_b32 {aMXW}, v8")
            self.bar()
            self.canary_set(2 + L, aCAN)
            e(f"ds_read_b128 v[8:11], {aMXR}\nds_read_b128 v[12:15], {aMXR} offset:16\ns_waitcnt lgkmcnt(0)")
            e("v_max3_f32 v8, v8, v9, v10\nv_max3_f32 v12, v12, v13, v14\nv_max3_f32 v8, v8, v11, v15\nv_max_f32 v20, v8, v12")
            for r in range(4):
                e(f"v_sub_f32 v{24+r}, v{24+r}, v20")
            for r in range(4):
                e(f"v_exp_f32 v{24+r}, v{24+r}")
            e("v_cvt_pk_bf16_f32 v8, v24, v25\nv_cvt_pk_bf16_f32 v9, v26, v27")
            e(f"ds_write_b64 {aPW}, v[8:9]")
            e("v_add_f32 v10, v24, v25\nv_add_f32 v11, v26, v27\nv_add_f32 v10, v10, v11")
            self.allred(["v10"], "v_add_f32", ["v11"], [16, 32])
            e(f"ds_write_b32 {aMXW}, v10 offset:512")
            self.bar()
            PA = 236
            for u in range(4):
                e(f"ds_read_b128 {R(PA+4*u,4)}, {aPR} offset:{u*64}")
            e(f"ds_read_b128 v[8:11], {aMXR} offset:512\nds_read_b128 v[12:15], {aMXR} offset:528")
            D = [16, 24, 28, 252]
            for u in range(4):
                if u < 2:
                    e(f"s_waitcnt lgkmcnt({5-u})")
                for t in range(4):
                    self.mfma(D[t], PA + 4 * u, CP + 16 * u + 4 * t, None if u == 0 else D[t])
                if u == 1:
                    e("s_waitcnt lgkmcnt(0)")
                    e("v_add_f32 v8, v8, v9\nv_add_f32 v10, v10, v11\nv_add_f32 v12, v12, v13\nv_add_f32 v14, v14, v15\nv_add_f32 v8, v8, v10\nv_add_f32 v12, v12, v14\nv_add_f32 v8, v8, v12")
                    e("v_rcp_f32 v9, v8\nv_log_f32 v8, v8")
                    for r in range(4):
                        e(f"ds_bpermute_b32 v{12+r}, {aBP}, v9 offset:{4*r}")
                    e(f"v_add_f32 v22, v8, v20\nv_mov_b32 v23, {vT}\ns_mov_b32 {sA}, {LSE(L)}")
                    e(f"buffer_store_dwordx2 v[22:23], {aLSEST}, {srd(S_WS)}, {sA} offen sc1")
            e("s_waitcnt lgkmcnt(0)")
            for r in range(4):
                e(f"s_mov_b32 {sA}, {S2R(L) + r*65536}")
                for t in range(4):
                    e(f"v_mul_f32 v{D[t]+r}, v{D[t]+r}, v{12+r}")
                self.packtag(f"v{8+2*(r&1)}", f"v{D[0]+r}", f"v{D[1]+r}", "v6", "v7")
                self.packtag(f"v{9+2*(r&1)}", f"v{D[2]+r}", f"v{D[3]+r}", "v20", "v21")
                e(f"buffer_store_dwordx2 {R(8+2*(r&1),2)}, {aS2ST}, {srd(S_WS)}, {sA} offen sc1")
            self.stamp(5 if L == 0 else 9)
            lnf = self.lab("nf")
            e(f"s_cmp_ge_u32 {sF}, 43\ns_cbranch_scc1 {lnf}")
            if L == 0:
                e("s_barrier")
                e(f"v_lshrrev_b32 v6, 2, {vL}\ns_lshl_b32 {sA}, {sW}, 6\nv_add_u32 v6, {sA}, v6\nv_mul_u32_u24 v6, 2752, v6\nv_and_b32 v15, 3, {vL}\nv_lshl_add_u32 v6, v15, 4, v6\ns_lshl_b32 {sA}, {sF}, 6\nv_add_u32 v6, {sA}, v6")
                e(f"s_lshl_b32 {sC}, {sW}, 12")
                for sr, base in ((S_WG, B_FG), (S_WU, B_FU)):
                    for q in range(4):
                        e(f"s_mov_b32 {sA}, {q*16*2752}\ns_add_u32 m0, {sC}, {base + q*1024}\nbuffer_load_dwordx4 v6, {srd(sr)}, {sA} offen lds")
                e("s_barrier")
                e(f"v_lshrrev_b32 v6, 3, {vL}\nv_lshlrev_b32 v6, 10, v6\nv_and_b32 v7, 7, {vL}\nv_lshl_add_u32 v6, v7, 4, v6\ns_lshl_b32 {sA}, {sF}, 15\ns_lshl_b32 {sB}, {sW}, 7\ns_add_u32 {sA}, {sA}, {sB}\nv_add_u32 v6, {sA}, v6")
                for q in range(4):
                    e(f"s_mov_b32 {sA}, {q*8192}\ns_add_u32 m0, {sC}, {B_FD + q*1024}\nbuffer_load_dwordx4 v6, {srd(S_WD)}, {sA} offen lds")
                e(f"v_bfe_u32 v14, {vL}, 2, 2\nv_and_b32 v6, 1, v14\nv_lshlrev_b32 v6, 4, v6\nv_lshl_add_u32 v6, {vG}, 2, v6\nv_lshrrev_b32 v7, 1, v14\nv_add_u32 v6, v6, v7\nv_lshlrev_b32 v6, 6, v6\nv_lshl_add_u32 v6, v15, 3, v6\nv_add_u32 v6, {sC}, v6")
                e(f"v_lshl_add_u32 v7, {vG}, 3, v14\nv_lshlrev_b32 v7, 7, v7\nv_lshl_add_u32 v7, v15, 3, v7\nv_add_u32 v7, {sC}, v7\nv_add_u32 v7, {B_FD}, v7")
                e("s_waitcnt vmcnt(4)")
                for mi, base in enumerate((B_FG, B_FU)):
                    for tt in range(2):
                        for u in range(2):
                            rg = FG + 8 * (2 * tt + mi) + 4 * u
                            off = base + u * 2048 + 32 * tt
                            e(f"ds_read_b64_tr_b16 {R(rg,2)}, v6 offset:{off}\nds_read_b64_tr_b16 {R(rg+2,2)}, v6 offset:{off+128}")
                e("s_waitcnt vmcnt(0)")
                for tt in range(4):
                    e(f"ds_read_b64_tr_b16 {R(FD+4*tt,2)}, v7 offset:{32*tt}\nds_read_b64_tr_b16 {R(FD+4*tt+2,2)}, v7 offset:{32*tt+512}")
                self.stamp(6)
            self.canary_wait(4 + L, o["d_s3"])
            l = self.lab("s3")
            e(f"s_mov_b32 {sA}, {S3R(L)}\ns_mov_b32 {sB}, {S3R(L)+8192}")
            e(f"{l}:")
            self.guard()
            e(f"buffer_load_dwordx4 v[8:11], {aS3LD}, {srd(S_WS)}, {sA} offen sc1\nbuffer_load_dwordx4 v[12:15], {aS3LD}, {srd(S_WS)}, {sB} offen sc1\ns_waitcnt vmcnt(0)")
            self.check(list(range(8, 16)), sP, sM, "v6")
            e(f"s_cbranch_vccnz {l}")
            self.canary_set(6 + L, aCAN)
            self.stamp(7 if L == 0 else 10)
            for k in range(4):
                e(f"v_lshlrev_b32 v{16+2*k}, 16, v{8+k}\nv_and_b32 v{17+2*k}, 0xffff0000, v{8+k}\nv_lshlrev_b32 v{24+2*k}, 16, v{12+k}\nv_and_b32 v{25+2*k}, 0xffff0000, v{12+k}")
            for k in range(8):
                e(f"v_add_f32 v{16+k}, v{16+k}, v{24+k}")
            for k in range(4):
                e(f"v_permlane32_swap_b32 v{16+k}, v{20+k}")
            for k in range(4):
                e(f"v_add_f32 v{16+k}, v{16+k}, v{20+k}")
            e("v_permlane16_swap_b32 v16, v18\nv_permlane16_swap_b32 v17, v19\nv_add_f32 v16, v16, v18\nv_add_f32 v17, v17, v19")
            aXPR = aXPR0 if L == 0 else aXPR1
            e(f"v_cvt_pk_bf16_f32 v6, v16, v17\nds_write_b32 {aXPW}, v6\ns_waitcnt lgkmcnt(0)")
            e(f"ds_read_b128 v[8:11], {aXPR}\nds_read_b128 v[12:15], {aXPR} offset:64")
            e("v_lshlrev_b32 v16, 16, v6\nv_and_b32 v17, 0xffff0000, v6\nv_add_f32 v6, v16, v17\nv_mul_f32 v7, v16, v16\nv_fmac_f32 v7, v17, v17")
            e("s_waitcnt lgkmcnt(1)")
            DD = [16, 20, 24, 28]
            for t in range(4):
                self.mfma(DD[t], 8, FG + 8 * t)
            e("s_waitcnt lgkmcnt(0)")
            for t in range(4):
                self.mfma(DD[t], 12, FG + 8 * t + 4, DD[t])
            self.allred(["v6", "v7"], "v_add_f32", ["v8", "v9"], [1, 2, 8, 16, 32])
            e(f"ds_write_b64 {aSTW}, v[6:7]")
            e(f"v_mov_b32 v17, v20\nv_mov_b32 v18, v24\nv_mov_b32 v19, v28\nds_write_b128 {aRBW}, v[16:19]")
            self.bar()
            for k in range(4):
                e(f"ds_read_b128 {R(236+4*k,4)}, {aSTR} offset:{16*k}")
            for k in range(8):
                e(f"ds_read_b64 {R(8+2*k,2)}, {aRBR} offset:{768*k}")
            e("s_waitcnt lgkmcnt(8)")
            e("v_add_f32 v6, v236, v238\nv_add_f32 v7, v237, v239")
            for k in range(2, 8):
                e(f"v_add_f32 v6, v6, v{236+2*k}\nv_add_f32 v7, v7, v{237+2*k}")
            e(f"v_mul_f32 v6, {f32(1/512)}, v6\nv_mov_b32 v24, {f32(1e-5)}\nv_fmac_f32 v24, {f32(1/512)}, v7\nv_fma_f32 v24, -v6, v6, v24\nv_rsq_f32 v24, v24")
            if L == 0:
                for k in range(8):
                    e(f"ds_read_b64 {R(236+2*k,2)}, {aRBC} offset:{768*k}")
            e(f"s_waitcnt lgkmcnt({8 if L == 0 else 0})")
            for k in range(1, 8):
                e(f"v_add_f32 v8, v8, v{8+2*k}\nv_add_f32 v9, v9, v{9+2*k}")
            if L == 0:
                e(f"s_waitcnt lgkmcnt(0)\nv_add_f32 {vCG}, v236, v238\nv_add_f32 {vCU}, v237, v239")
                for k in range(2, 8):
                    e(f"v_add_f32 {vCG}, {vCG}, v{236+2*k}\nv_add_f32 {vCU}, {vCU}, v{237+2*k}")
            e(f"v_fma_f32 v8, -v6, {vCG}, v8\nv_fma_f32 v9, -v6, {vCU}, v9\nv_mul_f32 v8, v8, v24\nv_mul_f32 v9, v9, v24")
            if o.get("dbgffn") and L == 0:
                e(f"v_mov_b32 v12, v8\nv_mov_b32 v13, v9\nv_mov_b32 v14, v24\nv_mov_b32 v15, {vCG}\ns_lshl_b32 {sA}, {sF}, 13\ns_add_u32 {sA}, {sA}, 0xD000000\nv_lshlrev_b32 v10, 4, v0\nbuffer_store_dwordx4 v[12:15], v10, {srd(S_WS)}, {sA} offen")
            c1 = -2 * 0.7978845608028654 * math.log2(math.e)
            e(f"v_mul_f32 v10, v8, v8\nv_mov_b32 v11, {f32(c1)}\nv_fmac_f32 v11, {f32(c1*0.044715)}, v10\nv_mul_f32 v10, v11, v8\nv_exp_f32 v10, v10")
            e(f"v_mul_f32 v8, v8, v9\nv_add_f32 v10, 1.0, v10\nv_rcp_f32 v10, v10\ns_mov_b32 {sA}, {S45(L)}\nv_mul_f32 v8, v8, v10")
            e(f"v_cvt_pk_bf16_f32 v8, v8, v8\nds_write_b16 {aHW}, v8\ns_waitcnt lgkmcnt(0)\nds_read_b128 v[8:11], {aHR}\ns_waitcnt lgkmcnt(0)")
            for t in range(4):
                self.mfma(DD[t], 8, FD + 4 * t)
            self.packtag("v8", "v16", "v20", "v10", "v11")
            self.packtag("v9", "v24", "v28", "v12", "v13")
            e(f"v_permlane32_swap_b32 v8, v9\nbuffer_store_dword v8, {aS45}, {srd(S_WS)}, {sA} offen sc1")
            if L == 1:
                self.stamp(11)
            e(f"{lnf}:")
        self.dump_stamps()


if __name__ == "__main__":
    import argparse
    ap = argparse.ArgumentParser()
    ap.add_argument("-o", default=f"cdna_kernels/{NAME}.s")
    ap.add_argument("--opt", action="append", default=[])
    a = ap.parse_args()
    opts = {k: int(v) for k, v in (x.split("=") for x in a.opt)}
    open(a.o, "w").write(Gen(**opts).build())
```

```python
import sys, math, struct
sys.path.insert(0, "scratch")
from asmlib import hazard_pass

NAME = "interleave_layers__compressed_kv_cla__glu_gated_geglu__decode"
f32 = lambda x: "0x%08x" % struct.unpack("<I", struct.pack("<f", x))[0]

CAN = 0x1000
PRET = 0x3800
I0S = lambda L: 0x4000 + L * 0x4000
LSE = lambda L: 0xC000 + L * 0x4000
S3R = lambda L: 0x18000 + L * 0x4000
S1R = lambda L: 0x20000 + L * 0x10000
S45 = lambda L: 0x40000 + L * 0x18000
I1R = lambda L: 0x70000 + L * 0x20000
COLS = 0xB0000
I0R = lambda L: 0x100000 + L * 0x80000
S2R = lambda L: 0x201000 + L * 0x201000
PRET2 = (0x200000, 0x401000, 0x602000)
STAMP = 0xE000000
OOB = 0x7FFFFF00
A_WQ = 0
A_OS = 0
A_XR = 18432
A_WUK = 34048
A_WUV = 67840
A_WO = 101632
A_Q = 134400
A_WW = A_Q + 512
A_CC = A_WW + 256
A_CT = A_CC + 512
A_RR = A_CT + 2048
A_XS = A_RR + 2048
A_DUM = A_XS + 256
B_CKV = 0
B_QA = 135168
B_MX = 152064
B_LS = B_MX + 512
B_P = B_LS + 512
B_ONES = B_P + 4608
B_DUM = B_ONES + 256
LDS_BYTES = B_DUM + 1024
B_FG = 0
B_FU = 32768
B_FD = 65536
B_XP = 98304
B_RB = B_XP + 2048
B_ST = B_RB + 6144
B_H = B_ST + 128

S_WS, S_X, S_CKV, S_WQ, S_WUK, S_WUV, S_WO, S_WG, S_WU, S_WD, S_OUT, S_DBG = [4 + 4 * k for k in range(12)]
sJ, sI, sW, sT, sP, sKLO, sKHI, sM, sFF, sSEL, sGUARD, sPLAIN = ["s%d" % (52 + k) for k in range(12)]
sA, sB, sC, sD = "s64", "s65", "s66", "s67"
sH, sCS = "s68", "s69"
sMASK = "s[70:71]"
sXC = "s[72:75]"
sXCC = "s76"
sE8 = "s77"
STAMP0 = 78
srd = lambda b: f"s[{b}:{b+3}]"
vL, vC, vG, vT, vP = "v1", "v2", "v3", "v4", "v5"


def R(a, n=1):
    return f"v{a}" if n == 1 else f"v[{a}:{a+n-1}]"


PROFILES = [
    (["start", "karg", "Wq", "P1a", "I0got", "S1pub", "Wo", "S2can", "S2got", "S3pub", "S45got"],
     ["start", "karg", "ckviss", "ckv", "S1got", "Y2", "Y3", "S2pub", "ffnW", "S3got", "S45pub"]),
    (["start", "S45got", "P1a'", "I0got'", "S1pub'", "S2can'", "S2got'", "I1pub'", "I1got'", "S3pub'", "end"],
     ["start", "S45pub", "S1can'", "S1got'", "Y2'", "Y3'", "S2pub'", "S3can'", "S3got'", "Z1'", "S45pub'"]),
    (["start", "karg", "Wq", "WukI", "Wuk", "P1a", "I0pr", "I0got", "S1pub", "Wo", "S2can"],
     ["start", "karg", "E", "ckv0", "ckv8", "ckviss", "ckv", "S1can", "S1got", "Y2", "S2pub"]),
]


class Gen:
    def __init__(self, **o):
        self.o = dict(stamps=False, bdelay=30, adelay=12, d_s1=0, d_s2=0, d_s3=0, d_s45=0, guard=0x400000, backoff=4,
                      lead_s1=0, lead_s2=0, lead_s3=0, lead_s45=0, prof=0, d_i0=0, i0tries=24, can0=1, bhelp=1, bdelay2=0)
        self.o.update(o)
        self.L = []
        self.uid = 0
        self.nst = 0
        self.cold = []
        self.NA, self.NB = PROFILES[self.o["prof"]]
        self.names = self.NA

    def e(self, s):
        for ln in s.split("\n"):
            self.L.append(ln)

    def lab(self, p):
        self.uid += 1
        return f"L_{p}_{self.uid}"

    def stamp(self, name):
        names = self.names
        if self.o["stamps"] and name in names:
            k = names.index(name)
            self.e(f"s_memrealtime s[{STAMP0+2*k}:{STAMP0+2*k+1}]")

    def dump_stamps(self):
        if not self.o["stamps"]:
            return
        e = self.e
        e("s_waitcnt lgkmcnt(0)")
        for k in range(11):
            e(f"v_mov_b32 v{8+k}, s{STAMP0+2*k}")
        e(f"s_lshl_b32 {sA}, s2, 9\ns_lshl_b32 {sB}, {sW}, 6\ns_add_u32 {sA}, {sA}, {sB}\ns_add_u32 {sA}, {sA}, {STAMP}")
        e(f"v_mov_b32 v6, {OOB}\nv_cmp_eq_u32 vcc, 0, {vL}\nv_cndmask_b32 v6, v6, v7, vcc".replace("v_cndmask_b32 v6, v6, v7, vcc", "v_cndmask_b32 v6, v6, " + vL + ", vcc"))
        e(f"v_mov_b32 v20, {sGUARD}\nv_mov_b32 v21, {sT}\nv_mov_b32 v22, {sPLAIN}\nv_mov_b32 v23, s3")
        for k in range(4):
            e(f"buffer_store_dwordx4 v[{8+4*k}:{11+4*k}], v6, {srd(S_WS)}, {sA} offen offset:{16*k}")

    def mfma(self, d, a, b, c=None):
        self.e(f"v_mfma_f32_16x16x32_bf16 {R(d,4)}, {R(a,4)}, {R(b,4)}, {'0' if c is None else R(c,4)}")

    def bar(self):
        self.e("s_waitcnt lgkmcnt(0)\ns_barrier")

    def guard(self):
        if self.o["stamps"]:
            self.nst += 1
            self.e(f"s_movk_i32 s3, {self.nst}")
        self.e(f"s_sub_u32 {sGUARD}, {sGUARD}, 1\ns_cbranch_scc1 {'L_bail' if self.o['stamps'] else 'L_end'}")

    def sel(self, dst, cond, a, b):
        self.e(cond)
        self.e(f"v_cndmask_b32 {dst}, {a}, {b}, vcc")

    def check(self, regs, pat, mask, acc, extra=None):
        e = self.e
        e(f"v_xor_b32 {acc}, {pat}, v{regs[0]}")
        for r in regs[1:]:
            e(f"v_bitop3_b32 {acc}, v{r}, {pat}, {acc} bitop3:0xbe")
        e(f"v_and_or_b32 {acc}, {acc}, {mask}, {extra}" if extra else f"v_and_b32 {acc}, {mask}, {acc}")
        e(f"v_cmp_ne_u32 vcc, 0, {acc}")

    def packtag(self, dst, lo, hi, t0, t1):
        e = self.e
        e(f"v_add_u32 {t0}, {sKLO}, {lo}\nv_add_u32 {t1}, {sKHI}, {hi}")
        e(f"v_perm_b32 {t0}, {t1}, {t0}, {sSEL}")
        e(f"v_bfi_b32 {dst}, {sM}, {vP}, {t0}")

    def allred(self, regs, op, tmps, steps):
        e = self.e
        dp = {1: "quad_perm:[1,0,3,2]", 2: "quad_perm:[2,3,0,1]", 4: "row_half_mirror", 8: "row_ror:8"}
        for s in steps:
            if s in dp:
                for r in regs:
                    e(f"{op}_dpp {r}, {r}, {r} {dp[s]} row_mask:0xf bank_mask:0xf")
            else:
                for r, t in zip(regs, tmps):
                    e(f"v_mov_b32 {t}, {r}")
                for r, t in zip(regs, tmps):
                    e(f"v_permlane{s}_swap_b32 {r}, {t}")
                for r, t in zip(regs, tmps):
                    e(f"{op} {r}, {r}, {t}")

    def can_addr(self, vw, vr, sidx):
        e = self.e
        e(f"s_lshl_b32 {sA}, {sidx}, 9\nv_add_u32 v6, {sA}, v0\ns_lshl_b32 {sA}, {sJ}, 7\ns_add_u32 {sA}, {sA}, {CAN}\nv_mov_b32 v8, {sA}\nv_cmp_eq_u32 vcc, 0, v6\nv_cndmask_b32 {vw}, v13, v8, vcc")
        e(f"v_and_b32 v6, 7, v0\nv_lshlrev_b32 v6, 7, v6\nv_add_u32 {vr}, {CAN}, v6")

    def canary_wait(self, idx, vr, delay):
        e = self.e
        l, l2 = self.lab("can"), self.lab("cb")
        e(f"s_cmp_lg_u32 {sW}, 0\ns_cbranch_scc1 {l2}\ns_movk_i32 {sA}, {idx*1024}")
        e(f"{l}:")
        self.guard()
        e(f"buffer_load_dword v6, {vr}, {srd(S_WS)}, {sA} offen sc1\ns_waitcnt vmcnt(0)")
        e(f"v_cmp_ne_u32 vcc, v6, {vT}\ns_cbranch_vccnz {l}")
        if delay:
            e(f"s_sleep {delay}")
        e(f"{l2}:\ns_barrier")

    def canary_set(self, idx, vw, cond=True):
        if cond:
            self.e(f"s_movk_i32 {sD}, {idx*1024}\nbuffer_store_dword {vT}, {vw}, {srd(S_WS)}, {sD} offen sc1")

    def retry_head(self, l, mult=1):
        l2 = self.lab("in")
        self.e(f"{l2}:")
        keep, self.L = self.L, []
        self.e(f"{l}:")
        self.guard()
        self.e(f"s_sleep {mult*self.o['backoff']}\ns_branch {l2}")
        self.cold.append("\n".join(self.L))
        self.L = keep

    def store_intra(self, ins):
        e = self.e
        l1, l2 = self.lab("sc"), self.lab("sd")
        e(f"s_cmp_eq_u32 {sPLAIN}, 0\ns_cbranch_scc1 {l1}")
        for i in ins:
            e(i)
        e(f"{l2}:")
        self.cold.append(f"{l1}:\n" + "\n".join(i + " sc1" for i in ins) + f"\ns_branch {l2}")

    def consts(self):
        self.e(f"s_mov_b32 {sM}, 0x00010001\ns_movk_i32 {sFF}, 0xff\ns_mov_b32 {sSEL}, 0x07060302\ns_mov_b32 {sGUARD}, {self.o['guard']}")

    def tags(self):
        e = self.e
        e(f"s_add_u32 {sT}, {sT}, 1")
        e(f"s_and_b32 {sA}, {sT}, 1\ns_lshr_b32 {sB}, {sT}, 1\ns_and_b32 {sB}, {sB}, 1")
        e(f"s_lshl_b32 {sP}, {sB}, 16\ns_or_b32 {sP}, {sP}, {sA}")
        e(f"s_xor_b32 {sA}, {sA}, 1\ns_lshl_b32 {sKLO}, {sA}, 16\ns_xor_b32 {sB}, {sB}, 1\ns_lshl_b32 {sKHI}, {sB}, 16")
        e(f"v_mov_b32 {vT}, {sT}\nv_mov_b32 {vP}, {sP}")

    def build(self):
        e = self.e
        K = NAME + "_kernel"
        e(f"; @launch grid=(256,1,1) block=(512,1,1) lds={LDS_BYTES}")
        e('.amdgcn_target "amdgcn-amd-amdhsa--gfx950"\n.text')
        e(f".globl {K}\n.p2align 8\n.type {K},@function\n{K}:")
        self.stamp('start')
        e("s_cmp_ge_u32 s2, 256\ns_cbranch_scc1 L_end")
        e(f"s_load_dwordx2 s[{S_WS}:{S_WS+1}], s[0:1], 96")
        e(f"s_lshr_b32 {sI}, s2, 3\ns_cmp_ge_u32 {sI}, 16\ns_cbranch_scc1 L_roleB")
        self.roleA()
        e("L_roleB:")
        self.names = self.NB
        self.roleB()
        e("s_endpgm")
        for c in self.cold:
            e(c)
        if self.o["stamps"]:
            e("s_endpgm\nL_bail:\ns_mov_b64 exec, -1")
            e(f"s_lshl_b32 {sA}, s2, 14\ns_add_u32 {sA}, {sA}, 0xC000000\nv_lshlrev_b32 v6, 5, v0\nbuffer_store_dwordx4 v[8:11], v6, {srd(S_WS)}, {sA} offen\nbuffer_store_dwordx4 v[12:15], v6, {srd(S_WS)}, {sA} offen offset:16\ns_waitcnt vmcnt(0)")
            self.dump_stamps()
        e("L_end:\ns_endpgm\nL_code_end:")
        body = hazard_pass(self.L)
        body.append(f""".section .rodata,"a"
.p2align 6
.amdhsa_kernel {K}
  .amdhsa_next_free_vgpr 256
  .amdhsa_next_free_sgpr 102
  .amdhsa_accum_offset 256
  .amdhsa_group_segment_fixed_size 0
  .amdhsa_kernarg_size 104
  .amdhsa_user_sgpr_count 2
  .amdhsa_user_sgpr_kernarg_segment_ptr 1
  .amdhsa_system_sgpr_workgroup_id_x 1
.end_amdhsa_kernel""")
        return "\n".join(body) + "\n"

    def common_ids(self):
        e = self.e
        e(f"s_and_b32 {sJ}, s2, 7")
        e(f"v_lshrrev_b32 v6, 6, v0\nv_and_b32 {vL}, 63, v0\nv_and_b32 {vC}, 15, v0\nv_bfe_u32 {vG}, v0, 4, 2")
        e(f"v_readfirstlane_b32 {sW}, v6")

    def fin_srd(self, b, size):
        self.e(f"s_mov_b32 s{b+2}, {size}\ns_mov_b32 s{b+3}, 0x20000")

    def roleA(self):
        e, o = self.e, self.o
        WQ, WUK, WUV, WO, XOP, SEL0, SEL4 = 32, 64, 128, 144, 160, 164, 168
        vCS, vX8a, vX8b, vONE = "v172", "v173", "v174", "v175"
        (aXOFF, aWROW, aI0ST0, aI0ST1, aI0LD, aCSLD, aSTLD, aSTST, aQW, aQR, aS1ST, aS2LD, aOSW, aLSE, aWW, aWA0, aWA1,
         aOTR, aCCW, aCCR, aI1ST, aI1LD, aCTW, aCTR, aRRW, aRRR, aS3ST, aXLD, aXRW, aXTR, aXSW, aXSR, aCANW, aCANR, aOUT) = ["v%d" % (176 + k) for k in range(35)]
        sPA, sBW = sE8, "s3" if not o["stamps"] else "s101"
        e(f"s_load_dwordx2 s[{S_WQ}:{S_WQ+1}], s[0:1], 16")
        e(f"v_lshrrev_b32 v6, 6, v0\nv_and_b32 {vL}, 63, v0\ns_and_b32 {sJ}, s2, 7\nv_readfirstlane_b32 {sW}, v6\nv_lshlrev_b32 v7, 4, {vL}")
        e(f"s_lshl_b32 {sA}, {sI}, 3\ns_add_u32 {sA}, {sA}, {sW}\ns_lshl_b32 {sA}, {sA}, 5\ns_add_u32 {sA}, {sA}, {sJ}\ns_lshl_b32 {sA}, {sA}, 10\nv_add_u32 v9, {sA}, v7")
        e(f"s_mul_i32 {sD}, {sW}, 4224\ns_lshr_b32 {sB}, {sW}, 2\ns_lshl_b32 {sB}, {sB}, 7\ns_add_u32 {sC}, {sD}, {sB}")
        self.fin_srd(S_WQ, 4 << 20)
        e("s_waitcnt lgkmcnt(0)")
        self.stamp("karg")
        e(f"s_load_dword {sT}, s[{S_WS}:{S_WS+1}], 0")
        for q in range(4):
            e(f"s_mov_b32 {sA}, {q*8192}\ns_add_u32 m0, {sC}, {A_WQ + q*1056}\nbuffer_load_dwordx4 v9, {srd(S_WQ)}, {sA} offen lds")
        for b, slot in ((S_X, 0), (S_WUK, 3), (S_WUV, 4), (S_WO, 5), (S_OUT, 10)):
            e(f"s_load_dwordx2 s[{b}:{b+1}], s[0:1], {slot*8}")
        e(f"v_and_b32 {vC}, 15, v0\nv_bfe_u32 {vG}, v0, 4, 2")
        e(f"v_bfe_u32 v10, {vC}, 2, 1\nv_lshlrev_b32 v6, 10, v10\nv_lshl_add_u32 v6, {vG}, 2, v6\ns_lshl_b32 {sA}, {sI}, 6\nv_add_u32 {aXOFF}, {sA}, v6")
        e(f"v_and_b32 v8, 1, {vG}\nv_lshlrev_b32 v8, 10, v8\nv_lshl_add_u32 v8, {vC}, 1, v8\nv_add_u32 v8, {sA}, v8")
        for b, sz in ((S_X, 2048), (S_WS, 0x10000000), (S_WUK, 4 << 20)):
            self.fin_srd(b, sz)
        e(f"v_mov_b32 v13, {OOB}\nv_mov_b32 v12, {PRET}")
        e(f"s_getreg_b32 {sXCC}, hwreg(HW_REG_XCC_ID)\ns_and_b32 {sXCC}, {sXCC}, 15\ns_lshl_b32 {sPA}, {sJ}, 4\ns_add_u32 {sPA}, {sPA}, {sI}\ns_mov_b32 {sPLAIN}, 0")
        e("s_waitcnt lgkmcnt(0)")
        self.stamp("E")
        for k, off in enumerate((0, 32, 16, 48)):
            e(f"buffer_load_dword v{24+k}, {aXOFF}, {srd(S_X)}, 0 offen offset:{off}")
        e(f"buffer_load_ushort v28, v8, {srd(S_X)}, 0 offen\nbuffer_load_ushort v29, v8, {srd(S_X)}, 0 offen offset:32")
        e(f"buffer_load_dword v30, v12, {srd(S_WS)}, 0 offen")
        self.consts()
        self.tags()
        e(f"s_and_b32 {sBW}, {sI}, 3\ns_lshl_b32 {sH}, {sJ}, 2\ns_add_u32 {sH}, {sH}, {sBW}\ns_lshr_b32 {sCS}, {sI}, 2")
        e(f"s_lshl_b32 {sA}, {sCS}, 3\ns_add_u32 {sA}, {sA}, {sW}\ns_lshl_b32 {sA}, {sA}, 9\ns_add_u32 {sA}, {sA}, {sH}\ns_lshl_b32 {sA}, {sA}, 8")
        e(f"v_lshlrev_b32 v6, 13, {vG}\nv_lshl_add_u32 v6, {vC}, 4, v6\nv_add_u32 {aWROW}, {sA}, v6")
        vr, vq = "v14", "v15"
        e(f"v_bfe_u32 {vr}, {vL}, 2, 2\nv_and_b32 {vq}, 3, {vL}")
        e(f"v_and_b32 v6, 1, {vr}\nv_mul_u32_u24 v6, {16*1056+128}, v6\nv_lshrrev_b32 v8, 1, {vr}\nv_lshl_add_u32 v8, {vG}, 1, v8\nv_mul_u32_u24 v8, 1056, v8\nv_lshl_add_u32 v6, {vq}, 3, v6")
        e(f"s_lshl_b32 {sA}, {sW}, 8\nv_add3_u32 v31, {sA}, v6, v8")
        e(f"s_lshl_b32 {sA}, {sPA}, 2\ns_add_u32 {sA}, {sA}, {sW}\ns_lshl_b32 {sB}, {sA}, 10\ns_add_u32 {sB}, {sB}, {I0R(0)}\nv_add_u32 v6, {sB}, v7\nv_cmp_gt_u32 vcc, 32, {vL}")
        e(f"s_lshl_b32 {sB}, {sA}, 9\ns_add_u32 {sB}, {sB}, {COLS - 512}\nv_cndmask_b32 {aI0ST1}, v13, v6, vcc\nv_add_u32 v6, {sB}, v7")
        e(f"s_lshl_b32 {sA}, {sH}, 2\ns_add_u32 {sA}, {sA}, {sCS}\ns_lshl_b32 {sB}, {sA}, 1\ns_add_u32 {sB}, {sB}, {sW}\ns_lshl_b32 {sB}, {sB}, 7")
        e(f"v_lshlrev_b32 v8, 15, {vG}\nv_lshl_add_u32 v8, {vC}, 3, v8\nv_add_u32 v8, {sB}, v8\nv_cndmask_b32 {aS1ST}, v13, v8, vcc")
        self.sel(aI0ST0, f"v_cmp_eq_u32 vcc, 2, {vG}", aI0ST1, "v6")
        e(f"v_add_u32 v6, 256, {aI0ST0}\nv_add_u32 v8, 512, {aI0ST0}\nv_cndmask_b32 {aOUT}, v8, v6, vcc")
        e(f"v_lshrrev_b32 v8, 3, {vL}\nv_and_b32 v9, 7, {vL}\nv_lshlrev_b32 v9, 4, v9")
        e(f"s_lshl_b32 {sA}, {sJ}, 6\ns_add_u32 {sA}, {sA}, {sBW}\ns_lshl_b32 {sB}, {sA}, 3\ns_add_u32 {sB}, {sB}, {sW}\ns_lshl_b32 {sB}, {sB}, 7")
        e(f"v_lshl_add_u32 v6, v8, 12, v9\nv_add_u32 {aI0LD}, {sB}, v6")
        e(f"s_lshr_b32 {sC}, {sW}, 2\ns_lshl_b32 {sA}, {sA}, 1\ns_add_u32 {sA}, {sA}, {sC}\ns_lshl_b32 {sA}, {sA}, 1\ns_and_b32 s72, {sW}, 1\ns_add_u32 {sA}, {sA}, s72\ns_lshl_b32 {sA}, {sA}, 7\ns_add_u32 {sA}, {sA}, {COLS}")
        e(f"v_lshl_add_u32 v6, v8, 11, v9\nv_add_u32 {aCSLD}, {sA}, v6")
        e(f"s_bfe_u32 {sB}, {sW}, 0x10001\ns_lshl_b32 {sA}, {sJ}, 7\ns_add_u32 {sA}, {sA}, {sB}\ns_lshl_b32 {sA}, {sA}, 4\nv_lshlrev_b32 v6, 7, {vC}\nv_add_u32 {aSTLD}, {sA}, v6")
        e(f"v_lshlrev_b32 v11, 4, {vG}\nv_lshrrev_b32 v6, 3, {vL}\nv_sub_u32 v8, {vL}, v6\nv_add_u32 v8, 3, v8\ns_mov_b32 vcc_lo, 0x01100101\ns_mov_b32 vcc_hi, 0\nv_cndmask_b32 v6, v8, v6, vcc")
        e(f"s_lshl_b32 {sA}, {sPA}, 7\nv_lshl_add_u32 v6, v6, 3, {sA}\ns_cmp_eq_u32 {sW}, 0\ns_cselect_b32 vcc_lo, 0x01103fff, 0\nv_cndmask_b32 {aSTST}, v13, v6, vcc")
        e(f"s_lshl_b32 {sA}, {sB}, 1\ns_add_u32 {sA}, {sA}, {sC}\ns_lshl_b32 {sA}, {sA}, 3\ns_add_u32 {sA}, {sA}, s72\ns_lshl_b32 {sA}, {sA}, 4\ns_add_u32 {sA}, {sA}, {A_Q}")
        e(f"v_lshrrev_b32 v6, 3, v9\nv_lshl_add_u32 v6, {vG}, 5, v6\nv_add_u32 {aQW}, {sA}, v6")
        e(f"v_lshl_add_u32 v6, v10, 8, v11\nv_add_u32 {aQR}, {A_Q}, v6")
        e(f"v_mov_b32 v6, 0x3f803f80\nv_cmp_eq_u32 vcc, 8, {vC}\nv_mov_b32 v8, 0\nv_cndmask_b32 {vONE}, v8, v6, vcc")
        self.can_addr(aCANW, aCANR, sI)
        self.stamp("addr")
        e("s_waitcnt vmcnt(1)")
        self.stamp("xv")
        e("s_barrier")
        self.stamp("Wq")
        lsk, lsk2 = self.lab("k"), self.lab("k")
        e(f"s_cmp_ge_u32 {sW}, 4\ns_cbranch_scc0 {lsk}")
        e(f"s_lshl_b32 {sA}, {sW}, 17\nv_add_u32 v6, {sA}, {aWROW}\nv_subrev_u32 v6, {8 << 17}, v6\ns_lshl_b32 {sD}, {sD}, 1\ns_add_u32 {sD}, {sD}, {A_WUK - 8*4224}")
        for q in range(8):
            e(f"s_mov_b32 {sA}, {q*32768}\ns_add_u32 m0, {sD}, {q*1056}\nbuffer_load_dwordx4 v6, {srd(S_WUK)}, {sA} offen lds")
        if o["stamps"]:
            self.stamp("WukI")
            e("s_waitcnt vmcnt(0)")
            self.stamp("Wuk")
        e(f"s_branch {lsk2}\n{lsk}:")
        for t in range(8):
            e(f"ds_read_b64_tr_b16 {R(WQ+4*t,2)}, v31 offset:{A_WQ+32*t}\nds_read_b64_tr_b16 {R(WQ+4*t+2,2)}, v31 offset:{A_WQ+32*t+8448}")
        e(f"s_mov_b32 {sA}, 0x05040100\nv_mov_b32 v6, 0x3f803f80\nv_cmp_eq_u32 vcc, 8, {vC}")
        e(f"v_perm_b32 v20, v25, v24, {sA}\nv_perm_b32 v21, v25, v24, {sSEL}\nv_perm_b32 v22, v27, v26, {sA}\nv_perm_b32 v23, v27, v26, {sSEL}")
        for k in range(4):
            e(f"v_cndmask_b32 v{XOP+k}, v{20+k}, v6, vcc")
        e(f"s_waitcnt lgkmcnt(0)\n{lsk2}:")
        e(f"v_lshlrev_b32 {vX8a}, 16, v28\nv_lshlrev_b32 {vX8b}, 16, v29")

        for L in range(2):
            X = "'" * L
            lsk = self.lab("k")
            e(f"s_cmp_ge_u32 {sW}, 4\ns_cbranch_scc1 {lsk}")
            D = [8, 12, 16, 20, 212, 216, 220, 224]
            self.mfma(228, XOP, XOP)
            for t in range(8):
                self.mfma(D[t], XOP, WQ + 4 * t)
            e(f"s_mov_b32 {sB}, {I0R(L)-I0R(0)}\ns_mov_b32 {sC}, {I0S(L)}\nv_mov_b32 v229, {vT}")
            for t in range(8):
                e(f"v_bfi_b32 v{232+t}, {sFF}, {vT}, v{D[t]}")
            if L == 0:
                e(f"v_mov_b32 v6, {sXCC}\nv_bfi_b32 v228, 15, v6, v228")
                first = [f"buffer_store_dwordx4 v[232:235], {aI0ST0}, {srd(S_WS)}, 0 offen", f"buffer_store_dwordx4 v[236:239], {aOUT}, {srd(S_WS)}, 0 offen",
                         f"buffer_store_dwordx2 v[228:229], {aSTST}, {srd(S_WS)}, {sC} offen"]
                e("\n".join(first))
            else:
                self.store_intra([f"buffer_store_dwordx4 v[232:235], {aI0ST1}, {srd(S_WS)}, {sB} offen",
                                  f"buffer_store_dwordx4 v[236:239], {aI0ST1}, {srd(S_WS)}, {sB} offen offset:512",
                                  f"buffer_store_dwordx2 v[228:229], {aSTST}, {srd(S_WS)}, {sC} offen"])
                for hf in range(2):
                    for r in range(4):
                        e(f"ds_write_b32 {aXSW}, v{244+4*hf+r} offset:{(16*(r&1)+(r>>1)+8*hf)*4}")
            e(f"{lsk}:\ns_barrier")
            self.stamp("P1a" + X)
            if L == 0 and o["d_i0"]:
                e(f"s_sleep {o['d_i0']}")
            l, lp, lr = self.lab("i0"), self.lab("i0p"), self.lab("i0r")
            e(f"s_mov_b32 {sA}, {I0R(L)}\ns_mov_b32 {sB}, {I0R(L)+32768}\ns_mov_b32 {sC}, {I0S(L)}\ns_movk_i32 {sD}, 16384")
            if L == 0:
                restore = "\n".join(x + " sc1" for x in first)
                e(f"s_movk_i32 s72, {o['i0tries']}")
                keep, self.L = self.L, []
                e(f"{lr}:")
                self.guard()
                e(f"s_sub_u32 s72, s72, 1\ns_cmp_lg_u32 s72, 0\ns_cbranch_scc1 {lp}\ns_cmp_ge_u32 {sW}, 4\ns_cbranch_scc1 {lp}\n{restore}\ns_branch {lp}")
                self.cold.append("\n".join(self.L))
                self.L = keep
                e(f"{lp}:")
            else:
                e(f"{lr}:")
                self.guard()
            e(f"buffer_load_dwordx4 v[16:19], {aSTLD}, {srd(S_WS)}, {sC} offen sc1\ns_waitcnt vmcnt(0)")
            e(f"v_xor_b32 v7, {vT}, v17\nv_bitop3_b32 v7, v19, {vT}, v7 bitop3:0xbe\nv_cmp_ne_u32 vcc, 0, v7\ns_cbranch_vccnz {lr}")
            self.stamp("I0pr" + X)
            e(f"buffer_load_dwordx4 v[8:11], {aI0LD}, {srd(S_WS)}, {sA} offen sc1\nbuffer_load_dwordx4 v[12:15], {aI0LD}, {srd(S_WS)}, {sB} offen sc1")
            if L == 0:
                e(f"buffer_load_dwordx4 v[20:23], {aCSLD}, {srd(S_WS)}, 0 offen sc1\nbuffer_load_dwordx4 v[24:27], {aCSLD}, {srd(S_WS)}, {sD} offen sc1")
                e(f"v_and_b32 v7, 15, v16\nv_cmp_ne_u32 vcc, {sXCC}, v7\ns_cmp_eq_u64 vcc, 0\ns_cselect_b32 {sPLAIN}, 1, 0")
            dp = ["quad_perm:[1,0,3,2]", "quad_perm:[2,3,0,1]", "row_half_mirror", "row_ror:8"]
            for k in range(4):
                e(f"v_add_f32_dpp v16, v16, v16 {dp[k]} row_mask:0xf bank_mask:0xf\nv_add_f32_dpp v18, v18, v18 {dp[k]} row_mask:0xf bank_mask:0xf")
            e(f"v_mul_f32 v18, {f32(1/512)}, v18\nv_mov_b32 v17, {f32(1e-5)}\nv_fmac_f32 v17, {f32(1/512)}, v16\nv_fma_f32 v17, -v18, v18, v17\nv_rsq_f32 v17, v17")
            e("s_waitcnt vmcnt(0)")
            self.check(list(range(8, 16)) + (list(range(20, 28)) if L == 0 else []), sT, sFF, "v6")
            e(f"s_cbranch_vccnz {lr}")
            self.stamp("I0got" + X)
            if L == 0:
                l1, l2 = self.lab("rs"), self.lab("rt")
                e(f"s_cmp_eq_u32 {sPLAIN}, 0\ns_cbranch_scc1 {l1}\n{l2}:")
                self.cold.append(f"{l1}:\ns_cmp_ge_u32 {sW}, 4\ns_cbranch_scc1 {l2}\n{restore}\ns_branch {l2}")
            self.canary_set(L, aCANW, o["lead_s1"] == 1)
            for k in range(4):
                e(f"v_add_f32 v{8+k}, v{8+k}, v{12+k}")
            if L == 0:
                for k in range(4):
                    e(f"v_add_f32 v{20+k}, v{20+k}, v{24+k}")
            e("v_permlane32_swap_b32 v8, v10\nv_permlane32_swap_b32 v9, v11")
            if L == 0:
                e("v_permlane32_swap_b32 v20, v22\nv_permlane32_swap_b32 v21, v23")
            e("v_add_f32 v8, v8, v10\nv_add_f32 v9, v9, v11")
            if L == 0:
                e("v_add_f32 v20, v20, v22\nv_add_f32 v21, v21, v23")
            e("v_permlane16_swap_b32 v8, v9")
            if L == 0:
                e("v_permlane16_swap_b32 v20, v21")
            e("v_add_f32 v8, v8, v9")
            if L == 0:
                e("v_add_f32 v20, v20, v21")
            e("v_add_f32_dpp v8, v8, v8 row_ror:8 row_mask:0xf bank_mask:0xf")
            if L == 0:
                e(f"v_add_f32_dpp {vCS}, v20, v20 row_ror:8 row_mask:0xf bank_mask:0xf")
            e(f"v_fma_f32 v8, -v18, {vCS}, v8\nv_mul_f32 v8, v8, v17\nv_cvt_pk_bf16_f32 v8, v8, v8\nds_write_b16 {aQW}, v8")
            self.bar()
            l = self.lab("p1b")
            e(f"s_cmp_ge_u32 {sW}, 2\ns_cbranch_scc1 {l}")
            for u in range(4):
                e(f"ds_read_b128 {R(8+4*u,4)}, {aQR} offset:{u*64}")
            if L == 0:
                e(f"s_mul_i32 {sA}, {sW}, {16*1056}\ns_add_u32 {sA}, {sA}, {A_WUK}\nv_mul_u32_u24 v6, 1056, {vC}\nv_lshlrev_b32 v7, 4, {vG}\nv_add3_u32 v6, {sA}, v6, v7")
                for u in range(4):
                    for t in range(4):
                        e(f"ds_read_b128 {R(WUK+16*t+4*u,4)}, v6 offset:{t*256+u*64}")
                        if u > 0 or t == 3:
                            pass
            e(f"s_mov_b32 {sA}, {S1R(L)}\ns_mov_b32 {sB}, {f32(128**-0.5*math.log2(math.e))}")
            for u in range(4):
                e(f"s_waitcnt lgkmcnt({3-u if L else 0 if u == 3 else 12-4*u if u else 8})")
                for t in range(4):
                    self.mfma(212 + 4 * t, 8 + 4 * u, WUK + 16 * t + 4 * u, None if u == 0 else 212 + 4 * t)
            for t in range(4):
                e(f"v_mul_f32 v{24+t}, {sB}, v{212+4*t}")
            self.packtag("v8", "v24", "v25", "v10", "v11")
            self.packtag("v9", "v26", "v27", "v12", "v13")
            e(f"buffer_store_dwordx2 v[8:9], {aS1ST}, {srd(S_WS)}, {sA} offen sc1")
            self.canary_set(L, aCANW, o["lead_s1"] == 0)
            e(f"{l}:")
            self.stamp("S1pub" + X)
            if L == 0:
                for b, sz in ((S_WUV, 4 << 20), (S_WO, 4 << 20), (S_OUT, 2048)):
                    self.fin_srd(b, sz)
                if o["adelay"]:
                    e(f"s_sleep {o['adelay']}")
                e(f"s_mul_i32 {sC}, {sW}, 4224")
                for q in range(4):
                    e(f"s_mov_b32 {sA}, {q*32768}\ns_add_u32 m0, {sC}, {A_WUV + q*1056}\nbuffer_load_dwordx4 {aWROW}, {srd(S_WUV)}, {sA} offen lds")
                e("s_barrier")
                e(f"v_lshlrev_b32 v7, 4, {vL}\nv_bfe_u32 {vr}, {vL}, 2, 2\nv_and_b32 {vq}, 3, {vL}\nv_mov_b32 v13, {OOB}")
                e(f"s_lshl_b32 {sA}, {sJ}, 19\ns_lshl_b32 {sB}, {sW}, 16\ns_add_u32 {sA}, {sA}, {sB}\ns_lshl_b32 {sB}, {sI}, 6\ns_add_u32 {sA}, {sA}, {sB}")
                e(f"v_lshrrev_b32 v6, 2, {vL}\nv_lshlrev_b32 v6, 10, v6\nv_lshl_add_u32 v6, {vq}, 4, v6\nv_add_u32 v6, {sA}, v6\ns_lshl_b32 {sC}, {sW}, 12")
                for q in range(4):
                    e(f"s_mov_b32 {sA}, {q*16384}\ns_add_u32 m0, {sC}, {A_WO + q*1024}\nbuffer_load_dwordx4 v6, {srd(S_WO)}, {sA} offen lds")
                for k in range(3):
                    e(f"v_mov_b32 v{28+k}, {PRET2[k]}\nbuffer_load_dword v{28+k}, v{28+k}, {srd(S_WS)}, 0 offen")
                e(f"v_bfe_u32 v10, {vC}, 2, 1\nv_lshlrev_b32 v11, 4, {vG}\nv_and_b32 v9, 7, {vL}\nv_lshlrev_b32 v9, 4, v9")
                e(f"v_add_u32 {aCCR}, {A_CC - A_Q}, {aQR}")
                e(f"v_mul_f32 {vX8a}, {f32(0.125)}, {vX8a}\nv_mul_f32 {vX8b}, {f32(0.125)}, {vX8b}")
                e(f"s_lshl_b32 {sA}, {sH}, 2\ns_add_u32 {sA}, {sA}, {sCS}\ns_lshl_b32 {sA}, {sA}, 14\ns_lshl_b32 {sC}, {sW}, 11\ns_add_u32 {sA}, {sA}, {sC}\nv_add_u32 {aS2LD}, {sA}, v7")
                e(f"s_mul_i32 {sA}, {sW}, {8*288}\nv_mul_u32_u24 v6, 288, {vG}\nv_lshl_add_u32 v6, {vC}, 4, v6\nv_add_u32 {aOSW}, {sA}, v6")
                e(f"s_lshr_b32 {sA}, {sJ}, 2\ns_lshl_b32 {sA}, {sA}, 12\ns_and_b32 {sC}, {sH}, 15\ns_lshl_b32 {sC}, {sC}, 3\ns_add_u32 {sA}, {sA}, {sC}")
                e(f"v_lshrrev_b32 v6, 5, {vL}\nv_and_b32 v12, 31, {vL}\nv_lshlrev_b32 v12, 7, v12\nv_lshl_add_u32 v12, v6, 13, v12\nv_add_u32 {aLSE}, {sA}, v12")
                e(f"v_lshlrev_b32 v6, 6, v6\nv_lshl_add_u32 v6, {vr}, 4, v6\nv_and_b32 v12, 1, {vG}\nv_lshl_add_u32 v6, v12, 3, v6\nv_lshl_add_u32 v6, {vq}, 1, v6\nv_add_u32 {aWW}, {A_WW}, v6")
                e(f"v_add_u32 v6, {A_WW}, v11\nv_add_u32 v12, {A_WW+128}, v11")
                self.sel(aWA0, f"v_cmp_eq_u32 vcc, 0, {vC}", "v12", "v6")
                e("v_add_u32 v6, 64, v6")
                self.sel(aWA1, f"v_cmp_eq_u32 vcc, 4, {vC}", "v12", "v6")
                e(f"v_lshrrev_b32 v12, 2, {vL}")
                e(f"s_lshl_b32 {sA}, {sW}, 5\nv_mul_u32_u24 v6, 288, v12\nv_lshl_add_u32 v6, {vq}, 3, v6\nv_add_u32 {aOTR}, {sA}, v6")
                e(f"v_mul_u32_u24 v6, 160, v12\nv_lshl_add_u32 v6, {vq}, 3, v6\nv_add_u32 {aXTR}, {A_XR}, v6")
                e(f"s_add_u32 {sA}, {sA}, {A_CC}\nv_lshlrev_b32 v6, 8, {vG}\nv_lshl_add_u32 v6, {vC}, 1, v6\nv_add_u32 v6, {sA}, v6\nv_mov_b32 v12, {A_DUM}")
                self.sel(aCCW, f"v_cmp_gt_u32 vcc, 32, {vL}", "v12", "v6")
                e(f"s_lshl_b32 {sA}, {sW}, 8\ns_add_u32 {sB}, {sA}, {A_RR}\nv_lshlrev_b32 v6, 3, {vL}\nv_add_u32 v6, {sB}, v6\nv_cndmask_b32 {aRRW}, v12, v6, vcc")
                e(f"v_and_b32 v6, 31, {vL}\nv_lshlrev_b32 v6, 3, v6\nv_add_u32 {aRRR}, {A_RR}, v6")
                e(f"s_lshl_b32 {sB}, {sPA}, 10\ns_lshl_b32 {sC}, {sW}, 7\ns_add_u32 {sB}, {sB}, {sC}\nv_lshlrev_b32 v8, 2, {vL}\nv_add_u32 v6, {sB}, v8\nv_cndmask_b32 {aI1ST}, v13, v6, vcc")
                e(f"s_lshl_b32 {sB}, {sPA}, 7\nv_add_u32 v6, {sB}, v8\nv_cndmask_b32 {aS3ST}, v13, v6, vcc")
                e(f"s_lshl_b32 {sB}, {sJ}, 14\ns_lshl_b32 {sC}, {sW}, 9\ns_add_u32 {sB}, {sB}, {sC}")
                e(f"v_lshlrev_b32 v6, 12, {vG}\nv_lshl_add_u32 v6, {vC}, 4, v6\nv_add_u32 {aI1LD}, {sB}, v6")
                e(f"s_add_u32 {sA}, {sA}, {A_CT}\nv_lshlrev_b32 v6, 7, v10\nv_add_u32 v6, {sA}, v6\nv_add_u32 {aCTR}, v6, v11")
                e(f"v_lshrrev_b32 v8, 1, {vG}\nv_lshl_add_u32 v6, v8, 6, v6\nv_lshrrev_b32 v8, 3, {vC}\nv_lshl_add_u32 v6, v8, 5, v6\nv_lshl_add_u32 v6, {vq}, 3, v6\nv_and_b32 v8, 1, {vG}\nv_lshl_add_u32 {aCTW}, v8, 2, v6")
                e(f"v_lshrrev_b32 v8, 3, v0\nv_mul_u32_u24 v6, 160, v8\nv_add_u32 v6, v6, v9\nv_add_u32 {aXRW}, {A_XR}, v6")
                e(f"s_lshl_b32 {sA}, {sI}, 7\nv_lshl_add_u32 v6, v8, 11, v9\nv_add_u32 {aXLD}, {sA}, v6")
                e(f"v_cmp_gt_u32 {sMASK}, 43, v8\nv_lshrrev_b32 v8, 3, v8\nv_cmp_eq_u32 vcc, 6, v8\ns_or_b64 {sMASK}, {sMASK}, vcc")
                e(f"v_lshlrev_b32 v6, 7, v10\nv_lshl_add_u32 v6, {vG}, 3, v6\nv_add_u32 v6, {A_XS}, v6\nv_and_b32 v8, 11, {vC}")
                self.sel(aXSW, "v_cmp_eq_u32 vcc, 0, v8", "v12", "v6")
                e(f"v_cndmask_b32 {aOUT}, v13, {aXOFF}, vcc")
                e(f"v_and_b32 v6, 1, {vG}\nv_lshlrev_b32 v6, 7, v6\nv_lshl_add_u32 v6, {vC}, 2, v6\nv_add_u32 {aXSR}, {A_XS}, v6")
                e(f"v_mov_b32 v6, 0x3f803f80\nv_mov_b32 v8, 0\nv_mov_b32 v9, 0\nv_mov_b32 v10, 0\nv_mov_b32 v11, 0")
                self.sel(R(SEL0), f"v_cmp_eq_u32 vcc, 0, {vC}", "v8", "v6")
                self.sel(R(SEL4), f"v_cmp_eq_u32 vcc, 4, {vC}", "v8", "v6")
                for k in range(1, 4):
                    e(f"v_mov_b32 v{SEL0+k}, v{SEL0}\nv_mov_b32 v{SEL4+k}, v{SEL4}")
                e(f"v_lshlrev_b32 v6, 2, {vC}\nv_add_u32 v6, {A_WW+128}, v6\nds_write_b32 v6, v8")
                e(f"s_mov_b64 exec, {sMASK}\ns_not_b64 exec, exec\nds_write_b128 {aXRW}, v[8:11]\ns_mov_b64 exec, -1")
                e("s_waitcnt vmcnt(0) lgkmcnt(0)")
                e("s_barrier")
                e(f"v_lshrrev_b32 v6, 1, {vG}\nv_lshl_add_u32 v6, {vr}, 2, v6\nv_mul_u32_u24 v6, 1056, v6\nv_and_b32 v7, 1, {vG}\nv_lshl_add_u32 v6, v7, 9, v6")
                e(f"s_lshl_b32 {sA}, {sW}, 5\ns_add_u32 {sA}, {sA}, {A_WUV}\nv_lshl_add_u32 v6, {vq}, 3, v6\nv_add_u32 v6, {sA}, v6")
                for u in range(4):
                    off = (16 * (u >> 1) + 2 * (u & 1)) * 1056
                    e(f"ds_read_b64_tr_b16 {R(WUV+4*u,2)}, v6 offset:{off}\nds_read_b64_tr_b16 {R(WUV+4*u+2,2)}, v6 offset:{off+256}")
                e(f"v_lshl_add_u32 v8, {vG}, 3, {vr}\nv_lshlrev_b32 v8, 6, v8\nv_lshl_add_u32 v8, {vq}, 3, v8\ns_lshl_b32 {sA}, {sW}, 12\ns_add_u32 {sA}, {sA}, {A_WO}\nv_add_u32 v8, {sA}, v8")
                for t in range(2):
                    for u in range(2):
                        off = u * 2048 + t * 32
                        e(f"ds_read_b64_tr_b16 {R(WO+8*t+4*u,2)}, v8 offset:{off}\nds_read_b64_tr_b16 {R(WO+8*t+4*u+2,2)}, v8 offset:{off+256}")
                e("s_waitcnt lgkmcnt(0)")
                self.stamp("Wo")
            else:
                e(f"ds_read_b32 {vX8a}, {aXSR}\nds_read_b32 {vX8b}, {aXSR} offset:64\ns_waitcnt lgkmcnt(0)")
                e(f"v_mul_f32 {vX8a}, {f32(0.125)}, {vX8a}\nv_mul_f32 {vX8b}, {f32(0.125)}, {vX8b}")
            self.canary_wait(2 + L, aCANR, o["d_s2"])
            self.stamp("S2can" + X)
            l, l0, l1 = self.lab("s2"), self.lab("s2w"), self.lab("s2x")
            e(f"s_mov_b32 {sA}, {S2R(L)}\ns_mov_b32 {sB}, {LSE(L)}\ns_cmp_eq_u32 {sW}, 0\ns_cbranch_scc1 {l0}")
            self.retry_head(l)
            e(f"buffer_load_dwordx4 v[8:11], {aS2LD}, {srd(S_WS)}, {sA} offen sc1\nbuffer_load_dwordx4 v[12:15], {aS2LD}, {srd(S_WS)}, {sA} offen offset:1024 sc1\ns_waitcnt vmcnt(0)")
            e(f"ds_write_b128 {aOSW}, v[8:11] offset:{A_OS}\nds_write_b128 {aOSW}, v[12:15] offset:{A_OS+4*288}")
            self.check(list(range(8, 16)), sP, sM, "v6")
            e(f"s_cbranch_vccnz {l}\ns_branch {l1}")
            e(f"{l0}:")
            l0 = self.lab("s2v")
            self.retry_head(l0)
            e(f"buffer_load_dwordx2 v[16:17], {aLSE}, {srd(S_WS)}, {sB} offen sc1")
            e(f"buffer_load_dwordx4 v[8:11], {aS2LD}, {srd(S_WS)}, {sA} offen sc1\nbuffer_load_dwordx4 v[12:15], {aS2LD}, {srd(S_WS)}, {sA} offen offset:1024 sc1\ns_waitcnt vmcnt(2)")
            e(f"v_xor_b32 v7, {vT}, v17\nv_mov_b32 v18, v16")
            self.allred(["v18"], "v_max_f32", ["v19"], [1, 2, 4, 8, 16])
            e("v_sub_f32 v16, v16, v18\nv_exp_f32 v16, v16\ns_nop 0\nv_mov_b32 v18, v16")
            self.allred(["v18"], "v_add_f32", ["v19"], [1, 2, 4, 8, 16])
            e(f"v_rcp_f32 v18, v18\ns_nop 0\nv_mul_f32 v16, v16, v18\nv_cvt_pk_bf16_f32 v16, v16, v16\nds_write_b16 {aWW}, v16\ns_waitcnt vmcnt(0)")
            e(f"ds_write_b128 {aOSW}, v[8:11] offset:{A_OS}\nds_write_b128 {aOSW}, v[12:15] offset:{A_OS+4*288}")
            self.check(list(range(8, 16)), sP, sM, "v6", extra="v7")
            e(f"s_cbranch_vccnz {l0}")
            e(f"{l1}:")
            self.stamp("S2got" + X)
            self.bar()
            e(f"ds_read_b128 v[8:11], {aWA0}\nds_read_b64_tr_b16 v[16:17], {aOTR} offset:{A_OS}\nds_read_b64_tr_b16 v[18:19], {aOTR} offset:{A_OS+4608}")
            e(f"ds_read_b128 v[12:15], {aWA1}\nds_read_b64_tr_b16 v[20:21], {aOTR} offset:{A_OS+9216}\nds_read_b64_tr_b16 v[22:23], {aOTR} offset:{A_OS+13824}")
            e("s_waitcnt lgkmcnt(3)")
            self.mfma(24, 8, 16)
            e("s_waitcnt lgkmcnt(0)")
            self.mfma(24, 12, 20, 24)
            e(f"s_mov_b32 {sB}, {I1R(L)}")
            e(f"v_cvt_pk_bf16_f32 v8, v24, v24\nds_write_b16 {aCCW}, v8")
            self.bar()
            for u in range(4):
                e(f"ds_read_b128 {R(8+4*u,4)}, {aCCR} offset:{u*64}")
            for u in range(4):
                e(f"s_waitcnt lgkmcnt({3-u})")
                self.mfma(24, 8 + 4 * u, WUV + 4 * u, None if u == 0 else 24)
            e(f"v_bfi_b32 v8, {sFF}, {vT}, v24")
            self.store_intra([f"buffer_store_dword v8, {aI1ST}, {srd(S_WS)}, {sB} offen"])
            self.stamp("I1pub" + X)
            l = self.lab("i1")
            e(f"{l}:")
            self.guard()
            e(f"buffer_load_dwordx4 v[8:11], {aI1LD}, {srd(S_WS)}, {sB} offen sc1\nbuffer_load_dwordx4 v[12:15], {aI1LD}, {srd(S_WS)}, {sB} offen offset:256 sc1\ns_waitcnt vmcnt(0)")
            self.check(list(range(8, 16)), sT, sFF, "v6")
            e(f"s_cbranch_vccnz {l}")
            self.stamp("I1got" + X)
            self.canary_set(4 + L, aCANW, o["lead_s3"] == 1)
            for k in range(4):
                e(f"v_permlane32_swap_b32 v{8+k}, v{12+k}")
            for k in range(4):
                e(f"v_add_f32 v{8+k}, v{8+k}, v{12+k}")
            e("v_permlane16_swap_b32 v8, v10\nv_permlane16_swap_b32 v9, v11\nv_add_f32 v8, v8, v10\nv_add_f32 v9, v9, v11")
            e(f"v_cvt_pk_bf16_f32 v8, v8, v9\nds_write_b32 {aCTW}, v8")
            e(f"ds_read_b128 v[8:11], {aCTR}\nds_read_b128 v[12:15], {aCTR} offset:64\ns_waitcnt lgkmcnt(1)")
            self.mfma(16, 8, WO)
            self.mfma(20, 8, WO + 8)
            e("s_waitcnt lgkmcnt(0)")
            self.mfma(16, 12, WO + 4, 16)
            self.mfma(20, 12, WO + 12, 20)
            e(f"v_mov_b32 v17, v20\nds_write_b64 {aRRW}, v[16:17]")
            self.bar()
            l = self.lab("fin")
            e(f"s_cmp_lg_u32 {sW}, 0\ns_cbranch_scc1 {l}")
            for k in range(8):
                e(f"ds_read_b64 {R(8+2*k,2)}, {aRRR} offset:{k*256}")
            e(f"s_mov_b32 {sA}, {S3R(L)}")
            for k in range(8):
                e(f"s_waitcnt lgkmcnt({7-k})")
                e(f"v_add_f32 v24, {vX8a if k == 0 else 'v24'}, v{8+2*k}\nv_add_f32 v25, {vX8b if k == 0 else 'v25'}, v{9+2*k}")
            self.packtag("v8", "v24", "v25", "v10", "v11")
            e(f"buffer_store_dword v8, {aS3ST}, {srd(S_WS)}, {sA} offen sc1")
            self.canary_set(4 + L, aCANW, o["lead_s3"] == 0)
            e(f"{l}:")
            self.stamp("S3pub" + X)
            if L == 1:
                l = self.lab("ex")
                e(f"s_and_b32 {sA}, {sI}, 7\ns_cmp_eq_u32 {sA}, {sJ}\ns_cbranch_scc1 {l}")
                self.dump_stamps()
                e(f"s_endpgm\n{l}:")
            e(f"s_mov_b32 {sB}, {S45(L)}\ns_cmp_eq_u32 {sW}, 6\ns_cselect_b32 {sB}, {S3R(L) - 48*2048}, {sB}")
            self.canary_wait(6 + L, aCANR, o["d_s45"])
            l, l2 = self.lab("s45"), self.lab("s45n")
            e(f"s_mov_b64 exec, {sMASK}\ns_cbranch_execz {l2}")
            self.retry_head(l)
            e(f"buffer_load_dwordx4 v[8:11], {aXLD}, {srd(S_WS)}, {sB} offen sc1\ns_waitcnt vmcnt(0)")
            e(f"ds_write_b128 {aXRW}, v[8:11]")
            self.check(list(range(8, 12)), sP, sM, "v6")
            e(f"s_cbranch_vccnz {l}")
            e(f"{l2}:\ns_mov_b64 exec, -1")
            self.stamp("S45got" + X)
            self.bar()
            lsk = self.lab("k")
            if L == 1:
                e(f"s_cmp_eq_u32 {sW}, 0\ns_cbranch_scc1 {lsk}")
                self.dump_stamps()
                e(f"s_endpgm\n{lsk}:")
            else:
                e(f"s_cmp_ge_u32 {sW}, 4\ns_cbranch_scc1 {lsk}")
            for u in range(2):
                for T in range(4):
                    off = u * 5120 + 32 * T
                    e(f"ds_read_b64_tr_b16 {R(212+16*u+4*T,2)}, {aXTR} offset:{off}\nds_read_b64_tr_b16 {R(214+16*u+4*T,2)}, {aXTR} offset:{off+2560}")
                    if u == 1 and T >= 1:
                        e(f"s_waitcnt lgkmcnt(10)")
                        self.mfma(244 + 4 * ((T - 1) & 1), 212 + 4 * (T - 1), SEL0 if T - 1 < 2 else SEL4, None if T - 1 < 2 else 244 + 4 * ((T - 1) & 1))
            for n in range(3, 8):
                u, T = n >> 2, n & 3
                e(f"s_waitcnt lgkmcnt({14-2*n})")
                self.mfma(244 + 4 * (T & 1), 212 + 16 * u + 4 * T, SEL0 if T < 2 else SEL4, 244 + 4 * (T & 1))
            if L == 0:
                for k in range(4):
                    e(f"v_cvt_pk_bf16_f32 v{XOP+k}, v{244+2*k}, v{245+2*k}")
                for k in range(4):
                    e(f"v_or_b32 v{XOP+k}, {vONE}, v{XOP+k}")
                e(f"{lsk}:")
            else:
                e("v_cvt_pk_bf16_f32 v8, v244, v246\nv_cvt_pk_bf16_f32 v9, v245, v247\nv_cvt_pk_bf16_f32 v10, v248, v250\nv_cvt_pk_bf16_f32 v11, v249, v251")
                for k, off in enumerate((0, 32, 16, 48)):
                    e(f"buffer_store_dword v{8+k}, {aOUT}, {srd(S_OUT)}, 0 offen offset:{off}")
                e(f"s_lshl_b32 {sA}, s2, 9\nv_add_u32 v6, {sA}, v0\nv_mov_b32 v7, {OOB}\nv_cmp_eq_u32 vcc, 0, v6\nv_cndmask_b32 v6, v7, v6, vcc\nbuffer_store_dword {vT}, v6, {srd(S_WS)}, 0 offen sc1")
                self.stamp("end")
                self.dump_stamps()
                e("s_endpgm")

    def roleB(self):
        e, o = self.e, self.o
        CS_, CP, FG, FD = 32, 96, 160, 192
        (aS1LD, aQAW, aQAR, aMXW, aMXR, aPW, aPR, aBP, aS2ST, aLSEST, aCAN, aS3LD, aXPW, aXPR0, aXPR1, aRBW, aRBR, aRBC,
         aSTW, aSTR, aHW, aHR, aS45) = ["v%d" % (208 + k) for k in range(23)]
        aCANR = "v233"
        vCG, vCU = "v231", "v232"
        ONE = 233
        sB_, sHG, sSP, sF = "s68", "s69", "s76", "s77"
        for b, slot in ((S_CKV, 1), (S_WUK, 3), (S_WO, 5), (S_WG, 7), (S_WU, 8), (S_WD, 9)):
            e(f"s_load_dwordx2 s[{b}:{b+1}], s[0:1], {slot*8}")
        self.common_ids()
        self.consts()
        e(f"s_sub_u32 {sI}, {sI}, 16\ns_sub_u32 {sF}, s2, 128")
        e(f"s_lshr_b32 {sB_}, {sJ}, 2\ns_and_b32 {sHG}, {sI}, 1\ns_and_b32 {sA}, {sJ}, 3\ns_lshl_b32 {sA}, {sA}, 3\ns_lshr_b32 {sSP}, {sI}, 1\ns_add_u32 {sSP}, {sSP}, {sA}")
        l = self.lab("np")
        e(f"s_cmp_lg_u32 {sI}, 0\ns_cbranch_scc1 {l}")
        e(f"s_getpc_b64 s[72:73]\nL_pc:\ns_sub_u32 s72, s72, L_pc-{NAME}_kernel\ns_subb_u32 s73, s73, 0")
        e(f"v_lshlrev_b32 v6, 6, v0\nv_min_u32 v6, L_code_end-{NAME}_kernel-4, v6\nglobal_load_dword v255, v6, s[72:73]")
        e(f"{l}:")
        e(f"v_lshlrev_b32 v7, 4, {vL}\nv_mov_b32 v13, {OOB}\nv_mov_b32 v12, {B_DUM}")
        vr, vq = "v14", "v15"
        e(f"v_bfe_u32 {vr}, {vL}, 2, 2\nv_and_b32 {vq}, 3, {vL}")
        e(f"s_lshl_b32 {sA}, {sB_}, 22\ns_lshl_b32 {sB}, {sSP}, 17\ns_add_u32 {sA}, {sA}, {sB}\ns_lshl_b32 {sB}, {sW}, 14\ns_add_u32 {sA}, {sA}, {sB}\nv_add_u32 v31, {sA}, v7")
        e("s_waitcnt lgkmcnt(0)")
        self.stamp('karg')
        e(f"s_load_dword {sT}, s[{S_WS}:{S_WS+1}], 0")
        for b, sz in ((S_CKV, 8 << 20), (S_WUK, 4 << 20), (S_WO, 4 << 20), (S_WS, 0x10000000), (S_WG, 1409024), (S_WU, 1409024), (S_WD, 1409024)):
            self.fin_srd(b, sz)
        for k, a in enumerate((PRET,) + PRET2):
            e(f"v_mov_b32 v{16+k}, {a}\nbuffer_load_dword v{16+k}, v{16+k}, {srd(S_WS)}, 0 offen")
        e(f"s_lshl_b32 {sA}, {sB_}, 15\ns_lshl_b32 {sB}, {sHG}, 14\ns_add_u32 {sA}, {sA}, {sB}\ns_lshl_b32 {sB}, {sW}, 11\ns_add_u32 {sA}, {sA}, {sB}\nv_add_u32 {aS1LD}, {sA}, v7")
        e(f"s_mul_i32 {sA}, {sW}, 2112\ns_add_u32 {sA}, {sA}, {B_QA}\nv_add_u32 {aQAW}, {sA}, v7")
        e(f"v_lshlrev_b32 v11, 4, {vG}\nv_mul_u32_u24 v6, 1056, {vC}\nv_add_u32 v6, v6, v11\nv_add_u32 {aQAR}, {B_QA}, v6")
        e(f"s_mul_i32 {sA}, {sW}, {16*1056}\nv_add_u32 v30, {sA}, v6")
        e(f"v_lshlrev_b32 v6, 5, {vC}\nv_add_u32 {aMXR}, {B_MX}, v6\ns_lshl_b32 {sA}, {sW}, 2\nv_add_u32 {aMXW}, {sA}, {aMXR}")
        e(f"v_mul_u32_u24 v6, 288, {vC}\nv_add3_u32 v6, v6, v11, 0\nv_add_u32 {aPR}, {B_P}, v6")
        e(f"s_lshr_b32 {sA}, {sW}, 1\ns_lshl_b32 {sA}, {sA}, 6\ns_and_b32 {sB}, {sW}, 1\ns_lshl_b32 {sC}, {sB}, 3\ns_add_u32 {sA}, {sA}, {sC}\nv_add_u32 {aPW}, {sA}, {aPR}")
        e(f"v_mov_b32 {aBP}, v11")
        e(f"s_lshl_b32 {sA}, {sHG}, 20\ns_lshr_b32 {sC}, {sW}, 1\ns_lshl_b32 {sC}, {sC}, 14\ns_add_u32 {sA}, {sA}, {sC}\ns_lshl_b32 {sC}, {sB_}, 13\ns_add_u32 {sA}, {sA}, {sC}")
        e(f"s_lshl_b32 {sC}, {sSP}, 8\ns_add_u32 {sA}, {sA}, {sC}\ns_lshl_b32 {sC}, {sB}, 7\ns_add_u32 {sA}, {sA}, {sC}")
        e(f"v_lshlrev_b32 v6, 18, {vG}\nv_lshl_add_u32 v6, {vC}, 3, v6\nv_add_u32 {aS2ST}, {sA}, v6")
        e(f"s_lshl_b32 {sA}, {sB_}, 1\ns_add_u32 {sA}, {sA}, {sHG}\ns_lshl_b32 {sA}, {sA}, 5\ns_add_u32 {sA}, {sA}, {sSP}\ns_lshl_b32 {sA}, {sA}, 7\nv_lshlrev_b32 v6, 3, v0\nv_add_u32 v6, {sA}, v6")
        self.sel(aLSEST, "v_cmp_gt_u32 vcc, 16, v0", "v13", "v6")
        self.can_addr(aCAN, aCANR, sI)
        e(f"s_lshl_b32 {sA}, {sW}, 8\nv_lshlrev_b32 v6, 11, {vG}\nv_lshl_add_u32 v6, {vC}, 4, v6\nv_add_u32 {aS3LD}, {sA}, v6")
        e(f"v_bfe_u32 v10, {vC}, 2, 1\ns_add_u32 {sB}, {sA}, {B_XP}\nv_lshlrev_b32 v6, 7, v10\nv_add_u32 v6, {sB}, v6\nv_add_u32 {aXPR1}, v6, v11")
        e(f"v_lshrrev_b32 v8, 3, {vC}\nv_lshl_add_u32 v6, v8, 6, v6\nv_lshl_add_u32 v6, {vq}, 4, v6\nv_lshl_add_u32 {aXPW}, {vG}, 2, v6")
        e(f"v_mov_b32 v6, {B_ONES}")
        self.sel(aXPR0, f"v_cmp_eq_u32 vcc, 8, {vC}", aXPR1, "v6")
        e(f"s_mul_i32 {sB}, {sW}, 768\ns_add_u32 {sB}, {sB}, {B_RB}\nv_add_u32 v6, {sB}, v7")
        self.sel(aRBW, f"v_cmp_gt_u32 vcc, 48, {vL}", "v12", "v6")
        e(f"v_and_b32 v8, 1, {vG}\nv_lshlrev_b32 v8, 3, v8\nv_lshl_add_u32 v8, {vC}, 4, v8\nv_add_u32 {aRBC}, {B_RB+512}, v8")
        e(f"v_lshrrev_b32 v9, 5, {vL}\nv_lshl_add_u32 v8, v9, 8, v8\nv_add_u32 {aRBR}, {B_RB}, v8")
        e(f"v_lshlrev_b32 v6, 6, v9\nv_add_u32 {aSTR}, {B_ST}, v6")
        e(f"s_lshl_b32 {sB}, {sW}, 3\ns_add_u32 {sB}, {sB}, {B_ST}\nv_lshlrev_b32 v6, 4, {vL}\nv_add_u32 v6, {sB}, v6\nv_and_b32 v8, 0xfffffffb, {vL}")
        self.sel(aSTW, "v_cmp_eq_u32 vcc, 0, v8", "v12", "v6")
        e(f"s_lshl_b32 {sB}, {sW}, 7\ns_add_u32 {sB}, {sB}, {B_H}\nv_lshlrev_b32 v6, 1, {vL}\nv_add_u32 {aHW}, {sB}, v6")
        e(f"v_lshl_add_u32 v6, v10, 6, v11\nv_add_u32 {aHR}, {sB}, v6")
        e(f"s_lshl_b32 {sB}, {sF}, 11\ns_add_u32 {sB}, {sB}, {sA}\nv_lshlrev_b32 v6, 2, {vL}\nv_add_u32 {aS45}, {sB}, v6")
        e(f"v_mov_b32 v8, 0x3f803f80\nv_add_u32 v6, {B_ONES}, v6\nds_write_b32 v6, v8")
        e(f"v_lshrrev_b32 v6, 2, {vL}\nv_mul_u32_u24 v6, 1056, v6\nv_lshl_add_u32 v6, {vq}, 3, v6\ns_lshl_b32 {sA}, {sW}, 7\nv_add_u32 v28, {sA}, v6\nv_add_u32 v29, {64*1056}, v28")
        self.stamp("addr")
        e("s_waitcnt lgkmcnt(0)")
        self.stamp("E")
        self.tags()
        if o["bdelay"]:
            e(f"s_sleep {o['bdelay']}")
        if o["bhelp"]:
            lh = self.lab("nh")
            e(f"s_cmp_ge_u32 {sW}, 4\ns_cbranch_scc1 {lh}")
            e(f"v_lshrrev_b32 v6, 3, v0\nv_lshlrev_b32 v6, 13, v6\nv_and_b32 v8, 7, v0\nv_lshl_add_u32 v6, v8, 7, v6\ns_lshl_b32 {sA}, {sI}, 8\ns_add_u32 {sA}, {sA}, {sJ}\ns_lshl_b32 {sA}, {sA}, 10")
            e(f"buffer_load_dword v254, v6, {srd(S_WUK)}, {sA} offen\n{lh}:")
            if o["bdelay2"]:
                e(f"s_sleep {o['bdelay2']}")
        e(f"s_mul_i32 {sC}, {sW}, {16*1056}\ns_lshl_b32 {sD}, {sHG}, 13")
        for q in range(16):
            if q == 0:
                self.stamp("ckv0")
            if q == 8:
                self.stamp("ckv8")
                e("s_barrier")
            e(f"s_add_u32 {sA}, {sD}, {q*1024}\ns_and_b32 {sA}, {sA}, 0x3fff\ns_add_u32 m0, {sC}, {B_CKV + q*1056}\nbuffer_load_dwordx4 v31, {srd(S_CKV)}, {sA} offen lds")
        self.stamp('ckviss')
        for L in range(2):
            X = "'" * L
            l = self.lab("s1")
            if L == 0:
                e("s_waitcnt vmcnt(0)")
                self.stamp('ckv')
                for u in range(16):
                    e(f"ds_read_b128 {R(CS_+4*u,4)}, v30 offset:{B_CKV+u*64}")
            self.canary_wait(L, aCANR, o["d_s1"])
            self.stamp("S1can" + X)
            e(f"s_mov_b32 {sA}, {S1R(L)}")
            self.retry_head(l, 2 - L)
            e(f"buffer_load_dwordx4 v[8:11], {aS1LD}, {srd(S_WS)}, {sA} offen sc1\nbuffer_load_dwordx4 v[12:15], {aS1LD}, {srd(S_WS)}, {sA} offen offset:1024 sc1")
            e("s_waitcnt vmcnt(0)")
            e(f"ds_write_b128 {aQAW}, v[8:11]\nds_write_b128 {aQAW}, v[12:15] offset:1056")
            self.check(list(range(8, 16)), sP, sM, "v6")
            e(f"s_cbranch_vccnz {l}")
            self.stamp('S1got' + X)
            self.bar()
            for u in range(4):
                e(f"ds_read_b128 {R(8+4*u,4)}, {aQAR} offset:{u*64}")
            for u in range(16):
                e(f"s_waitcnt lgkmcnt({min(3, 15-u)})")
                self.mfma(24, CS_ + 4 * u, 8 + 4 * (u & 3), None if u == 0 else 24)
                if u + 4 < 16:
                    e(f"ds_read_b128 {R(8+4*(u&3),4)}, {aQAR} offset:{(u+4)*64}")
            if L == 0:
                for u in range(4):
                    for t in range(4):
                        base, off = ("v28", u * 32 * 1056) if u < 2 else ("v29", (u - 2) * 32 * 1056)
                        e(f"ds_read_b64_tr_b16 {R(CP+16*u+4*t,2)}, {base} offset:{off+32*t}\nds_read_b64_tr_b16 {R(CP+16*u+4*t+2,2)}, {base} offset:{off+32*t+16*1056}")
            e("v_max3_f32 v8, v24, v25, v26\nv_max_f32 v8, v8, v27")
            self.allred(["v8"], "v_max_f32", ["v9"], [16, 32])
            e(f"ds_write_b32 {aMXW}, v8")
            self.bar()
            self.stamp('Y2' + X)
            self.canary_set(2 + L, aCAN, o['lead_s2'] == 2)
            e(f"ds_read_b128 v[8:11], {aMXR}\nds_read_b128 v[12:15], {aMXR} offset:16\ns_waitcnt lgkmcnt(0)")
            e("v_max3_f32 v8, v8, v9, v10\nv_max3_f32 v12, v12, v13, v14\nv_max3_f32 v8, v8, v11, v15\nv_max_f32 v20, v8, v12")
            for r in range(4):
                e(f"v_sub_f32 v{24+r}, v{24+r}, v20")
            for r in range(4):
                e(f"v_exp_f32 v{24+r}, v{24+r}")
            e("v_cvt_pk_bf16_f32 v8, v24, v25\nv_cvt_pk_bf16_f32 v9, v26, v27")
            e(f"ds_write_b64 {aPW}, v[8:9]")
            e("v_add_f32 v10, v24, v25\nv_add_f32 v11, v26, v27\nv_add_f32 v10, v10, v11")
            self.allred(["v10"], "v_add_f32", ["v11"], [16, 32])
            e(f"ds_write_b32 {aMXW}, v10 offset:512")
            self.bar()
            self.stamp('Y3' + X)
            self.canary_set(2 + L, aCAN, o['lead_s2'] == 1)
            PA = 236
            for u in range(4):
                e(f"ds_read_b128 {R(PA+4*u,4)}, {aPR} offset:{u*64}")
            e(f"ds_read_b128 v[8:11], {aMXR} offset:512\nds_read_b128 v[12:15], {aMXR} offset:528")
            D = [16, 24, 28, 252]
            for u in range(4):
                if u < 2:
                    e(f"s_waitcnt lgkmcnt({5-u})")
                for t in range(4):
                    self.mfma(D[t], PA + 4 * u, CP + 16 * u + 4 * t, None if u == 0 else D[t])
                if u == 1:
                    e("s_waitcnt lgkmcnt(0)")
                    e("v_add_f32 v8, v8, v9\nv_add_f32 v10, v10, v11\nv_add_f32 v12, v12, v13\nv_add_f32 v14, v14, v15\nv_add_f32 v8, v8, v10\nv_add_f32 v12, v12, v14\nv_add_f32 v8, v8, v12")
                    e("v_rcp_f32 v9, v8\nv_log_f32 v8, v8")
                    for r in range(4):
                        e(f"ds_bpermute_b32 v{12+r}, {aBP}, v9 offset:{4*r}")
                    e(f"v_add_f32 v22, v8, v20\nv_mov_b32 v23, {vT}\ns_mov_b32 {sA}, {LSE(L)}")
                    e(f"buffer_store_dwordx2 v[22:23], {aLSEST}, {srd(S_WS)}, {sA} offen sc1")
            e("s_waitcnt lgkmcnt(0)")
            for r in range(4):
                e(f"s_mov_b32 {sA}, {S2R(L) + r*65536}")
                for t in range(4):
                    e(f"v_mul_f32 v{D[t]+r}, v{D[t]+r}, v{12+r}")
                self.packtag(f"v{8+2*(r&1)}", f"v{D[0]+r}", f"v{D[1]+r}", "v6", "v7")
                self.packtag(f"v{9+2*(r&1)}", f"v{D[2]+r}", f"v{D[3]+r}", "v20", "v21")
                e(f"buffer_store_dwordx2 {R(8+2*(r&1),2)}, {aS2ST}, {srd(S_WS)}, {sA} offen sc1")
            self.canary_set(2 + L, aCAN, o['lead_s2'] == 0)
            self.stamp('S2pub' + X)
            lnf = self.lab("nf")
            e(f"s_cmp_ge_u32 {sF}, 43\ns_cbranch_scc1 {lnf}")
            if L == 0:
                e("s_barrier")
                e(f"v_lshrrev_b32 v6, 2, {vL}\ns_lshl_b32 {sA}, {sW}, 6\nv_add_u32 v6, {sA}, v6\nv_mul_u32_u24 v6, 2752, v6\nv_and_b32 v15, 3, {vL}\nv_lshl_add_u32 v6, v15, 4, v6\ns_lshl_b32 {sA}, {sF}, 6\nv_add_u32 v6, {sA}, v6")
                e(f"s_lshl_b32 {sC}, {sW}, 12")
                for sr, base in ((S_WG, B_FG), (S_WU, B_FU)):
                    for q in range(4):
                        e(f"s_mov_b32 {sA}, {q*16*2752}\ns_add_u32 m0, {sC}, {base + q*1024}\nbuffer_load_dwordx4 v6, {srd(sr)}, {sA} offen lds")
                e("s_barrier")
                e(f"v_lshrrev_b32 v6, 3, {vL}\nv_lshlrev_b32 v6, 10, v6\nv_and_b32 v7, 7, {vL}\nv_lshl_add_u32 v6, v7, 4, v6\ns_lshl_b32 {sA}, {sF}, 15\ns_lshl_b32 {sB}, {sW}, 7\ns_add_u32 {sA}, {sA}, {sB}\nv_add_u32 v6, {sA}, v6")
                for q in range(4):
                    e(f"s_mov_b32 {sA}, {q*8192}\ns_add_u32 m0, {sC}, {B_FD + q*1024}\nbuffer_load_dwordx4 v6, {srd(S_WD)}, {sA} offen lds")
                e(f"v_bfe_u32 v14, {vL}, 2, 2\nv_and_b32 v6, 1, v14\nv_lshlrev_b32 v6, 4, v6\nv_lshl_add_u32 v6, {vG}, 2, v6\nv_lshrrev_b32 v7, 1, v14\nv_add_u32 v6, v6, v7\nv_lshlrev_b32 v6, 6, v6\nv_lshl_add_u32 v6, v15, 3, v6\nv_add_u32 v6, {sC}, v6")
                e(f"v_lshl_add_u32 v7, {vG}, 3, v14\nv_lshlrev_b32 v7, 7, v7\nv_lshl_add_u32 v7, v15, 3, v7\nv_add_u32 v7, {sC}, v7\nv_add_u32 v7, {B_FD}, v7")
                e("s_waitcnt vmcnt(4)")
                for mi, base in enumerate((B_FG, B_FU)):
                    for tt in range(2):
                        for u in range(2):
                            rg = FG + 8 * (2 * tt + mi) + 4 * u
                            off = base + u * 2048 + 32 * tt
                            e(f"ds_read_b64_tr_b16 {R(rg,2)}, v6 offset:{off}\nds_read_b64_tr_b16 {R(rg+2,2)}, v6 offset:{off+128}")
                e("s_waitcnt vmcnt(0)")
                for tt in range(4):
                    e(f"ds_read_b64_tr_b16 {R(FD+4*tt,2)}, v7 offset:{32*tt}\nds_read_b64_tr_b16 {R(FD+4*tt+2,2)}, v7 offset:{32*tt+512}")
                self.stamp('ffnW')
            self.canary_wait(4 + L, aCANR, o["d_s3"])
            self.stamp('S3can' + X)
            l = self.lab("s3")
            e(f"s_mov_b32 {sA}, {S3R(L)}\ns_mov_b32 {sB}, {S3R(L)+8192}")
            self.retry_head(l)
            e(f"buffer_load_dwordx4 v[8:11], {aS3LD}, {srd(S_WS)}, {sA} offen sc1\nbuffer_load_dwordx4 v[12:15], {aS3LD}, {srd(S_WS)}, {sB} offen sc1\ns_waitcnt vmcnt(0)")
            self.check(list(range(8, 16)), sP, sM, "v6")
            e(f"s_cbranch_vccnz {l}")
            self.canary_set(6 + L, aCAN, o['lead_s45'] == 2)
            self.stamp('S3got' + X)
            for k in range(4):
                e(f"v_lshlrev_b32 v{16+2*k}, 16, v{8+k}\nv_and_b32 v{17+2*k}, 0xffff0000, v{8+k}\nv_lshlrev_b32 v{24+2*k}, 16, v{12+k}\nv_and_b32 v{25+2*k}, 0xffff0000, v{12+k}")
            for k in range(8):
                e(f"v_add_f32 v{16+k}, v{16+k}, v{24+k}")
            for k in range(4):
                e(f"v_permlane32_swap_b32 v{16+k}, v{20+k}")
            for k in range(4):
                e(f"v_add_f32 v{16+k}, v{16+k}, v{20+k}")
            e("v_permlane16_swap_b32 v16, v18\nv_permlane16_swap_b32 v17, v19\nv_add_f32 v16, v16, v18\nv_add_f32 v17, v17, v19")
            aXPR = aXPR0 if L == 0 else aXPR1
            e(f"v_cvt_pk_bf16_f32 v6, v16, v17\nds_write_b32 {aXPW}, v6\ns_waitcnt lgkmcnt(0)")
            e(f"ds_read_b128 v[8:11], {aXPR}\nds_read_b128 v[12:15], {aXPR} offset:64")
            e("v_lshlrev_b32 v16, 16, v6\nv_and_b32 v17, 0xffff0000, v6\nv_add_f32 v6, v16, v17\nv_mul_f32 v7, v16, v16\nv_fmac_f32 v7, v17, v17")
            e("s_waitcnt lgkmcnt(1)")
            DD = [16, 20, 24, 28]
            for t in range(4):
                self.mfma(DD[t], 8, FG + 8 * t)
            e("s_waitcnt lgkmcnt(0)")
            for t in range(4):
                self.mfma(DD[t], 12, FG + 8 * t + 4, DD[t])
            self.allred(["v6", "v7"], "v_add_f32", ["v8", "v9"], [1, 2, 8, 16, 32])
            e(f"ds_write_b64 {aSTW}, v[6:7]")
            e(f"v_mov_b32 v17, v20\nv_mov_b32 v18, v24\nv_mov_b32 v19, v28\nds_write_b128 {aRBW}, v[16:19]")
            self.bar()
            self.stamp('Z1' + X)
            self.canary_set(6 + L, aCAN, o['lead_s45'] == 1)
            for k in range(4):
                e(f"ds_read_b128 {R(236+4*k,4)}, {aSTR} offset:{16*k}")
            for k in range(8):
                e(f"ds_read_b64 {R(8+2*k,2)}, {aRBR} offset:{768*k}")
            e("s_waitcnt lgkmcnt(8)")
            e("v_add_f32 v6, v236, v238\nv_add_f32 v7, v237, v239")
            for k in range(2, 8):
                e(f"v_add_f32 v6, v6, v{236+2*k}\nv_add_f32 v7, v7, v{237+2*k}")
            e(f"v_mul_f32 v6, {f32(1/512)}, v6\nv_mov_b32 v24, {f32(1e-5)}\nv_fmac_f32 v24, {f32(1/512)}, v7\nv_fma_f32 v24, -v6, v6, v24\nv_rsq_f32 v24, v24")
            if L == 0:
                for k in range(8):
                    e(f"ds_read_b64 {R(236+2*k,2)}, {aRBC} offset:{768*k}")
            e(f"s_waitcnt lgkmcnt({8 if L == 0 else 0})")
            for k in range(1, 8):
                e(f"v_add_f32 v8, v8, v{8+2*k}\nv_add_f32 v9, v9, v{9+2*k}")
            if L == 0:
                e(f"s_waitcnt lgkmcnt(0)\nv_add_f32 {vCG}, v236, v238\nv_add_f32 {vCU}, v237, v239")
                for k in range(2, 8):
                    e(f"v_add_f32 {vCG}, {vCG}, v{236+2*k}\nv_add_f32 {vCU}, {vCU}, v{237+2*k}")
            e(f"v_fma_f32 v8, -v6, {vCG}, v8\nv_fma_f32 v9, -v6, {vCU}, v9\nv_mul_f32 v8, v8, v24\nv_mul_f32 v9, v9, v24")
            if o.get("dbgffn") and L == 0:
                e(f"v_mov_b32 v12, v8\nv_mov_b32 v13, v9\nv_mov_b32 v14, v24\nv_mov_b32 v15, {vCG}\ns_lshl_b32 {sA}, {sF}, 13\ns_add_u32 {sA}, {sA}, 0xD000000\nv_lshlrev_b32 v10, 4, v0\nbuffer_store_dwordx4 v[12:15], v10, {srd(S_WS)}, {sA} offen")
            c1 = -2 * 0.7978845608028654 * math.log2(math.e)
            e(f"v_mul_f32 v10, v8, v8\nv_mov_b32 v11, {f32(c1)}\nv_fmac_f32 v11, {f32(c1*0.044715)}, v10\nv_mul_f32 v10, v11, v8\nv_exp_f32 v10, v10")
            e(f"v_mul_f32 v8, v8, v9\nv_add_f32 v10, 1.0, v10\nv_rcp_f32 v10, v10\ns_mov_b32 {sA}, {S45(L)}\nv_mul_f32 v8, v8, v10")
            e(f"v_cvt_pk_bf16_f32 v8, v8, v8\nds_write_b16 {aHW}, v8\ns_waitcnt lgkmcnt(0)\nds_read_b128 v[8:11], {aHR}\ns_waitcnt lgkmcnt(0)")
            for t in range(4):
                self.mfma(DD[t], 8, FD + 4 * t)
            self.packtag("v8", "v16", "v20", "v10", "v11")
            self.packtag("v9", "v24", "v28", "v12", "v13")
            e(f"v_permlane32_swap_b32 v8, v9\nbuffer_store_dword v8, {aS45}, {srd(S_WS)}, {sA} offen sc1")
            self.canary_set(6 + L, aCAN, o['lead_s45'] == 0)
            self.stamp('S45pub' + X)
            e(f"{lnf}:")
        self.dump_stamps()


if __name__ == "__main__":
    import argparse
    ap = argparse.ArgumentParser()
    ap.add_argument("-o", default=f"cdna_kernels/{NAME}.s")
    ap.add_argument("--opt", action="append", default=[])
    a = ap.parse_args()
    opts = {k: int(v) for k, v in (x.split("=") for x in a.opt)}
    open(a.o, "w").write(Gen(**opts).build())
```

```python
import sys, math, struct
sys.path.insert(0, "scratch")
from asmlib import hazard_pass

NAME = "interleave_layers__compressed_kv_cla__glu_gated_geglu__decode"
f32 = lambda x: "0x%08x" % struct.unpack("<I", struct.pack("<f", x))[0]

CAN = 0x1000
PRET = 0x3800
I0S = lambda L: 0x4000 + L * 0x4000
LSE = lambda L: 0xC000 + L * 0x4000
S3R = lambda L: 0x18000 + L * 0x4000
S1R = lambda L: 0x20000 + L * 0x10000
S45 = lambda L: 0x40000 + L * 0x18000
I1R = lambda L: 0x70000 + L * 0x20000
COLS = 0xB0000
I0R = lambda L: 0x100000 + L * 0x80000
S2R = lambda L: 0x201000 + L * 0x201000
PRET2 = (0x200000, 0x401000, 0x602000)
STAMP = 0xE000000
OOB = 0x7FFFFF00
A_WQ = 0
A_OS = 0
A_XR = 18432
A_WUK = 34048
A_WUV = 67840
A_WO = 101632
A_Q = 134400
A_WW = A_Q + 512
A_CC = A_WW + 256
A_CT = A_CC + 512
A_RR = A_CT + 2048
A_XS = A_RR + 2048
A_DUM = A_XS + 256
B_CKV = 0
B_QA = 135168
B_MX = 152064
B_LI = B_MX + 1024
B_P = B_LI + 512
B_ONES = B_P + 4608
B_DUM = B_ONES + 128
LDS_BYTES = B_DUM + 256
B_FG = 0
B_FU = 32768
B_FD = 65536
B_XP = 98304
B_H = B_XP + 2048
B_RB = B_H + 1024
B_ST = B_RB + 6144

S_WS, S_X, S_CKV, S_WQ, S_WUK, S_WUV, S_WO, S_WG, S_WU, S_WD, S_OUT = [4 + 4 * k for k in range(11)]
sT1, sT2, sT3, sBW = "s48", "s49", "s50", "s51"
sJ, sI, sW, sT, sM, sFF, sSEL, sGUARD, sPLAIN, sXCC, sPA, sE = ["s%d" % (52 + k) for k in range(12)]
sA, sB, sC, sD = "s64", "s65", "s66", "s67"
sH, sCS = "s68", "s69"
sMASK = "s[70:71]"
sMEAN, sRSTD = "s72", "s73"
STAMP0 = 78
srd = lambda b: f"s[{b}:{b+3}]"
vL, vC, vG, vT = "v1", "v2", "v3", "v4"
DPPM = "row_mask:0xf bank_mask:0xf"
DP = {1: "quad_perm:[1,0,3,2]", 2: "quad_perm:[2,3,0,1]", 4: "row_half_mirror", 8: "row_ror:8"}

PROFILES = [
    (["start", "Wq", "P1a", "I0got", "S1pub", "Wo", "S2can", "S2got", "I1got", "S3pub", "S45got"],
     ["start", "ckv", "S1can", "S1got", "Y2", "Y3", "S2pub", "ffnW", "S3can", "S3got", "S45pub"]),
    (["start", "S45got", "P1a'", "I0got'", "S1pub'", "S2can'", "S2got'", "I1pub'", "I1got'", "S3pub'", "end"],
     ["start", "S45pub", "S1can'", "S1got'", "Y2'", "Y3'", "S2pub'", "S3can'", "S3got'", "Z1'", "S45pub'"]),
    (["start", "karg", "E", "Wq", "Wuk", "P1a", "I0pr", "I0got", "S1pub", "Wo", "S2can"],
     ["start", "karg", "E", "ckv0", "ckv8", "ckviss", "ckv", "S1can", "S1got", "Y2", "S2pub"]),
    (["start", "end", "S45got"], ["start"]),
]


def R(a, n=1):
    return f"v{a}" if n == 1 else f"v[{a}:{a+n-1}]"


class Gen:
    def __init__(self, **o):
        self.o = dict(stamps=0, bdelay=14, bdelay2=0, adelay=8, d_s1=0, d_s2=8, d_s3=7, d_s45=3, e_s1=4, e_s2=9, e_s3=9, e_s45=4, guard=0x400000, backoff=2,
                      lead_s1=1, lead_s2=1, lead_s3=1, lead_s45=1, prof=0, i0tries=24, bhelp=4, wohelp=1, fhelp=1, amp=0, warm=1, wukdelay=20)
        self.o.update(o)
        for h in ('s1', 's2', 's3', 's45'):
            self.o.setdefault('e_' + h, self.o['d_' + h])
        self.L = []
        self.uid = 0
        self.nst = 0
        self.cold = []
        self.NA, self.NB = PROFILES[self.o["prof"]]
        self.names = self.NA

    def e(self, s):
        for ln in s.split("\n"):
            self.L.append(ln)

    def lab(self, p):
        self.uid += 1
        return f"L_{p}_{self.uid}"

    def stamp(self, name):
        if self.o["stamps"] and name in self.names:
            k = self.names.index(name)
            self.e(f"s_memrealtime s[{STAMP0+2*k}:{STAMP0+2*k+1}]")

    def dump_stamps(self):
        if not self.o["stamps"]:
            return
        e = self.e
        e("s_waitcnt lgkmcnt(0)")
        for k in range(11):
            e(f"v_mov_b32 v{8+k}, s{STAMP0+2*k}")
        e(f"s_lshl_b32 {sA}, s2, 9\ns_lshl_b32 {sB}, {sW}, 6\ns_add_u32 {sA}, {sA}, {sB}\ns_add_u32 {sA}, {sA}, {STAMP}")
        e(f"v_mov_b32 v6, {OOB}\nv_cmp_eq_u32 vcc, 0, {vL}\nv_cndmask_b32 v6, v6, {vL}, vcc")
        e(f"v_mov_b32 v20, {sGUARD}\nv_mov_b32 v21, {sT}\nv_mov_b32 v22, {sPLAIN}\nv_mov_b32 v23, s3")
        for k in range(4):
            e(f"buffer_store_dwordx4 v[{8+4*k}:{11+4*k}], v6, {srd(S_WS)}, {sA} offen offset:{16*k}")

    def mfma(self, d, a, b, c=None):
        self.e(f"v_mfma_f32_16x16x32_bf16 {R(d,4)}, {R(a,4)}, {R(b,4)}, {'0' if c is None else R(c,4)}")

    def bar(self):
        self.e("s_waitcnt lgkmcnt(0)\ns_barrier")

    def guard(self):
        if self.o["stamps"]:
            self.nst += 1
            self.e(f"s_movk_i32 s3, {self.nst}")
        self.e(f"s_sub_u32 {sGUARD}, {sGUARD}, 1\ns_cbranch_scc1 {'L_bail' if self.o['stamps'] else 'L_end'}")

    def sel(self, dst, cond, a, b):
        self.e(cond)
        self.e(f"v_cndmask_b32 {dst}, {a}, {b}, vcc")

    def check(self, regs, pats, mask, acc, extra=None):
        e = self.e
        e(f"v_xor_b32 {acc}, {pats[0]}, v{regs[0]}")
        for n, r in enumerate(regs[1:], 1):
            e(f"v_bitop3_b32 {acc}, v{r}, {pats[n & 3]}, {acc} bitop3:0xbe")
        e(f"v_and_or_b32 {acc}, {acc}, {mask}, {extra}" if extra else f"v_and_b32 {acc}, {mask}, {acc}")
        e(f"v_cmp_ne_u32 vcc, 0, {acc}")

    def pat(self, dst, src, sh, kk=None):
        e = self.e
        e(f"v_bfe_u32 {dst}, {src}, {sh}, 2\nv_lshl_or_b32 {dst}, {dst}, 15, {dst}")
        if kk:
            e(f"v_not_b32 {kk[1]}, {dst}\nv_and_b32 {kk[0]}, 1, {kk[1]}\nv_lshlrev_b32 {kk[0]}, 16, {kk[0]}\nv_and_b32 {kk[1]}, 0x10000, {kk[1]}")

    def cons_pats(self, P):
        self.e(f"v_and_b32 v6, 3, {vL}\nv_lshlrev_b32 v6, 3, v6\nv_lshrrev_b32 v6, v6, {vT}")
        for k in range(4):
            self.pat(P[k], "v6", 2 * k)

    def pack_near(self, dst, lo, hi, t0, t1, p, kk):
        e = self.e
        e(f"v_add_u32 {t0}, {kk[0]}, {lo}\nv_add_u32 {t1}, {kk[1]}, {hi}")
        e(f"v_perm_b32 {t0}, {t1}, {t0}, {sSEL}\nv_bfi_b32 {dst}, {sM}, {p}, {t0}")

    def pack_ovw(self, dst, lo, hi, p):
        self.e(f"v_cvt_pk_bf16_f32 {dst}, {lo}, {hi}\nv_bfi_b32 {dst}, {sM}, {p}, {dst}")

    def allred(self, regs, op, tmps, steps):
        e = self.e
        for s in steps:
            if s in DP:
                for r in regs:
                    e(f"{op}_dpp {r}, {r}, {r} {DP[s]} {DPPM}")
            else:
                for r, t in zip(regs, tmps):
                    e(f"v_mov_b32 {t}, {r}")
                for r, t in zip(regs, tmps):
                    e(f"v_permlane{s}_swap_b32 {r}, {t}")
                for r, t in zip(regs, tmps):
                    e(f"{op} {r}, {r}, {t}")

    def can_addr(self, vw, vr, sidx):
        e = self.e
        e(f"s_lshl_b32 {sA}, {sidx}, 9\nv_add_u32 v6, {sA}, v0\ns_lshl_b32 {sA}, {sJ}, 7\ns_add_u32 {sA}, {sA}, {CAN}\nv_mov_b32 v8, {sA}\nv_cmp_eq_u32 vcc, 0, v6\nv_cndmask_b32 {vw}, v13, v8, vcc")
        e(f"v_and_b32 v6, 7, v0\nv_lshlrev_b32 v6, 7, v6\nv_add_u32 {vr}, {CAN}, v6")

    def canary_wait(self, idx, vr, delay, pre=None, wsel=0):
        e = self.e
        l, l2 = self.lab("can"), self.lab("cb")
        e(f"s_cmp_lg_u32 {sW}, {wsel}\ns_cbranch_scc1 {l2}\ns_movk_i32 {sA}, {idx*1024}\ns_mov_b64 exec, 0xff")
        e(f"{l}:")
        self.guard()
        e(f"buffer_load_dword v6, {vr}, {srd(S_WS)}, {sA} offen sc1\ns_waitcnt vmcnt(0)")
        e(f"v_cmp_ne_u32 vcc, v6, {vT}\ns_cbranch_vccnz {l}\ns_mov_b64 exec, -1")
        if delay:
            e(f"s_sleep {delay}")
        e(f"{l2}:")
        if pre:
            e(pre)
            self.stamp("ckv")
        e("s_barrier")

    def canary_set(self, idx, vw, cond=True):
        if cond:
            self.e(f"s_movk_i32 {sD}, {idx*1024}\nbuffer_store_dword {vT}, {vw}, {srd(S_WS)}, {sD} offen sc1")

    def oob(self, fn):
        keep, self.L = self.L, []
        fn()
        self.cold.append("\n".join(self.L))
        self.L = keep

    def retry_head(self, l, mult=1):
        l2 = self.lab("in")
        self.e(f"{l2}:")

        def stub():
            self.e(f"{l}:")
            self.guard()
            self.e(f"s_sleep {mult*self.o['backoff']}\ns_branch {l2}")
        self.oob(stub)

    def store_intra(self, ins):
        e = self.e
        l1, l2 = self.lab("sc"), self.lab("sd")
        e(f"s_cmp_eq_u32 {sPLAIN}, 0\ns_cbranch_scc1 {l1}")
        for i in ins:
            e(i)
        e(f"{l2}:")
        self.cold.append(f"{l1}:\n" + "\n".join(i + " sc1" for i in ins) + f"\ns_branch {l2}")

    def consts(self):
        self.e(f"s_mov_b32 {sM}, 0x00010001\ns_movk_i32 {sFF}, 0xff\ns_mov_b32 {sSEL}, 0x07060302\ns_mov_b32 {sGUARD}, {self.o['guard']}")

    def fin_srd(self, b, size):
        self.e(f"s_mov_b32 s{b+2}, {size}\ns_mov_b32 s{b+3}, 0x20000")

    def epoch_load(self):
        self.e(f"s_load_dword {sT}, s[{S_WS}:{S_WS+1}], 0")

    def tags(self):
        self.e(f"s_add_u32 {sT}, {sT}, 1\nv_mov_b32 {vT}, {sT}")

    def build(self):
        e = self.e
        K = NAME + "_kernel"
        e(f"; @launch grid=(256,1,1) block=(512,1,1) lds={LDS_BYTES}")
        e('.amdgcn_target "amdgcn-amd-amdhsa--gfx950"\n.text')
        e(f".globl {K}\n.p2align 8\n.type {K},@function\n{K}:")
        self.stamp('start')
        if self.o["amp"]:
            e("s_memrealtime s[98:99]")
        e("s_cmp_ge_u32 s2, 256\ns_cbranch_scc1 L_end")
        e(f"s_load_dwordx2 s[{S_WS}:{S_WS+1}], s[0:1], 96")
        e(f"s_lshr_b32 {sI}, s2, 3\ns_cmp_ge_u32 {sI}, 16\ns_cbranch_scc1 L_roleB")
        self.roleA()
        e("L_roleB:")
        self.names = self.NB
        self.roleB()
        e("s_endpgm")
        for c in self.cold:
            e(c)
        if self.o["stamps"]:
            e("L_bail:\ns_mov_b64 exec, -1")
            e(f"s_lshl_b32 {sA}, s2, 14\ns_add_u32 {sA}, {sA}, 0xC000000\nv_lshlrev_b32 v6, 5, v0\nbuffer_store_dwordx4 v[8:11], v6, {srd(S_WS)}, {sA} offen\nbuffer_store_dwordx4 v[12:15], v6, {srd(S_WS)}, {sA} offen offset:16\ns_waitcnt vmcnt(0)")
            self.dump_stamps()
        e("L_end:\ns_endpgm\nL_code_end:")
        body = hazard_pass(self.L)
        body.append(f""".section .rodata,"a"
.p2align 6
.amdhsa_kernel {K}
  .amdhsa_next_free_vgpr 256
  .amdhsa_next_free_sgpr 102
  .amdhsa_accum_offset 256
  .amdhsa_group_segment_fixed_size 0
  .amdhsa_kernarg_size 104
  .amdhsa_user_sgpr_count 2
  .amdhsa_user_sgpr_kernarg_segment_ptr 1
  .amdhsa_system_sgpr_workgroup_id_x 1
.end_amdhsa_kernel""")
        return "\n".join(body) + "\n"

    def roleA(self):
        e, o = self.e, self.o
        WQ, WUK, WUV, WO, XOP, SEL0, SEL4 = 32, 64, 128, 144, 160, 164, 168
        vCS, vONE, vTL = "v172", "v173", "v28"
        (aXOFF, aWROW, aI0ST0, aI0ST1, aI0LD, aCSLD, aSTLD, aSTST, aQW, aQR, aS1ST, aS2LD, aOSW, aLSE, aWW, aWA0, aWA1,
         aOTR, aCCW, aCCR, aI1ST, aI1LD, aCTW, aCTR, aRRW, aRRR, aS3ST, aXLD, aXRW, aXTR, aXSW, aCANW, aCANR, aOUT) = ["v%d" % (174 + k) for k in range(34)]
        TB = [vT, "v208", "v209", "v210"]
        PC = ["v240", "v241", "v242", "v243"]
        Q0, Q1, K0, K1 = "v252", "v253", ("v254", "v255"), ("v211", "v5")
        P3, K3 = "v30", ("v31", "v29")
        sTB = [sT, sT1, sT2, sT3]
        vr, vq = "v14", "v15"
        e(f"s_load_dwordx2 s[{S_WQ}:{S_WQ+1}], s[0:1], 16\ns_load_dwordx2 s[{S_WUK}:{S_WUK+1}], s[0:1], 24\ns_load_dwordx2 s[{S_X}:{S_X+1}], s[0:1], 0")
        e(f"v_lshrrev_b32 v6, 6, v0\nv_and_b32 {vC}, 15, v0\ns_and_b32 {sJ}, s2, 7\nv_readfirstlane_b32 {sW}, v6\nv_bfe_u32 {vG}, v0, 4, 2\nv_lshlrev_b32 v7, 4, {vC}")
        self.fin_srd(S_WQ, 4 << 20)
        self.fin_srd(S_WUK, 4 << 20)
        e(f"s_and_b32 {sBW}, {sI}, 3\ns_lshl_b32 {sH}, {sJ}, 2\ns_add_u32 {sH}, {sH}, {sBW}\ns_lshr_b32 {sCS}, {sI}, 2\ns_mul_i32 {sD}, {sW}, 8448")
        ljn = self.lab("jn")
        e(f"s_cmp_ge_u32 {sW}, 4\ns_cbranch_scc1 {ljn}")
        e(f"s_lshl_b32 {sA}, {sI}, 8\ns_add_u32 {sA}, {sA}, {sJ}\ns_lshl_b32 {sA}, {sA}, 2\ns_add_u32 {sA}, {sA}, {sW}\ns_lshl_b32 {sA}, {sA}, 8\nv_lshl_add_u32 v9, {vG}, 15, v7\nv_add_u32 v9, {sA}, v9")
        e(f"v_bfe_u32 v10, {vC}, 2, 1\nv_lshlrev_b32 v6, 10, v10\nv_lshl_add_u32 v6, {vG}, 2, v6\ns_lshl_b32 {sB}, {sI}, 6\nv_add_u32 {aXOFF}, {sB}, v6")
        self.fin_srd(S_X, 2048)
        e("s_waitcnt lgkmcnt(0)")
        self.stamp("karg")
        for k, off in enumerate((0, 32, 16, 48)):
            e(f"buffer_load_dword v{24+k}, {aXOFF}, {srd(S_X)}, 0 offen offset:{off}")
        for q in range(8):
            e(f"s_mov_b32 {sA}, {((q & 3) + 16*(q >> 2))*8192}\ns_add_u32 m0, {sD}, {A_WQ + q*1056}\nbuffer_load_dwordx4 v9, {srd(S_WQ)}, {sA} offen lds")
        e(f"{ljn}:\ns_waitcnt lgkmcnt(0)")
        self.epoch_load()
        for b, slot in ((S_WUV, 4), (S_WO, 5), (S_OUT, 10)):
            e(f"s_load_dwordx2 s[{b}:{b+1}], s[0:1], {slot*8}")
        self.fin_srd(S_WS, 0x10000000)
        e(f"v_and_b32 {vL}, 63, v0\nv_mov_b32 v13, {OOB}")
        self.consts()
        e(f"s_getreg_b32 {sXCC}, hwreg(HW_REG_XCC_ID)\ns_and_b32 {sXCC}, {sXCC}, 15\ns_lshl_b32 {sPA}, {sJ}, 4\ns_add_u32 {sPA}, {sPA}, {sI}\ns_mov_b32 {sPLAIN}, 0")
        e(f"v_lshlrev_b32 v7, 4, {vL}\nv_bfe_u32 v10, {vC}, 2, 1\nv_lshlrev_b32 v11, 4, {vG}\nv_bfe_u32 {vr}, {vL}, 2, 2\nv_and_b32 {vq}, 3, {vL}")
        e(f"v_and_b32 v6, 1, {vr}\nv_lshlrev_b32 v6, 2, v6\nv_lshrrev_b32 v8, 1, {vr}\nv_add_u32 v6, v6, v8\nv_and_b32 v8, 1, {vG}\nv_lshl_add_u32 v6, v8, 1, v6\nv_mul_u32_u24 v6, 1056, v6")
        e(f"v_lshrrev_b32 v8, 1, {vG}\nv_lshl_add_u32 v6, v8, 8, v6\nv_lshl_add_u32 v6, {vq}, 3, v6\nv_add_u32 v31, {sD}, v6")
        e(f"s_lshl_b32 {sA}, {sPA}, 2\ns_add_u32 {sA}, {sA}, {sW}\ns_lshl_b32 {sB}, {sA}, 10\ns_add_u32 {sB}, {sB}, {I0R(0)}\nv_add_u32 v6, {sB}, v7\nv_cmp_gt_u32 vcc, 32, {vL}")
        e(f"s_lshl_b32 {sB}, {sA}, 9\ns_add_u32 {sB}, {sB}, {COLS - 512}\nv_cndmask_b32 {aI0ST1}, v13, v6, vcc\nv_add_u32 v6, {sB}, v7")
        e(f"s_lshl_b32 {sA}, {sH}, 2\ns_add_u32 {sA}, {sA}, {sCS}\ns_lshl_b32 {sB}, {sA}, 1\ns_and_b32 {sC}, {sW}, 1\ns_add_u32 {sB}, {sB}, {sC}\ns_lshl_b32 {sB}, {sB}, 7")
        e(f"v_lshlrev_b32 v8, 15, {vG}\nv_lshl_add_u32 v8, {vC}, 3, v8\nv_add_u32 v8, {sB}, v8\nv_cndmask_b32 {aS1ST}, v13, v8, vcc")
        self.sel(aI0ST0, f"v_cmp_eq_u32 vcc, 2, {vG}", aI0ST1, "v6")
        e(f"v_add_u32 v6, 256, {aI0ST0}\nv_add_u32 v8, 512, {aI0ST0}\nv_cndmask_b32 {aOUT}, v8, v6, vcc")
        e(f"v_lshrrev_b32 v6, 3, {vL}\nv_sub_u32 v8, {vL}, v6\nv_add_u32 v8, 3, v8\ns_mov_b32 vcc_lo, 0x01100101\ns_mov_b32 vcc_hi, 0\nv_cndmask_b32 v6, v8, v6, vcc")
        e(f"s_lshl_b32 {sA}, {sPA}, 7\nv_lshl_add_u32 v6, v6, 3, {sA}\ns_cmp_eq_u32 {sW}, 0\ns_cselect_b32 vcc_lo, 0x01103fff, 0\nv_cndmask_b32 {aSTST}, v13, v6, vcc")
        e(f"v_lshrrev_b32 v8, 3, {vL}\nv_and_b32 v9, 7, {vL}\nv_lshlrev_b32 v9, 4, v9")
        e(f"s_lshl_b32 {sA}, {sJ}, 6\ns_add_u32 {sA}, {sA}, {sBW}\ns_lshl_b32 {sB}, {sA}, 3\ns_add_u32 {sB}, {sB}, {sW}\ns_lshl_b32 {sB}, {sB}, 7")
        e(f"v_lshl_add_u32 v6, v8, 12, v9\nv_add_u32 {aI0LD}, {sB}, v6")
        e(f"s_lshr_b32 {sC}, {sW}, 2\ns_lshl_b32 {sA}, {sA}, 1\ns_add_u32 {sA}, {sA}, {sC}\ns_lshl_b32 {sA}, {sA}, 1\ns_and_b32 {sE}, {sW}, 1\ns_add_u32 {sA}, {sA}, {sE}\ns_lshl_b32 {sA}, {sA}, 7\ns_add_u32 {sA}, {sA}, {COLS}")
        e(f"v_lshl_add_u32 v6, v8, 11, v9\nv_add_u32 {aCSLD}, {sA}, v6")
        e(f"s_bfe_u32 {sB}, {sW}, 0x10001\ns_lshl_b32 {sA}, {sJ}, 7\ns_add_u32 {sA}, {sA}, {sB}\ns_lshl_b32 {sA}, {sA}, 4\nv_lshlrev_b32 v6, 7, {vC}\nv_add_u32 {aSTLD}, {sA}, v6")
        e(f"s_lshl_b32 {sA}, {sB}, 1\ns_add_u32 {sA}, {sA}, {sC}\ns_lshl_b32 {sA}, {sA}, 3\ns_add_u32 {sA}, {sA}, {sE}\ns_lshl_b32 {sA}, {sA}, 4\ns_add_u32 {sA}, {sA}, {A_Q}")
        e(f"v_lshrrev_b32 v6, 3, v9\nv_lshl_add_u32 v6, {vG}, 5, v6\nv_add_u32 {aQW}, {sA}, v6")
        e(f"v_lshl_add_u32 v6, v10, 8, v11\nv_add_u32 {aQR}, {A_Q}, v6")
        e(f"v_mov_b32 v6, 0x3f803f80\nv_cmp_eq_u32 vcc, 8, {vC}\nv_mov_b32 v8, 0\nv_cndmask_b32 {vONE}, v8, v6, vcc")
        self.can_addr(aCANW, aCANR, sI)
        lsk = self.lab("k")
        e(f"s_cmp_lt_u32 {sW}, 4\ns_cbranch_scc1 {lsk}")
        lw = self.lab("k")
        e(f"s_cmp_lg_u32 {sW}, 4\ns_cbranch_scc1 {lw}\ns_lshl_b32 {sA}, {sPA}, 12\ns_add_u32 {sA}, {sA}, {I0R(0)}\ns_lshl_b32 {sB}, {sPA}, 11\ns_add_u32 {sB}, {sB}, {COLS - 4096}\ns_lshl_b32 {sC}, {sPA}, 7\ns_add_u32 {sC}, {sC}, {I0S(0)}")
        e(f"v_lshlrev_b32 v6, 7, {vL}\nv_add_u32 v8, {sA}, v6\nv_add_u32 v6, {sB}, v6\nv_cmp_gt_u32 vcc, 32, {vL}\nv_cndmask_b32 v6, v6, v8, vcc\nv_mov_b32 v8, {sC}\nv_cmp_gt_u32 vcc, 48, {vL}\nv_cndmask_b32 v6, v8, v6, vcc")
        e(f"buffer_load_dword v28, v6, {srd(S_WS)}, 0 offen\n{lw}:")
        e(f"s_cmp_ge_u32 {sW}, 6\ns_cbranch_scc1 {lsk}")
        e(f"s_lshl_b32 {sA}, {sCS}, 1\ns_add_u32 {sA}, {sA}, {sW}\ns_sub_u32 {sA}, {sA}, 4\ns_lshl_b32 {sA}, {sA}, 11\ns_add_u32 {sA}, {sA}, {sH}\ns_lshl_b32 {sA}, {sA}, 8\nv_lshlrev_b32 v9, 4, {vC}\nv_lshl_add_u32 v9, {vG}, 13, v9\nv_add_u32 v9, {sA}, v9")
        e(f"s_lshl_b32 {sD}, {sD}, 1\ns_sub_u32 {sD}, {sD}, {8*8448 - A_WUK}")
        if o["wukdelay"]:
            e(f"s_sleep {o['wukdelay']}")
        for q in range(16):
            e(f"s_mov_b32 {sA}, {q*32768}\ns_add_u32 m0, {sD}, {q*1056}\nbuffer_load_dwordx4 v9, {srd(S_WUK)}, {sA} offen lds")
        e(f"{lsk}:\ns_waitcnt lgkmcnt(0)")
        self.stamp("E")
        self.tags()
        for k in range(1, 4):
            e(f"v_lshrrev_b32 {TB[k]}, {8*k}, {vT}\ns_lshr_b32 {sTB[k]}, {sT}, {8*k}")
        e(f"v_and_b32 v6, 7, {vC}\nv_lshlrev_b32 v6, 2, v6\nv_lshrrev_b32 v6, v6, {vT}")
        self.pat(Q0, "v6", 0, K0)
        self.pat(Q1, "v6", 2, K1)
        lsk = self.lab("k")
        e(f"s_cmp_ge_u32 {sW}, 4\ns_cbranch_scc1 {lsk}\ns_waitcnt vmcnt(0)")
        self.stamp("Wq")
        for t in range(8):
            e(f"ds_read_b64_tr_b16 {R(WQ+4*t,2)}, v31 offset:{A_WQ+32*t}\nds_read_b64_tr_b16 {R(WQ+4*t+2,2)}, v31 offset:{A_WQ+32*t+512}")
        e(f"s_mov_b32 {sA}, 0x05040100\nv_mov_b32 v6, 0x3f803f80\nv_cmp_eq_u32 vcc, 8, {vC}")
        e(f"v_perm_b32 v20, v25, v24, {sA}\nv_perm_b32 v21, v25, v24, {sSEL}\nv_perm_b32 v22, v27, v26, {sA}\nv_perm_b32 v23, v27, v26, {sSEL}")
        for k in range(4):
            e(f"v_cndmask_b32 v{XOP+k}, v{20+k}, v6, vcc")
        lsk2 = self.lab("k")
        e(f"s_waitcnt lgkmcnt(0)\ns_branch {lsk2}\n{lsk}:\ns_cmp_ge_u32 {sW}, 6\ns_cbranch_scc1 {lsk2}")
        e(f"v_mul_u32_u24 v6, 1056, {vC}\nv_lshlrev_b32 v7, 4, {vG}\nv_add3_u32 v6, {sD}, v6, v7\ns_waitcnt vmcnt(0)")
        self.stamp("Wuk")
        for u in range(4):
            for t in range(4):
                e(f"ds_read_b128 {R(WUK+16*t+4*u,4)}, v6 offset:{t*256+u*64}")
        e(f"{lsk2}:")

        for L in range(2):
            X = "'" * L
            lsk = self.lab("k")
            e(f"s_cmp_ge_u32 {sW}, 4\ns_cbranch_scc1 {lsk}")
            D = [8, 12, 16, 20, 212, 216, 220, 224]
            self.mfma(228, XOP, XOP)
            for t in range(8):
                self.mfma(D[t], XOP, WQ + 4 * t)
            e(f"s_mov_b32 {sB}, {I0R(L)-I0R(0)}\ns_mov_b32 {sC}, {I0S(L)}\nv_mov_b32 v229, {vT}")
            if L == 0:
                e(f"v_mov_b32 v6, {sXCC}\nv_bfi_b32 v228, 15, v6, v228")
            for t in range(8):
                e(f"v_bfi_b32 v{232+t}, {sFF}, {TB[t & 3]}, v{D[t]}")
            if L == 0:
                first = [f"buffer_store_dwordx4 v[232:235], {aI0ST0}, {srd(S_WS)}, 0 offen", f"buffer_store_dwordx4 v[236:239], {aOUT}, {srd(S_WS)}, 0 offen",
                         f"buffer_store_dwordx2 v[228:229], {aSTST}, {srd(S_WS)}, {sC} offen"]
                e("\n".join(first))
            else:
                self.store_intra([f"buffer_store_dwordx4 v[232:235], {aI0ST1}, {srd(S_WS)}, {sB} offen",
                                  f"buffer_store_dwordx4 v[236:239], {aI0ST1}, {srd(S_WS)}, {sB} offen offset:512",
                                  f"buffer_store_dwordx2 v[228:229], {aSTST}, {srd(S_WS)}, {sC} offen"])
            e(f"{lsk}:")
            self.stamp("P1a" + X)
            lp, lr = self.lab("i0p"), self.lab("i0r")
            e(f"s_mov_b32 {sA}, {I0R(L)}\ns_mov_b32 {sB}, {I0R(L)+32768}\ns_mov_b32 {sC}, {I0S(L)}\ns_movk_i32 {sD}, 16384")
            if L == 0:
                restore = "\n".join(x + " sc1" for x in first)
                e(f"s_movk_i32 {sE}, {o['i0tries']}")

                def stub():
                    e(f"{lr}:")
                    self.guard()
                    e(f"s_sub_u32 {sE}, {sE}, 1\ns_cmp_lg_u32 {sE}, 0\ns_cbranch_scc1 {lp}\ns_cmp_ge_u32 {sW}, 4\ns_cbranch_scc1 {lp}\ns_mov_b64 exec, -1\n{restore}\ns_branch {lp}")
                self.oob(stub)
                e(f"{lp}:")
            else:
                e(f"{lr}:")
                self.guard()
            e(f"s_mov_b64 exec, 0xffff\nbuffer_load_dwordx4 v[16:19], {aSTLD}, {srd(S_WS)}, {sC} offen sc1\ns_waitcnt vmcnt(0)")
            e(f"v_xor_b32 v7, {vT}, v17\nv_bitop3_b32 v7, v19, {vT}, v7 bitop3:0xbe\nv_cmp_ne_u32 vcc, 0, v7\ns_cbranch_vccnz {lr}")
            if L == 0:
                e(f"v_and_b32 v7, 15, v16\nv_cmp_ne_u32 vcc, {sXCC}, v7")
            e("s_mov_b64 exec, -1")
            self.stamp("I0pr" + X)
            e(f"buffer_load_dwordx4 v[8:11], {aI0LD}, {srd(S_WS)}, {sA} offen sc1\nbuffer_load_dwordx4 v[12:15], {aI0LD}, {srd(S_WS)}, {sB} offen sc1")
            if L == 0:
                e(f"buffer_load_dwordx4 v[20:23], {aCSLD}, {srd(S_WS)}, 0 offen sc1\nbuffer_load_dwordx4 v[24:27], {aCSLD}, {srd(S_WS)}, {sD} offen sc1")
                e(f"s_cmp_eq_u64 vcc, 0\ns_cselect_b32 {sPLAIN}, 1, 0")
            for k in (1, 2, 4, 8):
                e(f"v_add_f32_dpp v16, v16, v16 {DP[k]} {DPPM}\nv_add_f32_dpp v18, v18, v18 {DP[k]} {DPPM}")
            e(f"v_mul_f32 v18, {f32(1/512)}, v18\nv_mov_b32 v17, {f32(1e-5)}\nv_fmac_f32 v17, {f32(1/512)}, v16\nv_fma_f32 v17, -v18, v18, v17\nv_rsq_f32 v17, v17")
            e(f"v_readfirstlane_b32 {sMEAN}, v18\nv_readfirstlane_b32 {sRSTD}, v17")
            e("s_waitcnt vmcnt(0)")
            self.check(list(range(8, 16)) + (list(range(20, 28)) if L == 0 else []), sTB, sFF, "v6")
            e(f"s_cbranch_vccnz {lr}")
            self.stamp("I0got" + X)
            if L == 0:
                l1, l2 = self.lab("rs"), self.lab("rt")
                e(f"s_cmp_eq_u32 {sPLAIN}, 0\ns_cbranch_scc1 {l1}\n{l2}:")
                self.cold.append(f"{l1}:\ns_cmp_ge_u32 {sW}, 4\ns_cbranch_scc1 {l2}\n{restore}\ns_branch {l2}")
            self.canary_set(L, aCANW, o["lead_s1"] == 1)
            grp = [8] + ([20] if L == 0 else [])
            for b in grp:
                for k in range(4):
                    e(f"v_add_f32 v{b+k}, v{b+k}, v{b+4+k}")
            for b in grp:
                e(f"v_permlane32_swap_b32 v{b}, v{b+2}\nv_permlane32_swap_b32 v{b+1}, v{b+3}")
            for b in grp:
                e(f"v_add_f32 v{b}, v{b}, v{b+2}\nv_add_f32 v{b+1}, v{b+1}, v{b+3}")
            for b in grp:
                e(f"v_permlane16_swap_b32 v{b}, v{b+1}")
            for b in grp:
                e(f"v_add_f32 v{b}, v{b}, v{b+1}")
            e(f"v_add_f32_dpp v8, v8, v8 row_ror:8 {DPPM}")
            if L == 0:
                e(f"v_add_f32_dpp {vCS}, v20, v20 row_ror:8 {DPPM}")
            e(f"v_fma_f32 v8, -{sMEAN}, {vCS}, v8\nv_mul_f32 v8, {sRSTD}, v8\nv_cvt_pk_bf16_f32 v8, v8, v8\nds_write_b16 {aQW}, v8")
            self.bar()
            l = self.lab("p1b")
            e(f"s_and_b32 {sA}, {sW}, 6\ns_cmp_lg_u32 {sA}, 4\ns_cbranch_scc1 {l}")
            for u in range(4):
                e(f"ds_read_b128 {R(8+4*u,4)}, {aQR} offset:{u*64}")
            e(f"s_mov_b32 {sA}, {S1R(L)}\ns_mov_b32 {sB}, {f32(128**-0.5*math.log2(math.e))}")
            for u in range(4):
                e(f"s_waitcnt lgkmcnt({3-u})")
                for t in range(4):
                    self.mfma(212 + 4 * t, 8 + 4 * u, WUK + 16 * t + 4 * u, None if u == 0 else 212 + 4 * t)
            for t in range(4):
                e(f"v_mul_f32 v{24+t}, {sB}, v{212+4*t}")
            self.pack_near("v8", "v24", "v25", "v10", "v11", Q0, K0)
            self.pack_near("v9", "v26", "v27", "v12", "v13", Q1, K1)
            e(f"buffer_store_dwordx2 v[8:9], {aS1ST}, {srd(S_WS)}, {sA} offen sc1")
            e(f"{l}:")
            self.stamp("S1pub" + X)
            if L == 0:
                for b, sz in ((S_WUV, 4 << 20), (S_WO, 4 << 20), (S_OUT, 2048)):
                    self.fin_srd(b, sz)
                if o["adelay"]:
                    e(f"s_sleep {o['adelay']}")
                e(f"s_lshl_b32 {sA}, {sCS}, 3\ns_add_u32 {sA}, {sA}, {sW}\ns_lshl_b32 {sA}, {sA}, 9\ns_add_u32 {sA}, {sA}, {sH}\ns_lshl_b32 {sA}, {sA}, 8")
                e(f"v_lshlrev_b32 v6, 13, {vG}\nv_lshl_add_u32 v6, {vC}, 4, v6\nv_add_u32 v6, {sA}, v6\ns_mul_i32 {sC}, {sW}, 4224")
                for q in range(4):
                    e(f"s_mov_b32 {sA}, {q*32768}\ns_add_u32 m0, {sC}, {A_WUV + q*1056}\nbuffer_load_dwordx4 v6, {srd(S_WUV)}, {sA} offen lds")
                e(f"v_lshlrev_b32 v7, 4, {vL}\nv_bfe_u32 {vr}, {vL}, 2, 2\nv_and_b32 {vq}, 3, {vL}\nv_mov_b32 v13, {OOB}")
                e(f"v_bfe_u32 v10, {vC}, 2, 1\nv_lshlrev_b32 v11, 4, {vG}\nv_and_b32 v9, 7, {vL}\nv_lshlrev_b32 v9, 4, v9")
                e(f"v_add_u32 {aCCR}, {A_CC - A_Q}, {aQR}")
                self.cons_pats(PC)
                e(f"v_lshlrev_b32 v6, 3, {vq}\nv_lshrrev_b32 {vTL}, v6, {vT}")
                e(f"s_lshl_b32 {sA}, {sH}, 2\ns_add_u32 {sA}, {sA}, {sCS}\ns_lshl_b32 {sA}, {sA}, 14\ns_lshl_b32 {sC}, {sW}, 11\ns_add_u32 {sA}, {sA}, {sC}\nv_add_u32 {aS2LD}, {sA}, v7")
                e(f"s_mul_i32 {sA}, {sW}, {8*288}\nv_mul_u32_u24 v6, 288, {vG}\nv_lshl_add_u32 v6, {vC}, 4, v6\nv_add_u32 {aOSW}, {sA}, v6")
                e(f"s_lshr_b32 {sA}, {sJ}, 2\ns_lshl_b32 {sA}, {sA}, 12\ns_and_b32 {sC}, {sH}, 15\ns_lshl_b32 {sC}, {sC}, 3\ns_add_u32 {sA}, {sA}, {sC}")
                e(f"v_lshrrev_b32 v6, 5, {vL}\nv_and_b32 v12, 31, {vL}\nv_lshlrev_b32 v12, 7, v12\nv_lshl_add_u32 v12, v6, 13, v12\nv_add_u32 {aLSE}, {sA}, v12")
                e(f"v_lshlrev_b32 v6, 6, v6\nv_lshl_add_u32 v6, {vr}, 4, v6\nv_and_b32 v12, 1, {vG}\nv_lshl_add_u32 v6, v12, 3, v6\nv_lshl_add_u32 v6, {vq}, 1, v6\nv_add_u32 {aWW}, {A_WW}, v6")
                e(f"v_add_u32 v6, {A_WW}, v11\nv_add_u32 v12, {A_WW+128}, v11")
                self.sel(aWA0, f"v_cmp_eq_u32 vcc, 0, {vC}", "v12", "v6")
                e("v_add_u32 v6, 64, v6")
                self.sel(aWA1, f"v_cmp_eq_u32 vcc, 4, {vC}", "v12", "v6")
                e("s_barrier")
                e(f"s_lshl_b32 {sA}, {sJ}, 19\ns_lshl_b32 {sB}, {sW}, 16\ns_add_u32 {sA}, {sA}, {sB}\ns_lshl_b32 {sB}, {sI}, 6\ns_add_u32 {sA}, {sA}, {sB}")
                e(f"v_lshrrev_b32 v12, 2, {vL}\nv_lshlrev_b32 v6, 10, v12\nv_lshl_add_u32 v6, {vq}, 4, v6\nv_add_u32 v6, {sA}, v6\ns_lshl_b32 {sC}, {sW}, 12")
                for q in range(4):
                    e(f"s_mov_b32 {sA}, {q*16384}\ns_add_u32 m0, {sC}, {A_WO + q*1024}\nbuffer_load_dwordx4 v6, {srd(S_WO)}, {sA} offen lds")
                for k in range(3):
                    e(f"v_mov_b32 v{24+k}, {PRET2[k]}\nbuffer_load_dword v{24+k}, v{24+k}, {srd(S_WS)}, 0 offen")
                self.fin_srd(S_X, 2048)
                e(f"v_and_b32 v8, 1, {vG}\nv_lshlrev_b32 v8, 10, v8\nv_lshl_add_u32 v8, {vC}, 1, v8\nv_add_u32 v8, {sB}, v8")
                e(f"buffer_load_ushort v244, v8, {srd(S_X)}, 0 offen\nbuffer_load_ushort v245, v8, {srd(S_X)}, 0 offen offset:32")
                e(f"s_lshl_b32 {sA}, {sW}, 5\nv_mul_u32_u24 v6, 288, v12\nv_lshl_add_u32 v6, {vq}, 3, v6\nv_add_u32 {aOTR}, {sA}, v6")
                e(f"v_mul_u32_u24 v6, 160, v12\nv_lshl_add_u32 v6, {vq}, 3, v6\nv_add_u32 {aXTR}, {A_XR}, v6")
                e(f"s_add_u32 {sA}, {sA}, {A_CC}\nv_lshlrev_b32 v6, 8, {vG}\nv_lshl_add_u32 v6, {vC}, 1, v6\nv_add_u32 v6, {sA}, v6\nv_mov_b32 v12, {A_DUM}")
                self.sel(aCCW, f"v_cmp_gt_u32 vcc, 32, {vL}", "v12", "v6")
                e(f"s_lshl_b32 {sB}, {sW}, 8\ns_add_u32 {sB}, {sB}, {A_RR}\nv_lshlrev_b32 v6, 3, {vL}\nv_add_u32 v6, {sB}, v6\nv_cndmask_b32 {aRRW}, v12, v6, vcc")
                e(f"v_lshlrev_b32 v6, 3, {vL}\nv_lshrrev_b32 v8, 5, {vL}\nv_mul_u32_u24 v8, 768, v8\nv_add3_u32 {aRRR}, v6, v8, 0\nv_add_u32 {aRRR}, {A_RR}, {aRRR}\nv_lshlrev_b32 v8, 2, {vL}")
                e(f"s_lshl_b32 {sB}, {sPA}, 10\ns_lshl_b32 {sC}, {sW}, 7\ns_add_u32 {sB}, {sB}, {sC}\nv_add_u32 v6, {sB}, v8\nv_cndmask_b32 {aI1ST}, v13, v6, vcc")
                if o["warm"]:
                    for rg in (I1R(0), I1R(1)):
                        e(f"s_mov_b32 {sB}, {rg}\nbuffer_load_dword v27, {aI1ST}, {srd(S_WS)}, {sB} offen")
                    e(f"s_mov_b32 {sB}, {I0S(1)}\nbuffer_load_dword v27, {aSTST}, {srd(S_WS)}, {sB} offen")
                    e(f"s_lshl_b32 {sB}, {sPA}, 12\ns_add_u32 {sB}, {sB}, {I0R(1)}\nv_lshlrev_b32 v6, 3, v0\nbuffer_load_dword v27, v6, {srd(S_WS)}, {sB} offen")
                e(f"s_lshl_b32 {sB}, {sPA}, 7\nv_add_u32 v6, {sB}, v8\nv_cndmask_b32 {aS3ST}, v13, v6, vcc")
                e(f"s_lshl_b32 {sB}, {sJ}, 14\ns_lshl_b32 {sC}, {sW}, 9\ns_add_u32 {sB}, {sB}, {sC}")
                e(f"v_lshlrev_b32 v6, 12, {vG}\nv_lshl_add_u32 v6, {vC}, 4, v6\nv_add_u32 {aI1LD}, {sB}, v6")
                e(f"s_lshl_b32 {sA}, {sW}, 8\ns_add_u32 {sA}, {sA}, {A_CT}\nv_lshlrev_b32 v6, 7, v10\nv_add_u32 v6, {sA}, v6\nv_add_u32 {aCTR}, v6, v11")
                e(f"v_lshrrev_b32 v8, 1, {vG}\nv_lshl_add_u32 v6, v8, 6, v6\nv_lshrrev_b32 v8, 3, {vC}\nv_lshl_add_u32 v6, v8, 5, v6\nv_lshl_add_u32 v6, {vq}, 3, v6\nv_and_b32 v8, 1, {vG}\nv_lshl_add_u32 {aCTW}, v8, 2, v6")
                e(f"v_lshrrev_b32 v8, 3, v0\nv_mul_u32_u24 v6, 160, v8\nv_add_u32 v6, v6, v9\nv_add_u32 {aXRW}, {A_XR}, v6")
                e(f"s_lshl_b32 {sA}, {sI}, 7\nv_lshl_add_u32 v6, v8, 11, v9\nv_add_u32 {aXLD}, {sA}, v6")
                e(f"v_cmp_gt_u32 {sMASK}, 43, v8\nv_lshrrev_b32 v8, 3, v8\nv_cmp_eq_u32 vcc, 6, v8\ns_or_b64 {sMASK}, {sMASK}, vcc")
                e(f"v_lshlrev_b32 v6, 7, v10\nv_lshl_add_u32 v6, {vG}, 4, v6\nv_add_u32 v6, {A_XS}, v6\nv_and_b32 v8, 11, {vC}")
                self.sel(aXSW, "v_cmp_eq_u32 vcc, 0, v8", "v12", "v6")
                l = self.lab("k")
                e(f"s_cmp_lg_u32 {sW}, 0\ns_cbranch_scc1 {l}\nv_cndmask_b32 {aOUT}, v13, {aXOFF}, vcc\n{l}:")
                e(f"v_mov_b32 v6, 0x3f803f80\nv_mov_b32 v8, 0\nv_mov_b32 v9, 0\nv_mov_b32 v10, 0\nv_mov_b32 v11, 0")
                self.sel(R(SEL0), f"v_cmp_eq_u32 vcc, 0, {vC}", "v8", "v6")
                self.sel(R(SEL4), f"v_cmp_eq_u32 vcc, 4, {vC}", "v8", "v6")
                for k in range(1, 4):
                    e(f"v_mov_b32 v{SEL0+k}, v{SEL0}\nv_mov_b32 v{SEL4+k}, v{SEL4}")
                e(f"v_lshlrev_b32 v6, 2, {vC}\nv_add_u32 v6, {A_WW+128}, v6\nds_write_b32 v6, v8")
                e(f"s_mov_b64 exec, {sMASK}\ns_not_b64 exec, exec\nds_write_b128 {aXRW}, v[8:11]\ns_mov_b64 exec, -1")
                e("s_waitcnt vmcnt(0) lgkmcnt(0)\ns_barrier")
                e(f"v_lshlrev_b32 v244, 16, v244\nv_lshlrev_b32 v245, 16, v245\nv_mul_f32 v244, {f32(0.125)}, v244\nv_mul_f32 v245, {f32(0.125)}, v245")
                e(f"v_lshrrev_b32 v6, 1, {vG}\nv_lshl_add_u32 v6, {vr}, 2, v6\nv_mul_u32_u24 v6, 1056, v6\nv_and_b32 v7, 1, {vG}\nv_lshl_add_u32 v6, v7, 9, v6")
                e(f"s_lshl_b32 {sA}, {sW}, 5\ns_add_u32 {sA}, {sA}, {A_WUV}\nv_lshl_add_u32 v6, {vq}, 3, v6\nv_add_u32 v6, {sA}, v6")
                for u in range(4):
                    off = (16 * (u >> 1) + 2 * (u & 1)) * 1056
                    e(f"ds_read_b64_tr_b16 {R(WUV+4*u,2)}, v6 offset:{off}\nds_read_b64_tr_b16 {R(WUV+4*u+2,2)}, v6 offset:{off+256}")
                e(f"v_lshl_add_u32 v8, {vG}, 3, {vr}\nv_lshlrev_b32 v8, 6, v8\nv_lshl_add_u32 v8, {vq}, 3, v8\ns_lshl_b32 {sA}, {sW}, 12\ns_add_u32 {sA}, {sA}, {A_WO}\nv_add_u32 v8, {sA}, v8")
                for t in range(2):
                    for u in range(2):
                        off = u * 2048 + t * 32
                        e(f"ds_read_b64_tr_b16 {R(WO+8*t+4*u,2)}, v8 offset:{off}\nds_read_b64_tr_b16 {R(WO+8*t+4*u+2,2)}, v8 offset:{off+256}")
                e("s_waitcnt lgkmcnt(0)")
                self.stamp("Wo")
            else:
                l = self.lab("k")
                e(f"s_cmp_lg_u32 {sW}, 0\ns_cbranch_scc1 {l}")
                for hf in range(2):
                    for r in range(4):
                        e(f"v_mul_f32 v{244+4*hf+r}, {f32(0.125)}, v{244+4*hf+r}\nds_write_b32 {aXSW}, v{244+4*hf+r} offset:{(r&1)*4 + (8*hf + (r>>1))*8}")
                e(f"v_and_b32 v6, 31, {vL}\nv_lshlrev_b32 v6, 3, v6\nv_add_u32 v6, {A_XS}, v6\nds_read_b64 v[244:245], v6\n{l}:")
            e(f"v_lshlrev_b32 v6, 1, {vC}\nv_lshrrev_b32 v6, v6, {vT}")
            self.pat(P3, "v6", 0, K3)
            self.canary_wait(2 + L, aCANR, o["d_s2" if L == 0 else "e_s2"])
            self.stamp("S2can" + X)
            l, l0, l1 = self.lab("s2"), self.lab("s2w"), self.lab("s2x")
            e(f"s_mov_b32 {sA}, {S2R(L)}\ns_mov_b32 {sB}, {LSE(L)}\ns_cmp_eq_u32 {sW}, 0\ns_cbranch_scc1 {l0}")
            self.retry_head(l)
            e(f"buffer_load_dwordx4 v[8:11], {aS2LD}, {srd(S_WS)}, {sA} offen sc1\nbuffer_load_dwordx4 v[12:15], {aS2LD}, {srd(S_WS)}, {sA} offen offset:1024 sc1\ns_waitcnt vmcnt(0)")
            e(f"ds_write_b128 {aOSW}, v[8:11] offset:{A_OS}\nds_write_b128 {aOSW}, v[12:15] offset:{A_OS+4*288}")
            self.check(list(range(8, 16)), PC, sM, "v6")
            e(f"s_cbranch_vccnz {l}\ns_branch {l1}")
            e(f"{l0}:")
            l0 = self.lab("s2v")
            self.retry_head(l0)
            e(f"buffer_load_dwordx2 v[16:17], {aLSE}, {srd(S_WS)}, {sB} offen sc1")
            e(f"buffer_load_dwordx4 v[8:11], {aS2LD}, {srd(S_WS)}, {sA} offen sc1\nbuffer_load_dwordx4 v[12:15], {aS2LD}, {srd(S_WS)}, {sA} offen offset:1024 sc1\ns_waitcnt vmcnt(2)")
            e(f"v_xor_b32 v7, {vT}, v17\nv_mov_b32 v18, v16")
            self.allred(["v18"], "v_max_f32", ["v19"], [1, 2, 4, 8, 16])
            e("v_sub_f32 v16, v16, v18\nv_exp_f32 v16, v16\ns_nop 0\nv_mov_b32 v18, v16")
            self.allred(["v18"], "v_add_f32", ["v19"], [1, 2, 4, 8, 16])
            e(f"v_rcp_f32 v18, v18\ns_nop 0\nv_mul_f32 v16, v16, v18\nv_cvt_pk_bf16_f32 v16, v16, v16\nds_write_b16 {aWW}, v16\ns_waitcnt vmcnt(0)")
            e(f"ds_write_b128 {aOSW}, v[8:11] offset:{A_OS}\nds_write_b128 {aOSW}, v[12:15] offset:{A_OS+4*288}")
            self.check(list(range(8, 16)), PC, sM, "v6", extra="v7")
            e(f"s_cbranch_vccnz {l0}")
            e(f"{l1}:")
            self.stamp("S2got" + X)
            self.bar()
            e(f"ds_read_b128 v[8:11], {aWA0}\nds_read_b64_tr_b16 v[16:17], {aOTR} offset:{A_OS}\nds_read_b64_tr_b16 v[18:19], {aOTR} offset:{A_OS+4608}")
            e(f"ds_read_b128 v[12:15], {aWA1}\nds_read_b64_tr_b16 v[20:21], {aOTR} offset:{A_OS+9216}\nds_read_b64_tr_b16 v[22:23], {aOTR} offset:{A_OS+13824}")
            e("s_waitcnt lgkmcnt(3)")
            self.mfma(24, 8, 16)
            e("s_waitcnt lgkmcnt(0)")
            self.mfma(24, 12, 20, 24)
            e(f"s_mov_b32 {sB}, {I1R(L)}")
            e(f"v_cvt_pk_bf16_f32 v8, v24, v24\nds_write_b16 {aCCW}, v8")
            self.bar()
            for u in range(4):
                e(f"ds_read_b128 {R(8+4*u,4)}, {aCCR} offset:{u*64}")
            for u in range(4):
                e(f"s_waitcnt lgkmcnt({3-u})")
                self.mfma(24, 8 + 4 * u, WUV + 4 * u, None if u == 0 else 24)
            e(f"v_bfi_b32 v8, {sFF}, {vTL}, v24")
            self.store_intra([f"buffer_store_dword v8, {aI1ST}, {srd(S_WS)}, {sB} offen"])
            self.stamp("I1pub" + X)
            l = self.lab("i1")
            e(f"{l}:")
            self.guard()
            e(f"buffer_load_dwordx4 v[8:11], {aI1LD}, {srd(S_WS)}, {sB} offen sc1\nbuffer_load_dwordx4 v[12:15], {aI1LD}, {srd(S_WS)}, {sB} offen offset:256 sc1\ns_waitcnt vmcnt(0)")
            self.check(list(range(8, 16)), sTB, sFF, "v6")
            e(f"s_cbranch_vccnz {l}")
            self.stamp("I1got" + X)
            self.canary_set(4 + L, aCANW, o["lead_s3"] == 1)
            for k in range(4):
                e(f"v_permlane32_swap_b32 v{8+k}, v{12+k}")
            for k in range(4):
                e(f"v_add_f32 v{8+k}, v{8+k}, v{12+k}")
            e("v_permlane16_swap_b32 v8, v10\nv_permlane16_swap_b32 v9, v11\nv_add_f32 v8, v8, v10\nv_add_f32 v9, v9, v11")
            e(f"v_cvt_pk_bf16_f32 v8, v8, v9\nds_write_b32 {aCTW}, v8")
            e(f"ds_read_b128 v[8:11], {aCTR}\nds_read_b128 v[12:15], {aCTR} offset:64\ns_waitcnt lgkmcnt(1)")
            self.mfma(16, 8, WO)
            self.mfma(20, 8, WO + 8)
            e("s_waitcnt lgkmcnt(0)")
            self.mfma(16, 12, WO + 4, 16)
            self.mfma(20, 12, WO + 12, 20)
            e(f"v_mov_b32 v17, v20\nds_write_b64 {aRRW}, v[16:17]")
            self.bar()
            l = self.lab("fin")
            e(f"s_cmp_lg_u32 {sW}, 0\ns_cbranch_scc1 {l}")
            for k in range(4):
                e(f"ds_read_b64 {R(8+2*k,2)}, {aRRR} offset:{k*256}")
            e(f"s_mov_b32 {sA}, {S3R(L)}\ns_waitcnt lgkmcnt(2)\nv_add_f32 v8, v8, v10\nv_add_f32 v9, v9, v11\ns_waitcnt lgkmcnt(0)\nv_add_f32 v12, v12, v14\nv_add_f32 v13, v13, v15")
            e("v_add_f32 v8, v8, v12\nv_add_f32 v9, v9, v13\nv_mov_b32 v10, v8\nv_mov_b32 v11, v9\nv_permlane32_swap_b32 v8, v10\nv_permlane32_swap_b32 v9, v11")
            e("v_add_f32 v8, v8, v244\nv_add_f32 v9, v9, v245\nv_add_f32 v24, v8, v10\nv_add_f32 v25, v9, v11")
            self.pack_near("v8", "v24", "v25", "v10", "v11", P3, K3)
            e(f"buffer_store_dword v8, {aS3ST}, {srd(S_WS)}, {sA} offen sc1")
            self.canary_set(4 + L, aCANW, o["lead_s3"] == 0)
            e(f"{l}:")
            self.stamp("S3pub" + X)
            if L == 1:
                l = self.lab("ex")
                e(f"s_and_b32 {sA}, {sI}, 7\ns_cmp_eq_u32 {sA}, {sJ}\ns_cbranch_scc1 {l}")
                self.dump_stamps()
                e(f"s_endpgm\n{l}:")
            e(f"s_mov_b32 {sB}, {S45(L)}\ns_cmp_eq_u32 {sW}, 6\ns_cselect_b32 {sB}, {S3R(L) - 48*2048}, {sB}")
            self.canary_wait(6 + L, aCANR, o["d_s45" if L == 0 else "e_s45"])
            l, l2 = self.lab("s45"), self.lab("s45n")
            e(f"s_mov_b64 exec, {sMASK}\ns_cbranch_execz {l2}")
            self.retry_head(l)
            e(f"buffer_load_dwordx4 v[8:11], {aXLD}, {srd(S_WS)}, {sB} offen sc1\ns_waitcnt vmcnt(0)")
            e(f"ds_write_b128 {aXRW}, v[8:11]")
            self.check(list(range(8, 12)), PC, sM, "v6")
            e(f"s_cbranch_vccnz {l}")
            e(f"{l2}:\ns_mov_b64 exec, -1")
            self.stamp("S45got" + X)
            self.bar()
            lsk = self.lab("k")
            if L == 1:
                e(f"s_cmp_eq_u32 {sW}, 0\ns_cbranch_scc1 {lsk}")
                self.dump_stamps()
                e(f"s_endpgm\n{lsk}:")
            else:
                e(f"s_cmp_ge_u32 {sW}, 4\ns_cbranch_scc1 {lsk}")
            XT = [8, 12, 16, 20, 212, 216, 220, 224]
            for n in range(8):
                off = (n >> 2) * 5120 + 32 * (n & 3)
                e(f"ds_read_b64_tr_b16 {R(XT[n],2)}, {aXTR} offset:{off}\nds_read_b64_tr_b16 {R(XT[n]+2,2)}, {aXTR} offset:{off+2560}")
                if n >= 5:
                    T = n - 5
                    e("s_waitcnt lgkmcnt(10)")
                    self.mfma(244 + 4 * (T & 1), XT[T], SEL0 if T < 2 else SEL4, None if T < 2 else 244 + 4 * (T & 1))
            for n in range(3, 8):
                T = n & 3
                e(f"s_waitcnt lgkmcnt({14-2*n})")
                self.mfma(244 + 4 * (T & 1), XT[n], SEL0 if T < 2 else SEL4, 244 + 4 * (T & 1))
            if L == 0:
                for k in range(4):
                    e(f"v_cvt_pk_bf16_f32 v{XOP+k}, v{244+2*k}, v{245+2*k}")
                for k in range(4):
                    e(f"v_or_b32 v{XOP+k}, {vONE}, v{XOP+k}")
                e(f"{lsk}:")
            else:
                e("v_cvt_pk_bf16_f32 v8, v244, v246\nv_cvt_pk_bf16_f32 v9, v245, v247\nv_cvt_pk_bf16_f32 v10, v248, v250\nv_cvt_pk_bf16_f32 v11, v249, v251")
                for k, off in enumerate((0, 32, 16, 48)):
                    e(f"buffer_store_dword v{8+k}, {aOUT}, {srd(S_OUT)}, 0 offen offset:{off}")
                e(f"s_lshl_b32 {sA}, s2, 9\nv_add_u32 v6, {sA}, v0\nv_mov_b32 v7, {OOB}\nv_cmp_eq_u32 vcc, 0, v6\nv_cndmask_b32 v6, v7, v6, vcc\nbuffer_store_dword {vT}, v6, {srd(S_WS)}, 0 offen sc1")
                self.stamp("end")
                if o["amp"]:
                    e(f"s_waitcnt vmcnt(0)\ns_memrealtime s[96:97]\ns_waitcnt lgkmcnt(0)\ns_sub_u32 s94, s96, s98\ns_mul_i32 s94, s94, {o['amp']}\nL_spin:\ns_sleep 8\ns_memrealtime s[92:93]\ns_waitcnt lgkmcnt(0)\ns_sub_u32 s95, s92, s96\ns_cmp_lt_u32 s95, s94\ns_cbranch_scc1 L_spin")
                self.dump_stamps()
                e("s_endpgm")

    def roleB(self):
        e, o = self.e, self.o
        CS_, CP, FG, FD = 32, 96, 160, 192
        (aS1LD, aQAW, aQAR, aMX, aLR, aPW, aPR, aS2ST, aLSEST, aCAN, aCANR, aS3LD, aXPW, aXPR, aRBW, aRBR, aSTW, aSTR, aHW, aHR, aS45,
         vCG, vCU, Q0, Q1, P45, aTCH) = ["v%d" % (224 + k) for k in range(27)]
        PC = ["v251", "v252", "v253", "v254"]
        sB_, sHG, sSP, sF = "s68", "s69", "s76", "s77"
        vr, vq = "v14", "v15"
        for b, slot in ((S_WUK, 3), (S_CKV, 1)):
            e(f"s_load_dwordx2 s[{b}:{b+1}], s[0:1], {slot*8}")
        e(f"v_lshrrev_b32 v6, 6, v0\nv_and_b32 {vL}, 63, v0\ns_and_b32 {sJ}, s2, 7\nv_readfirstlane_b32 {sW}, v6\ns_sub_u32 {sI}, {sI}, 16")
        e(f"v_lshrrev_b32 v6, 3, v0\nv_lshlrev_b32 v6, 13, v6\nv_and_b32 v8, 7, v0\nv_lshl_add_u32 v8, v8, 7, v6\ns_lshl_b32 {sE}, {sI}, 8\ns_add_u32 {sE}, {sE}, {sJ}\ns_lshl_b32 {sE}, {sE}, 10")
        self.fin_srd(S_WUK, 4 << 20)
        self.fin_srd(S_CKV, 8 << 20)
        e(f"s_lshr_b32 {sB_}, {sJ}, 2\ns_and_b32 {sHG}, {sI}, 1\ns_and_b32 {sA}, {sJ}, 3\ns_lshl_b32 {sA}, {sA}, 3\ns_lshr_b32 {sSP}, {sI}, 1\ns_add_u32 {sSP}, {sSP}, {sA}")
        e(f"v_lshlrev_b32 v7, 4, {vL}\ns_lshl_b32 {sA}, {sB_}, 22\ns_lshl_b32 {sB}, {sSP}, 17\ns_add_u32 {sA}, {sA}, {sB}\ns_lshl_b32 {sB}, {sW}, 14\ns_add_u32 {sA}, {sA}, {sB}\nv_add_u32 v31, {sA}, v7")
        e(f"s_mul_i32 s74, {sW}, {16*1056}\ns_lshl_b32 s75, {sHG}, 13")
        e("s_waitcnt lgkmcnt(0)")
        self.stamp('karg')
        if o["bdelay"]:
            e(f"s_sleep {o['bdelay']}")
        if o["bhelp"]:
            lh = self.lab("nh")
            e(f"s_cmp_ge_u32 {sW}, {o['bhelp']}\ns_cbranch_scc1 {lh}\nbuffer_load_dword v255, v8, {srd(S_WUK)}, {sE} offen\n{lh}:")
        l = self.lab("np")
        e(f"s_cmp_lg_u32 {sW}, 7\ns_cbranch_scc1 {l}")
        e(f"s_getpc_b64 s[72:73]\nL_pc:\ns_sub_u32 s72, s72, L_pc-{NAME}_kernel\ns_subb_u32 s73, s73, 0\ns_lshl_b32 {sA}, {sI}, 11")
        e(f"v_lshlrev_b32 v6, 5, {vL}\nv_add_u32 v6, {sA}, v6\nv_min_u32 v6, L_code_end-{NAME}_kernel-4, v6\nglobal_load_dword v255, v6, s[72:73]")
        e(f"{l}:")
        self.epoch_load()
        for b, slot in ((S_WO, 5), (S_WG, 7), (S_WU, 8), (S_WD, 9)):
            e(f"s_load_dwordx2 s[{b}:{b+1}], s[0:1], {slot*8}")
        if o["bdelay2"]:
            e(f"s_sleep {o['bdelay2']}")
        e("s_barrier")

        def ckv(qs):
            for q in qs:
                e(f"s_add_u32 {sA}, s75, {q*1024}\ns_and_b32 {sA}, {sA}, 0x3fff\ns_add_u32 m0, s74, {B_CKV + q*1056}\nbuffer_load_dwordx4 v31, {srd(S_CKV)}, {sA} offen lds")
        self.stamp("ckv0")
        ckv(range(8))
        self.stamp("ckv8")
        self.consts()
        e(f"v_and_b32 {vC}, 15, v0\nv_bfe_u32 {vG}, v0, 4, 2\ns_sub_u32 {sF}, s2, 128\nv_mov_b32 v13, {OOB}\nv_mov_b32 v12, {B_DUM}\nv_bfe_u32 {vr}, {vL}, 2, 2\nv_and_b32 {vq}, 3, {vL}")
        for b, sz in ((S_WO, 4 << 20), (S_WS, 0x10000000), (S_WG, 1409024), (S_WU, 1409024), (S_WD, 1409024)):
            self.fin_srd(b, sz)
        e(f"s_lshl_b32 {sA}, {sB_}, 15\ns_lshl_b32 {sB}, {sHG}, 14\ns_add_u32 {sA}, {sA}, {sB}\ns_lshl_b32 {sB}, {sW}, 11\ns_add_u32 {sA}, {sA}, {sB}\nv_add_u32 {aS1LD}, {sA}, v7")
        e(f"s_mul_i32 {sA}, {sW}, 2112\ns_add_u32 {sA}, {sA}, {B_QA}\nv_add_u32 {aQAW}, {sA}, v7")
        e(f"v_lshlrev_b32 v11, 4, {vG}\nv_mul_u32_u24 v6, 1056, {vC}\nv_add_u32 v6, v6, v11\nv_add_u32 {aQAR}, {B_QA}, v6")
        e(f"s_mul_i32 {sA}, {sW}, {16*1056}\nv_add_u32 v30, {sA}, v6")
        e(f"v_lshlrev_b32 v6, 5, {vC}\nv_add_u32 {aMX}, {B_MX}, v6\ns_lshl_b32 {sA}, {sW}, 6\ns_add_u32 {sA}, {sA}, {B_LI}\nv_add_u32 {aLR}, {sA}, v11")
        e(f"v_mul_u32_u24 v6, 288, {vC}\nv_add_u32 v6, v6, v11\nv_add_u32 {aPR}, {B_P}, v6")
        e(f"s_lshr_b32 {sA}, {sW}, 1\ns_lshl_b32 {sA}, {sA}, 6\ns_and_b32 {sB}, {sW}, 1\ns_lshl_b32 {sC}, {sB}, 3\ns_add_u32 {sA}, {sA}, {sC}\nv_add_u32 {aPW}, {sA}, {aPR}")
        e(f"s_lshl_b32 {sA}, {sHG}, 20\ns_lshr_b32 {sC}, {sW}, 1\ns_lshl_b32 {sC}, {sC}, 14\ns_add_u32 {sA}, {sA}, {sC}\ns_lshl_b32 {sC}, {sB_}, 13\ns_add_u32 {sA}, {sA}, {sC}")
        e(f"s_lshl_b32 {sC}, {sSP}, 8\ns_add_u32 {sA}, {sA}, {sC}\ns_lshl_b32 {sC}, {sB}, 7\ns_add_u32 {sA}, {sA}, {sC}")
        e(f"v_lshlrev_b32 v6, 18, {vG}\nv_lshl_add_u32 v6, {vC}, 3, v6\nv_add_u32 {aS2ST}, {sA}, v6")
        e(f"s_lshl_b32 {sA}, {sB_}, 1\ns_add_u32 {sA}, {sA}, {sHG}\ns_lshl_b32 {sA}, {sA}, 5\ns_add_u32 {sA}, {sA}, {sSP}\ns_lshl_b32 {sA}, {sA}, 7\nv_lshlrev_b32 v6, 3, {vC}\nv_add_u32 {aLSEST}, {sA}, v6")
        self.can_addr(aCAN, aCANR, sI)
        e(f"s_lshl_b32 {sA}, {sW}, 8\nv_lshlrev_b32 v6, 11, {vG}\nv_lshl_add_u32 v6, {vC}, 4, v6\nv_add_u32 {aS3LD}, {sA}, v6")
        e(f"v_bfe_u32 v10, {vC}, 2, 1\ns_add_u32 {sB}, {sA}, {B_XP}\nv_lshlrev_b32 v6, 7, v10\nv_add_u32 v6, {sB}, v6\nv_add_u32 v9, v6, v11")
        e(f"v_lshrrev_b32 v8, 3, {vC}\nv_lshl_add_u32 v6, v8, 6, v6\nv_lshl_add_u32 v6, {vq}, 4, v6\nv_lshl_add_u32 {aXPW}, {vG}, 2, v6")
        e(f"v_mov_b32 v6, {B_ONES}")
        self.sel(aXPR, f"v_cmp_eq_u32 vcc, 8, {vC}", "v9", "v6")
        e(f"s_mul_i32 {sB}, {sW}, 768\ns_add_u32 {sB}, {sB}, {B_RB}\nv_add_u32 v6, {sB}, v7\nv_lshlrev_b32 v9, 2, {vL}")
        self.sel(aRBW, f"v_cmp_gt_u32 vcc, 48, {vL}", "v12", "v6")
        e(f"v_and_b32 v8, 1, {vG}\nv_lshlrev_b32 v8, 3, v8\nv_lshl_add_u32 v8, {vC}, 4, v8\nv_lshrrev_b32 v6, 5, {vL}\nv_lshl_add_u32 v8, v6, 8, v8\nv_add_u32 {aRBR}, {B_RB}, v8")
        e(f"v_lshlrev_b32 v6, 6, v6\nv_add_u32 {aSTR}, {B_ST}, v6")
        e(f"v_lshrrev_b32 v6, 3, {vL}\nv_lshlrev_b32 v6, 5, v6\ns_lshl_b32 {sB}, {sW}, 2\ns_add_u32 {sB}, {sB}, {B_ST}\nv_add_u32 v6, {sB}, v6\ns_mov_b32 vcc_lo, 0x01100101\ns_mov_b32 vcc_hi, 0\nv_cndmask_b32 {aSTW}, v12, v6, vcc")
        e(f"s_lshl_b32 {sB}, {sW}, 7\ns_add_u32 {sB}, {sB}, {B_H}\nv_lshlrev_b32 v6, 1, {vL}\nv_add_u32 {aHW}, {sB}, v6")
        e(f"v_lshl_add_u32 v6, v10, 6, v11\nv_add_u32 {aHR}, {sB}, v6")
        e(f"s_lshl_b32 {sB}, {sF}, 11\ns_lshl_b32 {sA}, {sW}, 9\ns_add_u32 {sB}, {sB}, {sA}\nv_add_u32 {aS45}, {sB}, v9")
        e(f"v_mov_b32 v8, 0x3f803f80\nv_and_b32 v6, 31, {vL}\nv_lshlrev_b32 v6, 2, v6\nv_add_u32 v6, {B_ONES}, v6\nds_write_b32 v6, v8")
        e(f"v_lshrrev_b32 v6, 2, {vL}\nv_mul_u32_u24 v6, 1056, v6\nv_lshl_add_u32 v6, {vq}, 3, v6\ns_lshl_b32 {sA}, {sW}, 7\nv_add_u32 v28, {sA}, v6\nv_add_u32 v29, {64*1056}, v28")
        e(f"v_lshlrev_b32 {aTCH}, 7, v0\nv_cmp_gt_u32 vcc, 0x100, v0\nv_cndmask_b32 {aTCH}, v13, {aTCH}, vcc")
        e("s_waitcnt lgkmcnt(0)")
        self.stamp("E")
        self.tags()
        self.cons_pats(PC)
        e(f"v_and_b32 v6, 7, {vC}\nv_lshlrev_b32 v6, 2, v6\nv_lshrrev_b32 v6, v6, {vT}")
        self.pat(Q0, "v6", 0)
        self.pat(Q1, "v6", 2)
        e(f"v_lshlrev_b32 v6, 1, {vC}\nv_lshrrev_b32 v6, v6, {vT}")
        self.pat(P45, "v6", 0)
        e("s_barrier")
        ckv(range(8, 16))
        for k, a in enumerate((PRET,) + PRET2):
            e(f"v_mov_b32 v{16+k}, {a}\nbuffer_load_dword v{16+k}, v{16+k}, {srd(S_WS)}, 0 offen")
        self.stamp('ckviss')
        for L in range(2):
            X = "'" * L
            l = self.lab("s1")
            if L == 0:
                e(f"s_lshl_b32 {sE}, {sJ}, 4\ns_add_u32 {sE}, {sE}, {sI}\ns_lshl_b32 {sE}, {sE}, 15")
            self.canary_wait(L, aCANR, o["d_s1" if L == 0 else "e_s1"], pre="s_waitcnt vmcnt(0)" if L == 0 else None, wsel=7 if L == 0 else 0)
            self.stamp("S1can" + X)
            e(f"s_mov_b32 {sA}, {S1R(L)}")
            ld = f"buffer_load_dwordx4 v[8:11], {aS1LD}, {srd(S_WS)}, {sA} offen sc1\nbuffer_load_dwordx4 v[12:15], {aS1LD}, {srd(S_WS)}, {sA} offen offset:1024 sc1"
            if L == 0:
                e(ld)
                for u in range(16):
                    e(f"ds_read_b128 {R(CS_+4*u,4)}, v30 offset:{B_CKV+u*64}")
                for u in range(4):
                    for t in range(4):
                        base, off = ("v28", u * 32 * 1056) if u < 2 else ("v29", (u - 2) * 32 * 1056)
                        e(f"ds_read_b64_tr_b16 {R(CP+16*u+4*t,2)}, {base} offset:{off+32*t}\nds_read_b64_tr_b16 {R(CP+16*u+4*t+2,2)}, {base} offset:{off+32*t+16*1056}")
                l2 = self.lab("in")
                e(f"{l2}:")

                def stub():
                    e(f"{l}:")
                    self.guard()
                    e(f"s_sleep {o['backoff']}\n{ld}\ns_branch {l2}")
                self.oob(stub)
            else:
                self.retry_head(l)
                e(ld)
            e("s_waitcnt vmcnt(0)")
            e(f"ds_write_b128 {aQAW}, v[8:11]\nds_write_b128 {aQAW}, v[12:15] offset:1056")
            self.check(list(range(8, 16)), PC, sM, "v6")
            e(f"s_cbranch_vccnz {l}")
            if L == 0 and o["wohelp"]:
                e(f"buffer_load_dword v255, {aTCH}, {srd(S_WO)}, {sE} offen")
            self.stamp('S1got' + X)
            self.bar()
            for u in range(4):
                e(f"ds_read_b128 {R(8+4*u,4)}, {aQAR} offset:{u*64}")
            for u in range(16):
                e(f"s_waitcnt lgkmcnt({min(3, 15-u)})")
                self.mfma(24, CS_ + 4 * u, 8 + 4 * (u & 3), None if u == 0 else 24)
                if u + 4 < 16:
                    e(f"ds_read_b128 {R(8+4*(u&3),4)}, {aQAR} offset:{(u+4)*64}")
            e(f"s_lshl_b32 {sA}, {sW}, 2\nv_add_u32 v7, {sA}, {aMX}\nv_max3_f32 v8, v24, v25, v26\nv_max_f32 v8, v8, v27")
            self.allred(["v8"], "v_max_f32", ["v9"], [16, 32])
            e(f"ds_write_b32 v7, v8")
            self.bar()
            self.stamp('Y2' + X)
            self.canary_set(2 + L, aCAN, o['lead_s2'] == 2)
            e(f"ds_read_b128 v[8:11], {aMX}\nds_read_b128 v[12:15], {aMX} offset:16\ns_waitcnt lgkmcnt(1)")
            e("v_max3_f32 v8, v8, v9, v10\ns_waitcnt lgkmcnt(0)\nv_max3_f32 v12, v12, v13, v14\nv_max3_f32 v8, v8, v11, v15\nv_max_f32 v5, v8, v12")
            for r in range(4):
                e(f"v_sub_f32 v{24+r}, v{24+r}, v5")
            for r in range(4):
                e(f"v_exp_f32 v{24+r}, v{24+r}")
            e("v_cvt_pk_bf16_f32 v8, v24, v25\nv_cvt_pk_bf16_f32 v9, v26, v27\nv_add_f32 v10, v24, v25\nv_add_f32 v11, v26, v27")
            e(f"ds_write_b64 {aPW}, v[8:9]\nv_add_f32 v10, v10, v11")
            self.allred(["v10"], "v_add_f32", ["v11"], [16, 32])
            e(f"ds_write_b32 v7, v10 offset:512")
            self.bar()
            self.stamp('Y3' + X)
            self.canary_set(2 + L, aCAN, o['lead_s2'] == 1)
            e(f"ds_read_b128 v[24:27], {aMX} offset:512\nds_read_b128 v[28:31], {aMX} offset:528\nds_read_b128 v[8:11], {aPR}\nds_read_b128 v[12:15], {aPR} offset:64")
            e(f"v_lshlrev_b32 v7, 2, {vC}\ns_lshl_b32 {sA}, {sW}, 6\ns_add_u32 {sA}, {sA}, {B_LI}\nv_add_u32 v7, {sA}, v7\ns_waitcnt lgkmcnt(1)")
            D = [16, 20, 24, 28]
            self.mfma(D[0], 8, CP)
            self.mfma(D[1], 8, CP + 4)
            e("v_add_f32 v24, v24, v25\nv_add_f32 v26, v26, v27\nv_add_f32 v28, v28, v29\nv_add_f32 v30, v30, v31\nv_add_f32 v24, v24, v26\nv_add_f32 v28, v28, v30\nv_add_f32 v6, v24, v28")
            self.mfma(D[2], 8, CP + 8)
            self.mfma(D[3], 8, CP + 12)
            e(f"ds_read_b128 v[8:11], {aPR} offset:128\ns_waitcnt lgkmcnt(1)")
            for t in range(4):
                self.mfma(D[t], 12, CP + 16 + 4 * t, D[t])
            e(f"ds_read_b128 v[12:15], {aPR} offset:192\nds_write_b32 v7, v6")
            l = self.lab("k")
            e(f"s_cmp_lg_u32 {sW}, 0\ns_cbranch_scc1 {l}\nv_log_f32 v6, v6\nv_mov_b32 v7, {vT}\ns_mov_b32 {sA}, {LSE(L)}\nv_add_f32 v6, v6, v5\ns_mov_b64 exec, 0xffff")
            e(f"buffer_store_dwordx2 v[6:7], {aLSEST}, {srd(S_WS)}, {sA} offen sc1\ns_mov_b64 exec, -1\n{l}:")
            e("s_waitcnt lgkmcnt(2)")
            for t in range(4):
                self.mfma(D[t], 8, CP + 32 + 4 * t, D[t])
            e(f"ds_read_b128 v[8:11], {aLR}\ns_waitcnt lgkmcnt(2)")
            for t in range(4):
                self.mfma(D[t], 12, CP + 48 + 4 * t, D[t])
            e("s_waitcnt lgkmcnt(0)")
            for r in range(4):
                e(f"v_rcp_f32 v{8+r}, v{8+r}")
            for r in range(4):
                e(f"s_mov_b32 {sA}, {S2R(L) + r*65536}")
                for t in range(4):
                    e(f"v_mul_f32 v{D[t]+r}, v{D[t]+r}, v{8+r}")
                self.pack_ovw(f"v{12+2*(r&1)}", f"v{D[0]+r}", f"v{D[1]+r}", Q0)
                self.pack_ovw(f"v{13+2*(r&1)}", f"v{D[2]+r}", f"v{D[3]+r}", Q1)
                e(f"buffer_store_dwordx2 {R(12+2*(r&1),2)}, {aS2ST}, {srd(S_WS)}, {sA} offen sc1")
            self.canary_set(2 + L, aCAN, o['lead_s2'] == 0)
            self.stamp('S2pub' + X)
            lnf = self.lab("nf")
            if L == 0:
                e("s_barrier")
                if o["fhelp"]:
                    lh, lx = self.lab("fh"), self.lab("fx")
                    e(f"s_cmp_lt_u32 {sI}, 6\ns_cbranch_scc1 {lx}\ns_sub_u32 {sE}, {sI}, 6\n{lh}:")
                    e(f"s_lshr_b32 {sA}, {sE}, 1\ns_lshl_b32 {sA}, {sA}, 3\ns_add_u32 {sA}, {sA}, {sJ}\ns_cmp_ge_u32 {sA}, 43\ns_cbranch_scc1 {lx}")
                    l1, l2 = self.lab("fa"), self.lab("fb")
                    e(f"s_lshl_b32 {sB}, {sA}, 6\nv_mul_u32_u24 v6, 2752, v0\ns_bitcmp1_b32 {sE}, 0\ns_cbranch_scc1 {l1}")
                    e(f"buffer_load_dword v255, v6, {srd(S_WU)}, {sB} offen\ns_branch {l2}\n{l1}:")
                    e(f"s_lshl_b32 {sA}, {sA}, 15\nbuffer_load_dword v255, {aTCH}, {srd(S_WD)}, {sA} offen\nv_mov_b32 v7, {OOB}\nv_cmp_le_u32 vcc, 0x100, v0\nv_cndmask_b32 v6, v7, v6, vcc\nbuffer_load_dword v255, v6, {srd(S_WG)}, {sB} offen\n{l2}:")
                    e(f"s_add_u32 {sE}, {sE}, 10\ns_cmp_lt_u32 {sE}, 12\ns_cbranch_scc1 {lh}\n{lx}:")
            e(f"s_cmp_ge_u32 {sF}, 43\ns_cbranch_scc1 {lnf}")
            if L == 0:
                e(f"v_lshrrev_b32 v6, 2, {vL}\ns_lshl_b32 {sA}, {sW}, 6\nv_add_u32 v6, {sA}, v6\nv_mul_u32_u24 v6, 2752, v6\nv_and_b32 v15, 3, {vL}\nv_lshl_add_u32 v6, v15, 4, v6\ns_lshl_b32 {sA}, {sF}, 6\nv_add_u32 v6, {sA}, v6")
                e(f"s_lshl_b32 {sC}, {sW}, 12")
                for sr, base in ((S_WG, B_FG), (S_WU, B_FU)):
                    for q in range(4):
                        e(f"s_mov_b32 {sA}, {q*16*2752}\ns_add_u32 m0, {sC}, {base + q*1024}\nbuffer_load_dwordx4 v6, {srd(sr)}, {sA} offen lds")
                    e("s_barrier")
                e(f"v_lshrrev_b32 v6, 3, {vL}\nv_lshlrev_b32 v6, 10, v6\nv_and_b32 v7, 7, {vL}\nv_lshl_add_u32 v6, v7, 4, v6\ns_lshl_b32 {sA}, {sF}, 15\ns_lshl_b32 {sB}, {sW}, 7\ns_add_u32 {sA}, {sA}, {sB}\nv_add_u32 v6, {sA}, v6")
                for q in range(4):
                    e(f"s_mov_b32 {sA}, {q*8192}\ns_add_u32 m0, {sC}, {B_FD + q*1024}\nbuffer_load_dwordx4 v6, {srd(S_WD)}, {sA} offen lds")
                e(f"v_bfe_u32 v14, {vL}, 2, 2\nv_and_b32 v6, 1, v14\nv_lshlrev_b32 v6, 4, v6\nv_lshl_add_u32 v6, {vG}, 2, v6\nv_lshrrev_b32 v7, 1, v14\nv_add_u32 v6, v6, v7\nv_lshlrev_b32 v6, 6, v6\nv_lshl_add_u32 v6, v15, 3, v6\nv_add_u32 v6, {sC}, v6")
                e(f"v_lshl_add_u32 v7, {vG}, 3, v14\nv_lshlrev_b32 v7, 7, v7\nv_lshl_add_u32 v7, v15, 3, v7\ns_and_b32 {sA}, {sW}, 3\ns_lshl_b32 {sA}, {sA}, 13\ns_add_u32 {sA}, {sA}, {B_FD}\nv_add_u32 v7, {sA}, v7")
                e("s_waitcnt vmcnt(4)")
                for mi, base in enumerate((B_FG, B_FU)):
                    for tt in range(2):
                        for u in range(2):
                            rg = FG + 8 * (2 * tt + mi) + 4 * u
                            off = base + u * 2048 + 32 * tt
                            e(f"ds_read_b64_tr_b16 {R(rg,2)}, v6 offset:{off}\nds_read_b64_tr_b16 {R(rg+2,2)}, v6 offset:{off+128}")
                e("s_waitcnt vmcnt(0)\ns_barrier")
                for tt in range(8):
                    off = (tt >> 2) * 4096 + 32 * (tt & 3)
                    e(f"ds_read_b64_tr_b16 {R(FD+4*tt,2)}, v7 offset:{off}\nds_read_b64_tr_b16 {R(FD+4*tt+2,2)}, v7 offset:{off+512}")
                e("s_waitcnt lgkmcnt(0)")
                self.stamp('ffnW')
            self.canary_wait(4 + L, aCANR, o["d_s3" if L == 0 else "e_s3"])
            self.stamp('S3can' + X)
            l = self.lab("s3")
            e(f"s_mov_b32 {sA}, {S3R(L)}\ns_mov_b32 {sB}, {S3R(L)+8192}")
            self.retry_head(l)
            e(f"buffer_load_dwordx4 v[8:11], {aS3LD}, {srd(S_WS)}, {sA} offen sc1\nbuffer_load_dwordx4 v[12:15], {aS3LD}, {srd(S_WS)}, {sB} offen sc1\ns_waitcnt vmcnt(0)")
            self.check(list(range(8, 16)), PC, sM, "v6")
            e(f"s_cbranch_vccnz {l}")
            self.canary_set(6 + L, aCAN, o['lead_s45'] == 2)
            self.stamp('S3got' + X)
            for k in range(4):
                e(f"v_lshlrev_b32 v{16+2*k}, 16, v{8+k}\nv_and_b32 v{17+2*k}, 0xffff0000, v{8+k}\nv_lshlrev_b32 v{24+2*k}, 16, v{12+k}\nv_and_b32 v{25+2*k}, 0xffff0000, v{12+k}")
            for k in range(8):
                e(f"v_add_f32 v{16+k}, v{16+k}, v{24+k}")
            for k in range(4):
                e(f"v_permlane32_swap_b32 v{16+k}, v{20+k}")
            for k in range(4):
                e(f"v_add_f32 v{16+k}, v{16+k}, v{20+k}")
            e("v_permlane16_swap_b32 v16, v18\nv_permlane16_swap_b32 v17, v19\nv_add_f32 v16, v16, v18\nv_add_f32 v17, v17, v19")
            e(f"v_cvt_pk_bf16_f32 v6, v16, v17\nds_write_b32 {aXPW}, v6")
            e(f"ds_read_b128 v[8:11], {aXPR}\nds_read_b128 v[12:15], {aXPR} offset:64\ns_waitcnt lgkmcnt(1)")
            DD = [16, 20, 24, 28]
            for t in range(4):
                self.mfma(DD[t], 8, FG + 8 * t)
            e("s_waitcnt lgkmcnt(0)")
            for t in range(4):
                self.mfma(DD[t], 12, FG + 8 * t + 4, DD[t])
            e("v_mfma_f32_16x16x32_bf16 v[8:11], v[8:11], v[8:11], 0")
            e("v_mfma_f32_16x16x32_bf16 v[8:11], v[12:15], v[12:15], v[8:11]")
            e(f"v_mov_b32 v17, v20\nv_mov_b32 v18, v24\nv_mov_b32 v19, v28\nds_write_b128 {aRBW}, v[16:19]\nds_write_b32 {aSTW}, v8")
            self.bar()
            self.stamp('Z1' + X)
            self.canary_set(6 + L, aCAN, o['lead_s45'] == 1)
            e(f"s_cmp_ge_u32 {sW}, 4\ns_cbranch_scc1 {lnf}")
            if L == 0:
                e(f"v_lshrrev_b32 v6, 5, {vL}\nv_lshlrev_b32 v6, 8, v6\nv_sub_u32 v6, {aRBR}, v6")
                for k in range(8):
                    e(f"ds_read_b64 {R(8+2*k,2)}, v6 offset:{768*k+512}")
                e(f"s_waitcnt lgkmcnt(0)\nv_add_f32 {vCG}, v8, v10\nv_add_f32 {vCU}, v9, v11")
                for k in range(2, 8):
                    e(f"v_add_f32 {vCG}, {vCG}, v{8+2*k}\nv_add_f32 {vCU}, {vCU}, v{9+2*k}")
            e(f"ds_read_b128 v[24:27], {aSTR}\nds_read_b128 v[28:31], {aSTR} offset:16")
            for k in range(4):
                e(f"ds_read_b64 {R(8+2*k,2)}, {aRBR} offset:{768*k}")
            e("s_waitcnt lgkmcnt(4)\nv_add_f32 v24, v24, v25\nv_add_f32 v26, v26, v27\nv_add_f32 v28, v28, v29\nv_add_f32 v30, v30, v31\nv_add_f32 v24, v24, v26\nv_add_f32 v28, v28, v30\nv_add_f32 v6, v24, v28")
            e(f"ds_read_b128 v[24:27], {aSTR} offset:32\nds_read_b128 v[28:31], {aSTR} offset:48")
            for k in range(4, 8):
                e(f"ds_read_b64 {R(8+2*k,2)}, {aRBR} offset:{768*k}")
            e("s_waitcnt lgkmcnt(6)\nv_add_f32 v8, v8, v10\nv_add_f32 v9, v9, v11\nv_add_f32 v12, v12, v14\nv_add_f32 v13, v13, v15\nv_add_f32 v8, v8, v12\nv_add_f32 v9, v9, v13")
            e("s_waitcnt lgkmcnt(4)\nv_add_f32 v24, v24, v25\nv_add_f32 v26, v26, v27\nv_add_f32 v28, v28, v29\nv_add_f32 v30, v30, v31\nv_add_f32 v24, v24, v26\nv_add_f32 v28, v28, v30\nv_add_f32 v7, v24, v28")
            e(f"v_mul_f32 v7, {f32(1/512)}, v7\nv_mov_b32 v12, {f32(1e-5)}\nv_fmac_f32 v12, {f32(1/512)}, v6\nv_fma_f32 v12, -v7, v7, v12\nv_rsq_f32 v12, v12\ns_waitcnt lgkmcnt(0)")
            e("v_add_f32 v16, v16, v18\nv_add_f32 v17, v17, v19\nv_add_f32 v20, v20, v22\nv_add_f32 v21, v21, v23\nv_add_f32 v8, v8, v16\nv_add_f32 v9, v9, v17\nv_add_f32 v8, v8, v20\nv_add_f32 v9, v9, v21")
            e(f"v_fma_f32 v8, -v7, {vCG}, v8\nv_fma_f32 v9, -v7, {vCU}, v9\nv_mul_f32 v8, v8, v12\nv_mul_f32 v9, v9, v12")
            c1 = -2 * 0.7978845608028654 * math.log2(math.e)
            e(f"v_mul_f32 v10, v8, v8\nv_mov_b32 v11, {f32(c1)}\nv_fmac_f32 v11, {f32(c1*0.044715)}, v10\nv_mul_f32 v10, v11, v8\nv_exp_f32 v10, v10")
            e(f"v_mul_f32 v8, v8, v9\nv_add_f32 v10, 1.0, v10\nv_rcp_f32 v10, v10\ns_mov_b32 {sA}, {S45(L)}\nv_mul_f32 v8, v8, v10")
            e(f"v_cvt_pk_bf16_f32 v8, v8, v8\nds_write_b16 {aHW}, v8\nds_read_b128 v[8:11], {aHR}\ns_waitcnt lgkmcnt(0)")
            for hf in range(2):
                for t in range(4):
                    self.mfma(DD[t], 8, FD + 16 * hf + 4 * t)
                self.pack_ovw("v12", "v16", "v20", P45)
                self.pack_ovw("v13", "v24", "v28", P45)
                e(f"v_permlane32_swap_b32 v12, v13\nbuffer_store_dword v12, {aS45}, {srd(S_WS)}, {sA} offen offset:{256*hf} sc1")
            self.canary_set(6 + L, aCAN, o['lead_s45'] == 0)
            self.stamp('S45pub' + X)
            e(f"{lnf}:")
        self.dump_stamps()


if __name__ == "__main__":
    import argparse
    ap = argparse.ArgumentParser()
    ap.add_argument("-o", default=f"cdna_kernels/{NAME}.s")
    ap.add_argument("--opt", action="append", default=[])
    a = ap.parse_args()
    opts = {k: int(v) for k, v in (x.split("=") for x in a.opt)}
    open(a.o, "w").write(Gen(**opts).build())
```

```python
import simple_gen
triv = """.globl pre_kernel
.p2align 8
.type pre_kernel,@function
pre_kernel:
s_endpgm
"""
def kd(v):
    return simple_gen.kd("pre_kernel").replace("next_free_vgpr 128", f"next_free_vgpr {v}").replace("accum_offset 128", f"accum_offset {min(v,256)}")
for name, blk, v, lds, grid in (("a", 512, 256, 158592, 256), ("b", 512, 256, 0, 256), ("c", 512, 32, 0, 256), ("d", 64, 32, 0, 1), ("e", 256, 128, 158592, 256)):
    open(f"p_t{name}.s", "w").write(simple_gen.gen(pre=triv, pre_launch=f"; @launch kernel=pre_kernel grid=({grid},1,1) block=({blk},1,1) lds={lds}", pre_kd=kd(v), npre=200))
```

```python
import sys, math, struct
sys.path.insert(0, "scratch")
from asmlib import hazard_pass

NAME = "interleave_layers__compressed_kv_cla__glu_gated_geglu__decode"
f32 = lambda x: "0x%08x" % struct.unpack("<I", struct.pack("<f", x))[0]

WADR = 0x80
VOTES = 0x200
PRET = 0x800
CAN = 0x4000
LSE = lambda L: 0x8000 + L * 0x8000
S1R = lambda L: 0x18000 + L * 0x20000
S3R = lambda L: 0x58000 + L * 0x8000
S45 = lambda L: 0x68000 + L * 0x2C000
CAL = 0x100000
I0R = lambda L: 0x200000 + L * 0x80000
COLS = 0x300000
I1R = lambda L: 0x340000 + L * 0x20000
I0S = lambda L: 0x380000 + L * 0x4000
S2R = lambda L: 0x400000 + L * 0x400000
PRET2 = (0x3F0000,)
STAMP = 0xE000000
OOB = 0x7FFFFF00
A_WQ = 0
A_OS = 0
A_XR = 18432
A_WUK = 34048
A_WUV = 67840
A_WO = 101632
A_Q = 134400
A_WW = A_Q + 512
A_CC = A_WW + 256
A_CT = A_CC + 512
A_RR = A_CT + 2048
A_XS = A_RR + 2048
A_DUM = A_XS + 256
B_CKV = 0
B_QA = 135168
B_MX = 152064
B_LI = B_MX + 1024
B_P = B_LI + 512
B_ONES = B_P + 4608
B_DUM = B_ONES + 128
LDS_BYTES = B_DUM + 256
B_FG = 0
B_FU = 32768
B_FD = 65536
B_XP = 98304
B_H = B_XP + 2048
B_RB = B_H + 1024
B_ST = B_RB + 6144

S_WS, S_X, S_CKV, S_WQ, S_WUK, S_WUV, S_WO, S_WG, S_WU, S_WD, S_OUT = [4 + 4 * k for k in range(11)]
sT1, sT2, sT3, sBW = "s48", "s49", "s50", "s51"
sJ, sI, sW, sT, sM, sFF, sSEL, sGUARD, sPLAIN, sXCC, sPA, sE = ["s%d" % (52 + k) for k in range(12)]
sA, sB, sC, sD = "s64", "s65", "s66", "s67"
sH, sCS = "s68", "s69"
sMASK = "s[70:71]"
sMEAN, sRSTD = "s72", "s73"
sSIDE, sWW = "s100", "s101"
STAMP0 = 78
srd = lambda b: f"s[{b}:{b+3}]"
vL, vC, vG, vT = "v1", "v2", "v3", "v4"
DPPM = "row_mask:0xf bank_mask:0xf"
DP = {1: "quad_perm:[1,0,3,2]", 2: "quad_perm:[2,3,0,1]", 4: "row_half_mirror", 8: "row_ror:8"}

PROFILES = [
    (["start", "Wq", "P1a", "I0got", "S1pub", "Wo", "S2can", "S2got", "I1got", "S3pub", "S45got"],
     ["start", "ckv", "S1can", "S1got", "Y2", "Y3", "S2pub", "ffnW", "S3can", "S3got", "S45pub"]),
    (["start", "S45got", "P1a'", "I0got'", "S1pub'", "S2can'", "S2got'", "I1pub'", "I1got'", "S3pub'", "end"],
     ["start", "S45pub", "S1can'", "S1got'", "Y2'", "Y3'", "S2pub'", "S3can'", "S3got'", "Z1'", "S45pub'"]),
    (["start", "karg", "E", "Wq", "Wuk", "P1a", "I0pr", "I0got", "S1pub", "Wo", "S2can"],
     ["start", "karg", "E", "ckv0", "ckv8", "ckviss", "ckv", "S1can", "S1got", "Y2", "S2pub"]),
    (["start", "end", "S45got"], ["start"]),
    (["start", "S1pub", "Wuv", "Wo0", "Wo", "S2can", "S2got", "I1pub", "I1got", "S3pub", "S45got"],
     ["start", "ckviss", "ckv", "S1can", "S1got", "Y2", "S2pub", "ffnW", "S3can", "S3got", "S45pub"]),
]


def R(a, n=1):
    return f"v{a}" if n == 1 else f"v[{a}:{a+n-1}]"


class Gen:
    def __init__(self, **o):
        self.o = dict(stamps=0, bdelay=4, bdelay2=6, adelay=2, d_s1=1, d_s2=5, d_s3=5, d_s45=2, e_s1=2, e_s2=8, e_s3=5, e_s45=2, guard=0x400000, backoff=2,
                      lead_s1=1, lead_s2=1, lead_s3=1, lead_s45=1, prof=0, i0tries=24, bhelp=4, wohelp=2, fhelp=1, amp=0, warm=1, wukdelay=20, vdelay=16, forcec=-1)
        self.o.update(o)
        for h in ('s1', 's2', 's3', 's45'):
            self.o.setdefault('e_' + h, self.o['d_' + h])
        self.L = []
        self.uid = 0
        self.nst = 0
        self.cold = []
        self.NA, self.NB = PROFILES[self.o["prof"]]
        self.names = self.NA

    def e(self, s):
        for ln in s.split("\n"):
            self.L.append(ln)

    def lab(self, p):
        self.uid += 1
        return f"L_{p}_{self.uid}"

    def stamp(self, name):
        if self.o["stamps"] and name in self.names:
            k = self.names.index(name)
            self.e(f"s_memrealtime s[{STAMP0+2*k}:{STAMP0+2*k+1}]")

    def dump_stamps(self):
        if not self.o["stamps"]:
            return
        e = self.e
        e("s_waitcnt lgkmcnt(0)")
        for k in range(11):
            e(f"v_mov_b32 v{8+k}, s{STAMP0+2*k}")
        e(f"s_lshl_b32 {sA}, s2, 9\ns_lshl_b32 {sB}, {sW}, 6\ns_add_u32 {sA}, {sA}, {sB}\ns_add_u32 {sA}, {sA}, {STAMP}")
        e(f"v_mov_b32 v6, {OOB}\nv_cmp_eq_u32 vcc, 0, {vL}\nv_cndmask_b32 v6, v6, {vL}, vcc")
        e(f"v_mov_b32 v20, {sGUARD}\nv_mov_b32 v21, {sT}\nv_mov_b32 v22, {sPLAIN}\nv_mov_b32 v23, s3")
        for k in range(4):
            e(f"buffer_store_dwordx4 v[{8+4*k}:{11+4*k}], v6, {srd(S_WS)}, {sA} offen offset:{16*k}")

    def mfma(self, d, a, b, c=None):
        self.e(f"v_mfma_f32_16x16x32_bf16 {R(d,4)}, {R(a,4)}, {R(b,4)}, {'0' if c is None else R(c,4)}")

    def bar(self):
        self.e("s_waitcnt lgkmcnt(0)\ns_barrier")

    def guard(self):
        if self.o["stamps"]:
            self.nst += 1
            self.e(f"s_movk_i32 s3, {self.nst}")
        self.e(f"s_sub_u32 {sGUARD}, {sGUARD}, 1\ns_cbranch_scc1 {'L_bail' if self.o['stamps'] else 'L_end'}")

    def sel(self, dst, cond, a, b):
        self.e(cond)
        self.e(f"v_cndmask_b32 {dst}, {a}, {b}, vcc")

    def check(self, regs, pats, mask, acc, extra=None):
        e = self.e
        e(f"v_xor_b32 {acc}, {pats[0]}, v{regs[0]}")
        for n, r in enumerate(regs[1:], 1):
            e(f"v_bitop3_b32 {acc}, v{r}, {pats[n & 3]}, {acc} bitop3:0xbe")
        e(f"v_and_or_b32 {acc}, {acc}, {mask}, {extra}" if extra else f"v_and_b32 {acc}, {mask}, {acc}")
        e(f"v_cmp_ne_u32 vcc, 0, {acc}")

    def pat(self, dst, src, sh, kk=None):
        e = self.e
        e(f"v_bfe_u32 {dst}, {src}, {sh}, 2\nv_lshl_or_b32 {dst}, {dst}, 15, {dst}")
        if kk:
            e(f"v_not_b32 {kk[1]}, {dst}\nv_and_b32 {kk[0]}, 1, {kk[1]}\nv_lshlrev_b32 {kk[0]}, 16, {kk[0]}\nv_and_b32 {kk[1]}, 0x10000, {kk[1]}")

    def cons_pats(self, P):
        self.e(f"v_and_b32 v6, 3, {vL}\nv_lshlrev_b32 v6, 3, v6\nv_lshrrev_b32 v6, v6, {vT}")
        for k in range(4):
            self.pat(P[k], "v6", 2 * k)

    def pack_near(self, dst, lo, hi, t0, t1, p, kk):
        e = self.e
        e(f"v_add_u32 {t0}, {kk[0]}, {lo}\nv_add_u32 {t1}, {kk[1]}, {hi}")
        e(f"v_perm_b32 {t0}, {t1}, {t0}, {sSEL}\nv_bfi_b32 {dst}, {sM}, {p}, {t0}")

    def pack_ovw(self, dst, lo, hi, p):
        self.e(f"v_cvt_pk_bf16_f32 {dst}, {lo}, {hi}\nv_bfi_b32 {dst}, {sM}, {p}, {dst}")

    def allred(self, regs, op, tmps, steps):
        e = self.e
        for s in steps:
            if s in DP:
                for r in regs:
                    e(f"{op}_dpp {r}, {r}, {r} {DP[s]} {DPPM}")
            else:
                for r, t in zip(regs, tmps):
                    e(f"v_mov_b32 {t}, {r}")
                for r, t in zip(regs, tmps):
                    e(f"v_permlane{s}_swap_b32 {r}, {t}")
                for r, t in zip(regs, tmps):
                    e(f"{op} {r}, {r}, {t}")

    def can_addr(self, vw, vr, sidx):
        e = self.e
        e(f"s_lshl_b32 {sA}, {sidx}, 9\nv_add_u32 v6, {sA}, v0\ns_lshl_b32 {sA}, {sJ}, 7\ns_add_u32 {sA}, {sA}, {CAN}\nv_lshl_add_u32 v8, v0, 13, {sA}\nv_cmp_gt_u32 vcc, 2, v6\nv_cndmask_b32 {vw}, v13, v8, vcc")
        e(f"v_and_b32 v6, 7, v0\nv_lshlrev_b32 v6, 7, v6\nv_add_u32 {vr}, {CAN}, v6")

    def place_load(self, v):
        self.e(f"v_mov_b32 v{v}, {WADR}\nbuffer_load_dwordx2 v[{v}:{v+1}], v{v}, {srd(S_WS)}, 0 offen sc1")

    def place_wait(self, v, first=False):
        e = self.e
        l, l2 = self.lab("pw"), self.lab("px")
        if not first:
            self.place_load(v)
        e(f"{l2}:\ns_waitcnt vmcnt(0)\nv_readfirstlane_b32 {sA}, v{v}\nv_readfirstlane_b32 {sWW}, v{v+1}\ns_cmp_lg_u32 {sA}, {sT}\ns_cbranch_scc1 {l}")

        def stub():
            e(f"{l}:")
            self.guard()
            e("s_sleep 2")
            self.place_load(v)
            e(f"s_branch {l2}")
        self.oob(stub)
        e(f"s_lshr_b32 {sA}, {sWW}, 3\ns_lshr_b32 {sB}, {sXCC}, 2\ns_xor_b32 {sA}, {sA}, {sB}\ns_and_b32 {sA}, {sA}, 1\ns_lshl_b32 {sSIDE}, {sA}, 13")

    def canary_wait(self, idx, vr, delay, pre=None, wsel=0):
        e = self.e
        l, l2 = self.lab("can"), self.lab("cb")
        e(f"s_cmp_lg_u32 {sW}, {wsel}\ns_cbranch_scc1 {l2}\ns_movk_i32 {sA}, {idx*1024}\ns_mov_b64 exec, 0xff")
        e(f"{l}:")
        self.guard()
        e(f"buffer_load_dword v6, {vr}, {srd(S_WS)}, {sA} offen sc1\ns_waitcnt vmcnt(0)")
        e(f"v_cmp_ne_u32 vcc, v6, {vT}\ns_cbranch_vccnz {l}\ns_mov_b64 exec, -1")
        if delay:
            e(f"s_sleep {delay}")
        e(f"{l2}:")
        if pre:
            pre()
            self.stamp("ckv")
        e("s_barrier")

    def canary_set(self, idx, vw, cond=True):
        if cond:
            self.e(f"s_movk_i32 {sD}, {idx*1024}\nbuffer_store_dword {vT}, {vw}, {srd(S_WS)}, {sD} offen sc1")

    def oob(self, fn):
        keep, self.L = self.L, []
        fn()
        self.cold.append("\n".join(self.L))
        self.L = keep

    def retry_head(self, l, mult=1):
        l2 = self.lab("in")
        self.e(f"{l2}:")

        def stub():
            self.e(f"{l}:")
            self.guard()
            self.e(f"s_sleep {mult*self.o['backoff']}\ns_branch {l2}")
        self.oob(stub)

    def store_intra(self, ins):
        e = self.e
        l1, l2 = self.lab("sc"), self.lab("sd")
        e(f"s_cmp_eq_u32 {sPLAIN}, 0\ns_cbranch_scc1 {l1}")
        for i in ins:
            e(i)
        e(f"{l2}:")
        self.cold.append(f"{l1}:\n" + "\n".join(i + " sc1" for i in ins) + f"\ns_branch {l2}")

    def consts(self):
        self.e(f"s_mov_b32 {sM}, 0x00010001\ns_movk_i32 {sFF}, 0xff\ns_mov_b32 {sSEL}, 0x07060302\ns_mov_b32 {sGUARD}, {self.o['guard']}")

    def fin_srd(self, b, size):
        self.e(f"s_mov_b32 s{b+2}, {size}\ns_mov_b32 s{b+3}, 0x20000")

    def epoch_load(self):
        self.e(f"s_load_dword {sT}, s[{S_WS}:{S_WS+1}], 0")

    def calib(self, sidx):
        e = self.e
        e(f"s_lshl_b32 {sA}, {sidx}, 2\ns_lshr_b32 {sB}, {sW}, 1\ns_add_u32 {sA}, {sA}, {sB}\ns_lshr_b32 {sB}, {sA}, 6\ns_lshl_b32 {sB}, {sB}, 1\ns_and_b32 {sC}, {sW}, 1\ns_add_u32 {sB}, {sB}, {sC}\ns_lshl_b32 {sB}, {sB}, 6")
        e(f"s_and_b32 {sA}, {sA}, 63\ns_add_u32 {sA}, {sA}, {sB}\ns_lshl_b32 {sA}, {sA}, 7\ns_add_u32 {sA}, {sA}, {CAL}")

    def calib_run(self):
        self.e(f"s_memtime s[72:73]\ns_load_dword {sB}, s[{S_WS}:{S_WS+1}], {sA}\ns_waitcnt lgkmcnt(0)\ns_memtime s[70:71]\ns_waitcnt lgkmcnt(0)\ns_sub_u32 {sC}, s70, s72")

    def ffn_touch(self, sK, dst):
        e = self.e
        lx, l1, l2 = self.lab("fx"), self.lab("fa"), self.lab("fb")
        e(f"s_cmp_ge_u32 {sW}, 4\ns_cbranch_scc1 {lx}\ns_mul_i32 {sA}, {sK}, 43\ns_lshr_b32 {sA}, {sA}, 8\ns_mul_i32 {sB}, {sA}, 6\ns_sub_u32 {sB}, {sK}, {sB}\ns_lshl_b32 {sB}, {sB}, 3\ns_add_u32 {sB}, {sB}, {sJ}")
        e(f"s_cmp_ge_u32 {sB}, 43\ns_cbranch_scc1 {lx}\ns_cmp_eq_u32 {sA}, 3\ns_cbranch_scc1 {l1}")
        e(f"v_mul_u32_u24 v6, 2752, v0\ns_lshl_b32 {sB}, {sB}, 6\ns_cmp_eq_u32 {sA}, 1\ns_cselect_b32 {sC}, 0, {256*2752}\ns_add_u32 {sB}, {sB}, {sC}\ns_cmp_eq_u32 {sA}, 0\ns_cbranch_scc1 {l2}")
        e(f"buffer_load_dword {dst}, v6, {srd(S_WU)}, {sB} offen\ns_branch {lx}\n{l2}:\nbuffer_load_dword {dst}, v6, {srd(S_WG)}, {sB} offen\ns_branch {lx}")
        e(f"{l1}:\nv_lshlrev_b32 v6, 7, v0\ns_lshl_b32 {sB}, {sB}, 15\nbuffer_load_dword {dst}, v6, {srd(S_WD)}, {sB} offen\n{lx}:")

    def tags(self):
        self.e(f"s_add_u32 {sT}, {sT}, 1\nv_mov_b32 {vT}, {sT}")

    def build(self):
        e = self.e
        K = NAME + "_kernel"
        e(f"; @launch grid=(256,1,1) block=(512,1,1) lds={LDS_BYTES}")
        e('.amdgcn_target "amdgcn-amd-amdhsa--gfx950"\n.text')
        e(f".globl {K}\n.p2align 8\n.type {K},@function\n{K}:")
        self.stamp('start')
        if self.o["amp"]:
            e("s_memrealtime s[98:99]")
        e("s_cmp_ge_u32 s2, 256\ns_cbranch_scc1 L_end")
        e(f"s_load_dwordx2 s[{S_WS}:{S_WS+1}], s[0:1], 96")
        e(f"s_lshr_b32 {sI}, s2, 3\ns_cmp_ge_u32 {sI}, 16\ns_cbranch_scc1 L_roleB")
        self.roleA()
        e("L_roleB:")
        self.names = self.NB
        self.roleB()
        e("s_endpgm")
        for c in self.cold:
            e(c)
        if self.o["stamps"]:
            e("L_bail:\ns_mov_b64 exec, -1")
            e(f"s_lshl_b32 {sA}, s2, 14\ns_add_u32 {sA}, {sA}, 0xC000000\nv_lshlrev_b32 v6, 5, v0\nbuffer_store_dwordx4 v[8:11], v6, {srd(S_WS)}, {sA} offen\nbuffer_store_dwordx4 v[12:15], v6, {srd(S_WS)}, {sA} offen offset:16\ns_waitcnt vmcnt(0)")
            self.dump_stamps()
        e("L_end:\ns_endpgm\nL_code_end:")
        body = hazard_pass(self.L)
        body.append(f""".section .rodata,"a"
.p2align 6
.amdhsa_kernel {K}
  .amdhsa_next_free_vgpr 256
  .amdhsa_next_free_sgpr 102
  .amdhsa_accum_offset 256
  .amdhsa_group_segment_fixed_size 0
  .amdhsa_kernarg_size 104
  .amdhsa_user_sgpr_count 2
  .amdhsa_user_sgpr_kernarg_segment_ptr 1
  .amdhsa_system_sgpr_workgroup_id_x 1
.end_amdhsa_kernel""")
        return "\n".join(body) + "\n"

    def roleA(self):
        e, o = self.e, self.o
        WQ, WUK, WUV, WO, XOP, SEL0, SEL4 = 32, 64, 128, 144, 160, 164, 168
        vCS, vONE, vTL = "v172", "v173", "v28"
        (aXOFF, aWROW, aI0ST0, aI0ST1, aI0LD, aCSLD, aSTLD, aSTST, aQW, aQR, aS1ST, aS2LD, aOSW, aLSE, aWW, aWA0, aWA1,
         aOTR, aCCW, aCCR, aI1ST, aI1LD, aCTW, aCTR, aRRW, aRRR, aS3ST, aXLD, aXRW, aXTR, aXSW, aCANW, aCANR, aOUT) = ["v%d" % (174 + k) for k in range(34)]
        TB = [vT, "v208", "v209", "v210"]
        PC = ["v240", "v241", "v242", "v243"]
        Q0, Q1, K0, K1 = "v252", "v253", ("v254", "v255"), ("v211", "v5")
        P3, K3 = "v30", ("v31", "v29")
        sTB = [sT, sT1, sT2, sT3]
        vr, vq = "v14", "v15"
        e(f"s_load_dwordx2 s[{S_WQ}:{S_WQ+1}], s[0:1], 16\ns_load_dwordx2 s[{S_WUK}:{S_WUK+1}], s[0:1], 24\ns_load_dwordx2 s[{S_X}:{S_X+1}], s[0:1], 0")
        e(f"v_lshrrev_b32 v6, 6, v0\nv_and_b32 {vC}, 15, v0\ns_and_b32 {sJ}, s2, 7\nv_readfirstlane_b32 {sW}, v6\nv_bfe_u32 {vG}, v0, 4, 2\nv_lshlrev_b32 v7, 4, {vC}")
        self.fin_srd(S_WQ, 4 << 20)
        self.fin_srd(S_WUK, 4 << 20)
        e(f"s_and_b32 {sBW}, {sI}, 3\ns_lshl_b32 {sH}, {sJ}, 2\ns_add_u32 {sH}, {sH}, {sBW}\ns_lshr_b32 {sCS}, {sI}, 2\ns_mul_i32 {sD}, {sW}, 8448")
        ljn = self.lab("jn")
        e(f"s_cmp_ge_u32 {sW}, 4\ns_cbranch_scc1 {ljn}")
        e(f"s_lshl_b32 {sA}, {sI}, 8\ns_add_u32 {sA}, {sA}, {sJ}\ns_lshl_b32 {sA}, {sA}, 2\ns_add_u32 {sA}, {sA}, {sW}\ns_lshl_b32 {sA}, {sA}, 8\nv_lshl_add_u32 v9, {vG}, 15, v7\nv_add_u32 v9, {sA}, v9")
        e(f"v_bfe_u32 v10, {vC}, 2, 1\nv_lshlrev_b32 v6, 10, v10\nv_lshl_add_u32 v6, {vG}, 2, v6\ns_lshl_b32 {sB}, {sI}, 6\nv_add_u32 {aXOFF}, {sB}, v6")
        self.fin_srd(S_X, 2048)
        e("s_waitcnt lgkmcnt(0)")
        self.stamp("karg")
        for k, off in enumerate((0, 32, 16, 48)):
            e(f"buffer_load_dword v{24+k}, {aXOFF}, {srd(S_X)}, 0 offen offset:{off}")
        for q in range(8):
            e(f"s_mov_b32 {sA}, {((q & 3) + 16*(q >> 2))*8192}\ns_add_u32 m0, {sD}, {A_WQ + q*1056}\nbuffer_load_dwordx4 v9, {srd(S_WQ)}, {sA} offen lds")
        e(f"{ljn}:\ns_waitcnt lgkmcnt(0)")
        self.epoch_load()
        for b, slot in ((S_WUV, 4), (S_WO, 5), (S_OUT, 10), (S_WG, 7), (S_WU, 8), (S_WD, 9)):
            e(f"s_load_dwordx2 s[{b}:{b+1}], s[0:1], {slot*8}")
        self.fin_srd(S_WS, 0x10000000)
        e(f"v_and_b32 {vL}, 63, v0\nv_mov_b32 v13, {OOB}")
        self.consts()
        e(f"s_getreg_b32 {sXCC}, hwreg(HW_REG_XCC_ID)\ns_and_b32 {sXCC}, {sXCC}, 15\ns_lshl_b32 {sPA}, {sJ}, 4\ns_add_u32 {sPA}, {sPA}, {sI}\ns_mov_b32 {sPLAIN}, 0")
        e(f"v_lshlrev_b32 v7, 4, {vL}\nv_bfe_u32 v10, {vC}, 2, 1\nv_lshlrev_b32 v11, 4, {vG}\nv_bfe_u32 {vr}, {vL}, 2, 2\nv_and_b32 {vq}, 3, {vL}")
        e(f"v_and_b32 v6, 1, {vr}\nv_lshlrev_b32 v6, 2, v6\nv_lshrrev_b32 v8, 1, {vr}\nv_add_u32 v6, v6, v8\nv_and_b32 v8, 1, {vG}\nv_lshl_add_u32 v6, v8, 1, v6\nv_mul_u32_u24 v6, 1056, v6")
        e(f"v_lshrrev_b32 v8, 1, {vG}\nv_lshl_add_u32 v6, v8, 8, v6\nv_lshl_add_u32 v6, {vq}, 3, v6\nv_add_u32 v31, {sD}, v6")
        e(f"s_lshl_b32 {sA}, {sPA}, 2\ns_add_u32 {sA}, {sA}, {sW}\ns_lshl_b32 {sB}, {sA}, 10\ns_add_u32 {sB}, {sB}, {I0R(0)}\nv_add_u32 v6, {sB}, v7\nv_cmp_gt_u32 vcc, 32, {vL}")
        e(f"s_lshl_b32 {sB}, {sA}, 9\ns_add_u32 {sB}, {sB}, {COLS - 512}\nv_cndmask_b32 {aI0ST1}, v13, v6, vcc\nv_add_u32 v6, {sB}, v7")
        e(f"s_and_b32 {sA}, {sH}, 24\ns_add_u32 {sA}, {sA}, {sH}\ns_lshl_b32 {sA}, {sA}, 2\ns_add_u32 {sA}, {sA}, {sCS}\ns_lshl_b32 {sB}, {sA}, 1\ns_and_b32 {sC}, {sW}, 1\ns_add_u32 {sB}, {sB}, {sC}\ns_lshl_b32 {sB}, {sB}, 7")
        e(f"v_lshlrev_b32 v8, 16, {vG}\nv_lshl_add_u32 v8, {vC}, 3, v8\nv_add_u32 v8, {sB}, v8\nv_cndmask_b32 {aS1ST}, v13, v8, vcc")
        self.sel(aI0ST0, f"v_cmp_eq_u32 vcc, 2, {vG}", aI0ST1, "v6")
        e(f"v_add_u32 v6, 256, {aI0ST0}\nv_add_u32 v8, 512, {aI0ST0}\nv_cndmask_b32 {aOUT}, v8, v6, vcc")
        e(f"v_lshrrev_b32 v6, 3, {vL}\nv_sub_u32 v8, {vL}, v6\nv_add_u32 v8, 3, v8\ns_mov_b32 vcc_lo, 0x01100101\ns_mov_b32 vcc_hi, 0\nv_cndmask_b32 v6, v8, v6, vcc")
        e(f"s_lshl_b32 {sA}, {sPA}, 7\nv_lshl_add_u32 v6, v6, 3, {sA}\ns_cmp_eq_u32 {sW}, 0\ns_cselect_b32 vcc_lo, 0x01103fff, 0\nv_cndmask_b32 {aSTST}, v13, v6, vcc")
        e(f"v_lshrrev_b32 v8, 3, {vL}\nv_and_b32 v9, 7, {vL}\nv_lshlrev_b32 v9, 4, v9")
        e(f"s_lshl_b32 {sA}, {sJ}, 6\ns_add_u32 {sA}, {sA}, {sBW}\ns_lshl_b32 {sB}, {sA}, 3\ns_add_u32 {sB}, {sB}, {sW}\ns_lshl_b32 {sB}, {sB}, 7")
        e(f"v_lshl_add_u32 v6, v8, 12, v9\nv_add_u32 {aI0LD}, {sB}, v6")
        e(f"s_lshr_b32 {sC}, {sW}, 2\ns_lshl_b32 {sA}, {sA}, 1\ns_add_u32 {sA}, {sA}, {sC}\ns_lshl_b32 {sA}, {sA}, 1\ns_and_b32 {sE}, {sW}, 1\ns_add_u32 {sA}, {sA}, {sE}\ns_lshl_b32 {sA}, {sA}, 7\ns_add_u32 {sA}, {sA}, {COLS}")
        e(f"v_lshl_add_u32 v6, v8, 11, v9\nv_add_u32 {aCSLD}, {sA}, v6")
        e(f"s_bfe_u32 {sB}, {sW}, 0x10001\ns_lshl_b32 {sA}, {sJ}, 7\ns_add_u32 {sA}, {sA}, {sB}\ns_lshl_b32 {sA}, {sA}, 4\nv_lshlrev_b32 v6, 7, {vC}\nv_add_u32 {aSTLD}, {sA}, v6")
        e(f"s_lshl_b32 {sA}, {sB}, 1\ns_add_u32 {sA}, {sA}, {sC}\ns_lshl_b32 {sA}, {sA}, 3\ns_add_u32 {sA}, {sA}, {sE}\ns_lshl_b32 {sA}, {sA}, 4\ns_add_u32 {sA}, {sA}, {A_Q}")
        e(f"v_lshrrev_b32 v6, 3, v9\nv_lshl_add_u32 v6, {vG}, 5, v6\nv_add_u32 {aQW}, {sA}, v6")
        e(f"v_lshl_add_u32 v6, v10, 8, v11\nv_add_u32 {aQR}, {A_Q}, v6")
        e(f"v_mov_b32 v6, 0x3f803f80\nv_cmp_eq_u32 vcc, 8, {vC}\nv_mov_b32 v8, 0\nv_cndmask_b32 {vONE}, v8, v6, vcc")
        self.can_addr(aCANW, aCANR, sI)
        lsk = self.lab("k")
        e(f"s_cmp_lt_u32 {sW}, 4\ns_cbranch_scc1 {lsk}")
        lw = self.lab("k")
        e(f"s_cmp_lg_u32 {sW}, 4\ns_cbranch_scc1 {lw}\ns_lshl_b32 {sA}, {sPA}, 12\ns_add_u32 {sA}, {sA}, {I0R(0)}\ns_lshl_b32 {sB}, {sPA}, 11\ns_add_u32 {sB}, {sB}, {COLS - 4096}\ns_lshl_b32 {sC}, {sPA}, 7\ns_add_u32 {sC}, {sC}, {I0S(0)}")
        e(f"v_lshlrev_b32 v6, 7, {vL}\nv_add_u32 v8, {sA}, v6\nv_add_u32 v6, {sB}, v6\nv_cmp_gt_u32 vcc, 32, {vL}\nv_cndmask_b32 v6, v6, v8, vcc\nv_mov_b32 v8, {sC}\nv_cmp_gt_u32 vcc, 48, {vL}\nv_cndmask_b32 v6, v8, v6, vcc")
        e(f"buffer_load_dword v28, v6, {srd(S_WS)}, 0 offen\n{lw}:")
        e(f"s_cmp_ge_u32 {sW}, 6\ns_cbranch_scc1 {lsk}")
        e(f"s_lshl_b32 {sA}, {sCS}, 1\ns_add_u32 {sA}, {sA}, {sW}\ns_sub_u32 {sA}, {sA}, 4\ns_lshl_b32 {sA}, {sA}, 11\ns_add_u32 {sA}, {sA}, {sH}\ns_lshl_b32 {sA}, {sA}, 8\nv_lshlrev_b32 v9, 4, {vC}\nv_lshl_add_u32 v9, {vG}, 13, v9\nv_add_u32 v9, {sA}, v9")
        e(f"s_lshl_b32 {sD}, {sD}, 1\ns_sub_u32 {sD}, {sD}, {8*8448 - A_WUK}")
        if o["wukdelay"]:
            e(f"s_sleep {o['wukdelay']}")
        for q in range(16):
            e(f"s_mov_b32 {sA}, {q*32768}\ns_add_u32 m0, {sD}, {q*1056}\nbuffer_load_dwordx4 v9, {srd(S_WUK)}, {sA} offen lds")
        e(f"{lsk}:\ns_waitcnt lgkmcnt(0)")
        self.stamp("E")
        self.tags()
        for k in range(1, 4):
            e(f"v_lshrrev_b32 {TB[k]}, {8*k}, {vT}\ns_lshr_b32 {sTB[k]}, {sT}, {8*k}")
        e(f"v_and_b32 v6, 7, {vC}\nv_lshlrev_b32 v6, 2, v6\nv_lshrrev_b32 v6, v6, {vT}")
        self.pat(Q0, "v6", 0, K0)
        self.pat(Q1, "v6", 2, K1)
        lsk = self.lab("k")
        e(f"s_cmp_ge_u32 {sW}, 4\ns_cbranch_scc1 {lsk}\ns_waitcnt vmcnt(0)")
        self.stamp("Wq")
        for t in range(8):
            e(f"ds_read_b64_tr_b16 {R(WQ+4*t,2)}, v31 offset:{A_WQ+32*t}\nds_read_b64_tr_b16 {R(WQ+4*t+2,2)}, v31 offset:{A_WQ+32*t+512}")
        e(f"s_mov_b32 {sA}, 0x05040100\nv_mov_b32 v6, 0x3f803f80\nv_cmp_eq_u32 vcc, 8, {vC}")
        e(f"v_perm_b32 v20, v25, v24, {sA}\nv_perm_b32 v21, v25, v24, {sSEL}\nv_perm_b32 v22, v27, v26, {sA}\nv_perm_b32 v23, v27, v26, {sSEL}")
        for k in range(4):
            e(f"v_cndmask_b32 v{XOP+k}, v{20+k}, v6, vcc")
        lsk2 = self.lab("k")
        e(f"s_waitcnt lgkmcnt(0)\ns_branch {lsk2}\n{lsk}:\ns_cmp_ge_u32 {sW}, 6\ns_cbranch_scc1 {lsk2}")
        e(f"v_mul_u32_u24 v6, 1056, {vC}\nv_lshlrev_b32 v7, 4, {vG}\nv_add3_u32 v6, {sD}, v6, v7\ns_waitcnt vmcnt(0)")
        self.stamp("Wuk")
        for u in range(4):
            for t in range(4):
                e(f"ds_read_b128 {R(WUK+16*t+4*u,4)}, v6 offset:{t*256+u*64}")
        e(f"{lsk2}:")
        ld = self.lab("nd")
        e(f"s_lshl_b32 {sA}, s2, 3\ns_add_u32 {sA}, {sA}, {sW}\ns_cmp_lg_u32 {sA}, 7\ns_cbranch_scc1 {ld}")
        VS = 80 if not o["stamps"] else 32
        e(f"s_sleep {o['vdelay']}\ns_load_dwordx16 s[{VS}:{VS+15}], s[{S_WS}:{S_WS+1}], {VOTES}\ns_mov_b32 {sA}, 0\ns_mov_b32 {sB}, 0\ns_xor_b32 {sC}, {sT}, 0x80000000\ns_waitcnt lgkmcnt(0)")
        for k in range(16):
            e(f"s_cmp_eq_u32 s{VS+k}, {sT}\ns_addc_u32 {sA}, {sA}, 0\ns_cmp_eq_u32 s{VS+k}, {sC}\ns_addc_u32 {sB}, {sB}, 0")
        if o["stamps"]:
            for b_, slot in ((S_WG, 7), (S_WU, 8), (S_WD, 9)):
                e(f"s_load_dwordx2 s[{b_}:{b_+1}], s[0:1], {slot*8}")
            e(f"s_load_dwordx2 s[{S_OUT}:{S_OUT+1}], s[0:1], 80\ns_lshl_b32 s3, {sA}, 8\ns_or_b32 s3, s3, {sB}\nv_mov_b32 v10, s3\ns_waitcnt lgkmcnt(0)")
        e(f"s_cmp_gt_u32 {sB}, {sA}\ns_cselect_b32 {sA}, 8, 0\ns_and_b32 {sB}, {sXCC}, 7\ns_or_b32 {sA}, {sA}, {sB}")
        if o["forcec"] >= 0:
            e(f"s_andn2_b32 {sA}, {sA}, 8\ns_or_b32 {sA}, {sA}, {8*o['forcec']}")
        e(f"v_mov_b32 v9, {sA}\nv_mov_b32 v8, {vT}\nv_mov_b32 v6, {WADR}\ns_mov_b64 exec, 1\nbuffer_store_dwordx2 v[8:9], v6, {srd(S_WS)}, 0 offen sc1")
        if o["stamps"]:
            e(f"buffer_store_dword v10, v6, {srd(S_WS)}, 0 offen offset:128")
        e(f"s_mov_b64 exec, -1\n{ld}:")

        for L in range(2):
            X = "'" * L
            lsk = self.lab("k")
            e(f"s_cmp_ge_u32 {sW}, 4\ns_cbranch_scc1 {lsk}")
            D = [8, 12, 16, 20, 212, 216, 220, 224]
            self.mfma(228, XOP, XOP)
            for t in range(8):
                self.mfma(D[t], XOP, WQ + 4 * t)
            e(f"s_mov_b32 {sB}, {I0R(L)-I0R(0)}\ns_mov_b32 {sC}, {I0S(L)}\nv_mov_b32 v229, {vT}")
            if L == 0:
                e(f"v_mov_b32 v6, {sXCC}\nv_bfi_b32 v228, 15, v6, v228")
            for t in range(8):
                e(f"v_bfi_b32 v{232+t}, {sFF}, {TB[t & 3]}, v{D[t]}")
            if L == 0:
                first = [f"buffer_store_dwordx4 v[232:235], {aI0ST0}, {srd(S_WS)}, 0 offen", f"buffer_store_dwordx4 v[236:239], {aOUT}, {srd(S_WS)}, 0 offen",
                         f"buffer_store_dwordx2 v[228:229], {aSTST}, {srd(S_WS)}, {sC} offen"]
                e("\n".join(first))
            else:
                self.store_intra([f"buffer_store_dwordx4 v[232:235], {aI0ST1}, {srd(S_WS)}, {sB} offen",
                                  f"buffer_store_dwordx4 v[236:239], {aI0ST1}, {srd(S_WS)}, {sB} offen offset:512",
                                  f"buffer_store_dwordx2 v[228:229], {aSTST}, {srd(S_WS)}, {sC} offen"])
            e(f"{lsk}:")
            self.stamp("P1a" + X)
            lp, lr = self.lab("i0p"), self.lab("i0r")
            e(f"s_mov_b32 {sA}, {I0R(L)}\ns_mov_b32 {sB}, {I0R(L)+32768}\ns_mov_b32 {sC}, {I0S(L)}\ns_movk_i32 {sD}, 16384")
            if L == 0:
                restore = "\n".join(x + " sc1" for x in first)
                e(f"s_movk_i32 {sE}, {o['i0tries']}")

                def stub():
                    e(f"{lr}:")
                    self.guard()
                    e(f"s_sub_u32 {sE}, {sE}, 1\ns_cmp_lg_u32 {sE}, 0\ns_cbranch_scc1 {lp}\ns_cmp_ge_u32 {sW}, 4\ns_cbranch_scc1 {lp}\ns_mov_b64 exec, -1\n{restore}\ns_branch {lp}")
                self.oob(stub)
                e(f"{lp}:")
            else:
                e(f"{lr}:")
                self.guard()
            e(f"s_mov_b64 exec, 0xffff\nbuffer_load_dwordx4 v[16:19], {aSTLD}, {srd(S_WS)}, {sC} offen sc1\ns_waitcnt vmcnt(0)")
            e(f"v_xor_b32 v7, {vT}, v17\nv_bitop3_b32 v7, v19, {vT}, v7 bitop3:0xbe\nv_cmp_ne_u32 vcc, 0, v7\ns_cbranch_vccnz {lr}")
            if L == 0:
                e(f"v_and_b32 v7, 15, v16\nv_cmp_ne_u32 vcc, {sXCC}, v7")
            e("s_mov_b64 exec, -1")
            self.stamp("I0pr" + X)
            e(f"buffer_load_dwordx4 v[8:11], {aI0LD}, {srd(S_WS)}, {sA} offen sc1\nbuffer_load_dwordx4 v[12:15], {aI0LD}, {srd(S_WS)}, {sB} offen sc1")
            if L == 0:
                e(f"buffer_load_dwordx4 v[20:23], {aCSLD}, {srd(S_WS)}, 0 offen sc1\nbuffer_load_dwordx4 v[24:27], {aCSLD}, {srd(S_WS)}, {sD} offen sc1")
                e(f"s_cmp_eq_u64 vcc, 0\ns_cselect_b32 {sPLAIN}, 1, 0")
            for k in (1, 2, 4, 8):
                e(f"v_add_f32_dpp v16, v16, v16 {DP[k]} {DPPM}\nv_add_f32_dpp v18, v18, v18 {DP[k]} {DPPM}")
            e(f"v_mul_f32 v18, {f32(1/512)}, v18\nv_mov_b32 v17, {f32(1e-5)}\nv_fmac_f32 v17, {f32(1/512)}, v16\nv_fma_f32 v17, -v18, v18, v17\nv_rsq_f32 v17, v17")
            e(f"v_readfirstlane_b32 {sMEAN}, v18\nv_readfirstlane_b32 {sRSTD}, v17")
            e("s_waitcnt vmcnt(0)")
            self.check(list(range(8, 16)) + (list(range(20, 28)) if L == 0 else []), sTB, sFF, "v6")
            e(f"s_cbranch_vccnz {lr}")
            self.stamp("I0got" + X)
            if L == 0:
                l1, l2 = self.lab("rs"), self.lab("rt")
                e(f"s_cmp_eq_u32 {sPLAIN}, 0\ns_cbranch_scc1 {l1}\n{l2}:")
                self.cold.append(f"{l1}:\ns_cmp_ge_u32 {sW}, 4\ns_cbranch_scc1 {l2}\n{restore}\ns_branch {l2}")
            self.canary_set(L, aCANW, o["lead_s1"] == 1)
            grp = [8] + ([20] if L == 0 else [])
            for b in grp:
                for k in range(4):
                    e(f"v_add_f32 v{b+k}, v{b+k}, v{b+4+k}")
            for b in grp:
                e(f"v_permlane32_swap_b32 v{b}, v{b+2}\nv_permlane32_swap_b32 v{b+1}, v{b+3}")
            for b in grp:
                e(f"v_add_f32 v{b}, v{b}, v{b+2}\nv_add_f32 v{b+1}, v{b+1}, v{b+3}")
            for b in grp:
                e(f"v_permlane16_swap_b32 v{b}, v{b+1}")
            for b in grp:
                e(f"v_add_f32 v{b}, v{b}, v{b+1}")
            e(f"v_add_f32_dpp v8, v8, v8 row_ror:8 {DPPM}")
            if L == 0:
                e(f"v_add_f32_dpp {vCS}, v20, v20 row_ror:8 {DPPM}")
            e(f"v_fma_f32 v8, -{sMEAN}, {vCS}, v8\nv_mul_f32 v8, {sRSTD}, v8\nv_cvt_pk_bf16_f32 v8, v8, v8\nds_write_b16 {aQW}, v8")
            self.bar()
            l = self.lab("p1b")
            e(f"s_and_b32 {sA}, {sW}, 6\ns_cmp_lg_u32 {sA}, 4\ns_cbranch_scc1 {l}")
            for u in range(4):
                e(f"ds_read_b128 {R(8+4*u,4)}, {aQR} offset:{u*64}")
            e(f"s_mov_b32 {sA}, {S1R(L)}\ns_mov_b32 {sB}, {f32(128**-0.5*math.log2(math.e))}")
            for u in range(4):
                e(f"s_waitcnt lgkmcnt({3-u})")
                for t in range(4):
                    self.mfma(212 + 4 * t, 8 + 4 * u, WUK + 16 * t + 4 * u, None if u == 0 else 212 + 4 * t)
            for t in range(4):
                e(f"v_mul_f32 v{24+t}, {sB}, v{212+4*t}")
            self.pack_near("v8", "v24", "v25", "v10", "v11", Q0, K0)
            self.pack_near("v9", "v26", "v27", "v12", "v13", Q1, K1)
            e(f"s_mov_b32 {sB}, {S1R(L)+8192}\nbuffer_store_dwordx2 v[8:9], {aS1ST}, {srd(S_WS)}, {sA} offen sc1\nbuffer_store_dwordx2 v[8:9], {aS1ST}, {srd(S_WS)}, {sB} offen sc1")
            e(f"{l}:")
            self.stamp("S1pub" + X)
            if L == 0:
                for b, sz in ((S_WUV, 4 << 20), (S_WO, 4 << 20), (S_OUT, 2048), (S_WG, 1409024), (S_WU, 1409024), (S_WD, 1409024)):
                    self.fin_srd(b, sz)
                if o["adelay"]:
                    e(f"s_sleep {o['adelay']}")
                e(f"s_lshl_b32 {sA}, {sCS}, 3\ns_add_u32 {sA}, {sA}, {sW}\ns_lshl_b32 {sA}, {sA}, 9\ns_add_u32 {sA}, {sA}, {sH}\ns_lshl_b32 {sA}, {sA}, 8")
                e(f"v_lshlrev_b32 v6, 13, {vG}\nv_lshl_add_u32 v6, {vC}, 4, v6\nv_add_u32 v6, {sA}, v6\ns_mul_i32 {sC}, {sW}, 4224")
                for q in range(4):
                    e(f"s_mov_b32 {sA}, {q*32768}\ns_add_u32 m0, {sC}, {A_WUV + q*1056}\nbuffer_load_dwordx4 v6, {srd(S_WUV)}, {sA} offen lds")
                e(f"v_lshlrev_b32 v7, 4, {vL}\nv_bfe_u32 {vr}, {vL}, 2, 2\nv_and_b32 {vq}, 3, {vL}\nv_mov_b32 v13, {OOB}")
                e(f"v_bfe_u32 v10, {vC}, 2, 1\nv_lshlrev_b32 v11, 4, {vG}\nv_and_b32 v9, 7, {vL}\nv_lshlrev_b32 v9, 4, v9")
                e(f"v_add_u32 {aCCR}, {A_CC - A_Q}, {aQR}")
                self.cons_pats(PC)
                e(f"v_lshlrev_b32 v6, 3, {vq}\nv_lshrrev_b32 {vTL}, v6, {vT}")
                e(f"s_and_b32 {sA}, {sH}, 15\ns_lshl_b32 {sA}, {sA}, 2\ns_add_u32 {sA}, {sA}, {sCS}\ns_lshl_b32 {sA}, {sA}, 4\ns_and_b32 {sC}, {sW}, 4\ns_add_u32 {sA}, {sA}, {sC}\ns_add_u32 {sA}, {sA}, {sW}\ns_lshl_b32 {sA}, {sA}, 11\nv_add_u32 {aS2LD}, {sA}, v7")
                e(f"s_mul_i32 {sA}, {sW}, {8*288}\nv_mul_u32_u24 v6, 288, {vG}\nv_lshl_add_u32 v6, {vC}, 4, v6\nv_add_u32 {aOSW}, {sA}, v6")
                e(f"s_lshr_b32 {sA}, {sJ}, 2\ns_lshl_b32 {sA}, {sA}, 12\ns_and_b32 {sC}, {sH}, 15\ns_lshl_b32 {sC}, {sC}, 3\ns_add_u32 {sA}, {sA}, {sC}")
                e(f"v_lshrrev_b32 v6, 5, {vL}\nv_and_b32 v12, 31, {vL}\nv_lshlrev_b32 v12, 7, v12\nv_lshl_add_u32 v12, v6, 14, v12\nv_add_u32 {aLSE}, {sA}, v12")
                e(f"v_lshlrev_b32 v6, 6, v6\nv_lshl_add_u32 v6, {vr}, 4, v6\nv_and_b32 v12, 1, {vG}\nv_lshl_add_u32 v6, v12, 3, v6\nv_lshl_add_u32 v6, {vq}, 1, v6\nv_add_u32 {aWW}, {A_WW}, v6")
                e(f"v_add_u32 v6, {A_WW}, v11\nv_add_u32 v12, {A_WW+128}, v11")
                self.sel(aWA0, f"v_cmp_eq_u32 vcc, 0, {vC}", "v12", "v6")
                e("v_add_u32 v6, 64, v6")
                self.sel(aWA1, f"v_cmp_eq_u32 vcc, 4, {vC}", "v12", "v6")
                e("s_barrier")
                e(f"s_lshl_b32 {sA}, {sJ}, 19\ns_lshl_b32 {sB}, {sW}, 16\ns_add_u32 {sA}, {sA}, {sB}\ns_lshl_b32 {sB}, {sI}, 6\ns_add_u32 {sA}, {sA}, {sB}")
                e(f"v_lshrrev_b32 v12, 2, {vL}\nv_lshlrev_b32 v6, 10, v12\nv_lshl_add_u32 v6, {vq}, 4, v6\nv_add_u32 v6, {sA}, v6\ns_lshl_b32 {sC}, {sW}, 12")
                e(f"s_and_b32 {sD}, {sI}, 1\ns_lshl_b32 {sD}, {sD}, 11\nv_mov_b32 v23, v6")

                def wo(qs):
                    for q in qs:
                        e(f"s_xor_b32 {sA}, {sD}, {q*1024}\ns_add_u32 m0, {sA}, s74\ns_lshl_b32 {sA}, {sA}, 4\nbuffer_load_dwordx4 v23, {srd(S_WO)}, {sA} offen lds")
                e(f"s_add_u32 s74, {sC}, {A_WO}")
                wo((0, 1))
                for k in range(len(PRET2)):
                    e(f"v_mov_b32 v{24+k}, {PRET2[k]}\nbuffer_load_dword v{24+k}, v{24+k}, {srd(S_WS)}, 0 offen")
                self.fin_srd(S_X, 2048)
                e(f"v_and_b32 v8, 1, {vG}\nv_lshlrev_b32 v8, 10, v8\nv_lshl_add_u32 v8, {vC}, 1, v8\nv_add_u32 v8, {sB}, v8")
                e(f"buffer_load_ushort v244, v8, {srd(S_X)}, 0 offen\nbuffer_load_ushort v245, v8, {srd(S_X)}, 0 offen offset:32")
                e(f"s_lshl_b32 {sA}, {sW}, 5\nv_mul_u32_u24 v6, 288, v12\nv_lshl_add_u32 v6, {vq}, 3, v6\nv_add_u32 {aOTR}, {sA}, v6")
                e(f"v_mul_u32_u24 v6, 160, v12\nv_lshl_add_u32 v6, {vq}, 3, v6\nv_add_u32 {aXTR}, {A_XR}, v6")
                e(f"s_add_u32 {sA}, {sA}, {A_CC}\nv_lshlrev_b32 v6, 8, {vG}\nv_lshl_add_u32 v6, {vC}, 1, v6\nv_add_u32 v6, {sA}, v6\nv_mov_b32 v12, {A_DUM}")
                self.sel(aCCW, f"v_cmp_gt_u32 vcc, 32, {vL}", "v12", "v6")
                e(f"s_lshl_b32 {sB}, {sW}, 8\ns_add_u32 {sB}, {sB}, {A_RR}\nv_lshlrev_b32 v6, 3, {vL}\nv_add_u32 v6, {sB}, v6\nv_cndmask_b32 {aRRW}, v12, v6, vcc")
                e(f"v_lshlrev_b32 v6, 3, {vL}\nv_lshrrev_b32 v8, 5, {vL}\nv_mul_u32_u24 v8, 768, v8\nv_add3_u32 {aRRR}, v6, v8, 0\nv_add_u32 {aRRR}, {A_RR}, {aRRR}\nv_lshlrev_b32 v8, 2, {vL}")
                e(f"s_lshl_b32 {sB}, {sPA}, 10\ns_lshl_b32 {sC}, {sW}, 7\ns_add_u32 {sB}, {sB}, {sC}\nv_add_u32 v6, {sB}, v8\nv_cndmask_b32 {aI1ST}, v13, v6, vcc")
                if o["warm"]:
                    for rg in (I1R(0), I1R(1)):
                        e(f"s_mov_b32 {sB}, {rg}\nbuffer_load_dword v27, {aI1ST}, {srd(S_WS)}, {sB} offen")
                    e(f"s_mov_b32 {sB}, {I0S(1)}\nbuffer_load_dword v27, {aSTST}, {srd(S_WS)}, {sB} offen")
                    e(f"s_lshl_b32 {sB}, {sPA}, 12\ns_add_u32 {sB}, {sB}, {I0R(1)}\nv_lshlrev_b32 v6, 3, v0\nbuffer_load_dword v27, v6, {srd(S_WS)}, {sB} offen")
                e(f"s_and_b32 {sB}, {sPA}, 64\ns_add_u32 {sB}, {sB}, {sPA}\ns_lshl_b32 {sB}, {sB}, 7\nv_add_u32 v6, {sB}, v8\nv_cndmask_b32 {aS3ST}, v13, v6, vcc")
                e(f"s_lshl_b32 {sB}, {sJ}, 14\ns_lshl_b32 {sC}, {sW}, 9\ns_add_u32 {sB}, {sB}, {sC}")
                e(f"v_lshlrev_b32 v6, 12, {vG}\nv_lshl_add_u32 v6, {vC}, 4, v6\nv_add_u32 {aI1LD}, {sB}, v6")
                e(f"s_lshl_b32 {sA}, {sW}, 8\ns_add_u32 {sA}, {sA}, {A_CT}\nv_lshlrev_b32 v6, 7, v10\nv_add_u32 v6, {sA}, v6\nv_add_u32 {aCTR}, v6, v11")
                e(f"v_lshrrev_b32 v8, 1, {vG}\nv_lshl_add_u32 v6, v8, 6, v6\nv_lshrrev_b32 v8, 3, {vC}\nv_lshl_add_u32 v6, v8, 5, v6\nv_lshl_add_u32 v6, {vq}, 3, v6\nv_and_b32 v8, 1, {vG}\nv_lshl_add_u32 {aCTW}, v8, 2, v6")
                e(f"v_lshrrev_b32 v8, 3, v0\nv_mul_u32_u24 v6, 160, v8\nv_add_u32 v6, v6, v9\nv_add_u32 {aXRW}, {A_XR}, v6")
                e(f"s_lshl_b32 {sA}, {sI}, 7\nv_and_b32 v6, 60, v8\nv_add_u32 v6, v6, v8\nv_lshl_add_u32 v6, v6, 11, v9\nv_add_u32 {aXLD}, {sA}, v6")
                e(f"v_cmp_gt_u32 {sMASK}, 43, v8\nv_lshrrev_b32 v8, 3, v8\nv_cmp_eq_u32 vcc, 6, v8\ns_or_b64 {sMASK}, {sMASK}, vcc")
                e(f"v_lshlrev_b32 v6, 7, v10\nv_lshl_add_u32 v6, {vG}, 4, v6\nv_add_u32 v6, {A_XS}, v6\nv_and_b32 v8, 11, {vC}")
                self.sel(aXSW, "v_cmp_eq_u32 vcc, 0, v8", "v12", "v6")
                l = self.lab("k")
                e(f"s_cmp_lg_u32 {sW}, 0\ns_cbranch_scc1 {l}\nv_cndmask_b32 {aOUT}, v13, {aXOFF}, vcc\n{l}:")
                e(f"v_mov_b32 v6, 0x3f803f80\nv_mov_b32 v8, 0\nv_mov_b32 v9, 0\nv_mov_b32 v10, 0\nv_mov_b32 v11, 0")
                self.sel(R(SEL0), f"v_cmp_eq_u32 vcc, 0, {vC}", "v8", "v6")
                self.sel(R(SEL4), f"v_cmp_eq_u32 vcc, 4, {vC}", "v8", "v6")
                for k in range(1, 4):
                    e(f"v_mov_b32 v{SEL0+k}, v{SEL0}\nv_mov_b32 v{SEL4+k}, v{SEL4}")
                e(f"v_lshlrev_b32 v6, 2, {vC}\nv_add_u32 v6, {A_WW+128}, v6\nds_write_b32 v6, v8")
                e(f"s_mov_b64 exec, {sMASK}\ns_not_b64 exec, exec\nds_write_b128 {aXRW}, v[8:11]\ns_mov_b64 exec, -1")
                e("s_barrier")
                wo((2, 3))
                if o["fhelp"] == 2:
                    self.ffn_touch(sI, "v27")
                if o["stamps"] and "Wuv" in self.names:
                    self.stamp("Wuv")
                self.place_wait(26)
                e(f"v_add_u32 {aLSE}, {sSIDE}, {aLSE}\nv_add_u32 {aXLD}, {sSIDE}, {aXLD}\nv_add_u32 {aCANR}, {sSIDE}, {aCANR}")
                e(f"s_add_u32 {sA}, {sWW}, {sJ}\ns_lshl_b32 {sA}, {sA}, 1\ns_xor_b32 {sA}, {sA}, {sWW}\ns_and_b32 {sA}, {sA}, 8\ns_lshl_b32 {sA}, {sA}, 10\nv_add_u32 {aS2LD}, {sA}, {aS2LD}")
                e("s_waitcnt lgkmcnt(0)\ns_barrier")
                e(f"v_lshlrev_b32 v244, 16, v244\nv_lshlrev_b32 v245, 16, v245\nv_mul_f32 v244, {f32(0.125)}, v244\nv_mul_f32 v245, {f32(0.125)}, v245")
                e(f"v_lshrrev_b32 v6, 1, {vG}\nv_lshl_add_u32 v6, {vr}, 2, v6\nv_mul_u32_u24 v6, 1056, v6\nv_and_b32 v7, 1, {vG}\nv_lshl_add_u32 v6, v7, 9, v6")
                e(f"s_lshl_b32 {sA}, {sW}, 5\ns_add_u32 {sA}, {sA}, {A_WUV}\nv_lshl_add_u32 v6, {vq}, 3, v6\nv_add_u32 v6, {sA}, v6")
                for u in range(4):
                    off = (16 * (u >> 1) + 2 * (u & 1)) * 1056
                    e(f"ds_read_b64_tr_b16 {R(WUV+4*u,2)}, v6 offset:{off}\nds_read_b64_tr_b16 {R(WUV+4*u+2,2)}, v6 offset:{off+256}")
                e(f"v_lshl_add_u32 v8, {vG}, 3, {vr}\nv_lshlrev_b32 v8, 6, v8\nv_lshl_add_u32 v8, {vq}, 3, v8\ns_lshl_b32 {sA}, {sW}, 12\ns_add_u32 {sA}, {sA}, {A_WO}\nv_add_u32 v8, {sA}, v8")
                for t in range(2):
                    for u in range(2):
                        off = u * 2048 + t * 32
                        e(f"ds_read_b64_tr_b16 {R(WO+8*t+4*u,2)}, v8 offset:{off}\nds_read_b64_tr_b16 {R(WO+8*t+4*u+2,2)}, v8 offset:{off+256}")
                e("s_waitcnt lgkmcnt(0)")
                self.stamp("Wo")
            else:
                l = self.lab("k")
                e(f"s_cmp_lg_u32 {sW}, 0\ns_cbranch_scc1 {l}")
                for hf in range(2):
                    for r in range(4):
                        e(f"v_mul_f32 v{244+4*hf+r}, {f32(0.125)}, v{244+4*hf+r}\nds_write_b32 {aXSW}, v{244+4*hf+r} offset:{(r&1)*4 + (8*hf + (r>>1))*8}")
                e(f"v_and_b32 v6, 31, {vL}\nv_lshlrev_b32 v6, 3, v6\nv_add_u32 v6, {A_XS}, v6\nds_read_b64 v[244:245], v6\n{l}:")
            e(f"v_lshlrev_b32 v6, 1, {vC}\nv_lshrrev_b32 v6, v6, {vT}")
            self.pat(P3, "v6", 0, K3)
            self.canary_wait(2 + L, aCANR, o["d_s2" if L == 0 else "e_s2"])
            self.stamp("S2can" + X)
            l, l0, l1 = self.lab("s2"), self.lab("s2w"), self.lab("s2x")
            e(f"s_mov_b32 {sA}, {S2R(L)}\ns_mov_b32 {sB}, {LSE(L)}\ns_cmp_eq_u32 {sW}, 0\ns_cbranch_scc1 {l0}")
            self.retry_head(l)
            e(f"buffer_load_dwordx4 v[8:11], {aS2LD}, {srd(S_WS)}, {sA} offen sc1\nbuffer_load_dwordx4 v[12:15], {aS2LD}, {srd(S_WS)}, {sA} offen offset:1024 sc1\ns_waitcnt vmcnt(0)")
            e(f"ds_write_b128 {aOSW}, v[8:11] offset:{A_OS}\nds_write_b128 {aOSW}, v[12:15] offset:{A_OS+4*288}")
            self.check(list(range(8, 16)), PC, sM, "v6")
            e(f"s_cbranch_vccnz {l}\ns_branch {l1}")
            e(f"{l0}:")
            l0 = self.lab("s2v")
            self.retry_head(l0)
            e(f"buffer_load_dwordx2 v[16:17], {aLSE}, {srd(S_WS)}, {sB} offen sc1")
            e(f"buffer_load_dwordx4 v[8:11], {aS2LD}, {srd(S_WS)}, {sA} offen sc1\nbuffer_load_dwordx4 v[12:15], {aS2LD}, {srd(S_WS)}, {sA} offen offset:1024 sc1\ns_waitcnt vmcnt(2)")
            e(f"v_xor_b32 v7, {vT}, v17\nv_mov_b32 v18, v16")
            self.allred(["v18"], "v_max_f32", ["v19"], [1, 2, 4, 8, 16])
            e("v_sub_f32 v16, v16, v18\nv_exp_f32 v16, v16\ns_nop 0\nv_mov_b32 v18, v16")
            self.allred(["v18"], "v_add_f32", ["v19"], [1, 2, 4, 8, 16])
            e(f"v_rcp_f32 v18, v18\ns_nop 0\nv_mul_f32 v16, v16, v18\nv_cvt_pk_bf16_f32 v16, v16, v16\nds_write_b16 {aWW}, v16\ns_waitcnt vmcnt(0)")
            e(f"ds_write_b128 {aOSW}, v[8:11] offset:{A_OS}\nds_write_b128 {aOSW}, v[12:15] offset:{A_OS+4*288}")
            self.check(list(range(8, 16)), PC, sM, "v6", extra="v7")
            e(f"s_cbranch_vccnz {l0}")
            e(f"{l1}:")
            self.stamp("S2got" + X)
            self.bar()
            e(f"ds_read_b128 v[8:11], {aWA0}\nds_read_b64_tr_b16 v[16:17], {aOTR} offset:{A_OS}\nds_read_b64_tr_b16 v[18:19], {aOTR} offset:{A_OS+4608}")
            e(f"ds_read_b128 v[12:15], {aWA1}\nds_read_b64_tr_b16 v[20:21], {aOTR} offset:{A_OS+9216}\nds_read_b64_tr_b16 v[22:23], {aOTR} offset:{A_OS+13824}")
            e("s_waitcnt lgkmcnt(3)")
            self.mfma(24, 8, 16)
            e("s_waitcnt lgkmcnt(0)")
            self.mfma(24, 12, 20, 24)
            e(f"s_mov_b32 {sB}, {I1R(L)}")
            e(f"v_cvt_pk_bf16_f32 v8, v24, v24\nds_write_b16 {aCCW}, v8")
            self.bar()
            for u in range(4):
                e(f"ds_read_b128 {R(8+4*u,4)}, {aCCR} offset:{u*64}")
            for u in range(4):
                e(f"s_waitcnt lgkmcnt({3-u})")
                self.mfma(24, 8 + 4 * u, WUV + 4 * u, None if u == 0 else 24)
            e(f"v_bfi_b32 v8, {sFF}, {vTL}, v24")
            self.store_intra([f"buffer_store_dword v8, {aI1ST}, {srd(S_WS)}, {sB} offen"])
            self.stamp("I1pub" + X)
            l = self.lab("i1")
            e(f"{l}:")
            self.guard()
            e(f"buffer_load_dwordx4 v[8:11], {aI1LD}, {srd(S_WS)}, {sB} offen sc1\nbuffer_load_dwordx4 v[12:15], {aI1LD}, {srd(S_WS)}, {sB} offen offset:256 sc1\ns_waitcnt vmcnt(0)")
            self.check(list(range(8, 16)), sTB, sFF, "v6")
            e(f"s_cbranch_vccnz {l}")
            self.stamp("I1got" + X)
            self.canary_set(4 + L, aCANW, o["lead_s3"] == 1)
            for k in range(4):
                e(f"v_permlane32_swap_b32 v{8+k}, v{12+k}")
            for k in range(4):
                e(f"v_add_f32 v{8+k}, v{8+k}, v{12+k}")
            e("v_permlane16_swap_b32 v8, v10\nv_permlane16_swap_b32 v9, v11\nv_add_f32 v8, v8, v10\nv_add_f32 v9, v9, v11")
            e(f"v_cvt_pk_bf16_f32 v8, v8, v9\nds_write_b32 {aCTW}, v8")
            e(f"ds_read_b128 v[8:11], {aCTR}\nds_read_b128 v[12:15], {aCTR} offset:64\ns_waitcnt lgkmcnt(1)")
            self.mfma(16, 8, WO)
            self.mfma(20, 8, WO + 8)
            e("s_waitcnt lgkmcnt(0)")
            self.mfma(16, 12, WO + 4, 16)
            self.mfma(20, 12, WO + 12, 20)
            e(f"v_mov_b32 v17, v20\nds_write_b64 {aRRW}, v[16:17]")
            self.bar()
            l = self.lab("fin")
            e(f"s_cmp_lg_u32 {sW}, 0\ns_cbranch_scc1 {l}")
            for k in range(4):
                e(f"ds_read_b64 {R(8+2*k,2)}, {aRRR} offset:{k*256}")
            e(f"s_mov_b32 {sA}, {S3R(L)}\ns_waitcnt lgkmcnt(2)\nv_add_f32 v8, v8, v10\nv_add_f32 v9, v9, v11\ns_waitcnt lgkmcnt(0)\nv_add_f32 v12, v12, v14\nv_add_f32 v13, v13, v15")
            e("v_add_f32 v8, v8, v12\nv_add_f32 v9, v9, v13\nv_mov_b32 v10, v8\nv_mov_b32 v11, v9\nv_permlane32_swap_b32 v8, v10\nv_permlane32_swap_b32 v9, v11")
            e("v_add_f32 v8, v8, v244\nv_add_f32 v9, v9, v245\nv_add_f32 v24, v8, v10\nv_add_f32 v25, v9, v11")
            self.pack_near("v8", "v24", "v25", "v10", "v11", P3, K3)
            e(f"s_mov_b32 {sB}, {S3R(L)+8192}\nbuffer_store_dword v8, {aS3ST}, {srd(S_WS)}, {sA} offen sc1\nbuffer_store_dword v8, {aS3ST}, {srd(S_WS)}, {sB} offen sc1")
            self.canary_set(4 + L, aCANW, o["lead_s3"] == 0)
            e(f"{l}:")
            self.stamp("S3pub" + X)
            if L == 1:
                l = self.lab("ex")
                e(f"s_and_b32 {sA}, {sI}, 7\ns_cmp_eq_u32 {sA}, {sJ}\ns_cbranch_scc1 {l}")
                self.dump_stamps()
                e(f"s_endpgm\n{l}:")
            e(f"s_mov_b32 {sB}, {S45(L)}\ns_cmp_eq_u32 {sW}, 6\ns_cselect_b32 {sB}, {S3R(L) - 12*16384}, {sB}")
            self.canary_wait(6 + L, aCANR, o["d_s45" if L == 0 else "e_s45"])
            l, l2 = self.lab("s45"), self.lab("s45n")
            e(f"s_mov_b64 exec, {sMASK}\ns_cbranch_execz {l2}")
            self.retry_head(l)
            e(f"buffer_load_dwordx4 v[8:11], {aXLD}, {srd(S_WS)}, {sB} offen sc1\ns_waitcnt vmcnt(0)")
            e(f"ds_write_b128 {aXRW}, v[8:11]")
            self.check(list(range(8, 12)), PC, sM, "v6")
            e(f"s_cbranch_vccnz {l}")
            e(f"{l2}:\ns_mov_b64 exec, -1")
            self.stamp("S45got" + X)
            self.bar()
            lsk = self.lab("k")
            if L == 1:
                e(f"s_cmp_eq_u32 {sW}, 0\ns_cbranch_scc1 {lsk}")
                self.dump_stamps()
                e(f"s_endpgm\n{lsk}:")
            else:
                e(f"s_cmp_ge_u32 {sW}, 4\ns_cbranch_scc1 {lsk}")
            XT = [8, 12, 16, 20, 212, 216, 220, 224]
            for n in range(8):
                off = (n >> 2) * 5120 + 32 * (n & 3)
                e(f"ds_read_b64_tr_b16 {R(XT[n],2)}, {aXTR} offset:{off}\nds_read_b64_tr_b16 {R(XT[n]+2,2)}, {aXTR} offset:{off+2560}")
                if n >= 5:
                    T = n - 5
                    e("s_waitcnt lgkmcnt(10)")
                    self.mfma(244 + 4 * (T & 1), XT[T], SEL0 if T < 2 else SEL4, None if T < 2 else 244 + 4 * (T & 1))
            for n in range(3, 8):
                T = n & 3
                e(f"s_waitcnt lgkmcnt({14-2*n})")
                self.mfma(244 + 4 * (T & 1), XT[n], SEL0 if T < 2 else SEL4, 244 + 4 * (T & 1))
            if L == 0:
                for k in range(4):
                    e(f"v_cvt_pk_bf16_f32 v{XOP+k}, v{244+2*k}, v{245+2*k}")
                for k in range(4):
                    e(f"v_or_b32 v{XOP+k}, {vONE}, v{XOP+k}")
                e(f"{lsk}:")
            else:
                e("v_cvt_pk_bf16_f32 v8, v244, v246\nv_cvt_pk_bf16_f32 v9, v245, v247\nv_cvt_pk_bf16_f32 v10, v248, v250\nv_cvt_pk_bf16_f32 v11, v249, v251")
                for k, off in enumerate((0, 32, 16, 48)):
                    e(f"buffer_store_dword v{8+k}, {aOUT}, {srd(S_OUT)}, 0 offen offset:{off}")
                e(f"s_lshl_b32 {sA}, s2, 9\nv_add_u32 v6, {sA}, v0\nv_mov_b32 v7, {OOB}\nv_cmp_eq_u32 vcc, 0, v6\nv_cndmask_b32 v6, v7, v6, vcc\nbuffer_store_dword {vT}, v6, {srd(S_WS)}, 0 offen sc1")
                self.stamp("end")
                if o["amp"]:
                    e(f"s_waitcnt vmcnt(0)\ns_memrealtime s[96:97]\ns_waitcnt lgkmcnt(0)\ns_sub_u32 s94, s96, s98\ns_mul_i32 s94, s94, {o['amp']}\nL_spin:\ns_sleep 8\ns_memrealtime s[92:93]\ns_waitcnt lgkmcnt(0)\ns_sub_u32 s95, s92, s96\ns_cmp_lt_u32 s95, s94\ns_cbranch_scc1 L_spin")
                self.dump_stamps()
                e("s_endpgm")

    def roleB(self):
        e, o = self.e, self.o
        CS_, CP, FG, FD = 32, 96, 160, 192
        (aS1LD, aQAW, aQAR, aMX, aLR, aPW, aPR, aS2ST, aLSEST, aCAN, aCANR, aS3LD, aXPW, aXPR, aRBW, aRBR, aSTW, aSTR, aHW, aHR, aS45,
         vCG, vCU, Q0, Q1, P45, aTCH) = ["v%d" % (224 + k) for k in range(27)]
        PC = ["v251", "v252", "v253", "v254"]
        sB_, sHG, sSP, sF = "s68", "s69", "s76", "s77"
        vr, vq = "v14", "v15"
        for b, slot in ((S_WUK, 3), (S_CKV, 1)):
            e(f"s_load_dwordx2 s[{b}:{b+1}], s[0:1], {slot*8}")
        e(f"v_lshrrev_b32 v6, 6, v0\nv_and_b32 {vL}, 63, v0\ns_and_b32 {sJ}, s2, 7\nv_readfirstlane_b32 {sW}, v6\ns_sub_u32 {sI}, {sI}, 16")
        e(f"v_lshrrev_b32 v6, 3, v0\nv_lshlrev_b32 v6, 13, v6\nv_and_b32 v8, 7, v0\nv_lshl_add_u32 v8, v8, 7, v6\ns_lshl_b32 {sE}, {sI}, 8\ns_add_u32 {sE}, {sE}, {sJ}\ns_lshl_b32 {sE}, {sE}, 10")
        self.fin_srd(S_WUK, 4 << 20)
        self.fin_srd(S_CKV, 8 << 20)
        e(f"s_lshr_b32 {sB_}, {sJ}, 2\ns_and_b32 {sHG}, {sI}, 1\ns_and_b32 {sA}, {sJ}, 3\ns_lshl_b32 {sA}, {sA}, 3\ns_lshr_b32 {sSP}, {sI}, 1\ns_add_u32 {sSP}, {sSP}, {sA}")
        e(f"v_lshlrev_b32 v7, 4, {vL}\ns_lshl_b32 {sA}, {sB_}, 22\ns_lshl_b32 {sB}, {sSP}, 17\ns_add_u32 {sA}, {sA}, {sB}\ns_lshl_b32 {sB}, {sW}, 14\ns_add_u32 {sA}, {sA}, {sB}\nv_add_u32 v31, {sA}, v7")
        e(f"s_mul_i32 s74, {sW}, {16*1056}\ns_lshl_b32 s75, {sHG}, 12")
        e(f"s_sub_u32 {sF}, s2, 128\ns_getreg_b32 {sXCC}, hwreg(HW_REG_XCC_ID)\ns_and_b32 {sXCC}, {sXCC}, 15")
        self.calib(sF)
        e("s_waitcnt lgkmcnt(0)")
        self.stamp('karg')
        l, l2 = self.lab("nv"), self.lab("nw")
        e(f"s_cmp_eq_u32 {sW}, 7\ns_cbranch_scc1 {l}")
        self.calib_run()
        e(f"v_mov_b32 v6, {sC}\ns_lshl_b32 {sA}, {sW}, 2\ns_add_u32 {sA}, {sA}, {B_DUM}\nv_mov_b32 v9, {sA}\nds_write_b32 v9, v6\ns_waitcnt lgkmcnt(0)\ns_barrier")
        if o["bdelay"]:
            e(f"s_sleep {o['bdelay']}")
        if o["bhelp"]:
            lh = self.lab("nh")
            e(f"s_cmp_ge_u32 {sW}, {o['bhelp']}\ns_cbranch_scc1 {lh}\nbuffer_load_dword v255, v8, {srd(S_WUK)}, {sE} offen\n{lh}:")
        self.epoch_load()
        self.fin_srd(S_WS, 0x10000000)
        e(f"s_waitcnt lgkmcnt(0)")
        self.tags()
        e(f"s_branch {l2}\n{l}:")
        self.epoch_load()
        e(f"s_getpc_b64 s[72:73]\nL_pc:\ns_sub_u32 s72, s72, L_pc-{NAME}_kernel\ns_subb_u32 s73, s73, 0\ns_lshl_b32 {sA}, {sI}, 11")
        e(f"v_lshlrev_b32 v6, 5, {vL}\nv_add_u32 v6, {sA}, v6\nv_min_u32 v6, L_code_end-{NAME}_kernel-4, v6\nglobal_load_dword v255, v6, s[72:73]")
        self.fin_srd(S_WS, 0x10000000)
        e(f"v_mov_b32 v6, {B_DUM}\ns_lshr_b32 {sA}, {sXCC}, 2\ns_lshl_b32 {sB}, {sF}, 2\ns_waitcnt lgkmcnt(0)")
        self.tags()
        e(f"s_barrier\nds_read_b128 v[8:11], v6\nds_read_b128 v[12:15], v6 offset:16\nv_mov_b32 v6, {VOTES}\ns_waitcnt lgkmcnt(0)")
        e(f"v_min3_u32 v8, v8, v10, v12\nv_min3_u32 v9, v9, v11, v13\nv_min_u32 v8, v8, v14\nv_cmp_lt_u32 vcc, v9, v8\nv_cndmask_b32 v8, 0, 1, vcc\nv_xor_b32 v8, {sA}, v8\nv_lshlrev_b32 v8, 31, v8\nv_xor_b32 v8, {vT}, v8")
        e(f"s_mov_b64 exec, 1\nbuffer_store_dword v8, v6, {srd(S_WS)}, {sB} offen sc1\ns_mov_b64 exec, -1\n{l2}:")
        for b, slot in ((S_WO, 5), (S_WG, 7), (S_WU, 8), (S_WD, 9)):
            e(f"s_load_dwordx2 s[{b}:{b+1}], s[0:1], {slot*8}")
        if o["bdelay2"]:
            e(f"s_sleep {o['bdelay2']}")
        e("s_barrier")

        def ckv(qs):
            for q in qs:
                e(f"s_xor_b32 {sA}, s75, {((q & 3) + 8*((q >> 2) & 1) + 4*(q >> 3))*1024}\ns_add_u32 m0, s74, {B_CKV + q*1056}\nbuffer_load_dwordx4 v31, {srd(S_CKV)}, {sA} offen lds")
        self.stamp("ckv0")
        ckv(range(8))
        self.stamp("ckv8")
        self.consts()
        e(f"v_and_b32 {vC}, 15, v0\nv_bfe_u32 {vG}, v0, 4, 2\nv_mov_b32 v13, {OOB}\nv_mov_b32 v12, {B_DUM}\nv_bfe_u32 {vr}, {vL}, 2, 2\nv_and_b32 {vq}, 3, {vL}")
        for b, sz in ((S_WO, 4 << 20), (S_WG, 1409024), (S_WU, 1409024), (S_WD, 1409024)):
            self.fin_srd(b, sz)
        e(f"s_lshl_b32 {sA}, {sB_}, 16\ns_lshl_b32 {sB}, {sHG}, 15\ns_add_u32 {sA}, {sA}, {sB}\ns_and_b32 {sB}, {sW}, 4\ns_add_u32 {sB}, {sB}, {sW}\ns_lshl_b32 {sB}, {sB}, 11\ns_add_u32 {sA}, {sA}, {sB}\nv_add_u32 {aS1LD}, {sA}, v7")
        e(f"s_mul_i32 {sA}, {sW}, 2112\ns_add_u32 {sA}, {sA}, {B_QA}\nv_add_u32 {aQAW}, {sA}, v7")
        e(f"v_lshlrev_b32 v11, 4, {vG}\nv_mul_u32_u24 v6, 1056, {vC}\nv_add_u32 v6, v6, v11\nv_add_u32 {aQAR}, {B_QA}, v6")
        e(f"s_mul_i32 {sA}, {sW}, {16*1056}\nv_add_u32 v30, {sA}, v6")
        e(f"v_lshlrev_b32 v6, 5, {vC}\nv_add_u32 {aMX}, {B_MX}, v6\ns_lshl_b32 {sA}, {sW}, 6\ns_add_u32 {sA}, {sA}, {B_LI}\nv_add_u32 {aLR}, {sA}, v11")
        e(f"v_mul_u32_u24 v6, 288, {vC}\nv_add_u32 v6, v6, v11\nv_add_u32 {aPR}, {B_P}, v6")
        e(f"s_lshr_b32 {sA}, {sW}, 1\ns_lshl_b32 {sA}, {sA}, 6\ns_and_b32 {sB}, {sW}, 1\ns_lshl_b32 {sC}, {sB}, 3\ns_add_u32 {sA}, {sA}, {sC}\nv_add_u32 {aPW}, {sA}, {aPR}")
        e(f"s_lshr_b32 {sC}, {sW}, 1\ns_lshl_b32 {sA}, {sC}, 15\ns_lshl_b32 {sC}, {sB_}, 14\ns_add_u32 {sA}, {sA}, {sC}")
        e(f"s_lshl_b32 {sC}, {sSP}, 8\ns_add_u32 {sA}, {sA}, {sC}\ns_lshl_b32 {sC}, {sB}, 7\ns_add_u32 {sA}, {sA}, {sC}")
        e(f"v_lshlrev_b32 v6, 19, {vG}\nv_lshl_add_u32 v6, {vC}, 3, v6\nv_add_u32 {aS2ST}, {sA}, v6")
        e(f"s_lshl_b32 {sA}, {sB_}, 2\ns_add_u32 {sA}, {sA}, {sHG}\ns_lshl_b32 {sA}, {sA}, 5\ns_add_u32 {sA}, {sA}, {sSP}\ns_lshl_b32 {sA}, {sA}, 7\nv_lshlrev_b32 v6, 3, {vC}\nv_lshl_add_u32 v6, {vG}, 13, v6\nv_add_u32 {aLSEST}, {sA}, v6")
        self.can_addr(aCAN, aCANR, sI)
        e(f"s_lshl_b32 {sA}, {sW}, 8\nv_lshlrev_b32 v6, 11, {vG}\nv_lshl_add_u32 v6, {vC}, 4, v6\nv_add_u32 {aS3LD}, {sA}, v6")
        e(f"v_bfe_u32 v10, {vC}, 2, 1\ns_add_u32 {sB}, {sA}, {B_XP}\nv_lshlrev_b32 v6, 7, v10\nv_add_u32 v6, {sB}, v6\nv_add_u32 v9, v6, v11")
        e(f"v_lshrrev_b32 v8, 3, {vC}\nv_lshl_add_u32 v6, v8, 6, v6\nv_lshl_add_u32 v6, {vq}, 4, v6\nv_lshl_add_u32 {aXPW}, {vG}, 2, v6")
        e(f"v_mov_b32 v6, {B_ONES}")
        self.sel(aXPR, f"v_cmp_eq_u32 vcc, 8, {vC}", "v9", "v6")
        e(f"s_mul_i32 {sB}, {sW}, 768\ns_add_u32 {sB}, {sB}, {B_RB}\nv_add_u32 v6, {sB}, v7\nv_lshlrev_b32 v9, 2, {vL}")
        self.sel(aRBW, f"v_cmp_gt_u32 vcc, 48, {vL}", "v12", "v6")
        e(f"v_and_b32 v8, 1, {vG}\nv_lshlrev_b32 v8, 3, v8\nv_lshl_add_u32 v8, {vC}, 4, v8\nv_lshrrev_b32 v6, 5, {vL}\nv_lshl_add_u32 v8, v6, 8, v8\nv_add_u32 {aRBR}, {B_RB}, v8")
        e(f"v_lshlrev_b32 v6, 6, v6\nv_add_u32 {aSTR}, {B_ST}, v6")
        e(f"v_lshrrev_b32 v6, 3, {vL}\nv_lshlrev_b32 v6, 5, v6\ns_lshl_b32 {sB}, {sW}, 2\ns_add_u32 {sB}, {sB}, {B_ST}\nv_add_u32 v6, {sB}, v6\ns_mov_b32 vcc_lo, 0x01100101\ns_mov_b32 vcc_hi, 0\nv_cndmask_b32 {aSTW}, v12, v6, vcc")
        e(f"s_lshl_b32 {sB}, {sW}, 7\ns_add_u32 {sB}, {sB}, {B_H}\nv_lshlrev_b32 v6, 1, {vL}\nv_add_u32 {aHW}, {sB}, v6")
        e(f"v_lshl_add_u32 v6, v10, 6, v11\nv_add_u32 {aHR}, {sB}, v6")
        e(f"s_and_b32 {sB}, {sF}, 60\ns_add_u32 {sB}, {sB}, {sF}\ns_lshl_b32 {sB}, {sB}, 11\ns_lshl_b32 {sA}, {sW}, 9\ns_add_u32 {sB}, {sB}, {sA}\nv_add_u32 {aS45}, {sB}, v9")
        e(f"v_mov_b32 v8, 0x3f803f80\nv_and_b32 v6, 31, {vL}\nv_lshlrev_b32 v6, 2, v6\nv_add_u32 v6, {B_ONES}, v6\nds_write_b32 v6, v8")
        e(f"v_lshrrev_b32 v6, 2, {vL}\nv_mul_u32_u24 v6, 1056, v6\nv_lshl_add_u32 v6, {vq}, 3, v6\ns_lshl_b32 {sA}, {sW}, 7\nv_add_u32 v28, {sA}, v6\nv_add_u32 v29, {64*1056}, v28")
        e(f"v_lshlrev_b32 {aTCH}, 7, v0\nv_cmp_gt_u32 vcc, 0x100, v0\nv_cndmask_b32 {aTCH}, v13, {aTCH}, vcc")
        e("s_waitcnt lgkmcnt(0)")
        self.stamp("E")
        self.cons_pats(PC)
        e(f"v_and_b32 v6, 7, {vC}\nv_lshlrev_b32 v6, 2, v6\nv_lshrrev_b32 v6, v6, {vT}")
        self.pat(Q0, "v6", 0)
        self.pat(Q1, "v6", 2)
        e(f"v_lshlrev_b32 v6, 1, {vC}\nv_lshrrev_b32 v6, v6, {vT}")
        self.pat(P45, "v6", 0)
        e("s_barrier")
        ckv(range(8, 16))
        for k, a in enumerate((PRET,) + PRET2):
            e(f"v_mov_b32 v{16+k}, {a}\nbuffer_load_dword v{16+k}, v{16+k}, {srd(S_WS)}, 0 offen")
        self.place_load(20)
        self.stamp('ckviss')
        for L in range(2):
            X = "'" * L
            l = self.lab("s1")
            if L == 0:
                e(f"s_lshl_b32 {sE}, {sJ}, 4\ns_add_u32 {sE}, {sE}, {sI}\ns_lshl_b32 {sE}, {sE}, 15")

            def apply_place():
                e(f"s_lshr_b32 {sA}, {sWW}, 3\ns_lshr_b32 {sB}, {sXCC}, 2\ns_xor_b32 {sA}, {sA}, {sB}\ns_and_b32 {sA}, {sA}, 1\ns_lshl_b32 {sSIDE}, {sA}, 13")
                e(f"v_add_u32 {aS1LD}, {sSIDE}, {aS1LD}\nv_add_u32 {aS3LD}, {sSIDE}, {aS3LD}\nv_add_u32 {aCANR}, {sSIDE}, {aCANR}")
                e(f"s_lshl_b32 {sA}, {sHG}, 2\ns_add_u32 {sA}, {sA}, {sWW}\nv_add_u32 v6, {sA}, {vG}\nv_lshlrev_b32 v6, 1, v6\nv_xor_b32 v6, {sWW}, v6\nv_and_b32 v6, 8, v6\nv_lshl_add_u32 {aS2ST}, v6, 10, {aS2ST}")

            def place():
                lq = self.lab("pq")
                e(f"s_waitcnt vmcnt(0)")
                for u in range(16):
                    e(f"ds_read_b128 {R(CS_+4*u,4)}, v30 offset:{B_CKV+u*64}")
                e(f"v_readfirstlane_b32 {sPLAIN}, v20\nv_readfirstlane_b32 {sWW}, v21\ns_cmp_lg_u32 {sPLAIN}, {sT}\ns_cbranch_scc1 {lq}")
                apply_place()
                e(f"{lq}:")
            self.canary_wait(L, aCANR, o["d_s1" if L == 0 else "e_s1"], pre=place if L == 0 else None, wsel=7 if L == 0 else 0)
            self.stamp("S1can" + X)
            e(f"s_mov_b32 {sA}, {S1R(L)}")
            ld = f"buffer_load_dwordx4 v[8:11], {aS1LD}, {srd(S_WS)}, {sA} offen sc1\nbuffer_load_dwordx4 v[12:15], {aS1LD}, {srd(S_WS)}, {sA} offen offset:1024 sc1"
            if L == 0:
                e(ld)
                for u in range(4):
                    for t in range(4):
                        base, off = ("v28", u * 32 * 1056) if u < 2 else ("v29", (u - 2) * 32 * 1056)
                        e(f"ds_read_b64_tr_b16 {R(CP+16*u+4*t,2)}, {base} offset:{off+32*t}\nds_read_b64_tr_b16 {R(CP+16*u+4*t+2,2)}, {base} offset:{off+32*t+16*1056}")
                l2 = self.lab("in")
                e(f"{l2}:")

                def stub():
                    e(f"{l}:")
                    self.guard()
                    e(f"s_sleep {o['backoff']}\n{ld}\ns_branch {l2}")
                self.oob(stub)
            else:
                self.retry_head(l)
                e(ld)
            e("s_waitcnt vmcnt(0)")
            e(f"ds_write_b128 {aQAW}, v[8:11]\nds_write_b128 {aQAW}, v[12:15] offset:1056")
            self.check(list(range(8, 16)), PC, sM, "v6")
            e(f"s_cbranch_vccnz {l}")
            if L == 0 and o["wohelp"] == 1:
                e(f"buffer_load_dword v255, {aTCH}, {srd(S_WO)}, {sE} offen")
            self.stamp('S1got' + X)
            self.bar()
            for u in range(4):
                e(f"ds_read_b128 {R(8+4*u,4)}, {aQAR} offset:{u*64}")
            for u in range(16):
                e(f"s_waitcnt lgkmcnt({min(3, 15-u)})")
                self.mfma(24, CS_ + 4 * u, 8 + 4 * (u & 3), None if u == 0 else 24)
                if u + 4 < 16:
                    e(f"ds_read_b128 {R(8+4*(u&3),4)}, {aQAR} offset:{(u+4)*64}")
            e(f"s_lshl_b32 {sA}, {sW}, 2\nv_add_u32 v7, {sA}, {aMX}\nv_max3_f32 v8, v24, v25, v26\nv_max_f32 v8, v8, v27")
            self.allred(["v8"], "v_max_f32", ["v9"], [16, 32])
            e(f"ds_write_b32 v7, v8")
            self.bar()
            self.stamp('Y2' + X)
            if L == 0 and o["wohelp"] == 2:
                self.ffn_touch(sI, "v255")
            if L == 0:
                l1, l2 = self.lab("lp"), self.lab("lq")
                e(f"s_cmp_lg_u32 {sPLAIN}, {sT}\ns_cbranch_scc1 {l1}\n{l2}:")

                def late():
                    e(f"{l1}:")
                    self.guard()
                    self.place_load(20)
                    e(f"s_waitcnt vmcnt(0)\nv_readfirstlane_b32 {sPLAIN}, v20\nv_readfirstlane_b32 {sWW}, v21\ns_cmp_lg_u32 {sPLAIN}, {sT}\ns_cbranch_scc1 {l1}")
                    apply_place()
                    e(f"s_branch {l2}")
                self.oob(late)
            self.canary_set(2 + L, aCAN, o['lead_s2'] == 2)
            e(f"ds_read_b128 v[8:11], {aMX}\nds_read_b128 v[12:15], {aMX} offset:16\ns_waitcnt lgkmcnt(1)")
            e("v_max3_f32 v8, v8, v9, v10\ns_waitcnt lgkmcnt(0)\nv_max3_f32 v12, v12, v13, v14\nv_max3_f32 v8, v8, v11, v15\nv_max_f32 v5, v8, v12")
            for r in range(4):
                e(f"v_sub_f32 v{24+r}, v{24+r}, v5")
            for r in range(4):
                e(f"v_exp_f32 v{24+r}, v{24+r}")
            e("v_cvt_pk_bf16_f32 v8, v24, v25\nv_cvt_pk_bf16_f32 v9, v26, v27\nv_add_f32 v10, v24, v25\nv_add_f32 v11, v26, v27")
            e(f"ds_write_b64 {aPW}, v[8:9]\nv_add_f32 v10, v10, v11")
            self.allred(["v10"], "v_add_f32", ["v11"], [16, 32])
            e(f"ds_write_b32 v7, v10 offset:512")
            self.bar()
            self.stamp('Y3' + X)
            self.canary_set(2 + L, aCAN, o['lead_s2'] == 1)
            e(f"ds_read_b128 v[24:27], {aMX} offset:512\nds_read_b128 v[28:31], {aMX} offset:528\nds_read_b128 v[8:11], {aPR}\nds_read_b128 v[12:15], {aPR} offset:64")
            e(f"v_lshlrev_b32 v7, 2, {vC}\ns_lshl_b32 {sA}, {sW}, 6\ns_add_u32 {sA}, {sA}, {B_LI}\nv_add_u32 v7, {sA}, v7\ns_waitcnt lgkmcnt(1)")
            D = [16, 20, 24, 28]
            self.mfma(D[0], 8, CP)
            self.mfma(D[1], 8, CP + 4)
            e("v_add_f32 v24, v24, v25\nv_add_f32 v26, v26, v27\nv_add_f32 v28, v28, v29\nv_add_f32 v30, v30, v31\nv_add_f32 v24, v24, v26\nv_add_f32 v28, v28, v30\nv_add_f32 v6, v24, v28")
            self.mfma(D[2], 8, CP + 8)
            self.mfma(D[3], 8, CP + 12)
            e(f"ds_read_b128 v[8:11], {aPR} offset:128\ns_waitcnt lgkmcnt(1)")
            for t in range(4):
                self.mfma(D[t], 12, CP + 16 + 4 * t, D[t])
            e(f"ds_read_b128 v[12:15], {aPR} offset:192\nds_write_b32 v7, v6")
            l = self.lab("k")
            e(f"s_cmp_lg_u32 {sW}, 0\ns_cbranch_scc1 {l}\nv_log_f32 v6, v6\nv_mov_b32 v7, {vT}\ns_mov_b32 {sA}, {LSE(L)}\nv_add_f32 v6, v6, v5\ns_mov_b32 exec_hi, 0")
            e(f"buffer_store_dwordx2 v[6:7], {aLSEST}, {srd(S_WS)}, {sA} offen sc1\ns_mov_b64 exec, -1\n{l}:")
            e("s_waitcnt lgkmcnt(2)")
            for t in range(4):
                self.mfma(D[t], 8, CP + 32 + 4 * t, D[t])
            e(f"ds_read_b128 v[8:11], {aLR}\ns_waitcnt lgkmcnt(2)")
            for t in range(4):
                self.mfma(D[t], 12, CP + 48 + 4 * t, D[t])
            e("s_waitcnt lgkmcnt(0)")
            for r in range(4):
                e(f"v_rcp_f32 v{8+r}, v{8+r}")
            for r in range(4):
                e(f"s_mov_b32 {sA}, {S2R(L) + r*131072}")
                for t in range(4):
                    e(f"v_mul_f32 v{D[t]+r}, v{D[t]+r}, v{8+r}")
                self.pack_ovw(f"v{12+2*(r&1)}", f"v{D[0]+r}", f"v{D[1]+r}", Q0)
                self.pack_ovw(f"v{13+2*(r&1)}", f"v{D[2]+r}", f"v{D[3]+r}", Q1)
                e(f"buffer_store_dwordx2 {R(12+2*(r&1),2)}, {aS2ST}, {srd(S_WS)}, {sA} offen sc1")
            self.canary_set(2 + L, aCAN, o['lead_s2'] == 0)
            self.stamp('S2pub' + X)
            lnf = self.lab("nf")
            if L == 0:
                e("s_barrier")
                if o["fhelp"]:
                    lx = self.lab("fy")
                    e(f"s_add_u32 {sE}, {sI}, 10\ns_cmp_lt_u32 {sE}, 16\ns_cbranch_scc1 {lx}\ns_cmp_ge_u32 {sE}, 24\ns_cbranch_scc1 {lx}")
                    self.ffn_touch(sE, "v255")
                    e(f"{lx}:")
            e(f"s_cmp_ge_u32 {sF}, 43\ns_cbranch_scc1 {lnf}")
            if L == 0:
                e(f"v_lshrrev_b32 v6, 2, {vL}\ns_lshl_b32 {sA}, {sW}, 6\nv_add_u32 v6, {sA}, v6\nv_mul_u32_u24 v6, 2752, v6\nv_and_b32 v15, 3, {vL}\nv_lshl_add_u32 v6, v15, 4, v6\ns_lshl_b32 {sA}, {sF}, 6\nv_add_u32 v6, {sA}, v6")
                e(f"s_lshl_b32 {sC}, {sW}, 12")
                for sr, base in ((S_WG, B_FG), (S_WU, B_FU)):
                    for q in range(4):
                        e(f"s_mov_b32 {sA}, {q*16*2752}\ns_add_u32 m0, {sC}, {base + q*1024}\nbuffer_load_dwordx4 v6, {srd(sr)}, {sA} offen lds")
                    e("s_barrier")
                e(f"v_lshrrev_b32 v6, 3, {vL}\nv_lshlrev_b32 v6, 10, v6\nv_and_b32 v7, 7, {vL}\nv_lshl_add_u32 v6, v7, 4, v6\ns_lshl_b32 {sA}, {sF}, 15\ns_lshl_b32 {sB}, {sW}, 7\ns_add_u32 {sA}, {sA}, {sB}\nv_add_u32 v6, {sA}, v6")
                for q in range(4):
                    e(f"s_mov_b32 {sA}, {q*8192}\ns_add_u32 m0, {sC}, {B_FD + q*1024}\nbuffer_load_dwordx4 v6, {srd(S_WD)}, {sA} offen lds")
                e(f"v_bfe_u32 v14, {vL}, 2, 2\nv_and_b32 v6, 1, v14\nv_lshlrev_b32 v6, 4, v6\nv_lshl_add_u32 v6, {vG}, 2, v6\nv_lshrrev_b32 v7, 1, v14\nv_add_u32 v6, v6, v7\nv_lshlrev_b32 v6, 6, v6\nv_lshl_add_u32 v6, v15, 3, v6\nv_add_u32 v6, {sC}, v6")
                e(f"v_lshl_add_u32 v7, {vG}, 3, v14\nv_lshlrev_b32 v7, 7, v7\nv_lshl_add_u32 v7, v15, 3, v7\ns_and_b32 {sA}, {sW}, 3\ns_lshl_b32 {sA}, {sA}, 13\ns_add_u32 {sA}, {sA}, {B_FD}\nv_add_u32 v7, {sA}, v7")
                e("s_waitcnt vmcnt(4)")
                for mi, base in enumerate((B_FG, B_FU)):
                    for tt in range(2):
                        for u in range(2):
                            rg = FG + 8 * (2 * tt + mi) + 4 * u
                            off = base + u * 2048 + 32 * tt
                            e(f"ds_read_b64_tr_b16 {R(rg,2)}, v6 offset:{off}\nds_read_b64_tr_b16 {R(rg+2,2)}, v6 offset:{off+128}")
                e("s_waitcnt vmcnt(0)\ns_barrier")
                for tt in range(8):
                    off = (tt >> 2) * 4096 + 32 * (tt & 3)
                    e(f"ds_read_b64_tr_b16 {R(FD+4*tt,2)}, v7 offset:{off}\nds_read_b64_tr_b16 {R(FD+4*tt+2,2)}, v7 offset:{off+512}")
                e("s_waitcnt lgkmcnt(0)")
                self.stamp('ffnW')
            self.canary_wait(4 + L, aCANR, o["d_s3" if L == 0 else "e_s3"])
            self.stamp('S3can' + X)
            l = self.lab("s3")
            e(f"s_mov_b32 {sA}, {S3R(L)}\ns_mov_b32 {sB}, {S3R(L)+16384}")
            self.retry_head(l)
            e(f"buffer_load_dwordx4 v[8:11], {aS3LD}, {srd(S_WS)}, {sA} offen sc1\nbuffer_load_dwordx4 v[12:15], {aS3LD}, {srd(S_WS)}, {sB} offen sc1\ns_waitcnt vmcnt(0)")
            self.check(list(range(8, 16)), PC, sM, "v6")
            e(f"s_cbranch_vccnz {l}")
            self.canary_set(6 + L, aCAN, o['lead_s45'] == 2)
            self.stamp('S3got' + X)
            for k in range(4):
                e(f"v_lshlrev_b32 v{16+2*k}, 16, v{8+k}\nv_and_b32 v{17+2*k}, 0xffff0000, v{8+k}\nv_lshlrev_b32 v{24+2*k}, 16, v{12+k}\nv_and_b32 v{25+2*k}, 0xffff0000, v{12+k}")
            for k in range(8):
                e(f"v_add_f32 v{16+k}, v{16+k}, v{24+k}")
            for k in range(4):
                e(f"v_permlane32_swap_b32 v{16+k}, v{20+k}")
            for k in range(4):
                e(f"v_add_f32 v{16+k}, v{16+k}, v{20+k}")
            e("v_permlane16_swap_b32 v16, v18\nv_permlane16_swap_b32 v17, v19\nv_add_f32 v16, v16, v18\nv_add_f32 v17, v17, v19")
            e(f"v_cvt_pk_bf16_f32 v6, v16, v17\nds_write_b32 {aXPW}, v6")
            e(f"ds_read_b128 v[8:11], {aXPR}\nds_read_b128 v[12:15], {aXPR} offset:64\ns_waitcnt lgkmcnt(1)")
            DD = [16, 20, 24, 28]
            for t in range(4):
                self.mfma(DD[t], 8, FG + 8 * t)
            e("s_waitcnt lgkmcnt(0)")
            for t in range(4):
                self.mfma(DD[t], 12, FG + 8 * t + 4, DD[t])
            e("v_mfma_f32_16x16x32_bf16 v[8:11], v[8:11], v[8:11], 0")
            e("v_mfma_f32_16x16x32_bf16 v[8:11], v[12:15], v[12:15], v[8:11]")
            e(f"v_mov_b32 v17, v20\nv_mov_b32 v18, v24\nv_mov_b32 v19, v28\nds_write_b128 {aRBW}, v[16:19]\nds_write_b32 {aSTW}, v8")
            self.bar()
            self.stamp('Z1' + X)
            self.canary_set(6 + L, aCAN, o['lead_s45'] == 1)
            e(f"s_cmp_ge_u32 {sW}, 4\ns_cbranch_scc1 {lnf}")
            if L == 0:
                e(f"v_lshrrev_b32 v6, 5, {vL}\nv_lshlrev_b32 v6, 8, v6\nv_sub_u32 v6, {aRBR}, v6")
                for k in range(8):
                    e(f"ds_read_b64 {R(8+2*k,2)}, v6 offset:{768*k+512}")
                e(f"s_waitcnt lgkmcnt(0)\nv_add_f32 {vCG}, v8, v10\nv_add_f32 {vCU}, v9, v11")
                for k in range(2, 8):
                    e(f"v_add_f32 {vCG}, {vCG}, v{8+2*k}\nv_add_f32 {vCU}, {vCU}, v{9+2*k}")
            e(f"ds_read_b128 v[24:27], {aSTR}\nds_read_b128 v[28:31], {aSTR} offset:16")
            for k in range(4):
                e(f"ds_read_b64 {R(8+2*k,2)}, {aRBR} offset:{768*k}")
            e("s_waitcnt lgkmcnt(4)\nv_add_f32 v24, v24, v25\nv_add_f32 v26, v26, v27\nv_add_f32 v28, v28, v29\nv_add_f32 v30, v30, v31\nv_add_f32 v24, v24, v26\nv_add_f32 v28, v28, v30\nv_add_f32 v6, v24, v28")
            e(f"ds_read_b128 v[24:27], {aSTR} offset:32\nds_read_b128 v[28:31], {aSTR} offset:48")
            for k in range(4, 8):
                e(f"ds_read_b64 {R(8+2*k,2)}, {aRBR} offset:{768*k}")
            e("s_waitcnt lgkmcnt(6)\nv_add_f32 v8, v8, v10\nv_add_f32 v9, v9, v11\nv_add_f32 v12, v12, v14\nv_add_f32 v13, v13, v15\nv_add_f32 v8, v8, v12\nv_add_f32 v9, v9, v13")
            e("s_waitcnt lgkmcnt(4)\nv_add_f32 v24, v24, v25\nv_add_f32 v26, v26, v27\nv_add_f32 v28, v28, v29\nv_add_f32 v30, v30, v31\nv_add_f32 v24, v24, v26\nv_add_f32 v28, v28, v30\nv_add_f32 v7, v24, v28")
            e(f"v_mul_f32 v7, {f32(1/512)}, v7\nv_mov_b32 v12, {f32(1e-5)}\nv_fmac_f32 v12, {f32(1/512)}, v6\nv_fma_f32 v12, -v7, v7, v12\nv_rsq_f32 v12, v12\ns_waitcnt lgkmcnt(0)")
            e("v_add_f32 v16, v16, v18\nv_add_f32 v17, v17, v19\nv_add_f32 v20, v20, v22\nv_add_f32 v21, v21, v23\nv_add_f32 v8, v8, v16\nv_add_f32 v9, v9, v17\nv_add_f32 v8, v8, v20\nv_add_f32 v9, v9, v21")
            e(f"v_fma_f32 v8, -v7, {vCG}, v8\nv_fma_f32 v9, -v7, {vCU}, v9\nv_mul_f32 v8, v8, v12\nv_mul_f32 v9, v9, v12")
            c1 = -2 * 0.7978845608028654 * math.log2(math.e)
            e(f"v_mul_f32 v10, v8, v8\nv_mov_b32 v11, {f32(c1)}\nv_fmac_f32 v11, {f32(c1*0.044715)}, v10\nv_mul_f32 v10, v11, v8\nv_exp_f32 v10, v10")
            e(f"v_mul_f32 v8, v8, v9\nv_add_f32 v10, 1.0, v10\nv_rcp_f32 v10, v10\ns_mov_b32 {sA}, {S45(L)}\ns_mov_b32 {sB}, {S45(L)+8192}\nv_mul_f32 v8, v8, v10")
            e(f"v_cvt_pk_bf16_f32 v8, v8, v8\nds_write_b16 {aHW}, v8\nds_read_b128 v[8:11], {aHR}\ns_waitcnt lgkmcnt(0)")
            for hf in range(2):
                for t in range(4):
                    self.mfma(DD[t], 8, FD + 16 * hf + 4 * t)
                self.pack_ovw("v12", "v16", "v20", P45)
                self.pack_ovw("v13", "v24", "v28", P45)
                e(f"v_permlane32_swap_b32 v12, v13\nbuffer_store_dword v12, {aS45}, {srd(S_WS)}, {sA} offen offset:{256*hf} sc1\nbuffer_store_dword v12, {aS45}, {srd(S_WS)}, {sB} offen offset:{256*hf} sc1")
            self.canary_set(6 + L, aCAN, o['lead_s45'] == 0)
            self.stamp('S45pub' + X)
            e(f"{lnf}:")
        self.dump_stamps()


if __name__ == "__main__":
    import argparse
    ap = argparse.ArgumentParser()
    ap.add_argument("-o", default=f"cdna_kernels/{NAME}.s")
    ap.add_argument("--opt", action="append", default=[])
    a = ap.parse_args()
    opts = {k: int(v) for k, v in (x.split("=") for x in a.opt)}
    open(a.o, "w").write(Gen(**opts).build())
```

```python
import sys, math, struct
sys.path.insert(0, "scratch")
from asmlib import hazard_pass

NAME = "interleave_layers__compressed_kv_cla__glu_gated_geglu__decode"
f32 = lambda x: "0x%08x" % struct.unpack("<I", struct.pack("<f", x))[0]

WADR = 0x80
VOTES = 0x200
PRET = 0x800
CAN = 0x4000
LSE = lambda L: 0x8000 + L * 0x8000
S1R = lambda L: 0x18000 + L * 0x20000
S3R = lambda L: 0x58000 + L * 0x8000
S45 = lambda L: 0x68000 + L * 0x2C000
CAL = 0x100000
I0R = lambda L: 0x200000 + L * 0x80000
COLS = 0x300000
I1R = lambda L: 0x340000 + L * 0x20000
I0S = lambda L: 0x380000 + L * 0x4000
S2R = lambda L: 0x400000 + L * 0x400000
PRET2 = (0x3F0000,)
STAMP = 0xE000000
OOB = 0x7FFFFF00
A_WQ = 0
A_OS = 0
A_XR = 18432
A_WUK = 34048
A_WUV = 67840
A_WO = 101632
A_Q = 134400
A_WW = A_Q + 512
A_CC = A_WW + 256
A_CT = A_CC + 512
A_RR = A_CT + 2048
A_XS = A_RR + 2048
A_DUM = A_XS + 256
B_CKV = 0
B_QA = 135168
B_MX = 152064
B_LI = B_MX + 1024
B_P = B_LI + 512
B_ONES = B_P + 4608
B_DUM = B_ONES + 128
LDS_BYTES = B_DUM + 256
B_FG = 0
B_FU = 32768
B_FD = 65536
B_XP = 98304
B_H = B_XP + 2048
B_RB = B_H + 1024
B_ST = B_RB + 6144

S_WS, S_X, S_CKV, S_WQ, S_WUK, S_WUV, S_WO, S_WG, S_WU, S_WD, S_OUT = [4 + 4 * k for k in range(11)]
sT1, sT2, sT3, sBW = "s48", "s49", "s50", "s51"
sJ, sI, sW, sT, sM, sFF, sSEL, sGUARD, sPLAIN, sXCC, sPA, sE = ["s%d" % (52 + k) for k in range(12)]
sA, sB, sC, sD = "s64", "s65", "s66", "s67"
sH, sCS = "s68", "s69"
sMASK = "s[70:71]"
sMEAN, sRSTD = "s72", "s73"
sSIDE, sWW = "s100", "s101"
STAMP0 = 78
srd = lambda b: f"s[{b}:{b+3}]"
vL, vC, vG, vT = "v1", "v2", "v3", "v4"
DPPM = "row_mask:0xf bank_mask:0xf"
DP = {1: "quad_perm:[1,0,3,2]", 2: "quad_perm:[2,3,0,1]", 4: "row_half_mirror", 8: "row_ror:8"}

PROFILES = [
    (["start", "Wq", "P1a", "I0got", "S1pub", "Wo", "S2can", "S2got", "I1got", "S3pub", "S45got"],
     ["start", "ckv", "S1can", "S1got", "Y2", "Y3", "S2pub", "ffnW", "S3can", "S3got", "S45pub"]),
    (["start", "S45got", "P1a'", "I0got'", "S1pub'", "S2can'", "S2got'", "I1pub'", "I1got'", "S3pub'", "end"],
     ["start", "S45pub", "S1can'", "S1got'", "Y2'", "Y3'", "S2pub'", "S3can'", "S3got'", "Z1'", "S45pub'"]),
    (["start", "karg", "E", "Wq", "Wuk", "P1a", "I0pr", "I0got", "S1pub", "Wo", "S2can"],
     ["start", "karg", "E", "ckv0", "ckv8", "ckviss", "ckv", "S1can", "S1got", "Y2", "S2pub"]),
    (["start", "end", "S45got"], ["start"]),
    (["start", "S1pub", "Wuv", "Wo0", "Wo", "S2can", "S2got", "I1pub", "I1got", "S3pub", "S45got"],
     ["start", "ckviss", "ckv", "S1can", "S1got", "Y2", "S2pub", "ffnW", "S3can", "S3got", "S45pub"]),
]


def R(a, n=1):
    return f"v{a}" if n == 1 else f"v[{a}:{a+n-1}]"


class Gen:
    def __init__(self, **o):
        self.o = dict(stamps=0, bdelay=4, bdelay2=6, adelay=2, d_s1=1, d_s2=5, d_s3=5, d_s45=2, e_s1=2, e_s2=8, e_s3=5, e_s45=2, guard=0x400000, backoff=2,
                      lead_s1=1, lead_s2=1, lead_s3=1, lead_s45=1, prof=0, i0tries=24, bhelp=4, wohelp=2, fhelp=1, amp=0, warm=1, wukdelay=20, vdelay=16, forcec=-1)
        self.o.update(o)
        for h in ('s1', 's2', 's3', 's45'):
            self.o.setdefault('e_' + h, self.o['d_' + h])
        self.L = []
        self.uid = 0
        self.nst = 0
        self.cold = []
        self.NA, self.NB = PROFILES[self.o["prof"]]
        self.names = self.NA

    def e(self, s):
        for ln in s.split("\n"):
            self.L.append(ln)

    def lab(self, p):
        self.uid += 1
        return f"L_{p}_{self.uid}"

    def stamp(self, name):
        if self.o["stamps"] and name in self.names:
            k = self.names.index(name)
            self.e(f"s_memrealtime s[{STAMP0+2*k}:{STAMP0+2*k+1}]")

    def dump_stamps(self):
        if not self.o["stamps"]:
            return
        e = self.e
        e("s_waitcnt lgkmcnt(0)")
        for k in range(11):
            e(f"v_mov_b32 v{8+k}, s{STAMP0+2*k}")
        e(f"s_lshl_b32 {sA}, s2, 9\ns_lshl_b32 {sB}, {sW}, 6\ns_add_u32 {sA}, {sA}, {sB}\ns_add_u32 {sA}, {sA}, {STAMP}")
        e(f"v_mov_b32 v6, {OOB}\nv_cmp_eq_u32 vcc, 0, {vL}\nv_cndmask_b32 v6, v6, {vL}, vcc")
        e(f"v_mov_b32 v20, {sGUARD}\nv_mov_b32 v21, {sT}\nv_mov_b32 v22, {sPLAIN}\nv_mov_b32 v23, s3")
        for k in range(4):
            e(f"buffer_store_dwordx4 v[{8+4*k}:{11+4*k}], v6, {srd(S_WS)}, {sA} offen offset:{16*k}")

    def mfma(self, d, a, b, c=None):
        self.e(f"v_mfma_f32_16x16x32_bf16 {R(d,4)}, {R(a,4)}, {R(b,4)}, {'0' if c is None else R(c,4)}")

    def bar(self):
        self.e("s_waitcnt lgkmcnt(0)\ns_barrier")

    def guard(self):
        if self.o["stamps"]:
            self.nst += 1
            self.e(f"s_movk_i32 s3, {self.nst}")
        self.e(f"s_sub_u32 {sGUARD}, {sGUARD}, 1\ns_cbranch_scc1 {'L_bail' if self.o['stamps'] else 'L_end'}")

    def sel(self, dst, cond, a, b):
        self.e(cond)
        self.e(f"v_cndmask_b32 {dst}, {a}, {b}, vcc")

    def check(self, regs, pats, mask, acc, extra=None):
        e = self.e
        e(f"v_xor_b32 {acc}, {pats[0]}, v{regs[0]}")
        for n, r in enumerate(regs[1:], 1):
            e(f"v_bitop3_b32 {acc}, v{r}, {pats[n & 3]}, {acc} bitop3:0xbe")
        e(f"v_and_or_b32 {acc}, {acc}, {mask}, {extra}" if extra else f"v_and_b32 {acc}, {mask}, {acc}")
        e(f"v_cmp_ne_u32 vcc, 0, {acc}")

    def pat(self, dst, src, sh, kk=None):
        e = self.e
        e(f"v_bfe_u32 {dst}, {src}, {sh}, 2\nv_lshl_or_b32 {dst}, {dst}, 15, {dst}")
        if kk:
            e(f"v_not_b32 {kk[1]}, {dst}\nv_and_b32 {kk[0]}, 1, {kk[1]}\nv_lshlrev_b32 {kk[0]}, 16, {kk[0]}\nv_and_b32 {kk[1]}, 0x10000, {kk[1]}")

    def cons_pats(self, P):
        self.e(f"v_and_b32 v6, 3, {vL}\nv_lshlrev_b32 v6, 3, v6\nv_lshrrev_b32 v6, v6, {vT}")
        for k in range(4):
            self.pat(P[k], "v6", 2 * k)

    def pack_near(self, dst, lo, hi, t0, t1, p, kk):
        e = self.e
        e(f"v_add_u32 {t0}, {kk[0]}, {lo}\nv_add_u32 {t1}, {kk[1]}, {hi}")
        e(f"v_perm_b32 {t0}, {t1}, {t0}, {sSEL}\nv_bfi_b32 {dst}, {sM}, {p}, {t0}")

    def pack_ovw(self, dst, lo, hi, p):
        self.e(f"v_cvt_pk_bf16_f32 {dst}, {lo}, {hi}\nv_bfi_b32 {dst}, {sM}, {p}, {dst}")

    def allred(self, regs, op, tmps, steps):
        e = self.e
        for s in steps:
            if s in DP:
                for r in regs:
                    e(f"{op}_dpp {r}, {r}, {r} {DP[s]} {DPPM}")
            else:
                for r, t in zip(regs, tmps):
                    e(f"v_mov_b32 {t}, {r}")
                for r, t in zip(regs, tmps):
                    e(f"v_permlane{s}_swap_b32 {r}, {t}")
                for r, t in zip(regs, tmps):
                    e(f"{op} {r}, {r}, {t}")

    def can_addr(self, vw, vr, sidx):
        e = self.e
        e(f"s_lshl_b32 {sA}, {sidx}, 9\nv_add_u32 v6, {sA}, v0\ns_lshl_b32 {sA}, {sJ}, 7\ns_add_u32 {sA}, {sA}, {CAN}\nv_lshl_add_u32 v8, v0, 13, {sA}\nv_cmp_gt_u32 vcc, 2, v6\nv_cndmask_b32 {vw}, v13, v8, vcc")
        e(f"v_and_b32 v6, 7, v0\nv_lshlrev_b32 v6, 7, v6\nv_add_u32 {vr}, {CAN}, v6")

    def place_load(self, v):
        self.e(f"v_mov_b32 v{v}, {WADR}\nbuffer_load_dwordx2 v[{v}:{v+1}], v{v}, {srd(S_WS)}, 0 offen sc1")

    def place_wait(self, v, first=False):
        e = self.e
        l, l2 = self.lab("pw"), self.lab("px")
        if not first:
            self.place_load(v)
        e(f"{l2}:\ns_waitcnt vmcnt(0)\nv_readfirstlane_b32 {sA}, v{v}\nv_readfirstlane_b32 {sWW}, v{v+1}\ns_cmp_lg_u32 {sA}, {sT}\ns_cbranch_scc1 {l}")

        def stub():
            e(f"{l}:")
            self.guard()
            e("s_sleep 2")
            self.place_load(v)
            e(f"s_branch {l2}")
        self.oob(stub)
        e(f"s_lshr_b32 {sA}, {sWW}, 3\ns_lshr_b32 {sB}, {sXCC}, 2\ns_xor_b32 {sA}, {sA}, {sB}\ns_and_b32 {sA}, {sA}, 1\ns_lshl_b32 {sSIDE}, {sA}, 13")

    def canary_wait(self, idx, vr, delay, pre=None, wsel=0):
        e = self.e
        l, l2 = self.lab("can"), self.lab("cb")
        e(f"s_cmp_lg_u32 {sW}, {wsel}\ns_cbranch_scc1 {l2}\ns_movk_i32 {sA}, {idx*1024}\ns_mov_b64 exec, 0xff")
        e(f"{l}:")
        self.guard()
        e(f"buffer_load_dword v6, {vr}, {srd(S_WS)}, {sA} offen sc1\ns_waitcnt vmcnt(0)")
        e(f"v_cmp_ne_u32 vcc, v6, {vT}\ns_cbranch_vccnz {l}\ns_mov_b64 exec, -1")
        if delay:
            e(f"s_sleep {delay}")
        e(f"{l2}:")
        if pre:
            pre()
            self.stamp("ckv")
        e("s_barrier")

    def canary_set(self, idx, vw, cond=True):
        if cond:
            self.e(f"s_movk_i32 {sD}, {idx*1024}\nbuffer_store_dword {vT}, {vw}, {srd(S_WS)}, {sD} offen sc1")

    def oob(self, fn):
        keep, self.L = self.L, []
        fn()
        self.cold.append("\n".join(self.L))
        self.L = keep

    def retry_head(self, l, mult=1):
        l2 = self.lab("in")
        self.e(f"{l2}:")

        def stub():
            self.e(f"{l}:")
            self.guard()
            self.e(f"s_sleep {mult*self.o['backoff']}\ns_branch {l2}")
        self.oob(stub)

    def store_intra(self, ins):
        e = self.e
        l1, l2 = self.lab("sc"), self.lab("sd")
        e(f"s_cmp_eq_u32 {sPLAIN}, 0\ns_cbranch_scc1 {l1}")
        for i in ins:
            e(i)
        e(f"{l2}:")
        self.cold.append(f"{l1}:\n" + "\n".join(i + " sc1" for i in ins) + f"\ns_branch {l2}")

    def consts(self):
        self.e(f"s_mov_b32 {sM}, 0x00010001\ns_movk_i32 {sFF}, 0xff\ns_mov_b32 {sSEL}, 0x07060302\ns_mov_b32 {sGUARD}, {self.o['guard']}")

    def fin_srd(self, b, size):
        self.e(f"s_mov_b32 s{b+2}, {size}\ns_mov_b32 s{b+3}, 0x20000")

    def epoch_load(self):
        self.e(f"s_load_dword {sT}, s[{S_WS}:{S_WS+1}], 0")

    def calib(self, sidx):
        e = self.e
        e(f"s_lshl_b32 {sA}, {sidx}, 2\ns_lshr_b32 {sB}, {sW}, 1\ns_add_u32 {sA}, {sA}, {sB}\ns_lshr_b32 {sB}, {sA}, 6\ns_lshl_b32 {sB}, {sB}, 1\ns_and_b32 {sC}, {sW}, 1\ns_add_u32 {sB}, {sB}, {sC}\ns_lshl_b32 {sB}, {sB}, 6")
        e(f"s_and_b32 {sA}, {sA}, 63\ns_add_u32 {sA}, {sA}, {sB}\ns_lshl_b32 {sA}, {sA}, 7\ns_add_u32 {sA}, {sA}, {CAL}")

    def calib_run(self):
        self.e(f"s_memtime s[72:73]\ns_load_dword {sB}, s[{S_WS}:{S_WS+1}], {sA}\ns_waitcnt lgkmcnt(0)\ns_memtime s[70:71]\ns_waitcnt lgkmcnt(0)\ns_sub_u32 {sC}, s70, s72")

    def ffn_touch(self, sK, dst):
        e = self.e
        lx, l1, l2 = self.lab("fx"), self.lab("fa"), self.lab("fb")
        e(f"s_cmp_ge_u32 {sW}, 4\ns_cbranch_scc1 {lx}\ns_mul_i32 {sA}, {sK}, 43\ns_lshr_b32 {sA}, {sA}, 8\ns_mul_i32 {sB}, {sA}, 6\ns_sub_u32 {sB}, {sK}, {sB}\ns_lshl_b32 {sB}, {sB}, 3\ns_add_u32 {sB}, {sB}, {sJ}")
        e(f"s_cmp_ge_u32 {sB}, 43\ns_cbranch_scc1 {lx}\ns_cmp_eq_u32 {sA}, 3\ns_cbranch_scc1 {l1}")
        e(f"v_mul_u32_u24 v6, 2752, v0\ns_lshl_b32 {sB}, {sB}, 6\ns_cmp_eq_u32 {sA}, 1\ns_cselect_b32 {sC}, 0, {256*2752}\ns_add_u32 {sB}, {sB}, {sC}\ns_cmp_eq_u32 {sA}, 0\ns_cbranch_scc1 {l2}")
        e(f"buffer_load_dword {dst}, v6, {srd(S_WU)}, {sB} offen\ns_branch {lx}\n{l2}:\nbuffer_load_dword {dst}, v6, {srd(S_WG)}, {sB} offen\ns_branch {lx}")
        e(f"{l1}:\nv_lshlrev_b32 v6, 7, v0\ns_lshl_b32 {sB}, {sB}, 15\nbuffer_load_dword {dst}, v6, {srd(S_WD)}, {sB} offen\n{lx}:")

    def tags(self):
        self.e(f"s_add_u32 {sT}, {sT}, 1\nv_mov_b32 {vT}, {sT}")

    def build(self):
        e = self.e
        K = NAME + "_kernel"
        e(f"; @launch grid=(256,1,1) block=(512,1,1) lds={LDS_BYTES}")
        e('.amdgcn_target "amdgcn-amd-amdhsa--gfx950"\n.text')
        e(f".globl {K}\n.p2align 8\n.type {K},@function\n{K}:")
        self.stamp('start')
        if self.o["amp"]:
            e("s_memrealtime s[98:99]")
        e("s_cmp_ge_u32 s2, 256\ns_cbranch_scc1 L_end")
        e(f"s_load_dwordx2 s[{S_WS}:{S_WS+1}], s[0:1], 96")
        e(f"s_lshr_b32 {sI}, s2, 3\ns_cmp_ge_u32 {sI}, 16\ns_cbranch_scc1 L_roleB")
        self.roleA()
        e("L_roleB:")
        self.names = self.NB
        self.roleB()
        e("s_endpgm")
        for c in self.cold:
            e(c)
        if self.o["stamps"]:
            e("L_bail:\ns_mov_b64 exec, -1")
            e(f"s_lshl_b32 {sA}, s2, 14\ns_add_u32 {sA}, {sA}, 0xC000000\nv_lshlrev_b32 v6, 5, v0\nbuffer_store_dwordx4 v[8:11], v6, {srd(S_WS)}, {sA} offen\nbuffer_store_dwordx4 v[12:15], v6, {srd(S_WS)}, {sA} offen offset:16\ns_waitcnt vmcnt(0)")
            self.dump_stamps()
        e("L_end:\ns_endpgm\nL_code_end:")
        body = hazard_pass(self.L)
        body.append(f""".section .rodata,"a"
.p2align 6
.amdhsa_kernel {K}
  .amdhsa_next_free_vgpr 256
  .amdhsa_next_free_sgpr 102
  .amdhsa_accum_offset 256
  .amdhsa_group_segment_fixed_size 0
  .amdhsa_kernarg_size 104
  .amdhsa_user_sgpr_count 2
  .amdhsa_user_sgpr_kernarg_segment_ptr 1
  .amdhsa_system_sgpr_workgroup_id_x 1
.end_amdhsa_kernel""")
        return "\n".join(body) + "\n"

    def roleA(self):
        e, o = self.e, self.o
        WQ, WUK, WUV, WO, XOP, SEL0, SEL4 = 32, 64, 128, 144, 160, 164, 168
        vCS, vONE, vTL = "v172", "v173", "v28"
        (aXOFF, aWROW, aI0ST0, aI0ST1, aI0LD, aCSLD, aSTLD, aSTST, aQW, aQR, aS1ST, aS2LD, aOSW, aLSE, aWW, aWA0, aWA1,
         aOTR, aCCW, aCCR, aI1ST, aI1LD, aCTW, aCTR, aRRW, aRRR, aS3ST, aXLD, aXRW, aXTR, aXSW, aCANW, aCANR, aOUT) = ["v%d" % (174 + k) for k in range(34)]
        TB = [vT, "v208", "v209", "v210"]
        PC = ["v240", "v241", "v242", "v243"]
        Q0, Q1, K0, K1 = "v252", "v253", ("v254", "v255"), ("v211", "v5")
        P3, K3 = "v30", ("v31", "v29")
        sTB = [sT, sT1, sT2, sT3]
        vr, vq = "v14", "v15"
        e(f"s_load_dwordx2 s[{S_WQ}:{S_WQ+1}], s[0:1], 16\ns_load_dwordx2 s[{S_WUK}:{S_WUK+1}], s[0:1], 24\ns_load_dwordx2 s[{S_X}:{S_X+1}], s[0:1], 0")
        e(f"v_lshrrev_b32 v6, 6, v0\nv_and_b32 {vC}, 15, v0\ns_and_b32 {sJ}, s2, 7\nv_readfirstlane_b32 {sW}, v6\nv_bfe_u32 {vG}, v0, 4, 2\nv_lshlrev_b32 v7, 4, {vC}")
        self.fin_srd(S_WQ, 4 << 20)
        self.fin_srd(S_WUK, 4 << 20)
        e(f"s_and_b32 {sBW}, {sI}, 3\ns_lshl_b32 {sH}, {sJ}, 2\ns_add_u32 {sH}, {sH}, {sBW}\ns_lshr_b32 {sCS}, {sI}, 2\ns_mul_i32 {sD}, {sW}, 8448")
        ljn = self.lab("jn")
        e(f"s_cmp_ge_u32 {sW}, 4\ns_cbranch_scc1 {ljn}")
        e(f"s_lshl_b32 {sA}, {sI}, 8\ns_add_u32 {sA}, {sA}, {sJ}\ns_lshl_b32 {sA}, {sA}, 2\ns_add_u32 {sA}, {sA}, {sW}\ns_lshl_b32 {sA}, {sA}, 8\nv_lshl_add_u32 v9, {vG}, 15, v7\nv_add_u32 v9, {sA}, v9")
        e(f"v_bfe_u32 v10, {vC}, 2, 1\nv_lshlrev_b32 v6, 10, v10\nv_lshl_add_u32 v6, {vG}, 2, v6\ns_lshl_b32 {sB}, {sI}, 6\nv_add_u32 {aXOFF}, {sB}, v6")
        self.fin_srd(S_X, 2048)
        e("s_waitcnt lgkmcnt(0)")
        self.stamp("karg")
        for k, off in enumerate((0, 32, 16, 48)):
            e(f"buffer_load_dword v{24+k}, {aXOFF}, {srd(S_X)}, 0 offen offset:{off}")
        for q in range(8):
            e(f"s_mov_b32 {sA}, {((q & 3) + 16*(q >> 2))*8192}\ns_add_u32 m0, {sD}, {A_WQ + q*1056}\nbuffer_load_dwordx4 v9, {srd(S_WQ)}, {sA} offen lds")
        e(f"{ljn}:\ns_waitcnt lgkmcnt(0)")
        self.epoch_load()
        for b, slot in ((S_WUV, 4), (S_WO, 5), (S_OUT, 10), (S_WG, 7), (S_WU, 8), (S_WD, 9)):
            e(f"s_load_dwordx2 s[{b}:{b+1}], s[0:1], {slot*8}")
        self.fin_srd(S_WS, 0x10000000)
        e(f"v_and_b32 {vL}, 63, v0\nv_mov_b32 v13, {OOB}")
        self.consts()
        e(f"s_getreg_b32 {sXCC}, hwreg(HW_REG_XCC_ID)\ns_and_b32 {sXCC}, {sXCC}, 15\ns_lshl_b32 {sPA}, {sJ}, 4\ns_add_u32 {sPA}, {sPA}, {sI}\ns_mov_b32 {sPLAIN}, 0")
        e(f"v_lshlrev_b32 v7, 4, {vL}\nv_bfe_u32 v10, {vC}, 2, 1\nv_lshlrev_b32 v11, 4, {vG}\nv_bfe_u32 {vr}, {vL}, 2, 2\nv_and_b32 {vq}, 3, {vL}")
        e(f"v_and_b32 v6, 1, {vr}\nv_lshlrev_b32 v6, 2, v6\nv_lshrrev_b32 v8, 1, {vr}\nv_add_u32 v6, v6, v8\nv_and_b32 v8, 1, {vG}\nv_lshl_add_u32 v6, v8, 1, v6\nv_mul_u32_u24 v6, 1056, v6")
        e(f"v_lshrrev_b32 v8, 1, {vG}\nv_lshl_add_u32 v6, v8, 8, v6\nv_lshl_add_u32 v6, {vq}, 3, v6\nv_add_u32 v31, {sD}, v6")
        e(f"s_lshl_b32 {sA}, {sPA}, 2\ns_add_u32 {sA}, {sA}, {sW}\ns_lshl_b32 {sB}, {sA}, 10\ns_add_u32 {sB}, {sB}, {I0R(0)}\nv_add_u32 v6, {sB}, v7\nv_cmp_gt_u32 vcc, 32, {vL}")
        e(f"s_lshl_b32 {sB}, {sA}, 9\ns_add_u32 {sB}, {sB}, {COLS - 512}\nv_cndmask_b32 {aI0ST1}, v13, v6, vcc\nv_add_u32 v6, {sB}, v7")
        e(f"s_and_b32 {sA}, {sH}, 24\ns_add_u32 {sA}, {sA}, {sH}\ns_lshl_b32 {sA}, {sA}, 2\ns_add_u32 {sA}, {sA}, {sCS}\ns_lshl_b32 {sB}, {sA}, 1\ns_and_b32 {sC}, {sW}, 1\ns_add_u32 {sB}, {sB}, {sC}\ns_lshl_b32 {sB}, {sB}, 7")
        e(f"v_lshlrev_b32 v8, 16, {vG}\nv_lshl_add_u32 v8, {vC}, 3, v8\nv_add_u32 v8, {sB}, v8\nv_cndmask_b32 {aS1ST}, v13, v8, vcc")
        self.sel(aI0ST0, f"v_cmp_eq_u32 vcc, 2, {vG}", aI0ST1, "v6")
        e(f"v_add_u32 v6, 256, {aI0ST0}\nv_add_u32 v8, 512, {aI0ST0}\nv_cndmask_b32 {aOUT}, v8, v6, vcc")
        e(f"v_lshrrev_b32 v6, 3, {vL}\nv_sub_u32 v8, {vL}, v6\nv_add_u32 v8, 3, v8\ns_mov_b32 vcc_lo, 0x01100101\ns_mov_b32 vcc_hi, 0\nv_cndmask_b32 v6, v8, v6, vcc")
        e(f"s_lshl_b32 {sA}, {sPA}, 7\nv_lshl_add_u32 v6, v6, 3, {sA}\ns_cmp_eq_u32 {sW}, 0\ns_cselect_b32 vcc_lo, 0x01103fff, 0\nv_cndmask_b32 {aSTST}, v13, v6, vcc")
        e(f"v_lshrrev_b32 v8, 3, {vL}\nv_and_b32 v9, 7, {vL}\nv_lshlrev_b32 v9, 4, v9")
        e(f"s_lshl_b32 {sA}, {sJ}, 6\ns_add_u32 {sA}, {sA}, {sBW}\ns_lshl_b32 {sB}, {sA}, 3\ns_add_u32 {sB}, {sB}, {sW}\ns_lshl_b32 {sB}, {sB}, 7")
        e(f"v_lshl_add_u32 v6, v8, 12, v9\nv_add_u32 {aI0LD}, {sB}, v6")
        e(f"s_lshr_b32 {sC}, {sW}, 2\ns_lshl_b32 {sA}, {sA}, 1\ns_add_u32 {sA}, {sA}, {sC}\ns_lshl_b32 {sA}, {sA}, 1\ns_and_b32 {sE}, {sW}, 1\ns_add_u32 {sA}, {sA}, {sE}\ns_lshl_b32 {sA}, {sA}, 7\ns_add_u32 {sA}, {sA}, {COLS}")
        e(f"v_lshl_add_u32 v6, v8, 11, v9\nv_add_u32 {aCSLD}, {sA}, v6")
        e(f"s_bfe_u32 {sB}, {sW}, 0x10001\ns_lshl_b32 {sA}, {sJ}, 7\ns_add_u32 {sA}, {sA}, {sB}\ns_lshl_b32 {sA}, {sA}, 4\nv_lshlrev_b32 v6, 7, {vC}\nv_add_u32 {aSTLD}, {sA}, v6")
        e(f"s_lshl_b32 {sA}, {sB}, 1\ns_add_u32 {sA}, {sA}, {sC}\ns_lshl_b32 {sA}, {sA}, 3\ns_add_u32 {sA}, {sA}, {sE}\ns_lshl_b32 {sA}, {sA}, 4\ns_add_u32 {sA}, {sA}, {A_Q}")
        e(f"v_lshrrev_b32 v6, 3, v9\nv_lshl_add_u32 v6, {vG}, 5, v6\nv_add_u32 {aQW}, {sA}, v6")
        e(f"v_lshl_add_u32 v6, v10, 8, v11\nv_add_u32 {aQR}, {A_Q}, v6")
        e(f"v_mov_b32 v6, 0x3f803f80\nv_cmp_eq_u32 vcc, 8, {vC}\nv_mov_b32 v8, 0\nv_cndmask_b32 {vONE}, v8, v6, vcc")
        self.can_addr(aCANW, aCANR, sI)
        lsk = self.lab("k")
        e(f"s_cmp_lt_u32 {sW}, 4\ns_cbranch_scc1 {lsk}")
        lw = self.lab("k")
        e(f"s_cmp_lg_u32 {sW}, 4\ns_cbranch_scc1 {lw}\ns_lshl_b32 {sA}, {sPA}, 12\ns_add_u32 {sA}, {sA}, {I0R(0)}\ns_lshl_b32 {sB}, {sPA}, 11\ns_add_u32 {sB}, {sB}, {COLS - 4096}\ns_lshl_b32 {sC}, {sPA}, 7\ns_add_u32 {sC}, {sC}, {I0S(0)}")
        e(f"v_lshlrev_b32 v6, 7, {vL}\nv_add_u32 v8, {sA}, v6\nv_add_u32 v6, {sB}, v6\nv_cmp_gt_u32 vcc, 32, {vL}\nv_cndmask_b32 v6, v6, v8, vcc\nv_mov_b32 v8, {sC}\nv_cmp_gt_u32 vcc, 48, {vL}\nv_cndmask_b32 v6, v8, v6, vcc")
        e(f"buffer_load_dword v28, v6, {srd(S_WS)}, 0 offen\n{lw}:")
        e(f"s_cmp_ge_u32 {sW}, 6\ns_cbranch_scc1 {lsk}")
        e(f"s_lshl_b32 {sA}, {sCS}, 1\ns_add_u32 {sA}, {sA}, {sW}\ns_sub_u32 {sA}, {sA}, 4\ns_lshl_b32 {sA}, {sA}, 11\ns_add_u32 {sA}, {sA}, {sH}\ns_lshl_b32 {sA}, {sA}, 8\nv_lshlrev_b32 v9, 4, {vC}\nv_lshl_add_u32 v9, {vG}, 13, v9\nv_add_u32 v9, {sA}, v9")
        e(f"s_lshl_b32 {sD}, {sD}, 1\ns_sub_u32 {sD}, {sD}, {8*8448 - A_WUK}")
        if o["wukdelay"]:
            e(f"s_sleep {o['wukdelay']}")
        for q in range(16):
            e(f"s_mov_b32 {sA}, {q*32768}\ns_add_u32 m0, {sD}, {q*1056}\nbuffer_load_dwordx4 v9, {srd(S_WUK)}, {sA} offen lds")
        e(f"{lsk}:\ns_waitcnt lgkmcnt(0)")
        self.stamp("E")
        self.tags()
        for k in range(1, 4):
            e(f"v_lshrrev_b32 {TB[k]}, {8*k}, {vT}\ns_lshr_b32 {sTB[k]}, {sT}, {8*k}")
        e(f"v_and_b32 v6, 7, {vC}\nv_lshlrev_b32 v6, 2, v6\nv_lshrrev_b32 v6, v6, {vT}")
        self.pat(Q0, "v6", 0, K0)
        self.pat(Q1, "v6", 2, K1)
        lsk = self.lab("k")
        e(f"s_cmp_ge_u32 {sW}, 4\ns_cbranch_scc1 {lsk}\ns_waitcnt vmcnt(0)")
        self.stamp("Wq")
        for t in range(8):
            e(f"ds_read_b64_tr_b16 {R(WQ+4*t,2)}, v31 offset:{A_WQ+32*t}\nds_read_b64_tr_b16 {R(WQ+4*t+2,2)}, v31 offset:{A_WQ+32*t+512}")
        e(f"s_mov_b32 {sA}, 0x05040100\nv_mov_b32 v6, 0x3f803f80\nv_cmp_eq_u32 vcc, 8, {vC}")
        e(f"v_perm_b32 v20, v25, v24, {sA}\nv_perm_b32 v21, v25, v24, {sSEL}\nv_perm_b32 v22, v27, v26, {sA}\nv_perm_b32 v23, v27, v26, {sSEL}")
        for k in range(4):
            e(f"v_cndmask_b32 v{XOP+k}, v{20+k}, v6, vcc")
        lsk2 = self.lab("k")
        e(f"s_waitcnt lgkmcnt(0)\ns_branch {lsk2}\n{lsk}:\ns_cmp_ge_u32 {sW}, 6\ns_cbranch_scc1 {lsk2}")
        e(f"v_mul_u32_u24 v6, 1056, {vC}\nv_lshlrev_b32 v7, 4, {vG}\nv_add3_u32 v6, {sD}, v6, v7\ns_waitcnt vmcnt(0)")
        self.stamp("Wuk")
        for u in range(4):
            for t in range(4):
                e(f"ds_read_b128 {R(WUK+16*t+4*u,4)}, v6 offset:{t*256+u*64}")
        e(f"{lsk2}:")
        ld = self.lab("nd")
        e(f"s_lshl_b32 {sA}, s2, 3\ns_add_u32 {sA}, {sA}, {sW}\ns_cmp_lg_u32 {sA}, 7\ns_cbranch_scc1 {ld}")
        VS = 80 if not o["stamps"] else 32
        e(f"s_sleep {o['vdelay']}\ns_load_dwordx16 s[{VS}:{VS+15}], s[{S_WS}:{S_WS+1}], {VOTES}\ns_mov_b32 {sA}, 0\ns_mov_b32 {sB}, 0\ns_xor_b32 {sC}, {sT}, 0x80000000\ns_waitcnt lgkmcnt(0)")
        for k in range(16):
            e(f"s_cmp_eq_u32 s{VS+k}, {sT}\ns_addc_u32 {sA}, {sA}, 0\ns_cmp_eq_u32 s{VS+k}, {sC}\ns_addc_u32 {sB}, {sB}, 0")
        if o.get("vprobe"):
            e(f"s_mul_i32 s94, {sA if o['vprobe'] == 1 else sB}, 1000\ns_cmp_eq_u32 {sA}, {sA}\ns_memrealtime s[96:97]\ns_waitcnt lgkmcnt(0)")
        if o["stamps"]:
            for b_, slot in ((S_WG, 7), (S_WU, 8), (S_WD, 9)):
                e(f"s_load_dwordx2 s[{b_}:{b_+1}], s[0:1], {slot*8}")
            e(f"s_load_dwordx2 s[{S_OUT}:{S_OUT+1}], s[0:1], 80\ns_lshl_b32 s3, {sA}, 8\ns_or_b32 s3, s3, {sB}\nv_mov_b32 v10, s3\ns_waitcnt lgkmcnt(0)")
        e(f"s_cmp_gt_u32 {sB}, {sA}\ns_cselect_b32 {sA}, 8, 0\ns_and_b32 {sB}, {sXCC}, 7\ns_or_b32 {sA}, {sA}, {sB}")
        if o["forcec"] >= 0:
            e(f"s_andn2_b32 {sA}, {sA}, 8\ns_or_b32 {sA}, {sA}, {8*o['forcec']}")
        e(f"v_mov_b32 v9, {sA}\nv_mov_b32 v8, {vT}\nv_mov_b32 v6, {WADR}\ns_mov_b64 exec, 1\nbuffer_store_dwordx2 v[8:9], v6, {srd(S_WS)}, 0 offen sc1")
        if o["stamps"]:
            e(f"buffer_store_dword v10, v6, {srd(S_WS)}, 0 offen offset:128")
        e(f"s_mov_b64 exec, -1")
        if o.get("vprobe"):
            e("L_spin2:\ns_sleep 8\ns_memrealtime s[92:93]\ns_waitcnt lgkmcnt(0)\ns_sub_u32 s95, s92, s96\ns_cmp_lt_u32 s95, s94\ns_cbranch_scc1 L_spin2")
        e(f"{ld}:")

        for L in range(2):
            X = "'" * L
            lsk = self.lab("k")
            e(f"s_cmp_ge_u32 {sW}, 4\ns_cbranch_scc1 {lsk}")
            D = [8, 12, 16, 20, 212, 216, 220, 224]
            self.mfma(228, XOP, XOP)
            for t in range(8):
                self.mfma(D[t], XOP, WQ + 4 * t)
            e(f"s_mov_b32 {sB}, {I0R(L)-I0R(0)}\ns_mov_b32 {sC}, {I0S(L)}\nv_mov_b32 v229, {vT}")
            if L == 0:
                e(f"v_mov_b32 v6, {sXCC}\nv_bfi_b32 v228, 15, v6, v228")
            for t in range(8):
                e(f"v_bfi_b32 v{232+t}, {sFF}, {TB[t & 3]}, v{D[t]}")
            if L == 0:
                first = [f"buffer_store_dwordx4 v[232:235], {aI0ST0}, {srd(S_WS)}, 0 offen", f"buffer_store_dwordx4 v[236:239], {aOUT}, {srd(S_WS)}, 0 offen",
                         f"buffer_store_dwordx2 v[228:229], {aSTST}, {srd(S_WS)}, {sC} offen"]
                e("\n".join(first))
            else:
                self.store_intra([f"buffer_store_dwordx4 v[232:235], {aI0ST1}, {srd(S_WS)}, {sB} offen",
                                  f"buffer_store_dwordx4 v[236:239], {aI0ST1}, {srd(S_WS)}, {sB} offen offset:512",
                                  f"buffer_store_dwordx2 v[228:229], {aSTST}, {srd(S_WS)}, {sC} offen"])
            e(f"{lsk}:")
            self.stamp("P1a" + X)
            lp, lr = self.lab("i0p"), self.lab("i0r")
            e(f"s_mov_b32 {sA}, {I0R(L)}\ns_mov_b32 {sB}, {I0R(L)+32768}\ns_mov_b32 {sC}, {I0S(L)}\ns_movk_i32 {sD}, 16384")
            if L == 0:
                restore = "\n".join(x + " sc1" for x in first)
                e(f"s_movk_i32 {sE}, {o['i0tries']}")

                def stub():
                    e(f"{lr}:")
                    self.guard()
                    e(f"s_sub_u32 {sE}, {sE}, 1\ns_cmp_lg_u32 {sE}, 0\ns_cbranch_scc1 {lp}\ns_cmp_ge_u32 {sW}, 4\ns_cbranch_scc1 {lp}\ns_mov_b64 exec, -1\n{restore}\ns_branch {lp}")
                self.oob(stub)
                e(f"{lp}:")
            else:
                e(f"{lr}:")
                self.guard()
            e(f"s_mov_b64 exec, 0xffff\nbuffer_load_dwordx4 v[16:19], {aSTLD}, {srd(S_WS)}, {sC} offen sc1\ns_waitcnt vmcnt(0)")
            e(f"v_xor_b32 v7, {vT}, v17\nv_bitop3_b32 v7, v19, {vT}, v7 bitop3:0xbe\nv_cmp_ne_u32 vcc, 0, v7\ns_cbranch_vccnz {lr}")
            if L == 0:
                e(f"v_and_b32 v7, 15, v16\nv_cmp_ne_u32 vcc, {sXCC}, v7")
            e("s_mov_b64 exec, -1")
            self.stamp("I0pr" + X)
            e(f"buffer_load_dwordx4 v[8:11], {aI0LD}, {srd(S_WS)}, {sA} offen sc1\nbuffer_load_dwordx4 v[12:15], {aI0LD}, {srd(S_WS)}, {sB} offen sc1")
            if L == 0:
                e(f"buffer_load_dwordx4 v[20:23], {aCSLD}, {srd(S_WS)}, 0 offen sc1\nbuffer_load_dwordx4 v[24:27], {aCSLD}, {srd(S_WS)}, {sD} offen sc1")
                e(f"s_cmp_eq_u64 vcc, 0\ns_cselect_b32 {sPLAIN}, 1, 0")
            for k in (1, 2, 4, 8):
                e(f"v_add_f32_dpp v16, v16, v16 {DP[k]} {DPPM}\nv_add_f32_dpp v18, v18, v18 {DP[k]} {DPPM}")
            e(f"v_mul_f32 v18, {f32(1/512)}, v18\nv_mov_b32 v17, {f32(1e-5)}\nv_fmac_f32 v17, {f32(1/512)}, v16\nv_fma_f32 v17, -v18, v18, v17\nv_rsq_f32 v17, v17")
            e(f"v_readfirstlane_b32 {sMEAN}, v18\nv_readfirstlane_b32 {sRSTD}, v17")
            e("s_waitcnt vmcnt(0)")
            self.check(list(range(8, 16)) + (list(range(20, 28)) if L == 0 else []), sTB, sFF, "v6")
            e(f"s_cbranch_vccnz {lr}")
            self.stamp("I0got" + X)
            if L == 0:
                l1, l2 = self.lab("rs"), self.lab("rt")
                e(f"s_cmp_eq_u32 {sPLAIN}, 0\ns_cbranch_scc1 {l1}\n{l2}:")
                self.cold.append(f"{l1}:\ns_cmp_ge_u32 {sW}, 4\ns_cbranch_scc1 {l2}\n{restore}\ns_branch {l2}")
            self.canary_set(L, aCANW, o["lead_s1"] == 1)
            grp = [8] + ([20] if L == 0 else [])
            for b in grp:
                for k in range(4):
                    e(f"v_add_f32 v{b+k}, v{b+k}, v{b+4+k}")
            for b in grp:
                e(f"v_permlane32_swap_b32 v{b}, v{b+2}\nv_permlane32_swap_b32 v{b+1}, v{b+3}")
            for b in grp:
                e(f"v_add_f32 v{b}, v{b}, v{b+2}\nv_add_f32 v{b+1}, v{b+1}, v{b+3}")
            for b in grp:
                e(f"v_permlane16_swap_b32 v{b}, v{b+1}")
            for b in grp:
                e(f"v_add_f32 v{b}, v{b}, v{b+1}")
            e(f"v_add_f32_dpp v8, v8, v8 row_ror:8 {DPPM}")
            if L == 0:
                e(f"v_add_f32_dpp {vCS}, v20, v20 row_ror:8 {DPPM}")
            e(f"v_fma_f32 v8, -{sMEAN}, {vCS}, v8\nv_mul_f32 v8, {sRSTD}, v8\nv_cvt_pk_bf16_f32 v8, v8, v8\nds_write_b16 {aQW}, v8")
            self.bar()
            l = self.lab("p1b")
            e(f"s_and_b32 {sA}, {sW}, 6\ns_cmp_lg_u32 {sA}, 4\ns_cbranch_scc1 {l}")
            for u in range(4):
                e(f"ds_read_b128 {R(8+4*u,4)}, {aQR} offset:{u*64}")
            e(f"s_mov_b32 {sA}, {S1R(L)}\ns_mov_b32 {sB}, {f32(128**-0.5*math.log2(math.e))}")
            for u in range(4):
                e(f"s_waitcnt lgkmcnt({3-u})")
                for t in range(4):
                    self.mfma(212 + 4 * t, 8 + 4 * u, WUK + 16 * t + 4 * u, None if u == 0 else 212 + 4 * t)
            for t in range(4):
                e(f"v_mul_f32 v{24+t}, {sB}, v{212+4*t}")
            self.pack_near("v8", "v24", "v25", "v10", "v11", Q0, K0)
            self.pack_near("v9", "v26", "v27", "v12", "v13", Q1, K1)
            e(f"s_mov_b32 {sB}, {S1R(L)+8192}\nbuffer_store_dwordx2 v[8:9], {aS1ST}, {srd(S_WS)}, {sA} offen sc1\nbuffer_store_dwordx2 v[8:9], {aS1ST}, {srd(S_WS)}, {sB} offen sc1")
            e(f"{l}:")
            self.stamp("S1pub" + X)
            if L == 0:
                for b, sz in ((S_WUV, 4 << 20), (S_WO, 4 << 20), (S_OUT, 2048), (S_WG, 1409024), (S_WU, 1409024), (S_WD, 1409024)):
                    self.fin_srd(b, sz)
                if o["adelay"]:
                    e(f"s_sleep {o['adelay']}")
                e(f"s_lshl_b32 {sA}, {sCS}, 3\ns_add_u32 {sA}, {sA}, {sW}\ns_lshl_b32 {sA}, {sA}, 9\ns_add_u32 {sA}, {sA}, {sH}\ns_lshl_b32 {sA}, {sA}, 8")
                e(f"v_lshlrev_b32 v6, 13, {vG}\nv_lshl_add_u32 v6, {vC}, 4, v6\nv_add_u32 v6, {sA}, v6\ns_mul_i32 {sC}, {sW}, 4224")
                for q in range(4):
                    e(f"s_mov_b32 {sA}, {q*32768}\ns_add_u32 m0, {sC}, {A_WUV + q*1056}\nbuffer_load_dwordx4 v6, {srd(S_WUV)}, {sA} offen lds")
                e(f"v_lshlrev_b32 v7, 4, {vL}\nv_bfe_u32 {vr}, {vL}, 2, 2\nv_and_b32 {vq}, 3, {vL}\nv_mov_b32 v13, {OOB}")
                e(f"v_bfe_u32 v10, {vC}, 2, 1\nv_lshlrev_b32 v11, 4, {vG}\nv_and_b32 v9, 7, {vL}\nv_lshlrev_b32 v9, 4, v9")
                e(f"v_add_u32 {aCCR}, {A_CC - A_Q}, {aQR}")
                self.cons_pats(PC)
                e(f"v_lshlrev_b32 v6, 3, {vq}\nv_lshrrev_b32 {vTL}, v6, {vT}")
                e(f"s_and_b32 {sA}, {sH}, 15\ns_lshl_b32 {sA}, {sA}, 2\ns_add_u32 {sA}, {sA}, {sCS}\ns_lshl_b32 {sA}, {sA}, 4\ns_and_b32 {sC}, {sW}, 4\ns_add_u32 {sA}, {sA}, {sC}\ns_add_u32 {sA}, {sA}, {sW}\ns_lshl_b32 {sA}, {sA}, 11\nv_add_u32 {aS2LD}, {sA}, v7")
                e(f"s_mul_i32 {sA}, {sW}, {8*288}\nv_mul_u32_u24 v6, 288, {vG}\nv_lshl_add_u32 v6, {vC}, 4, v6\nv_add_u32 {aOSW}, {sA}, v6")
                e(f"s_lshr_b32 {sA}, {sJ}, 2\ns_lshl_b32 {sA}, {sA}, 12\ns_and_b32 {sC}, {sH}, 15\ns_lshl_b32 {sC}, {sC}, 3\ns_add_u32 {sA}, {sA}, {sC}")
                e(f"v_lshrrev_b32 v6, 5, {vL}\nv_and_b32 v12, 31, {vL}\nv_lshlrev_b32 v12, 7, v12\nv_lshl_add_u32 v12, v6, 14, v12\nv_add_u32 {aLSE}, {sA}, v12")
                e(f"v_lshlrev_b32 v6, 6, v6\nv_lshl_add_u32 v6, {vr}, 4, v6\nv_and_b32 v12, 1, {vG}\nv_lshl_add_u32 v6, v12, 3, v6\nv_lshl_add_u32 v6, {vq}, 1, v6\nv_add_u32 {aWW}, {A_WW}, v6")
                e(f"v_add_u32 v6, {A_WW}, v11\nv_add_u32 v12, {A_WW+128}, v11")
                self.sel(aWA0, f"v_cmp_eq_u32 vcc, 0, {vC}", "v12", "v6")
                e("v_add_u32 v6, 64, v6")
                self.sel(aWA1, f"v_cmp_eq_u32 vcc, 4, {vC}", "v12", "v6")
                e("s_barrier")
                e(f"s_lshl_b32 {sA}, {sJ}, 19\ns_lshl_b32 {sB}, {sW}, 16\ns_add_u32 {sA}, {sA}, {sB}\ns_lshl_b32 {sB}, {sI}, 6\ns_add_u32 {sA}, {sA}, {sB}")
                e(f"v_lshrrev_b32 v12, 2, {vL}\nv_lshlrev_b32 v6, 10, v12\nv_lshl_add_u32 v6, {vq}, 4, v6\nv_add_u32 v6, {sA}, v6\ns_lshl_b32 {sC}, {sW}, 12")
                e(f"s_and_b32 {sD}, {sI}, 1\ns_lshl_b32 {sD}, {sD}, 11\nv_mov_b32 v23, v6")

                def wo(qs):
                    for q in qs:
                        e(f"s_xor_b32 {sA}, {sD}, {q*1024}\ns_add_u32 m0, {sA}, s74\ns_lshl_b32 {sA}, {sA}, 4\nbuffer_load_dwordx4 v23, {srd(S_WO)}, {sA} offen lds")
                e(f"s_add_u32 s74, {sC}, {A_WO}")
                wo((0, 1))
                for k in range(len(PRET2)):
                    e(f"v_mov_b32 v{24+k}, {PRET2[k]}\nbuffer_load_dword v{24+k}, v{24+k}, {srd(S_WS)}, 0 offen")
                self.fin_srd(S_X, 2048)
                e(f"v_and_b32 v8, 1, {vG}\nv_lshlrev_b32 v8, 10, v8\nv_lshl_add_u32 v8, {vC}, 1, v8\nv_add_u32 v8, {sB}, v8")
                e(f"buffer_load_ushort v244, v8, {srd(S_X)}, 0 offen\nbuffer_load_ushort v245, v8, {srd(S_X)}, 0 offen offset:32")
                e(f"s_lshl_b32 {sA}, {sW}, 5\nv_mul_u32_u24 v6, 288, v12\nv_lshl_add_u32 v6, {vq}, 3, v6\nv_add_u32 {aOTR}, {sA}, v6")
                e(f"v_mul_u32_u24 v6, 160, v12\nv_lshl_add_u32 v6, {vq}, 3, v6\nv_add_u32 {aXTR}, {A_XR}, v6")
                e(f"s_add_u32 {sA}, {sA}, {A_CC}\nv_lshlrev_b32 v6, 8, {vG}\nv_lshl_add_u32 v6, {vC}, 1, v6\nv_add_u32 v6, {sA}, v6\nv_mov_b32 v12, {A_DUM}")
                self.sel(aCCW, f"v_cmp_gt_u32 vcc, 32, {vL}", "v12", "v6")
                e(f"s_lshl_b32 {sB}, {sW}, 8\ns_add_u32 {sB}, {sB}, {A_RR}\nv_lshlrev_b32 v6, 3, {vL}\nv_add_u32 v6, {sB}, v6\nv_cndmask_b32 {aRRW}, v12, v6, vcc")
                e(f"v_lshlrev_b32 v6, 3, {vL}\nv_lshrrev_b32 v8, 5, {vL}\nv_mul_u32_u24 v8, 768, v8\nv_add3_u32 {aRRR}, v6, v8, 0\nv_add_u32 {aRRR}, {A_RR}, {aRRR}\nv_lshlrev_b32 v8, 2, {vL}")
                e(f"s_lshl_b32 {sB}, {sPA}, 10\ns_lshl_b32 {sC}, {sW}, 7\ns_add_u32 {sB}, {sB}, {sC}\nv_add_u32 v6, {sB}, v8\nv_cndmask_b32 {aI1ST}, v13, v6, vcc")
                if o["warm"]:
                    for rg in (I1R(0), I1R(1)):
                        e(f"s_mov_b32 {sB}, {rg}\nbuffer_load_dword v27, {aI1ST}, {srd(S_WS)}, {sB} offen")
                    e(f"s_mov_b32 {sB}, {I0S(1)}\nbuffer_load_dword v27, {aSTST}, {srd(S_WS)}, {sB} offen")
                    e(f"s_lshl_b32 {sB}, {sPA}, 12\ns_add_u32 {sB}, {sB}, {I0R(1)}\nv_lshlrev_b32 v6, 3, v0\nbuffer_load_dword v27, v6, {srd(S_WS)}, {sB} offen")
                e(f"s_and_b32 {sB}, {sPA}, 64\ns_add_u32 {sB}, {sB}, {sPA}\ns_lshl_b32 {sB}, {sB}, 7\nv_add_u32 v6, {sB}, v8\nv_cndmask_b32 {aS3ST}, v13, v6, vcc")
                e(f"s_lshl_b32 {sB}, {sJ}, 14\ns_lshl_b32 {sC}, {sW}, 9\ns_add_u32 {sB}, {sB}, {sC}")
                e(f"v_lshlrev_b32 v6, 12, {vG}\nv_lshl_add_u32 v6, {vC}, 4, v6\nv_add_u32 {aI1LD}, {sB}, v6")
                e(f"s_lshl_b32 {sA}, {sW}, 8\ns_add_u32 {sA}, {sA}, {A_CT}\nv_lshlrev_b32 v6, 7, v10\nv_add_u32 v6, {sA}, v6\nv_add_u32 {aCTR}, v6, v11")
                e(f"v_lshrrev_b32 v8, 1, {vG}\nv_lshl_add_u32 v6, v8, 6, v6\nv_lshrrev_b32 v8, 3, {vC}\nv_lshl_add_u32 v6, v8, 5, v6\nv_lshl_add_u32 v6, {vq}, 3, v6\nv_and_b32 v8, 1, {vG}\nv_lshl_add_u32 {aCTW}, v8, 2, v6")
                e(f"v_lshrrev_b32 v8, 3, v0\nv_mul_u32_u24 v6, 160, v8\nv_add_u32 v6, v6, v9\nv_add_u32 {aXRW}, {A_XR}, v6")
                e(f"s_lshl_b32 {sA}, {sI}, 7\nv_and_b32 v6, 60, v8\nv_add_u32 v6, v6, v8\nv_lshl_add_u32 v6, v6, 11, v9\nv_add_u32 {aXLD}, {sA}, v6")
                e(f"v_cmp_gt_u32 {sMASK}, 43, v8\nv_lshrrev_b32 v8, 3, v8\nv_cmp_eq_u32 vcc, 6, v8\ns_or_b64 {sMASK}, {sMASK}, vcc")
                e(f"v_lshlrev_b32 v6, 7, v10\nv_lshl_add_u32 v6, {vG}, 4, v6\nv_add_u32 v6, {A_XS}, v6\nv_and_b32 v8, 11, {vC}")
                self.sel(aXSW, "v_cmp_eq_u32 vcc, 0, v8", "v12", "v6")
                l = self.lab("k")
                e(f"s_cmp_lg_u32 {sW}, 0\ns_cbranch_scc1 {l}\nv_cndmask_b32 {aOUT}, v13, {aXOFF}, vcc\n{l}:")
                e(f"v_mov_b32 v6, 0x3f803f80\nv_mov_b32 v8, 0\nv_mov_b32 v9, 0\nv_mov_b32 v10, 0\nv_mov_b32 v11, 0")
                self.sel(R(SEL0), f"v_cmp_eq_u32 vcc, 0, {vC}", "v8", "v6")
                self.sel(R(SEL4), f"v_cmp_eq_u32 vcc, 4, {vC}", "v8", "v6")
                for k in range(1, 4):
                    e(f"v_mov_b32 v{SEL0+k}, v{SEL0}\nv_mov_b32 v{SEL4+k}, v{SEL4}")
                e(f"v_lshlrev_b32 v6, 2, {vC}\nv_add_u32 v6, {A_WW+128}, v6\nds_write_b32 v6, v8")
                e(f"s_mov_b64 exec, {sMASK}\ns_not_b64 exec, exec\nds_write_b128 {aXRW}, v[8:11]\ns_mov_b64 exec, -1")
                e("s_barrier")
                wo((2, 3))
                if o["fhelp"] == 2:
                    self.ffn_touch(sI, "v27")
                if o["stamps"] and "Wuv" in self.names:
                    self.stamp("Wuv")
                self.place_wait(26)
                e(f"v_add_u32 {aLSE}, {sSIDE}, {aLSE}\nv_add_u32 {aXLD}, {sSIDE}, {aXLD}\nv_add_u32 {aCANR}, {sSIDE}, {aCANR}")
                e(f"s_add_u32 {sA}, {sWW}, {sJ}\ns_lshl_b32 {sA}, {sA}, 1\ns_xor_b32 {sA}, {sA}, {sWW}\ns_and_b32 {sA}, {sA}, 8\ns_lshl_b32 {sA}, {sA}, 10\nv_add_u32 {aS2LD}, {sA}, {aS2LD}")
                e("s_waitcnt lgkmcnt(0)\ns_barrier")
                e(f"v_lshlrev_b32 v244, 16, v244\nv_lshlrev_b32 v245, 16, v245\nv_mul_f32 v244, {f32(0.125)}, v244\nv_mul_f32 v245, {f32(0.125)}, v245")
                e(f"v_lshrrev_b32 v6, 1, {vG}\nv_lshl_add_u32 v6, {vr}, 2, v6\nv_mul_u32_u24 v6, 1056, v6\nv_and_b32 v7, 1, {vG}\nv_lshl_add_u32 v6, v7, 9, v6")
                e(f"s_lshl_b32 {sA}, {sW}, 5\ns_add_u32 {sA}, {sA}, {A_WUV}\nv_lshl_add_u32 v6, {vq}, 3, v6\nv_add_u32 v6, {sA}, v6")
                for u in range(4):
                    off = (16 * (u >> 1) + 2 * (u & 1)) * 1056
                    e(f"ds_read_b64_tr_b16 {R(WUV+4*u,2)}, v6 offset:{off}\nds_read_b64_tr_b16 {R(WUV+4*u+2,2)}, v6 offset:{off+256}")
                e(f"v_lshl_add_u32 v8, {vG}, 3, {vr}\nv_lshlrev_b32 v8, 6, v8\nv_lshl_add_u32 v8, {vq}, 3, v8\ns_lshl_b32 {sA}, {sW}, 12\ns_add_u32 {sA}, {sA}, {A_WO}\nv_add_u32 v8, {sA}, v8")
                for t in range(2):
                    for u in range(2):
                        off = u * 2048 + t * 32
                        e(f"ds_read_b64_tr_b16 {R(WO+8*t+4*u,2)}, v8 offset:{off}\nds_read_b64_tr_b16 {R(WO+8*t+4*u+2,2)}, v8 offset:{off+256}")
                e("s_waitcnt lgkmcnt(0)")
                self.stamp("Wo")
            else:
                l = self.lab("k")
                e(f"s_cmp_lg_u32 {sW}, 0\ns_cbranch_scc1 {l}")
                for hf in range(2):
                    for r in range(4):
                        e(f"v_mul_f32 v{244+4*hf+r}, {f32(0.125)}, v{244+4*hf+r}\nds_write_b32 {aXSW}, v{244+4*hf+r} offset:{(r&1)*4 + (8*hf + (r>>1))*8}")
                e(f"v_and_b32 v6, 31, {vL}\nv_lshlrev_b32 v6, 3, v6\nv_add_u32 v6, {A_XS}, v6\nds_read_b64 v[244:245], v6\n{l}:")
            e(f"v_lshlrev_b32 v6, 1, {vC}\nv_lshrrev_b32 v6, v6, {vT}")
            self.pat(P3, "v6", 0, K3)
            self.canary_wait(2 + L, aCANR, o["d_s2" if L == 0 else "e_s2"])
            self.stamp("S2can" + X)
            l, l0, l1 = self.lab("s2"), self.lab("s2w"), self.lab("s2x")
            e(f"s_mov_b32 {sA}, {S2R(L)}\ns_mov_b32 {sB}, {LSE(L)}\ns_cmp_eq_u32 {sW}, 0\ns_cbranch_scc1 {l0}")
            self.retry_head(l)
            e(f"buffer_load_dwordx4 v[8:11], {aS2LD}, {srd(S_WS)}, {sA} offen sc1\nbuffer_load_dwordx4 v[12:15], {aS2LD}, {srd(S_WS)}, {sA} offen offset:1024 sc1\ns_waitcnt vmcnt(0)")
            e(f"ds_write_b128 {aOSW}, v[8:11] offset:{A_OS}\nds_write_b128 {aOSW}, v[12:15] offset:{A_OS+4*288}")
            self.check(list(range(8, 16)), PC, sM, "v6")
            e(f"s_cbranch_vccnz {l}\ns_branch {l1}")
            e(f"{l0}:")
            l0 = self.lab("s2v")
            self.retry_head(l0)
            e(f"buffer_load_dwordx2 v[16:17], {aLSE}, {srd(S_WS)}, {sB} offen sc1")
            e(f"buffer_load_dwordx4 v[8:11], {aS2LD}, {srd(S_WS)}, {sA} offen sc1\nbuffer_load_dwordx4 v[12:15], {aS2LD}, {srd(S_WS)}, {sA} offen offset:1024 sc1\ns_waitcnt vmcnt(2)")
            e(f"v_xor_b32 v7, {vT}, v17\nv_mov_b32 v18, v16")
            self.allred(["v18"], "v_max_f32", ["v19"], [1, 2, 4, 8, 16])
            e("v_sub_f32 v16, v16, v18\nv_exp_f32 v16, v16\ns_nop 0\nv_mov_b32 v18, v16")
            self.allred(["v18"], "v_add_f32", ["v19"], [1, 2, 4, 8, 16])
            e(f"v_rcp_f32 v18, v18\ns_nop 0\nv_mul_f32 v16, v16, v18\nv_cvt_pk_bf16_f32 v16, v16, v16\nds_write_b16 {aWW}, v16\ns_waitcnt vmcnt(0)")
            e(f"ds_write_b128 {aOSW}, v[8:11] offset:{A_OS}\nds_write_b128 {aOSW}, v[12:15] offset:{A_OS+4*288}")
            self.check(list(range(8, 16)), PC, sM, "v6", extra="v7")
            e(f"s_cbranch_vccnz {l0}")
            e(f"{l1}:")
            self.stamp("S2got" + X)
            self.bar()
            e(f"ds_read_b128 v[8:11], {aWA0}\nds_read_b64_tr_b16 v[16:17], {aOTR} offset:{A_OS}\nds_read_b64_tr_b16 v[18:19], {aOTR} offset:{A_OS+4608}")
            e(f"ds_read_b128 v[12:15], {aWA1}\nds_read_b64_tr_b16 v[20:21], {aOTR} offset:{A_OS+9216}\nds_read_b64_tr_b16 v[22:23], {aOTR} offset:{A_OS+13824}")
            e("s_waitcnt lgkmcnt(3)")
            self.mfma(24, 8, 16)
            e("s_waitcnt lgkmcnt(0)")
            self.mfma(24, 12, 20, 24)
            e(f"s_mov_b32 {sB}, {I1R(L)}")
            e(f"v_cvt_pk_bf16_f32 v8, v24, v24\nds_write_b16 {aCCW}, v8")
            self.bar()
            for u in range(4):
                e(f"ds_read_b128 {R(8+4*u,4)}, {aCCR} offset:{u*64}")
            for u in range(4):
                e(f"s_waitcnt lgkmcnt({3-u})")
                self.mfma(24, 8 + 4 * u, WUV + 4 * u, None if u == 0 else 24)
            e(f"v_bfi_b32 v8, {sFF}, {vTL}, v24")
            self.store_intra([f"buffer_store_dword v8, {aI1ST}, {srd(S_WS)}, {sB} offen"])
            self.stamp("I1pub" + X)
            l = self.lab("i1")
            e(f"{l}:")
            self.guard()
            e(f"buffer_load_dwordx4 v[8:11], {aI1LD}, {srd(S_WS)}, {sB} offen sc1\nbuffer_load_dwordx4 v[12:15], {aI1LD}, {srd(S_WS)}, {sB} offen offset:256 sc1\ns_waitcnt vmcnt(0)")
            self.check(list(range(8, 16)), sTB, sFF, "v6")
            e(f"s_cbranch_vccnz {l}")
            self.stamp("I1got" + X)
            self.canary_set(4 + L, aCANW, o["lead_s3"] == 1)
            for k in range(4):
                e(f"v_permlane32_swap_b32 v{8+k}, v{12+k}")
            for k in range(4):
                e(f"v_add_f32 v{8+k}, v{8+k}, v{12+k}")
            e("v_permlane16_swap_b32 v8, v10\nv_permlane16_swap_b32 v9, v11\nv_add_f32 v8, v8, v10\nv_add_f32 v9, v9, v11")
            e(f"v_cvt_pk_bf16_f32 v8, v8, v9\nds_write_b32 {aCTW}, v8")
            e(f"ds_read_b128 v[8:11], {aCTR}\nds_read_b128 v[12:15], {aCTR} offset:64\ns_waitcnt lgkmcnt(1)")
            self.mfma(16, 8, WO)
            self.mfma(20, 8, WO + 8)
            e("s_waitcnt lgkmcnt(0)")
            self.mfma(16, 12, WO + 4, 16)
            self.mfma(20, 12, WO + 12, 20)
            e(f"v_mov_b32 v17, v20\nds_write_b64 {aRRW}, v[16:17]")
            self.bar()
            l = self.lab("fin")
            e(f"s_cmp_lg_u32 {sW}, 0\ns_cbranch_scc1 {l}")
            for k in range(4):
                e(f"ds_read_b64 {R(8+2*k,2)}, {aRRR} offset:{k*256}")
            e(f"s_mov_b32 {sA}, {S3R(L)}\ns_waitcnt lgkmcnt(2)\nv_add_f32 v8, v8, v10\nv_add_f32 v9, v9, v11\ns_waitcnt lgkmcnt(0)\nv_add_f32 v12, v12, v14\nv_add_f32 v13, v13, v15")
            e("v_add_f32 v8, v8, v12\nv_add_f32 v9, v9, v13\nv_mov_b32 v10, v8\nv_mov_b32 v11, v9\nv_permlane32_swap_b32 v8, v10\nv_permlane32_swap_b32 v9, v11")
            e("v_add_f32 v8, v8, v244\nv_add_f32 v9, v9, v245\nv_add_f32 v24, v8, v10\nv_add_f32 v25, v9, v11")
            self.pack_near("v8", "v24", "v25", "v10", "v11", P3, K3)
            e(f"s_mov_b32 {sB}, {S3R(L)+8192}\nbuffer_store_dword v8, {aS3ST}, {srd(S_WS)}, {sA} offen sc1\nbuffer_store_dword v8, {aS3ST}, {srd(S_WS)}, {sB} offen sc1")
            self.canary_set(4 + L, aCANW, o["lead_s3"] == 0)
            e(f"{l}:")
            self.stamp("S3pub" + X)
            if L == 1:
                l = self.lab("ex")
                e(f"s_and_b32 {sA}, {sI}, 7\ns_cmp_eq_u32 {sA}, {sJ}\ns_cbranch_scc1 {l}")
                self.dump_stamps()
                e(f"s_endpgm\n{l}:")
            e(f"s_mov_b32 {sB}, {S45(L)}\ns_cmp_eq_u32 {sW}, 6\ns_cselect_b32 {sB}, {S3R(L) - 12*16384}, {sB}")
            self.canary_wait(6 + L, aCANR, o["d_s45" if L == 0 else "e_s45"])
            l, l2 = self.lab("s45"), self.lab("s45n")
            e(f"s_mov_b64 exec, {sMASK}\ns_cbranch_execz {l2}")
            self.retry_head(l)
            e(f"buffer_load_dwordx4 v[8:11], {aXLD}, {srd(S_WS)}, {sB} offen sc1\ns_waitcnt vmcnt(0)")
            e(f"ds_write_b128 {aXRW}, v[8:11]")
            self.check(list(range(8, 12)), PC, sM, "v6")
            e(f"s_cbranch_vccnz {l}")
            e(f"{l2}:\ns_mov_b64 exec, -1")
            self.stamp("S45got" + X)
            self.bar()
            lsk = self.lab("k")
            if L == 1:
                e(f"s_cmp_eq_u32 {sW}, 0\ns_cbranch_scc1 {lsk}")
                self.dump_stamps()
                e(f"s_endpgm\n{lsk}:")
            else:
                e(f"s_cmp_ge_u32 {sW}, 4\ns_cbranch_scc1 {lsk}")
            XT = [8, 12, 16, 20, 212, 216, 220, 224]
            for n in range(8):
                off = (n >> 2) * 5120 + 32 * (n & 3)
                e(f"ds_read_b64_tr_b16 {R(XT[n],2)}, {aXTR} offset:{off}\nds_read_b64_tr_b16 {R(XT[n]+2,2)}, {aXTR} offset:{off+2560}")
                if n >= 5:
                    T = n - 5
                    e("s_waitcnt lgkmcnt(10)")
                    self.mfma(244 + 4 * (T & 1), XT[T], SEL0 if T < 2 else SEL4, None if T < 2 else 244 + 4 * (T & 1))
            for n in range(3, 8):
                T = n & 3
                e(f"s_waitcnt lgkmcnt({14-2*n})")
                self.mfma(244 + 4 * (T & 1), XT[n], SEL0 if T < 2 else SEL4, 244 + 4 * (T & 1))
            if L == 0:
                for k in range(4):
                    e(f"v_cvt_pk_bf16_f32 v{XOP+k}, v{244+2*k}, v{245+2*k}")
                for k in range(4):
                    e(f"v_or_b32 v{XOP+k}, {vONE}, v{XOP+k}")
                e(f"{lsk}:")
            else:
                e("v_cvt_pk_bf16_f32 v8, v244, v246\nv_cvt_pk_bf16_f32 v9, v245, v247\nv_cvt_pk_bf16_f32 v10, v248, v250\nv_cvt_pk_bf16_f32 v11, v249, v251")
                for k, off in enumerate((0, 32, 16, 48)):
                    e(f"buffer_store_dword v{8+k}, {aOUT}, {srd(S_OUT)}, 0 offen offset:{off}")
                e(f"s_lshl_b32 {sA}, s2, 9\nv_add_u32 v6, {sA}, v0\nv_mov_b32 v7, {OOB}\nv_cmp_eq_u32 vcc, 0, v6\nv_cndmask_b32 v6, v7, v6, vcc\nbuffer_store_dword {vT}, v6, {srd(S_WS)}, 0 offen sc1")
                self.stamp("end")
                if o["amp"]:
                    e(f"s_waitcnt vmcnt(0)\ns_memrealtime s[96:97]\ns_waitcnt lgkmcnt(0)\ns_sub_u32 s94, s96, s98\ns_mul_i32 s94, s94, {o['amp']}\nL_spin:\ns_sleep 8\ns_memrealtime s[92:93]\ns_waitcnt lgkmcnt(0)\ns_sub_u32 s95, s92, s96\ns_cmp_lt_u32 s95, s94\ns_cbranch_scc1 L_spin")
                self.dump_stamps()
                e("s_endpgm")

    def roleB(self):
        e, o = self.e, self.o
        CS_, CP, FG, FD = 32, 96, 160, 192
        (aS1LD, aQAW, aQAR, aMX, aLR, aPW, aPR, aS2ST, aLSEST, aCAN, aCANR, aS3LD, aXPW, aXPR, aRBW, aRBR, aSTW, aSTR, aHW, aHR, aS45,
         vCG, vCU, Q0, Q1, P45, aTCH) = ["v%d" % (224 + k) for k in range(27)]
        PC = ["v251", "v252", "v253", "v254"]
        sB_, sHG, sSP, sF = "s68", "s69", "s76", "s77"
        vr, vq = "v14", "v15"
        for b, slot in ((S_WUK, 3), (S_CKV, 1)):
            e(f"s_load_dwordx2 s[{b}:{b+1}], s[0:1], {slot*8}")
        e(f"v_lshrrev_b32 v6, 6, v0\nv_and_b32 {vL}, 63, v0\ns_and_b32 {sJ}, s2, 7\nv_readfirstlane_b32 {sW}, v6\ns_sub_u32 {sI}, {sI}, 16")
        e(f"v_lshrrev_b32 v6, 3, v0\nv_lshlrev_b32 v6, 13, v6\nv_and_b32 v8, 7, v0\nv_lshl_add_u32 v8, v8, 7, v6\ns_lshl_b32 {sE}, {sI}, 8\ns_add_u32 {sE}, {sE}, {sJ}\ns_lshl_b32 {sE}, {sE}, 10")
        self.fin_srd(S_WUK, 4 << 20)
        self.fin_srd(S_CKV, 8 << 20)
        e(f"s_lshr_b32 {sB_}, {sJ}, 2\ns_and_b32 {sHG}, {sI}, 1\ns_and_b32 {sA}, {sJ}, 3\ns_lshl_b32 {sA}, {sA}, 3\ns_lshr_b32 {sSP}, {sI}, 1\ns_add_u32 {sSP}, {sSP}, {sA}")
        e(f"v_lshlrev_b32 v7, 4, {vL}\ns_lshl_b32 {sA}, {sB_}, 22\ns_lshl_b32 {sB}, {sSP}, 17\ns_add_u32 {sA}, {sA}, {sB}\ns_lshl_b32 {sB}, {sW}, 14\ns_add_u32 {sA}, {sA}, {sB}\nv_add_u32 v31, {sA}, v7")
        e(f"s_mul_i32 s74, {sW}, {16*1056}\ns_lshl_b32 s75, {sHG}, 12")
        e(f"s_sub_u32 {sF}, s2, 128\ns_getreg_b32 {sXCC}, hwreg(HW_REG_XCC_ID)\ns_and_b32 {sXCC}, {sXCC}, 15")
        self.calib(sF)
        e("s_waitcnt lgkmcnt(0)")
        self.stamp('karg')
        l, l2 = self.lab("nv"), self.lab("nw")
        e(f"s_cmp_eq_u32 {sW}, 7\ns_cbranch_scc1 {l}")
        self.calib_run()
        e(f"v_mov_b32 v6, {sC}\ns_lshl_b32 {sA}, {sW}, 2\ns_add_u32 {sA}, {sA}, {B_DUM}\nv_mov_b32 v9, {sA}\nds_write_b32 v9, v6\ns_waitcnt lgkmcnt(0)\ns_barrier")
        if o["bdelay"]:
            e(f"s_sleep {o['bdelay']}")
        if o["bhelp"]:
            lh = self.lab("nh")
            e(f"s_cmp_ge_u32 {sW}, {o['bhelp']}\ns_cbranch_scc1 {lh}\nbuffer_load_dword v255, v8, {srd(S_WUK)}, {sE} offen\n{lh}:")
        self.epoch_load()
        self.fin_srd(S_WS, 0x10000000)
        e(f"s_waitcnt lgkmcnt(0)")
        self.tags()
        e(f"s_branch {l2}\n{l}:")
        self.epoch_load()
        e(f"s_getpc_b64 s[72:73]\nL_pc:\ns_sub_u32 s72, s72, L_pc-{NAME}_kernel\ns_subb_u32 s73, s73, 0\ns_lshl_b32 {sA}, {sI}, 11")
        e(f"v_lshlrev_b32 v6, 5, {vL}\nv_add_u32 v6, {sA}, v6\nv_min_u32 v6, L_code_end-{NAME}_kernel-4, v6\nglobal_load_dword v255, v6, s[72:73]")
        self.fin_srd(S_WS, 0x10000000)
        e(f"v_mov_b32 v6, {B_DUM}\ns_lshr_b32 {sA}, {sXCC}, 2\ns_lshl_b32 {sB}, {sF}, 2\ns_waitcnt lgkmcnt(0)")
        self.tags()
        e(f"s_barrier\nds_read_b128 v[8:11], v6\nds_read_b128 v[12:15], v6 offset:16\nv_mov_b32 v6, {VOTES}\ns_waitcnt lgkmcnt(0)")
        e(f"v_min3_u32 v8, v8, v10, v12\nv_min3_u32 v9, v9, v11, v13\nv_min_u32 v8, v8, v14\nv_cmp_lt_u32 vcc, v9, v8\nv_cndmask_b32 v8, 0, 1, vcc\nv_xor_b32 v8, {sA}, v8\nv_lshlrev_b32 v8, 31, v8\nv_xor_b32 v8, {vT}, v8")
        e(f"s_mov_b64 exec, 1\nbuffer_store_dword v8, v6, {srd(S_WS)}, {sB} offen sc1\ns_mov_b64 exec, -1\n{l2}:")
        for b, slot in ((S_WO, 5), (S_WG, 7), (S_WU, 8), (S_WD, 9)):
            e(f"s_load_dwordx2 s[{b}:{b+1}], s[0:1], {slot*8}")
        if o["bdelay2"]:
            e(f"s_sleep {o['bdelay2']}")
        e("s_barrier")

        def ckv(qs):
            for q in qs:
                e(f"s_xor_b32 {sA}, s75, {((q & 3) + 8*((q >> 2) & 1) + 4*(q >> 3))*1024}\ns_add_u32 m0, s74, {B_CKV + q*1056}\nbuffer_load_dwordx4 v31, {srd(S_CKV)}, {sA} offen lds")
        self.stamp("ckv0")
        ckv(range(8))
        self.stamp("ckv8")
        self.consts()
        e(f"v_and_b32 {vC}, 15, v0\nv_bfe_u32 {vG}, v0, 4, 2\nv_mov_b32 v13, {OOB}\nv_mov_b32 v12, {B_DUM}\nv_bfe_u32 {vr}, {vL}, 2, 2\nv_and_b32 {vq}, 3, {vL}")
        for b, sz in ((S_WO, 4 << 20), (S_WG, 1409024), (S_WU, 1409024), (S_WD, 1409024)):
            self.fin_srd(b, sz)
        e(f"s_lshl_b32 {sA}, {sB_}, 16\ns_lshl_b32 {sB}, {sHG}, 15\ns_add_u32 {sA}, {sA}, {sB}\ns_and_b32 {sB}, {sW}, 4\ns_add_u32 {sB}, {sB}, {sW}\ns_lshl_b32 {sB}, {sB}, 11\ns_add_u32 {sA}, {sA}, {sB}\nv_add_u32 {aS1LD}, {sA}, v7")
        e(f"s_mul_i32 {sA}, {sW}, 2112\ns_add_u32 {sA}, {sA}, {B_QA}\nv_add_u32 {aQAW}, {sA}, v7")
        e(f"v_lshlrev_b32 v11, 4, {vG}\nv_mul_u32_u24 v6, 1056, {vC}\nv_add_u32 v6, v6, v11\nv_add_u32 {aQAR}, {B_QA}, v6")
        e(f"s_mul_i32 {sA}, {sW}, {16*1056}\nv_add_u32 v30, {sA}, v6")
        e(f"v_lshlrev_b32 v6, 5, {vC}\nv_add_u32 {aMX}, {B_MX}, v6\ns_lshl_b32 {sA}, {sW}, 6\ns_add_u32 {sA}, {sA}, {B_LI}\nv_add_u32 {aLR}, {sA}, v11")
        e(f"v_mul_u32_u24 v6, 288, {vC}\nv_add_u32 v6, v6, v11\nv_add_u32 {aPR}, {B_P}, v6")
        e(f"s_lshr_b32 {sA}, {sW}, 1\ns_lshl_b32 {sA}, {sA}, 6\ns_and_b32 {sB}, {sW}, 1\ns_lshl_b32 {sC}, {sB}, 3\ns_add_u32 {sA}, {sA}, {sC}\nv_add_u32 {aPW}, {sA}, {aPR}")
        e(f"s_lshr_b32 {sC}, {sW}, 1\ns_lshl_b32 {sA}, {sC}, 15\ns_lshl_b32 {sC}, {sB_}, 14\ns_add_u32 {sA}, {sA}, {sC}")
        e(f"s_lshl_b32 {sC}, {sSP}, 8\ns_add_u32 {sA}, {sA}, {sC}\ns_lshl_b32 {sC}, {sB}, 7\ns_add_u32 {sA}, {sA}, {sC}")
        e(f"v_lshlrev_b32 v6, 19, {vG}\nv_lshl_add_u32 v6, {vC}, 3, v6\nv_add_u32 {aS2ST}, {sA}, v6")
        e(f"s_lshl_b32 {sA}, {sB_}, 2\ns_add_u32 {sA}, {sA}, {sHG}\ns_lshl_b32 {sA}, {sA}, 5\ns_add_u32 {sA}, {sA}, {sSP}\ns_lshl_b32 {sA}, {sA}, 7\nv_lshlrev_b32 v6, 3, {vC}\nv_lshl_add_u32 v6, {vG}, 13, v6\nv_add_u32 {aLSEST}, {sA}, v6")
        self.can_addr(aCAN, aCANR, sI)
        e(f"s_lshl_b32 {sA}, {sW}, 8\nv_lshlrev_b32 v6, 11, {vG}\nv_lshl_add_u32 v6, {vC}, 4, v6\nv_add_u32 {aS3LD}, {sA}, v6")
        e(f"v_bfe_u32 v10, {vC}, 2, 1\ns_add_u32 {sB}, {sA}, {B_XP}\nv_lshlrev_b32 v6, 7, v10\nv_add_u32 v6, {sB}, v6\nv_add_u32 v9, v6, v11")
        e(f"v_lshrrev_b32 v8, 3, {vC}\nv_lshl_add_u32 v6, v8, 6, v6\nv_lshl_add_u32 v6, {vq}, 4, v6\nv_lshl_add_u32 {aXPW}, {vG}, 2, v6")
        e(f"v_mov_b32 v6, {B_ONES}")
        self.sel(aXPR, f"v_cmp_eq_u32 vcc, 8, {vC}", "v9", "v6")
        e(f"s_mul_i32 {sB}, {sW}, 768\ns_add_u32 {sB}, {sB}, {B_RB}\nv_add_u32 v6, {sB}, v7\nv_lshlrev_b32 v9, 2, {vL}")
        self.sel(aRBW, f"v_cmp_gt_u32 vcc, 48, {vL}", "v12", "v6")
        e(f"v_and_b32 v8, 1, {vG}\nv_lshlrev_b32 v8, 3, v8\nv_lshl_add_u32 v8, {vC}, 4, v8\nv_lshrrev_b32 v6, 5, {vL}\nv_lshl_add_u32 v8, v6, 8, v8\nv_add_u32 {aRBR}, {B_RB}, v8")
        e(f"v_lshlrev_b32 v6, 6, v6\nv_add_u32 {aSTR}, {B_ST}, v6")
        e(f"v_lshrrev_b32 v6, 3, {vL}\nv_lshlrev_b32 v6, 5, v6\ns_lshl_b32 {sB}, {sW}, 2\ns_add_u32 {sB}, {sB}, {B_ST}\nv_add_u32 v6, {sB}, v6\ns_mov_b32 vcc_lo, 0x01100101\ns_mov_b32 vcc_hi, 0\nv_cndmask_b32 {aSTW}, v12, v6, vcc")
        e(f"s_lshl_b32 {sB}, {sW}, 7\ns_add_u32 {sB}, {sB}, {B_H}\nv_lshlrev_b32 v6, 1, {vL}\nv_add_u32 {aHW}, {sB}, v6")
        e(f"v_lshl_add_u32 v6, v10, 6, v11\nv_add_u32 {aHR}, {sB}, v6")
        e(f"s_and_b32 {sB}, {sF}, 60\ns_add_u32 {sB}, {sB}, {sF}\ns_lshl_b32 {sB}, {sB}, 11\ns_lshl_b32 {sA}, {sW}, 9\ns_add_u32 {sB}, {sB}, {sA}\nv_add_u32 {aS45}, {sB}, v9")
        e(f"v_mov_b32 v8, 0x3f803f80\nv_and_b32 v6, 31, {vL}\nv_lshlrev_b32 v6, 2, v6\nv_add_u32 v6, {B_ONES}, v6\nds_write_b32 v6, v8")
        e(f"v_lshrrev_b32 v6, 2, {vL}\nv_mul_u32_u24 v6, 1056, v6\nv_lshl_add_u32 v6, {vq}, 3, v6\ns_lshl_b32 {sA}, {sW}, 7\nv_add_u32 v28, {sA}, v6\nv_add_u32 v29, {64*1056}, v28")
        e(f"v_lshlrev_b32 {aTCH}, 7, v0\nv_cmp_gt_u32 vcc, 0x100, v0\nv_cndmask_b32 {aTCH}, v13, {aTCH}, vcc")
        e("s_waitcnt lgkmcnt(0)")
        self.stamp("E")
        self.cons_pats(PC)
        e(f"v_and_b32 v6, 7, {vC}\nv_lshlrev_b32 v6, 2, v6\nv_lshrrev_b32 v6, v6, {vT}")
        self.pat(Q0, "v6", 0)
        self.pat(Q1, "v6", 2)
        e(f"v_lshlrev_b32 v6, 1, {vC}\nv_lshrrev_b32 v6, v6, {vT}")
        self.pat(P45, "v6", 0)
        e("s_barrier")
        ckv(range(8, 16))
        for k, a in enumerate((PRET,) + PRET2):
            e(f"v_mov_b32 v{16+k}, {a}\nbuffer_load_dword v{16+k}, v{16+k}, {srd(S_WS)}, 0 offen")
        self.place_load(20)
        self.stamp('ckviss')
        for L in range(2):
            X = "'" * L
            l = self.lab("s1")
            if L == 0:
                e(f"s_lshl_b32 {sE}, {sJ}, 4\ns_add_u32 {sE}, {sE}, {sI}\ns_lshl_b32 {sE}, {sE}, 15")

            def apply_place():
                e(f"s_lshr_b32 {sA}, {sWW}, 3\ns_lshr_b32 {sB}, {sXCC}, 2\ns_xor_b32 {sA}, {sA}, {sB}\ns_and_b32 {sA}, {sA}, 1\ns_lshl_b32 {sSIDE}, {sA}, 13")
                e(f"v_add_u32 {aS1LD}, {sSIDE}, {aS1LD}\nv_add_u32 {aS3LD}, {sSIDE}, {aS3LD}\nv_add_u32 {aCANR}, {sSIDE}, {aCANR}")
                e(f"s_lshl_b32 {sA}, {sHG}, 2\ns_add_u32 {sA}, {sA}, {sWW}\nv_add_u32 v6, {sA}, {vG}\nv_lshlrev_b32 v6, 1, v6\nv_xor_b32 v6, {sWW}, v6\nv_and_b32 v6, 8, v6\nv_lshl_add_u32 {aS2ST}, v6, 10, {aS2ST}")

            def place():
                lq = self.lab("pq")
                e(f"s_waitcnt vmcnt(0)")
                for u in range(16):
                    e(f"ds_read_b128 {R(CS_+4*u,4)}, v30 offset:{B_CKV+u*64}")
                e(f"v_readfirstlane_b32 {sPLAIN}, v20\nv_readfirstlane_b32 {sWW}, v21\ns_cmp_lg_u32 {sPLAIN}, {sT}\ns_cbranch_scc1 {lq}")
                apply_place()
                e(f"{lq}:")
            self.canary_wait(L, aCANR, o["d_s1" if L == 0 else "e_s1"], pre=place if L == 0 else None, wsel=7 if L == 0 else 0)
            self.stamp("S1can" + X)
            e(f"s_mov_b32 {sA}, {S1R(L)}")
            ld = f"buffer_load_dwordx4 v[8:11], {aS1LD}, {srd(S_WS)}, {sA} offen sc1\nbuffer_load_dwordx4 v[12:15], {aS1LD}, {srd(S_WS)}, {sA} offen offset:1024 sc1"
            if L == 0:
                e(ld)
                for u in range(4):
                    for t in range(4):
                        base, off = ("v28", u * 32 * 1056) if u < 2 else ("v29", (u - 2) * 32 * 1056)
                        e(f"ds_read_b64_tr_b16 {R(CP+16*u+4*t,2)}, {base} offset:{off+32*t}\nds_read_b64_tr_b16 {R(CP+16*u+4*t+2,2)}, {base} offset:{off+32*t+16*1056}")
                l2 = self.lab("in")
                e(f"{l2}:")

                def stub():
                    e(f"{l}:")
                    self.guard()
                    e(f"s_sleep {o['backoff']}\n{ld}\ns_branch {l2}")
                self.oob(stub)
            else:
                self.retry_head(l)
                e(ld)
            e("s_waitcnt vmcnt(0)")
            e(f"ds_write_b128 {aQAW}, v[8:11]\nds_write_b128 {aQAW}, v[12:15] offset:1056")
            self.check(list(range(8, 16)), PC, sM, "v6")
            e(f"s_cbranch_vccnz {l}")
            if L == 0 and o["wohelp"] == 1:
                e(f"buffer_load_dword v255, {aTCH}, {srd(S_WO)}, {sE} offen")
            self.stamp('S1got' + X)
            self.bar()
            for u in range(4):
                e(f"ds_read_b128 {R(8+4*u,4)}, {aQAR} offset:{u*64}")
            for u in range(16):
                e(f"s_waitcnt lgkmcnt({min(3, 15-u)})")
                self.mfma(24, CS_ + 4 * u, 8 + 4 * (u & 3), None if u == 0 else 24)
                if u + 4 < 16:
                    e(f"ds_read_b128 {R(8+4*(u&3),4)}, {aQAR} offset:{(u+4)*64}")
            e(f"s_lshl_b32 {sA}, {sW}, 2\nv_add_u32 v7, {sA}, {aMX}\nv_max3_f32 v8, v24, v25, v26\nv_max_f32 v8, v8, v27")
            self.allred(["v8"], "v_max_f32", ["v9"], [16, 32])
            e(f"ds_write_b32 v7, v8")
            self.bar()
            self.stamp('Y2' + X)
            if L == 0 and o["wohelp"] == 2:
                self.ffn_touch(sI, "v255")
            if L == 0:
                l1, l2 = self.lab("lp"), self.lab("lq")
                e(f"s_cmp_lg_u32 {sPLAIN}, {sT}\ns_cbranch_scc1 {l1}\n{l2}:")

                def late():
                    e(f"{l1}:")
                    self.guard()
                    self.place_load(20)
                    e(f"s_waitcnt vmcnt(0)\nv_readfirstlane_b32 {sPLAIN}, v20\nv_readfirstlane_b32 {sWW}, v21\ns_cmp_lg_u32 {sPLAIN}, {sT}\ns_cbranch_scc1 {l1}")
                    apply_place()
                    e(f"s_branch {l2}")
                self.oob(late)
            self.canary_set(2 + L, aCAN, o['lead_s2'] == 2)
            e(f"ds_read_b128 v[8:11], {aMX}\nds_read_b128 v[12:15], {aMX} offset:16\ns_waitcnt lgkmcnt(1)")
            e("v_max3_f32 v8, v8, v9, v10\ns_waitcnt lgkmcnt(0)\nv_max3_f32 v12, v12, v13, v14\nv_max3_f32 v8, v8, v11, v15\nv_max_f32 v5, v8, v12")
            for r in range(4):
                e(f"v_sub_f32 v{24+r}, v{24+r}, v5")
            for r in range(4):
                e(f"v_exp_f32 v{24+r}, v{24+r}")
            e("v_cvt_pk_bf16_f32 v8, v24, v25\nv_cvt_pk_bf16_f32 v9, v26, v27\nv_add_f32 v10, v24, v25\nv_add_f32 v11, v26, v27")
            e(f"ds_write_b64 {aPW}, v[8:9]\nv_add_f32 v10, v10, v11")
            self.allred(["v10"], "v_add_f32", ["v11"], [16, 32])
            e(f"ds_write_b32 v7, v10 offset:512")
            self.bar()
            self.stamp('Y3' + X)
            self.canary_set(2 + L, aCAN, o['lead_s2'] == 1)
            e(f"ds_read_b128 v[24:27], {aMX} offset:512\nds_read_b128 v[28:31], {aMX} offset:528\nds_read_b128 v[8:11], {aPR}\nds_read_b128 v[12:15], {aPR} offset:64")
            e(f"v_lshlrev_b32 v7, 2, {vC}\ns_lshl_b32 {sA}, {sW}, 6\ns_add_u32 {sA}, {sA}, {B_LI}\nv_add_u32 v7, {sA}, v7\ns_waitcnt lgkmcnt(1)")
            D = [16, 20, 24, 28]
            self.mfma(D[0], 8, CP)
            self.mfma(D[1], 8, CP + 4)
            e("v_add_f32 v24, v24, v25\nv_add_f32 v26, v26, v27\nv_add_f32 v28, v28, v29\nv_add_f32 v30, v30, v31\nv_add_f32 v24, v24, v26\nv_add_f32 v28, v28, v30\nv_add_f32 v6, v24, v28")
            self.mfma(D[2], 8, CP + 8)
            self.mfma(D[3], 8, CP + 12)
            e(f"ds_read_b128 v[8:11], {aPR} offset:128\ns_waitcnt lgkmcnt(1)")
            for t in range(4):
                self.mfma(D[t], 12, CP + 16 + 4 * t, D[t])
            e(f"ds_read_b128 v[12:15], {aPR} offset:192\nds_write_b32 v7, v6")
            l = self.lab("k")
            e(f"s_cmp_lg_u32 {sW}, 0\ns_cbranch_scc1 {l}\nv_log_f32 v6, v6\nv_mov_b32 v7, {vT}\ns_mov_b32 {sA}, {LSE(L)}\nv_add_f32 v6, v6, v5\ns_mov_b32 exec_hi, 0")
            e(f"buffer_store_dwordx2 v[6:7], {aLSEST}, {srd(S_WS)}, {sA} offen sc1\ns_mov_b64 exec, -1\n{l}:")
            e("s_waitcnt lgkmcnt(2)")
            for t in range(4):
                self.mfma(D[t], 8, CP + 32 + 4 * t, D[t])
            e(f"ds_read_b128 v[8:11], {aLR}\ns_waitcnt lgkmcnt(2)")
            for t in range(4):
                self.mfma(D[t], 12, CP + 48 + 4 * t, D[t])
            e("s_waitcnt lgkmcnt(0)")
            for r in range(4):
                e(f"v_rcp_f32 v{8+r}, v{8+r}")
            for r in range(4):
                e(f"s_mov_b32 {sA}, {S2R(L) + r*131072}")
                for t in range(4):
                    e(f"v_mul_f32 v{D[t]+r}, v{D[t]+r}, v{8+r}")
                self.pack_ovw(f"v{12+2*(r&1)}", f"v{D[0]+r}", f"v{D[1]+r}", Q0)
                self.pack_ovw(f"v{13+2*(r&1)}", f"v{D[2]+r}", f"v{D[3]+r}", Q1)
                e(f"buffer_store_dwordx2 {R(12+2*(r&1),2)}, {aS2ST}, {srd(S_WS)}, {sA} offen sc1")
            self.canary_set(2 + L, aCAN, o['lead_s2'] == 0)
            self.stamp('S2pub' + X)
            lnf = self.lab("nf")
            if L == 0:
                e("s_barrier")
                if o["fhelp"]:
                    lx = self.lab("fy")
                    e(f"s_add_u32 {sE}, {sI}, 10\ns_cmp_lt_u32 {sE}, 16\ns_cbranch_scc1 {lx}\ns_cmp_ge_u32 {sE}, 24\ns_cbranch_scc1 {lx}")
                    self.ffn_touch(sE, "v255")
                    e(f"{lx}:")
            e(f"s_cmp_ge_u32 {sF}, 43\ns_cbranch_scc1 {lnf}")
            if L == 0:
                e(f"v_lshrrev_b32 v6, 2, {vL}\ns_lshl_b32 {sA}, {sW}, 6\nv_add_u32 v6, {sA}, v6\nv_mul_u32_u24 v6, 2752, v6\nv_and_b32 v15, 3, {vL}\nv_lshl_add_u32 v6, v15, 4, v6\ns_lshl_b32 {sA}, {sF}, 6\nv_add_u32 v6, {sA}, v6")
                e(f"s_lshl_b32 {sC}, {sW}, 12")
                for sr, base in ((S_WG, B_FG), (S_WU, B_FU)):
                    for q in range(4):
                        e(f"s_mov_b32 {sA}, {q*16*2752}\ns_add_u32 m0, {sC}, {base + q*1024}\nbuffer_load_dwordx4 v6, {srd(sr)}, {sA} offen lds")
                    e("s_barrier")
                e(f"v_lshrrev_b32 v6, 3, {vL}\nv_lshlrev_b32 v6, 10, v6\nv_and_b32 v7, 7, {vL}\nv_lshl_add_u32 v6, v7, 4, v6\ns_lshl_b32 {sA}, {sF}, 15\ns_lshl_b32 {sB}, {sW}, 7\ns_add_u32 {sA}, {sA}, {sB}\nv_add_u32 v6, {sA}, v6")
                for q in range(4):
                    e(f"s_mov_b32 {sA}, {q*8192}\ns_add_u32 m0, {sC}, {B_FD + q*1024}\nbuffer_load_dwordx4 v6, {srd(S_WD)}, {sA} offen lds")
                e(f"v_bfe_u32 v14, {vL}, 2, 2\nv_and_b32 v6, 1, v14\nv_lshlrev_b32 v6, 4, v6\nv_lshl_add_u32 v6, {vG}, 2, v6\nv_lshrrev_b32 v7, 1, v14\nv_add_u32 v6, v6, v7\nv_lshlrev_b32 v6, 6, v6\nv_lshl_add_u32 v6, v15, 3, v6\nv_add_u32 v6, {sC}, v6")
                e(f"v_lshl_add_u32 v7, {vG}, 3, v14\nv_lshlrev_b32 v7, 7, v7\nv_lshl_add_u32 v7, v15, 3, v7\ns_and_b32 {sA}, {sW}, 3\ns_lshl_b32 {sA}, {sA}, 13\ns_add_u32 {sA}, {sA}, {B_FD}\nv_add_u32 v7, {sA}, v7")
                e("s_waitcnt vmcnt(4)")
                for mi, base in enumerate((B_FG, B_FU)):
                    for tt in range(2):
                        for u in range(2):
                            rg = FG + 8 * (2 * tt + mi) + 4 * u
                            off = base + u * 2048 + 32 * tt
                            e(f"ds_read_b64_tr_b16 {R(rg,2)}, v6 offset:{off}\nds_read_b64_tr_b16 {R(rg+2,2)}, v6 offset:{off+128}")
                e("s_waitcnt vmcnt(0)\ns_barrier")
                for tt in range(8):
                    off = (tt >> 2) * 4096 + 32 * (tt & 3)
                    e(f"ds_read_b64_tr_b16 {R(FD+4*tt,2)}, v7 offset:{off}\nds_read_b64_tr_b16 {R(FD+4*tt+2,2)}, v7 offset:{off+512}")
                e("s_waitcnt lgkmcnt(0)")
                self.stamp('ffnW')
            self.canary_wait(4 + L, aCANR, o["d_s3" if L == 0 else "e_s3"])
            self.stamp('S3can' + X)
            l = self.lab("s3")
            e(f"s_mov_b32 {sA}, {S3R(L)}\ns_mov_b32 {sB}, {S3R(L)+16384}")
            self.retry_head(l)
            e(f"buffer_load_dwordx4 v[8:11], {aS3LD}, {srd(S_WS)}, {sA} offen sc1\nbuffer_load_dwordx4 v[12:15], {aS3LD}, {srd(S_WS)}, {sB} offen sc1\ns_waitcnt vmcnt(0)")
            self.check(list(range(8, 16)), PC, sM, "v6")
            e(f"s_cbranch_vccnz {l}")
            self.canary_set(6 + L, aCAN, o['lead_s45'] == 2)
            self.stamp('S3got' + X)
            for k in range(4):
                e(f"v_lshlrev_b32 v{16+2*k}, 16, v{8+k}\nv_and_b32 v{17+2*k}, 0xffff0000, v{8+k}\nv_lshlrev_b32 v{24+2*k}, 16, v{12+k}\nv_and_b32 v{25+2*k}, 0xffff0000, v{12+k}")
            for k in range(8):
                e(f"v_add_f32 v{16+k}, v{16+k}, v{24+k}")
            for k in range(4):
                e(f"v_permlane32_swap_b32 v{16+k}, v{20+k}")
            for k in range(4):
                e(f"v_add_f32 v{16+k}, v{16+k}, v{20+k}")
            e("v_permlane16_swap_b32 v16, v18\nv_permlane16_swap_b32 v17, v19\nv_add_f32 v16, v16, v18\nv_add_f32 v17, v17, v19")
            e(f"v_cvt_pk_bf16_f32 v6, v16, v17\nds_write_b32 {aXPW}, v6")
            e(f"ds_read_b128 v[8:11], {aXPR}\nds_read_b128 v[12:15], {aXPR} offset:64\ns_waitcnt lgkmcnt(1)")
            DD = [16, 20, 24, 28]
            for t in range(4):
                self.mfma(DD[t], 8, FG + 8 * t)
            e("s_waitcnt lgkmcnt(0)")
            for t in range(4):
                self.mfma(DD[t], 12, FG + 8 * t + 4, DD[t])
            e("v_mfma_f32_16x16x32_bf16 v[8:11], v[8:11], v[8:11], 0")
            e("v_mfma_f32_16x16x32_bf16 v[8:11], v[12:15], v[12:15], v[8:11]")
            e(f"v_mov_b32 v17, v20\nv_mov_b32 v18, v24\nv_mov_b32 v19, v28\nds_write_b128 {aRBW}, v[16:19]\nds_write_b32 {aSTW}, v8")
            self.bar()
            self.stamp('Z1' + X)
            self.canary_set(6 + L, aCAN, o['lead_s45'] == 1)
            e(f"s_cmp_ge_u32 {sW}, 4\ns_cbranch_scc1 {lnf}")
            if L == 0:
                e(f"v_lshrrev_b32 v6, 5, {vL}\nv_lshlrev_b32 v6, 8, v6\nv_sub_u32 v6, {aRBR}, v6")
                for k in range(8):
                    e(f"ds_read_b64 {R(8+2*k,2)}, v6 offset:{768*k+512}")
                e(f"s_waitcnt lgkmcnt(0)\nv_add_f32 {vCG}, v8, v10\nv_add_f32 {vCU}, v9, v11")
                for k in range(2, 8):
                    e(f"v_add_f32 {vCG}, {vCG}, v{8+2*k}\nv_add_f32 {vCU}, {vCU}, v{9+2*k}")
            e(f"ds_read_b128 v[24:27], {aSTR}\nds_read_b128 v[28:31], {aSTR} offset:16")
            for k in range(4):
                e(f"ds_read_b64 {R(8+2*k,2)}, {aRBR} offset:{768*k}")
            e("s_waitcnt lgkmcnt(4)\nv_add_f32 v24, v24, v25\nv_add_f32 v26, v26, v27\nv_add_f32 v28, v28, v29\nv_add_f32 v30, v30, v31\nv_add_f32 v24, v24, v26\nv_add_f32 v28, v28, v30\nv_add_f32 v6, v24, v28")
            e(f"ds_read_b128 v[24:27], {aSTR} offset:32\nds_read_b128 v[28:31], {aSTR} offset:48")
            for k in range(4, 8):
                e(f"ds_read_b64 {R(8+2*k,2)}, {aRBR} offset:{768*k}")
            e("s_waitcnt lgkmcnt(6)\nv_add_f32 v8, v8, v10\nv_add_f32 v9, v9, v11\nv_add_f32 v12, v12, v14\nv_add_f32 v13, v13, v15\nv_add_f32 v8, v8, v12\nv_add_f32 v9, v9, v13")
            e("s_waitcnt lgkmcnt(4)\nv_add_f32 v24, v24, v25\nv_add_f32 v26, v26, v27\nv_add_f32 v28, v28, v29\nv_add_f32 v30, v30, v31\nv_add_f32 v24, v24, v26\nv_add_f32 v28, v28, v30\nv_add_f32 v7, v24, v28")
            e(f"v_mul_f32 v7, {f32(1/512)}, v7\nv_mov_b32 v12, {f32(1e-5)}\nv_fmac_f32 v12, {f32(1/512)}, v6\nv_fma_f32 v12, -v7, v7, v12\nv_rsq_f32 v12, v12\ns_waitcnt lgkmcnt(0)")
            e("v_add_f32 v16, v16, v18\nv_add_f32 v17, v17, v19\nv_add_f32 v20, v20, v22\nv_add_f32 v21, v21, v23\nv_add_f32 v8, v8, v16\nv_add_f32 v9, v9, v17\nv_add_f32 v8, v8, v20\nv_add_f32 v9, v9, v21")
            e(f"v_fma_f32 v8, -v7, {vCG}, v8\nv_fma_f32 v9, -v7, {vCU}, v9\nv_mul_f32 v8, v8, v12\nv_mul_f32 v9, v9, v12")
            c1 = -2 * 0.7978845608028654 * math.log2(math.e)
            e(f"v_mul_f32 v10, v8, v8\nv_mov_b32 v11, {f32(c1)}\nv_fmac_f32 v11, {f32(c1*0.044715)}, v10\nv_mul_f32 v10, v11, v8\nv_exp_f32 v10, v10")
            e(f"v_mul_f32 v8, v8, v9\nv_add_f32 v10, 1.0, v10\nv_rcp_f32 v10, v10\ns_mov_b32 {sA}, {S45(L)}\ns_mov_b32 {sB}, {S45(L)+8192}\nv_mul_f32 v8, v8, v10")
            e(f"v_cvt_pk_bf16_f32 v8, v8, v8\nds_write_b16 {aHW}, v8\nds_read_b128 v[8:11], {aHR}\ns_waitcnt lgkmcnt(0)")
            for hf in range(2):
                for t in range(4):
                    self.mfma(DD[t], 8, FD + 16 * hf + 4 * t)
                self.pack_ovw("v12", "v16", "v20", P45)
                self.pack_ovw("v13", "v24", "v28", P45)
                e(f"v_permlane32_swap_b32 v12, v13\nbuffer_store_dword v12, {aS45}, {srd(S_WS)}, {sA} offen offset:{256*hf} sc1\nbuffer_store_dword v12, {aS45}, {srd(S_WS)}, {sB} offen offset:{256*hf} sc1")
            self.canary_set(6 + L, aCAN, o['lead_s45'] == 0)
            self.stamp('S45pub' + X)
            e(f"{lnf}:")
        self.dump_stamps()


if __name__ == "__main__":
    import argparse
    ap = argparse.ArgumentParser()
    ap.add_argument("-o", default=f"cdna_kernels/{NAME}.s")
    ap.add_argument("--opt", action="append", default=[])
    a = ap.parse_args()
    opts = {k: int(v) for k, v in (x.split("=") for x in a.opt)}
    open(a.o, "w").write(Gen(**opts).build())
```

```python
import re

TRANS = ("v_exp_f32", "v_log_f32", "v_rcp_f32", "v_rsq_f32", "v_sqrt_f32", "v_sin_f32", "v_cos_f32")


def regs_of(tok):
    tok = tok.strip()
    tok = re.sub(r"^-|^abs\(|\)$|^\|", "", tok).rstrip("|")
    m = re.fullmatch(r"([vsa])\[(\d+):(\d+)\]", tok)
    if m:
        return {(m.group(1), i) for i in range(int(m.group(2)), int(m.group(3)) + 1)}
    m = re.fullmatch(r"([vsa])(\d+)", tok)
    if m:
        return {(m.group(1), int(m.group(2)))}
    if tok in ("vcc", "vcc_lo", "vcc_hi"):
        return {("x", "vcc")}
    if tok in ("exec", "exec_lo", "exec_hi"):
        return {("x", "exec")}
    if tok == "m0":
        return {("x", "m0")}
    return set()


class Ins:
    def __init__(self, text):
        self.text = text
        t = text.split(";")[0].strip()
        self.op = t.split()[0]
        rest = t[len(self.op):].strip()
        ops = [o.strip() for o in rest.split(",")] if rest else []
        if ops:
            parts = ops[-1].split()
            ops[-1] = parts[0] if parts else ""
            self.mods = " ".join(parts[1:])
        else:
            self.mods = ""
        self.ops = ops
        op = self.op
        R = [regs_of(o) for o in ops]
        U = lambda xs: set().union(*xs) if xs else set()
        self.kind = "other"
        self.w, self.r = set(), set()
        self.dpp = set()
        if op.startswith("v_mfma") or op.startswith("v_smfmac"):
            self.kind = "mfma"
            self.w = R[0]
            self.a, self.b = R[1], R[2]
            self.c = R[0] if op.startswith("v_smfmac") else R[3]
            if op.startswith("v_smfmac"):
                self.b = self.b | R[3]
            self.r = self.a | self.b | self.c
            self.passes = 8 if "32x32" in op else 4
        elif op.startswith("v_"):
            self.kind = "valu"
            if "swap" in op:
                self.w = R[0] | R[1]
                self.r = R[0] | R[1]
            elif re.match(r"v_(add|sub|subrev|addc|subb)_co_", op):
                self.w = R[0] | R[1]
                self.r = U(R[2:])
            else:
                self.w = R[0]
                self.r = U(R[1:])
                if op.startswith("v_fmac") or op.startswith("v_writelane") or "dpp" in op:
                    self.r = self.r | R[0]
            if "dpp" in op:
                self.dpp = R[1]
        elif op.startswith("ds_"):
            self.kind = "ds"
            if op.startswith(("ds_write", "ds_add_f32", "ds_max_f32")):
                self.r = U(R)
            else:
                self.w = R[0]
                self.r = U(R[1:])
        elif op.startswith("buffer_") or op.startswith("global_"):
            self.kind = "vmem"
            self.lds = " lds" in (" " + self.mods)
            if "store" in op:
                self.r = U(R)
                self.data = R[0] if op.startswith("buffer_") else R[1]
                self.wide = "x3" in op or "x4" in op
            elif self.lds:
                self.r = U(R) | {("x", "m0")}
            else:
                self.w = R[0]
                self.r = U(R[1:])
        elif op.startswith("s_"):
            self.kind = "salu"
            if op in ("s_nop", "s_waitcnt", "s_barrier", "s_sleep", "s_endpgm", "s_setprio") or op.startswith("s_cbranch") or op == "s_branch":
                pass
            elif op.startswith("s_cmp") or op.startswith("s_bitcmp"):
                self.r = U(R)
            else:
                self.w = R[0]
                self.r = U(R[1:])
                if "saveexec" in op:
                    self.w = self.w | {("x", "exec")}
        self.states = int(ops[0], 0) + 1 if op == "s_nop" else 1


def need(p, c):
    n = 0
    vw = {x for x in p.w if x[0] in "va"}
    sw = {x for x in p.w if x[0] == "s" or x == ("x", "vcc")}
    if p.kind == "valu":
        if c.kind == "mfma" and vw & c.r:
            n = max(n, 2)
        if c.kind == "valu":
            if vw & c.dpp:
                n = max(n, 2)
            if "permlane" in c.op and vw & c.r:
                n = max(n, 2)
            if c.op.startswith(("v_readlane", "v_readfirstlane")) and vw & c.r:
                n = max(n, 1)
            if p.op.replace("_e32", "").replace("_e64", "") in TRANS and vw & c.r and c.op not in TRANS:
                n = max(n, 1)
            if "sdwa" in p.op and vw & (c.r | c.w):
                n = max(n, 1)
            if sw & c.r:
                n = max(n, 4 if c.op.startswith(("v_readlane", "v_writelane")) else 2)
        if c.kind == "vmem" and sw & c.r:
            n = max(n, 5)
        if c.kind == "salu" and sw & c.r:
            n = max(n, 1)
        if ("x", "exec") in p.w:
            n = max(n, 5)
    if p.kind == "mfma":
        big = {4: 8, 8: 12}[p.passes]
        if c.kind in ("valu", "ds", "vmem") and p.w & (c.r | c.w):
            n = max(n, big)
        if c.kind == "mfma":
            if p.w & (c.a | c.b):
                n = max(n, big)
            if p.w & c.c and p.w != c.c:
                n = max(n, big - 2)
        if c.kind == "valu" and p.c & c.w:
            n = max(n, {4: 3, 8: 7}[p.passes])
    if p.kind == "salu" and ("x", "m0") in p.w and c.kind == "vmem" and c.lds:
        n = max(n, 1)
    if p.kind == "vmem" and "store" in p.op and p.wide and p.data & c.w:
        n = max(n, 2 if c.kind == "valu" else 1)
    return n


def hazard_pass(lines):
    tmp, lg = [], 0
    for ln in lines:
        s = ln.strip()
        if not s or s.startswith((";", ".")) or s.endswith(":"):
            tmp.append(ln)
            continue
        c = Ins(s)
        if c.op == "s_waitcnt":
            mm = re.search(r"lgkmcnt\((\d+)\)", s)
            if mm:
                lg = min(lg, int(mm.group(1)))
        inc = 1 if c.kind == "ds" else 2 if c.op.startswith(("s_load", "s_memrealtime", "s_memtime")) else 0
        if inc and lg + inc > 14:
            tmp.append("s_waitcnt lgkmcnt(8)")
            lg = 8
        lg += inc
        tmp.append(ln)
    code, where, labels = [], [], {}
    for n, ln in enumerate(tmp):
        s = ln.strip()
        if not s or s.startswith((";", ".")):
            continue
        if s.endswith(":"):
            labels[s[:-1]] = len(code)
            continue
        code.append(Ins(s))
        where.append(n)
    preds = [[] for _ in code]
    for i, c in enumerate(code):
        if c.op not in ("s_branch", "s_endpgm") and i + 1 < len(code):
            preds[i + 1].append(i)
        if c.op == "s_branch" or c.op.startswith("s_cbranch"):
            t = labels[c.ops[0]]
            if t < len(code):
                preds[t].append(i)
    pad = [0] * len(code)
    for i, c in enumerate(code):
        worst, seen, stack = 0, {}, [(p, 0) for p in preds[i]]
        while stack:
            p, dist = stack.pop()
            if dist >= 20 or seen.get(p, 99) <= dist:
                continue
            seen[p] = dist
            worst = max(worst, need(code[p], c) - dist)
            for q in preds[p]:
                stack.append((q, dist + code[p].states + pad[p]))
        pad[i] = max(0, worst)
    out, at = [], dict(zip(where, pad))
    for n, ln in enumerate(tmp):
        k = at.get(n, 0)
        while k > 0:
            out.append(f"s_nop {min(k, 16) - 1}")
            k -= 16
        out.append(ln)
    return out
```

```python
import sys, math, struct
sys.path.insert(0, "scratch")
from asmlib import hazard_pass

NAME = "interleave_layers__compressed_kv_cla__glu_gated_geglu__decode"
f32 = lambda x: "0x%08x" % struct.unpack("<I", struct.pack("<f", x))[0]

WADR = 0x80
VOTES = 0x200
PRET = 0x800
CAN = 0x4000
LSE = lambda L: 0x8000 + L * 0x8000
S1R = lambda L: 0x18000 + L * 0x20000
S3R = lambda L: 0x58000 + L * 0x8000
S45 = lambda L: 0x68000 + L * 0x2C000
CAL = 0x100000
I0R = lambda L: 0x200000 + L * 0x80000
COLS = 0x300000
I1R = lambda L: 0x340000 + L * 0x20000
I0S = lambda L: 0x380000 + L * 0x4000
S2R = lambda L: 0x400000 + L * 0x400000
PRET2 = (0x3F0000,)
STAMP = 0xE000000
OOB = 0x7FFFFF00
A_WQ = 0
A_OS = 0
A_XR = 18432
A_WUK = 34048
A_WUV = 67840
A_WO = 101632
A_Q = 134400
A_WW = A_Q + 768
A_CC = A_WW + 256
A_CT = A_CC + 512
A_RR = A_CT + 2304
A_XS = A_RR + 2048
A_ST = A_XS + 256
A_ONE = A_ST + 64
A_DUM = A_ONE + 512
B_CKV = 0
B_QA = 135168
B_MX = 152064
B_LI = B_MX + 1024
B_P = B_LI + 512
B_ONES = B_P + 4608
B_DUM = B_ONES + 128
LDS_BYTES = B_DUM + 256
B_FG = 0
B_FU = 32768
B_FD = 65536
B_XP = 98304
B_H = B_XP + 2048
B_RB = B_H + 1024
B_ST = B_RB + 6144

S_WS, S_X, S_CKV, S_WQ, S_WUK, S_WUV, S_WO, S_WG, S_WU, S_WD, S_OUT = [4 + 4 * k for k in range(11)]
sT1, sT2, sT3, sBW = "s48", "s49", "s50", "s51"
sJ, sI, sW, sT, sM, sFF, sSEL, sGUARD, sPLAIN, sXCC, sPA, sE = ["s%d" % (52 + k) for k in range(12)]
sA, sB, sC, sD = "s64", "s65", "s66", "s67"
sH, sCS = "s68", "s69"
sMASK = "s[70:71]"
sMEAN, sRSTD = "s72", "s73"
sSIDE, sWW = "s100", "s101"
STAMP0 = 78
srd = lambda b: f"s[{b}:{b+3}]"
vL, vC, vG, vT = "v1", "v2", "v3", "v4"
DPPM = "row_mask:0xf bank_mask:0xf"
DP = {1: "quad_perm:[1,0,3,2]", 2: "quad_perm:[2,3,0,1]", 4: "row_half_mirror", 8: "row_ror:8"}

PROFILES = [
    (["start", "Wq", "P1a", "I0got", "S1pub", "Wo", "S2can", "S2got", "I1got", "S3pub", "S45got"],
     ["start", "ckv", "S1can", "S1got", "Y2", "Y3", "S2pub", "ffnW", "S3can", "S3got", "S45pub"]),
    (["start", "S45got", "P1a'", "I0got'", "S1pub'", "S2can'", "S2got'", "I1pub'", "I1got'", "S3pub'", "end"],
     ["start", "S45pub", "S1can'", "S1got'", "Y2'", "Y3'", "S2pub'", "S3can'", "S3got'", "Z1'", "S45pub'"]),
    (["start", "karg", "E", "Wq", "Wuk", "P1a", "I0pr", "I0got", "S1pub", "Wo", "S2can"],
     ["start", "karg", "E", "ckv0", "ckv8", "ckviss", "ckv", "S1can", "S1got", "Y2", "S2pub"]),
    (["start", "end", "S45got"], ["start"]),
    (["start", "S45can", "S45got", "I0got'", "S2can'", "S2got'", "I1got'", "S2can", "S2got", "I1got", "I0got"],
     ["start", "S1can", "S1got", "S3can", "S3got", "S1can'", "S1got'", "S3can'", "S3got'", "Y2", "Y3"]),
    (["start", "S45got", "P1a'", "I0got'", "Xb", "Qs", "Qw", "Qb", "S1pub'", "S2got'", "end"], ["start"] + ["x"] * 10),
    (["start", "S1pub", "Wuv", "WqF", "Wo", "S2can", "S2got", "I1pub", "I1got", "S3pub", "S45got"],
     ["start", "ckviss", "ckv", "S1can", "S1got", "Y2", "S2pub", "ffnW", "S3can", "S3got", "S45pub"]),
]


def R(a, n=1):
    return f"v{a}" if n == 1 else f"v[{a}:{a+n-1}]"


class Gen:
    def __init__(self, **o):
        self.o = dict(stamps=0, bdelay=4, bdelay2=6, adelay=2, d_s1=2, d_s2=5, d_s3=4, d_s45=3, e_s1=2, e_s2=8, e_s3=5, e_s45=4, guard=0x400000, backoff=1,
                      lead_s1=1, lead_s2=1, lead_s3=1, lead_s45=1, prof=0, i0tries=24, bhelp=4, wohelp=2, fhelp=1, amp=0, warm=1, wukdelay=20, vdelay=16, forcec=-1, i0d=1, dma1=1, dma2=1, dma45=1, smf=15, early=0, i1b=1, wqf=1, xd=1, retouch=1)
        self.o.update(o)
        for h in ('s1', 's2', 's3', 's45'):
            self.o.setdefault('e_' + h, self.o['d_' + h])
        self.L = []
        self.uid = 0
        self.nst = 0
        self.cold = []
        self.NA, self.NB = PROFILES[self.o["prof"]]
        self.names = self.NA

    def e(self, s):
        for ln in s.split("\n"):
            self.L.append(ln)

    def lab(self, p):
        self.uid += 1
        return f"L_{p}_{self.uid}"

    def stamp(self, name):
        if self.o["stamps"] and name in self.names:
            k = self.names.index(name)
            if self.o.get("gst") and name != "start":
                self.e(f"s_mov_b32 s{STAMP0+2*k}, {sGUARD}")
            else:
                self.e(f"s_memrealtime s[{STAMP0+2*k}:{STAMP0+2*k+1}]")

    def dump_stamps(self):
        if not self.o["stamps"]:
            return
        e = self.e
        e("s_waitcnt lgkmcnt(0)")
        for k in range(11):
            e(f"v_mov_b32 v{8+k}, s{STAMP0+2*k}")
        e(f"s_lshl_b32 {sA}, s2, 9\ns_lshl_b32 {sB}, {sW}, 6\ns_add_u32 {sA}, {sA}, {sB}\ns_add_u32 {sA}, {sA}, {STAMP}")
        e(f"v_mov_b32 v6, {OOB}\nv_cmp_eq_u32 vcc, 0, {vL}\nv_cndmask_b32 v6, v6, {vL}, vcc")
        e(f"v_mov_b32 v20, {sGUARD}\nv_mov_b32 v21, {sT}\nv_mov_b32 v22, {sPLAIN}\nv_mov_b32 v23, s3")
        for k in range(4):
            e(f"buffer_store_dwordx4 v[{8+4*k}:{11+4*k}], v6, {srd(S_WS)}, {sA} offen offset:{16*k}")

    def mfma(self, d, a, b, c=None):
        self.e(f"v_mfma_f32_16x16x32_bf16 {R(d,4)}, {R(a,4)}, {R(b,4)}, {'0' if c is None else R(c,4)}")

    def smf(self, d, a, b, idx):
        self.e(f"v_smfmac_f32_16x16x64_bf16 {R(d,4)}, {R(a,4)}, {R(b,8)}, {idx}")

    def bar(self):
        self.e("s_waitcnt lgkmcnt(0)\ns_barrier")

    def guard(self):
        if self.o["stamps"]:
            self.nst += 1
            self.e(f"s_movk_i32 s3, {self.nst}")
        self.e(f"s_sub_u32 {sGUARD}, {sGUARD}, 1\ns_cbranch_scc1 {'L_bail' if self.o['stamps'] else 'L_end'}")

    def sel(self, dst, cond, a, b):
        self.e(cond)
        self.e(f"v_cndmask_b32 {dst}, {a}, {b}, vcc")

    def check(self, regs, pats, mask, acc, extra=None):
        e = self.e
        e(f"v_xor_b32 {acc}, {pats[0]}, v{regs[0]}")
        for n, r in enumerate(regs[1:], 1):
            e(f"v_bitop3_b32 {acc}, v{r}, {pats[n & 3]}, {acc} bitop3:0xbe")
        e(f"v_and_or_b32 {acc}, {acc}, {mask}, {extra}" if extra else f"v_and_b32 {acc}, {mask}, {acc}")
        e(f"v_cmp_ne_u32 vcc, 0, {acc}")

    def pat(self, dst, src, sh, kk=None):
        e = self.e
        e(f"v_bfe_u32 {dst}, {src}, {sh}, 2\nv_lshl_or_b32 {dst}, {dst}, 15, {dst}")
        if kk:
            e(f"v_not_b32 {kk[1]}, {dst}\nv_and_b32 {kk[0]}, 1, {kk[1]}\nv_lshlrev_b32 {kk[0]}, 16, {kk[0]}\nv_and_b32 {kk[1]}, 0x10000, {kk[1]}")

    def cons_pats(self, P):
        self.e(f"v_and_b32 v6, 3, {vL}\nv_lshlrev_b32 v6, 3, v6\nv_lshrrev_b32 v6, v6, {vT}")
        for k in range(4):
            self.pat(P[k], "v6", 2 * k)

    def pack_near(self, dst, lo, hi, t0, t1, p, kk):
        e = self.e
        e(f"v_add_u32 {t0}, {kk[0]}, {lo}\nv_add_u32 {t1}, {kk[1]}, {hi}")
        e(f"v_perm_b32 {t0}, {t1}, {t0}, {sSEL}\nv_bfi_b32 {dst}, {sM}, {p}, {t0}")

    def pack_ovw(self, dst, lo, hi, p):
        self.e(f"v_cvt_pk_bf16_f32 {dst}, {lo}, {hi}\nv_bfi_b32 {dst}, {sM}, {p}, {dst}")

    def allred(self, regs, op, tmps, steps):
        e = self.e
        for s in steps:
            if s in DP:
                for r in regs:
                    e(f"{op}_dpp {r}, {r}, {r} {DP[s]} {DPPM}")
            else:
                for r, t in zip(regs, tmps):
                    e(f"v_mov_b32 {t}, {r}")
                for r, t in zip(regs, tmps):
                    e(f"v_permlane{s}_swap_b32 {r}, {t}")
                for r, t in zip(regs, tmps):
                    e(f"{op} {r}, {r}, {t}")

    def can_addr(self, vw, vr, sidx):
        e = self.e
        e(f"s_lshl_b32 {sA}, {sidx}, 9\nv_add_u32 v6, {sA}, v0\ns_lshl_b32 {sA}, {sJ}, 7\ns_add_u32 {sA}, {sA}, {CAN}\nv_lshl_add_u32 v8, v0, 13, {sA}\nv_cmp_gt_u32 vcc, 2, v6\nv_cndmask_b32 {vw}, v13, v8, vcc")
        e(f"v_and_b32 v6, 7, v0\nv_lshlrev_b32 v6, 7, v6\nv_add_u32 {vr}, {CAN}, v6")

    def place_load(self, v):
        self.e(f"v_mov_b32 v{v}, {WADR}\nbuffer_load_dwordx2 v[{v}:{v+1}], v{v}, {srd(S_WS)}, 0 offen sc1")

    def place_wait(self, v, first=False):
        e = self.e
        l, l2 = self.lab("pw"), self.lab("px")
        if not first:
            self.place_load(v)
        e(f"{l2}:\ns_waitcnt vmcnt(0)\nv_readfirstlane_b32 {sA}, v{v}\nv_readfirstlane_b32 {sWW}, v{v+1}\ns_cmp_lg_u32 {sA}, {sT}\ns_cbranch_scc1 {l}")

        def stub():
            e(f"{l}:")
            self.guard()
            e("s_sleep 2")
            self.place_load(v)
            e(f"s_branch {l2}")
        self.oob(stub)
        e(f"s_lshr_b32 {sA}, {sWW}, 3\ns_lshr_b32 {sB}, {sXCC}, 2\ns_xor_b32 {sA}, {sA}, {sB}\ns_and_b32 {sA}, {sA}, 1\ns_lshl_b32 {sSIDE}, {sA}, 13")

    def canary_wait(self, idx, vr, delay, pre=None, wsel=0):
        e = self.e
        l, l2 = self.lab("can"), self.lab("cb")
        e(f"s_cmp_lg_u32 {sW}, {wsel}\ns_cbranch_scc1 {l2}\ns_movk_i32 {sA}, {idx*1024}\ns_mov_b64 exec, 0xff")
        e(f"{l}:")
        self.guard()
        e(f"buffer_load_dword v6, {vr}, {srd(S_WS)}, {sA} offen sc1\ns_waitcnt vmcnt(0)")
        e(f"v_cmp_ne_u32 vcc, v6, {vT}\ns_cbranch_vccnz {l}\ns_mov_b64 exec, -1")
        if delay:
            e(f"s_sleep {delay}")
        e(f"{l2}:")
        if pre:
            pre()
            self.stamp("ckv")
        e("s_barrier")

    def canary_set(self, idx, vw, cond=True):
        if cond:
            self.e(f"s_movk_i32 {sD}, {idx*1024}\nbuffer_store_dword {vT}, {vw}, {srd(S_WS)}, {sD} offen sc1")

    def oob(self, fn):
        keep, self.L = self.L, []
        fn()
        self.cold.append("\n".join(self.L))
        self.L = keep

    def retry_head(self, l, mult=1):
        l2 = self.lab("in")
        self.e(f"{l2}:")

        def stub():
            self.e(f"{l}:")
            self.guard()
            self.e(f"s_sleep {mult*self.o['backoff']}\ns_branch {l2}")
        self.oob(stub)

    def store_intra(self, ins):
        e = self.e
        l1, l2 = self.lab("sc"), self.lab("sd")
        e(f"s_cmp_eq_u32 {sPLAIN}, 0\ns_cbranch_scc1 {l1}")
        for i in ins:
            e(i)
        e(f"{l2}:")
        self.cold.append(f"{l1}:\n" + "\n".join(i + " sc1" for i in ins) + f"\ns_branch {l2}")

    def consts(self):
        self.e(f"s_mov_b32 {sM}, 0x00010001\ns_movk_i32 {sFF}, 0xff\ns_mov_b32 {sSEL}, 0x07060302\ns_mov_b32 {sGUARD}, {self.o['guard']}")

    def fin_srd(self, b, size):
        self.e(f"s_mov_b32 s{b+2}, {size}\ns_mov_b32 s{b+3}, 0x20000")

    def epoch_load(self):
        self.e(f"s_load_dword {sT}, s[{S_WS}:{S_WS+1}], 0")

    def calib(self, sidx):
        e = self.e
        e(f"s_lshl_b32 {sA}, {sidx}, 2\ns_lshr_b32 {sB}, {sW}, 1\ns_add_u32 {sA}, {sA}, {sB}\ns_lshr_b32 {sB}, {sA}, 6\ns_lshl_b32 {sB}, {sB}, 1\ns_and_b32 {sC}, {sW}, 1\ns_add_u32 {sB}, {sB}, {sC}\ns_lshl_b32 {sB}, {sB}, 6")
        e(f"s_and_b32 {sA}, {sA}, 63\ns_add_u32 {sA}, {sA}, {sB}\ns_lshl_b32 {sA}, {sA}, 7\ns_add_u32 {sA}, {sA}, {CAL}")

    def calib_run(self):
        self.e(f"s_memtime s[72:73]\ns_load_dword {sB}, s[{S_WS}:{S_WS+1}], {sA}\ns_waitcnt lgkmcnt(0)\ns_memtime s[70:71]\ns_waitcnt lgkmcnt(0)\ns_sub_u32 {sC}, s70, s72")

    def ffn_touch(self, sK, dst):
        e = self.e
        lx, l1, l2 = self.lab("fx"), self.lab("fa"), self.lab("fb")
        e(f"s_cmp_ge_u32 {sW}, 4\ns_cbranch_scc1 {lx}\ns_mul_i32 {sA}, {sK}, 43\ns_lshr_b32 {sA}, {sA}, 8\ns_mul_i32 {sB}, {sA}, 6\ns_sub_u32 {sB}, {sK}, {sB}\ns_lshl_b32 {sB}, {sB}, 3\ns_add_u32 {sB}, {sB}, {sJ}")
        e(f"s_cmp_ge_u32 {sB}, 43\ns_cselect_b32 {sB}, 0x8000, {sB}\ns_cmp_eq_u32 {sA}, 3\ns_cbranch_scc1 {l1}")
        e(f"v_mul_u32_u24 v6, 2752, v0\ns_lshl_b32 {sB}, {sB}, 6\ns_cmp_eq_u32 {sA}, 1\ns_cselect_b32 {sC}, 0, {256*2752}\ns_add_u32 {sB}, {sB}, {sC}\ns_cmp_eq_u32 {sA}, 0\ns_cbranch_scc1 {l2}")
        e(f"buffer_load_dword {dst}, v6, {srd(S_WU)}, {sB} offen\ns_branch {lx}\n{l2}:\nbuffer_load_dword {dst}, v6, {srd(S_WG)}, {sB} offen\ns_branch {lx}")
        e(f"{l1}:\nv_lshlrev_b32 v6, 7, v0\ns_lshl_b32 {sB}, {sB}, 15\nbuffer_load_dword {dst}, v6, {srd(S_WD)}, {sB} offen\n{lx}:")

    def tags(self):
        self.e(f"s_add_u32 {sT}, {sT}, 1\nv_mov_b32 {vT}, {sT}")

    def build(self):
        e = self.e
        K = NAME + "_kernel"
        e(f"; @launch grid=(256,1,1) block=(512,1,1) lds={LDS_BYTES}")
        e('.amdgcn_target "amdgcn-amd-amdhsa--gfx950"\n.text')
        e(f".globl {K}\n.p2align 8\n.type {K},@function\n{K}:")
        self.stamp('start')
        if self.o["amp"]:
            e("s_memrealtime s[98:99]")
        e("s_cmp_ge_u32 s2, 256\ns_cbranch_scc1 L_end")
        e(f"s_load_dwordx2 s[{S_WS}:{S_WS+1}], s[0:1], 96")
        e(f"s_lshr_b32 {sI}, s2, 3\ns_cmp_ge_u32 {sI}, 16\ns_cbranch_scc1 L_roleB")
        self.roleA()
        e("L_roleB:")
        self.names = self.NB
        self.roleB()
        e("s_endpgm")
        for c in self.cold:
            e(c)
        if self.o["stamps"]:
            e("L_bail:\ns_mov_b64 exec, -1")
            e(f"s_lshl_b32 {sA}, s2, 14\ns_add_u32 {sA}, {sA}, 0xC000000\nv_lshlrev_b32 v6, 5, v0\nbuffer_store_dwordx4 v[8:11], v6, {srd(S_WS)}, {sA} offen\nbuffer_store_dwordx4 v[12:15], v6, {srd(S_WS)}, {sA} offen offset:16\ns_waitcnt vmcnt(0)")
            self.dump_stamps()
        e("L_end:\ns_endpgm\nL_code_end:")
        body = hazard_pass(self.L)
        body.append(f""".section .rodata,"a"
.p2align 6
.amdhsa_kernel {K}
  .amdhsa_next_free_vgpr 256
  .amdhsa_next_free_sgpr 102
  .amdhsa_accum_offset 256
  .amdhsa_group_segment_fixed_size 0
  .amdhsa_kernarg_size 104
  .amdhsa_user_sgpr_count 2
  .amdhsa_user_sgpr_kernarg_segment_ptr 1
  .amdhsa_system_sgpr_workgroup_id_x 1
.end_amdhsa_kernel""")
        return "\n".join(body) + "\n"

    def roleA(self):
        e, o = self.e, self.o
        WQ, WUK, WUV, WO, XOP, SEL0, SEL4 = 32, 32, 128, 144, 160, 164, 168
        vCS, vONE, vTL = "v172", "v173", "v28"
        (aXOFF, aWROW, aI0ST0, aI0ST1, aI0LD, aCSLD, aSTLD, aSTST, aQW, aQR, aS1ST, aS2LD, aOSW, aLSE, aWW, aWA0, aWA1,
         aOTR, aCCW, aCCR, aI1ST, aI1LD, aCTW, aCTR, aRRW, aRRR, aS3ST, aXLD, aXRW, aXTR, aXSW, aCANW, aCANR, aOUT) = ["v%d" % (174 + k) for k in range(34)]
        TB = [vT, "v208", "v209", "v210"]
        PC = ["v240", "v241", "v242", "v243"]
        PS, aS2B, PX = ["v96", "v97", "v98", "v99"], "v100", ["v104", "v105", "v106", "v107"]
        vIDX, P1, PD = "v108", "v109", ["v104", "v105", "v106", "v107"]
        if o["i1b"]:
            WUV = 112
        KG = {(0, 0): 112, (1, 0): 120, (2, 0): 128, (3, 0): 136, (0, 1): 160, (1, 1): 244, (2, 1): 32, (3, 1): 40}
        wuk = lambda t, u: KG[t, u >> 1] + 4 * (u & 1)
        Q0, Q1, K0, K1 = "v252", "v253", ("v254", "v255"), ("v211", "v5")
        P3, K3 = "v30", ("v31", "v29")
        sTB = [sT, sT1, sT2, sT3]
        vr, vq = "v14", "v15"
        e(f"s_load_dwordx2 s[{S_WQ}:{S_WQ+1}], s[0:1], 16\ns_load_dwordx2 s[{S_WUK}:{S_WUK+1}], s[0:1], 24\ns_load_dwordx2 s[{S_X}:{S_X+1}], s[0:1], 0")
        e(f"v_lshrrev_b32 v6, 6, v0\nv_and_b32 {vC}, 15, v0\ns_and_b32 {sJ}, s2, 7\nv_readfirstlane_b32 {sW}, v6\nv_bfe_u32 {vG}, v0, 4, 2\nv_lshlrev_b32 v7, 4, {vC}")
        self.fin_srd(S_WQ, 4 << 20)
        self.fin_srd(S_WUK, 4 << 20)
        e(f"s_and_b32 {sBW}, {sI}, 3\ns_lshl_b32 {sH}, {sJ}, 2\ns_add_u32 {sH}, {sH}, {sBW}\ns_lshr_b32 {sCS}, {sI}, 2\ns_mul_i32 {sD}, {sW}, 8448")
        ljn = self.lab("jn")
        e(f"s_cmp_ge_u32 {sW}, 4\ns_cbranch_scc1 {ljn}")
        e(f"s_lshl_b32 {sA}, {sI}, 8\ns_add_u32 {sA}, {sA}, {sJ}\ns_lshl_b32 {sA}, {sA}, 2\ns_add_u32 {sA}, {sA}, {sW}\ns_lshl_b32 {sA}, {sA}, 8\nv_lshl_add_u32 v9, {vG}, 15, v7\nv_add_u32 v9, {sA}, v9")
        e(f"v_bfe_u32 v10, {vC}, 2, 1\nv_lshlrev_b32 v6, 10, v10\nv_lshl_add_u32 v6, {vG}, 2, v6\ns_lshl_b32 {sB}, {sI}, 6\nv_add_u32 {aXOFF}, {sB}, v6")
        self.fin_srd(S_X, 2048)
        e("s_waitcnt lgkmcnt(0)")
        self.stamp("karg")
        for k, off in enumerate((0, 32, 16, 48)):
            e(f"buffer_load_dword v{24+k}, {aXOFF}, {srd(S_X)}, 0 offen offset:{off}")
        for q in range(8):
            e(f"s_mov_b32 {sA}, {((q & 3) + 16*(q >> 2))*8192}\ns_add_u32 m0, {sD}, {A_WQ + q*1056}\nbuffer_load_dwordx4 v9, {srd(S_WQ)}, {sA} offen lds")
        e(f"{ljn}:\ns_waitcnt lgkmcnt(0)")
        self.epoch_load()
        for b, slot in ((S_WUV, 4), (S_WO, 5), (S_OUT, 10)):
            e(f"s_load_dwordx2 s[{b}:{b+1}], s[0:1], {slot*8}")
        self.fin_srd(S_WS, 0x10000000)
        e(f"v_and_b32 {vL}, 63, v0\nv_mov_b32 v13, {OOB}")
        self.consts()
        e(f"s_getreg_b32 {sXCC}, hwreg(HW_REG_XCC_ID)\ns_and_b32 {sXCC}, {sXCC}, 15\ns_lshl_b32 {sPA}, {sJ}, 4\ns_add_u32 {sPA}, {sPA}, {sI}\ns_mov_b32 {sPLAIN}, 0")
        e(f"v_lshlrev_b32 v7, 4, {vL}\nv_bfe_u32 v10, {vC}, 2, 1\nv_lshlrev_b32 v11, 4, {vG}\nv_bfe_u32 {vr}, {vL}, 2, 2\nv_and_b32 {vq}, 3, {vL}")
        e(f"v_and_b32 v6, 1, {vr}\nv_lshlrev_b32 v6, 2, v6\nv_lshrrev_b32 v8, 1, {vr}\nv_add_u32 v6, v6, v8\nv_and_b32 v8, 1, {vG}\nv_lshl_add_u32 v6, v8, 1, v6\nv_mul_u32_u24 v6, 1056, v6")
        e(f"v_lshrrev_b32 v8, 1, {vG}\nv_lshl_add_u32 v6, v8, 8, v6\nv_lshl_add_u32 v6, {vq}, 3, v6\nv_add_u32 v31, {sD}, v6")
        e(f"s_lshl_b32 {sA}, {sPA}, 2\ns_add_u32 {sA}, {sA}, {sW}\ns_lshl_b32 {sB}, {sA}, 10\ns_add_u32 {sB}, {sB}, {I0R(0)}\nv_add_u32 v6, {sB}, v7\nv_cmp_gt_u32 vcc, 32, {vL}")
        e(f"s_lshl_b32 {sB}, {sA}, 9\ns_add_u32 {sB}, {sB}, {COLS - 512}\nv_cndmask_b32 {aI0ST1}, v13, v6, vcc\nv_add_u32 v6, {sB}, v7")
        e(f"s_and_b32 {sA}, {sH}, 24\ns_add_u32 {sA}, {sA}, {sH}\ns_lshl_b32 {sA}, {sA}, 2\ns_add_u32 {sA}, {sA}, {sCS}\ns_lshl_b32 {sB}, {sA}, 1\ns_and_b32 {sC}, {sW}, 1\ns_add_u32 {sB}, {sB}, {sC}\ns_lshl_b32 {sB}, {sB}, 7")
        e(f"v_lshlrev_b32 v8, 16, {vG}\nv_lshl_add_u32 v8, {vC}, 3, v8\nv_add_u32 v8, {sB}, v8\nv_cndmask_b32 {aS1ST}, v13, v8, vcc")
        self.sel(aI0ST0, f"v_cmp_eq_u32 vcc, 2, {vG}", aI0ST1, "v6")
        e(f"v_add_u32 v6, 256, {aI0ST0}\nv_add_u32 v8, 512, {aI0ST0}\nv_cndmask_b32 {aOUT}, v8, v6, vcc")
        e(f"v_lshrrev_b32 v6, 3, {vL}\nv_sub_u32 v8, {vL}, v6\nv_add_u32 v8, 3, v8\ns_mov_b32 vcc_lo, 0x01100101\ns_mov_b32 vcc_hi, 0\nv_cndmask_b32 v6, v8, v6, vcc")
        e(f"s_lshl_b32 {sA}, {sPA}, 7\nv_lshl_add_u32 v6, v6, 3, {sA}\ns_cmp_eq_u32 {sW}, 0\ns_cselect_b32 vcc_lo, 0x01103fff, 0\nv_cndmask_b32 {aSTST}, v13, v6, vcc")
        e(f"v_lshrrev_b32 v8, 3, {vL}\nv_and_b32 v9, 7, {vL}\nv_lshlrev_b32 v9, 4, v9")
        e(f"s_lshl_b32 {sA}, {sJ}, 6\ns_add_u32 {sA}, {sA}, {sBW}\ns_lshl_b32 {sB}, {sA}, 3\ns_add_u32 {sB}, {sB}, {sW}\ns_lshl_b32 {sB}, {sB}, 7")
        e(f"v_lshl_add_u32 v6, v8, 12, v9\nv_add_u32 {aI0LD}, {sB}, v6")
        e(f"s_lshr_b32 {sC}, {sW}, 2\ns_lshl_b32 {sA}, {sA}, 1\ns_add_u32 {sA}, {sA}, {sC}\ns_lshl_b32 {sA}, {sA}, 1\ns_and_b32 {sE}, {sW}, 1\ns_add_u32 {sA}, {sA}, {sE}\ns_lshl_b32 {sA}, {sA}, 7\ns_add_u32 {sA}, {sA}, {COLS}")
        e(f"v_lshl_add_u32 v6, v8, 11, v9\nv_add_u32 {aCSLD}, {sA}, v6")
        e(f"s_bfe_u32 {sB}, {sW}, 0x10001\ns_lshl_b32 {sA}, {sJ}, 7\ns_add_u32 {sA}, {sA}, {sB}\ns_lshl_b32 {sA}, {sA}, 4\nv_lshlrev_b32 v6, 7, {vC}\nv_add_u32 {aSTLD}, {sA}, v6")
        e(f"v_and_b32 v6, 1, {vC}\nv_mul_u32_u24 {vIDX}, 0xaaaa, v6\nv_add_u32 {vIDX}, 0x4444, {vIDX}")
        if o["smf"] & 1:
            e(f"s_lshl_b32 {sA}, {sB}, 2\ns_add_u32 {sA}, {sA}, {sC}\ns_lshl_b32 {sA}, {sA}, 3\ns_add_u32 {sA}, {sA}, {sE}\ns_lshl_b32 {sA}, {sA}, 3\ns_add_u32 {sA}, {sA}, {A_Q}")
            e(f"v_bfe_u32 v8, {vL}, 1, 1\nv_lshl_add_u32 v8, v8, 7, v11\nv_lshl_add_u32 v8, v6, 1, v8\nv_and_b32 v12, 4, {vL}\nv_add3_u32 {aQW}, v8, v12, {sA}")
            e(f"v_lshl_add_u32 v6, v6, 7, v11\nv_lshl_add_u32 v6, v10, 8, v6\nv_add_u32 {aQR}, {A_Q}, v6")
        else:
            e(f"s_lshl_b32 {sA}, {sB}, 1\ns_add_u32 {sA}, {sA}, {sC}\ns_lshl_b32 {sA}, {sA}, 3\ns_add_u32 {sA}, {sA}, {sE}\ns_lshl_b32 {sA}, {sA}, 4\ns_add_u32 {sA}, {sA}, {A_Q}")
            e(f"v_lshrrev_b32 v6, 3, v9\nv_lshl_add_u32 v6, {vG}, 5, v6\nv_add_u32 {aQW}, {sA}, v6")
            e(f"v_lshl_add_u32 v6, v10, 8, v11\nv_add_u32 {aQR}, {A_Q}, v6")
        e(f"v_mov_b32 v6, 0x3f803f80\nv_cmp_eq_u32 vcc, 8, {vC}\nv_mov_b32 v8, 0\nv_cndmask_b32 {vONE}, v8, v6, vcc")
        self.can_addr(aCANW, aCANR, sI)
        lsk = self.lab("k")
        e(f"s_cmp_lt_u32 {sW}, 4\ns_cbranch_scc1 {lsk}")
        lw = self.lab("k")
        e(f"s_cmp_lg_u32 {sW}, 4\ns_cbranch_scc1 {lw}\ns_lshl_b32 {sA}, {sPA}, 12\ns_add_u32 {sA}, {sA}, {I0R(0)}\ns_lshl_b32 {sB}, {sPA}, 11\ns_add_u32 {sB}, {sB}, {COLS - 4096}\ns_lshl_b32 {sC}, {sPA}, 7\ns_add_u32 {sC}, {sC}, {I0S(0)}")
        e(f"v_lshlrev_b32 v6, 7, {vL}\nv_add_u32 v8, {sA}, v6\nv_add_u32 v6, {sB}, v6\nv_cmp_gt_u32 vcc, 32, {vL}\nv_cndmask_b32 v6, v6, v8, vcc\nv_mov_b32 v8, {sC}\nv_cmp_gt_u32 vcc, 48, {vL}\nv_cndmask_b32 v6, v8, v6, vcc")
        e(f"buffer_load_dword v28, v6, {srd(S_WS)}, 0 offen\n{lw}:")
        e(f"s_cmp_ge_u32 {sW}, 6\ns_cbranch_scc1 {lsk}")
        e(f"s_lshl_b32 {sA}, {sCS}, 1\ns_add_u32 {sA}, {sA}, {sW}\ns_sub_u32 {sA}, {sA}, 4\ns_lshl_b32 {sA}, {sA}, 11\ns_add_u32 {sA}, {sA}, {sH}\ns_lshl_b32 {sA}, {sA}, 8\nv_lshlrev_b32 v9, 4, {vC}\nv_lshl_add_u32 v9, {vG}, 13, v9\nv_add_u32 v9, {sA}, v9")
        e(f"s_lshl_b32 {sD}, {sD}, 1\ns_sub_u32 {sD}, {sD}, {8*8448 - A_WUK}")
        if o["wukdelay"]:
            e(f"s_sleep {o['wukdelay']}")
        for q in range(16):
            e(f"s_mov_b32 {sA}, {q*32768}\ns_add_u32 m0, {sD}, {q*1056}\nbuffer_load_dwordx4 v9, {srd(S_WUK)}, {sA} offen lds")
        e(f"{lsk}:\ns_waitcnt lgkmcnt(0)")
        self.stamp("E")
        self.tags()
        for k in range(1, 4):
            e(f"v_lshrrev_b32 {TB[k]}, {8*k}, {vT}\ns_lshr_b32 {sTB[k]}, {sT}, {8*k}")
        e(f"v_and_b32 v6, 7, {vC}\nv_lshlrev_b32 v6, 2, v6\nv_lshrrev_b32 v6, v6, {vT}")
        self.pat(Q0, "v6", 0, K0)
        self.pat(Q1, "v6", 2, K1)
        lsk = self.lab("k")
        e(f"s_cmp_ge_u32 {sW}, 4\ns_cbranch_scc1 {lsk}\ns_waitcnt vmcnt(0)")
        self.stamp("Wq")
        for t in range(8):
            e(f"ds_read_b64_tr_b16 {R(WQ+4*t,2)}, v31 offset:{A_WQ+32*t}\nds_read_b64_tr_b16 {R(WQ+4*t+2,2)}, v31 offset:{A_WQ+32*t+512}")
        e(f"s_mov_b32 {sA}, 0x05040100\nv_mov_b32 v6, 0x3f803f80\nv_cmp_eq_u32 vcc, 8, {vC}")
        e(f"v_perm_b32 v20, v25, v24, {sA}\nv_perm_b32 v21, v25, v24, {sSEL}\nv_perm_b32 v22, v27, v26, {sA}\nv_perm_b32 v23, v27, v26, {sSEL}")
        for k in range(4):
            e(f"v_cndmask_b32 v{XOP+k}, v{20+k}, v6, vcc")
        lsk2 = self.lab("k")
        e(f"s_waitcnt lgkmcnt(0)\ns_branch {lsk2}\n{lsk}:\ns_cmp_ge_u32 {sW}, 6\ns_cbranch_scc1 {lsk2}")
        e(f"v_mul_u32_u24 v6, 1056, {vC}\nv_lshlrev_b32 v7, 4, {vG}\nv_add3_u32 v6, {sD}, v6, v7\ns_waitcnt vmcnt(0)")
        self.stamp("Wuk")
        for u in range(4):
            for t in range(4):
                e(f"ds_read_b128 {R(wuk(t, u),4)}, v6 offset:{t*256+u*64}")
        e(f"{lsk2}:")
        ld = self.lab("nd")
        e(f"s_lshl_b32 {sA}, s2, 3\ns_add_u32 {sA}, {sA}, {sW}\ns_cmp_lg_u32 {sA}, 7\ns_cbranch_scc1 {ld}")
        e(f"s_sleep {o['vdelay']}\ns_load_dwordx16 s[32:47], s[{S_WS}:{S_WS+1}], {VOTES}")
        VS = list(range(32, 48))
        if not o["stamps"]:
            e(f"s_load_dwordx16 s[80:95], s[{S_WS}:{S_WS+1}], {VOTES+64}")
            VS += list(range(80, 96))
        e(f"s_mov_b32 {sA}, 0\ns_mov_b32 {sB}, 0\ns_xor_b32 {sC}, {sT}, 0x80000000\ns_waitcnt lgkmcnt(0)")
        for k in VS:
            e(f"s_cmp_eq_u32 s{k}, {sT}\ns_addc_u32 {sA}, {sA}, 0\ns_cmp_eq_u32 s{k}, {sC}\ns_addc_u32 {sB}, {sB}, 0")
        e(f"s_load_dwordx2 s[{S_OUT}:{S_OUT+1}], s[0:1], 80")
        if o.get("vprobe"):
            e(f"s_mul_i32 s94, {sA if o['vprobe'] == 1 else sB}, 1000\ns_cmp_eq_u32 {sA}, {sA}\ns_memrealtime s[96:97]\ns_waitcnt lgkmcnt(0)")
        if o["stamps"]:
            e(f"s_lshl_b32 s3, {sA}, 8\ns_or_b32 s3, s3, {sB}\nv_mov_b32 v10, s3")
        e(f"s_cmp_gt_u32 {sB}, {sA}\ns_cselect_b32 {sA}, 8, 0\ns_and_b32 {sB}, {sXCC}, 7\ns_or_b32 {sA}, {sA}, {sB}")
        if o["forcec"] >= 0:
            e(f"s_andn2_b32 {sA}, {sA}, 8\ns_or_b32 {sA}, {sA}, {8*o['forcec']}")
        e(f"v_mov_b32 v9, {sA}\nv_mov_b32 v8, {vT}\nv_mov_b32 v6, {WADR}\ns_mov_b64 exec, 1\nbuffer_store_dwordx2 v[8:9], v6, {srd(S_WS)}, 0 offen sc1")
        if o["stamps"]:
            e(f"buffer_store_dword v10, v6, {srd(S_WS)}, 0 offen offset:128")
        e(f"s_mov_b64 exec, -1\ns_waitcnt lgkmcnt(0)")
        if o.get("vprobe"):
            e("L_spin2:\ns_sleep 8\ns_memrealtime s[92:93]\ns_waitcnt lgkmcnt(0)\ns_sub_u32 s95, s92, s96\ns_cmp_lt_u32 s95, s94\ns_cbranch_scc1 L_spin2")
        e(f"{ld}:")

        for L in range(2):
            X = "'" * L
            if L == 1 and o["wqf"]:
                for k in range(16):
                    e(f"v_mov_b32 v{212+k}, 0")
                for k in range(4):
                    e(f"v_mov_b32 v{16+k}, 0")
                lsk, l = self.lab("k"), self.lab("xg")
                e(f"s_mov_b32 {sA}, {I0R(1)}\ns_cmp_ge_u32 {sW}, 4\ns_cbranch_scc1 {lsk}")
                if o["xd"]:
                    e(f"s_sleep {o['xd']}")
                e(f"{l}:")
                self.guard()
                e(f"buffer_load_dwordx4 v[8:11], {aI0LD}, {srd(S_WS)}, {sA} offen sc1\ns_waitcnt vmcnt(0)")
                e(f"v_cvt_pk_bf16_f32 v12, v8, v9\nv_cvt_pk_bf16_f32 v13, v10, v11\nds_write_b32 {aCSLD}, v12\nds_write_b32 {aCSLD}, v13 offset:576")
                self.check(list(range(8, 12)), sTB, sFF, "v6")
                e(f"s_cbranch_vccnz {l}\n{lsk}:")
                self.stamp("I0got'")
                self.bar()
                self.stamp("Xb")
                XB = [20, 24, 228, 232]
                for U in range(4):
                    e(f"ds_read_b128 {R(XB[U],4)}, {aSTLD} offset:{U*64}")
                fill = [f"v_add_f32_dpp v6, v6, v6 {DP[k]} {DPPM}\nv_add_f32_dpp v7, v7, v7 {DP[k]} {DPPM}" for k in (1, 2, 4)]
                fill += ["v_mov_b32 v12, v6\nv_mov_b32 v13, v7", "v_permlane16_swap_b32 v6, v12\nv_permlane16_swap_b32 v7, v13", "v_add_f32 v6, v6, v12\nv_add_f32 v7, v7, v13\nv_mov_b32 v12, v6\nv_mov_b32 v13, v7",
                         "v_permlane32_swap_b32 v6, v12\nv_permlane32_swap_b32 v7, v13", "v_add_f32 v6, v6, v12\nv_add_f32 v7, v7, v13"]

                def qpass(stats):
                    for U in range(8):
                        e(f"s_waitcnt lgkmcnt({min(3, 7-U)})")
                        self.smf(16, XB[U & 3], 32 + 8 * U, vIDX)
                        if U < 4:
                            e(f"ds_read_b128 {R(XB[U],4)}, {aSTLD} offset:{(U+4)*64}")
                        if stats:
                            e(fill[U])
                    self.stamp("Qs")
                lsk, lsk2 = self.lab("k"), self.lab("k")
                e(f"s_cmp_ge_u32 {sW}, 4\ns_cbranch_scc1 {lsk}")
                e("v_add_f32 v7, v8, v9\nv_mul_f32 v6, v8, v8\nv_add_f32 v12, v10, v11\nv_fmac_f32 v6, v9, v9\nv_add_f32 v7, v7, v12\nv_fmac_f32 v6, v10, v10\nv_fmac_f32 v6, v11, v11")
                qpass(True)
                e(f"ds_write_b64 {aSTST}, v[6:7]\ns_branch {lsk2}\n{lsk}:")
                qpass(False)
                e(f"s_cmp_ge_u32 {sW}, 6\ns_cbranch_scc1 {lsk2}")
                for t in range(2, 4):
                    for u in range(2, 4):
                        e(f"ds_read_b128 {R(wuk(t, u),4)}, {aI0ST0} offset:{t*256+u*64}")
                e(f"{lsk2}:\nv_add_f32 v16, v16, v17\nv_add_f32 v18, v18, v19\nv_cvt_pk_bf16_f32 v16, v16, v18\ns_mov_b32 exec_hi, 0")
                e(f"ds_write_b16 {aQW}, v16\ns_mov_b64 exec, 0xffff\nds_write_b16_d16_hi {aQW}, v16 offset:512\ns_mov_b64 exec, -1")
                self.stamp("Qw")
                self.bar()
                self.stamp("Qb")
                self.canary_set(L, aCANW, o["lead_s1"] == 1)
                l = self.lab("p1b")
                e(f"s_and_b32 {sA}, {sW}, 6\ns_cmp_lg_u32 {sA}, 4\ns_cbranch_scc1 {l}")
                e(f"ds_read_b128 v[8:11], {aQR}\nds_read_b128 v[12:15], {aQR} offset:64\nds_read_b128 v[16:19], {aI0ST1}\nds_read_b128 v[20:23], {aI0ST1} offset:16")
                e(f"s_mov_b32 {sA}, {S1R(L)}\ns_mov_b32 {sB}, {f32(128**-0.5*math.log2(math.e))}")
                for u in range(2):
                    e(f"s_waitcnt lgkmcnt({3-u})")
                    for t in range(4):
                        self.smf(212 + 4 * t, 8 + 4 * u, KG[t, u], vIDX)
                e("s_waitcnt lgkmcnt(0)\nv_add_f32 v16, v16, v18\nv_add_f32 v17, v17, v19\nv_add_f32 v20, v20, v22\nv_add_f32 v21, v21, v23\nv_add_f32 v16, v16, v20\nv_add_f32 v17, v17, v21")
                e(f"v_mul_f32 v17, {f32(1/512)}, v17\nv_mov_b32 v18, {f32(1e-5)}\nv_fmac_f32 v18, {f32(1/512)}, v16\nv_fma_f32 v18, -v17, v17, v18\nv_rsq_f32 v18, v18\ns_nop 0\nv_mul_f32 v18, {sB}, v18")
                for t in range(4):
                    e(f"v_add_f32 v{24+t}, v{212+4*t}, v{213+4*t}\nv_add_f32 v{20+t}, v{214+4*t}, v{215+4*t}")
                for t in range(4):
                    e(f"v_fma_f32 v{24+t}, -v17, v{20+t}, v{24+t}")
                for t in range(4):
                    e(f"v_mul_f32 v{24+t}, v18, v{24+t}")
            else:
                lsk = self.lab("k")
                e(f"s_cmp_ge_u32 {sW}, 4\ns_cbranch_scc1 {lsk}")
                D = [8, 12, 16, 20, 212, 216, 220, 224]
                self.mfma(228, XOP, XOP)
                for t in range(8):
                    self.mfma(D[t], XOP, WQ + 4 * t)
                e(f"s_mov_b32 {sB}, {I0R(L)-I0R(0)}\ns_mov_b32 {sC}, {I0S(L)}\nv_mov_b32 v229, {vT}")
                if L == 0:
                    e(f"v_mov_b32 v6, {sXCC}\nv_bfi_b32 v228, 15, v6, v228")
                for t in range(8):
                    e(f"v_bfi_b32 v{232+t}, {sFF}, {TB[t & 3]}, v{D[t]}")
                if L == 0:
                    first = [f"buffer_store_dwordx4 v[232:235], {aI0ST0}, {srd(S_WS)}, 0 offen", f"buffer_store_dwordx4 v[236:239], {aOUT}, {srd(S_WS)}, 0 offen",
                             f"buffer_store_dwordx2 v[228:229], {aSTST}, {srd(S_WS)}, {sC} offen"]
                    e("\n".join(first))
                else:
                    self.store_intra([f"buffer_store_dwordx4 v[232:235], {aI0ST1}, {srd(S_WS)}, {sB} offen",
                                      f"buffer_store_dwordx4 v[236:239], {aI0ST1}, {srd(S_WS)}, {sB} offen offset:512",
                                      f"buffer_store_dwordx2 v[228:229], {aSTST}, {srd(S_WS)}, {sC} offen"])
                e(f"{lsk}:")
                self.stamp("P1a" + X)
                lp, lr, lm = self.lab("i0p"), self.lab("i0r"), self.lab("i0m")
                e(f"s_mov_b32 {sA}, {I0R(L)}\ns_mov_b32 {sB}, {I0R(L)+32768}\ns_mov_b32 {sC}, {I0S(L)}\ns_movk_i32 {sD}, 16384")
                probe = f"s_mov_b64 exec, 0xffff\nbuffer_load_dwordx4 v[16:19], {aSTLD}, {srd(S_WS)}, {sC} offen sc1"
                ptest = f"v_xor_b32 v7, {vT}, v17\nv_bitop3_b32 v7, v19, {vT}, v7 bitop3:0xbe\nv_cmp_ne_u32 vcc, 0, v7"
                if L == 0:
                    restore = "\n".join(x + " sc1" for x in first)
                    e(f"s_movk_i32 {sE}, {o['i0tries']}")

                def stub():
                    e(f"{lr}:")
                    self.guard()
                    if L == 0:
                        e(f"s_sub_u32 {sE}, {sE}, 1\ns_cmp_lg_u32 {sE}, 0\ns_cbranch_scc1 {lp}\ns_cmp_ge_u32 {sW}, 4\ns_cbranch_scc1 {lp}\ns_mov_b64 exec, -1\n{restore}\n{lp}:")
                    e(f"{probe}\ns_waitcnt vmcnt(0)\n{ptest}\ns_cbranch_vccnz {lr}\ns_branch {lm}")
                self.oob(stub)
                if L == 0 or o["i0d"] < 0:
                    e(f"s_branch {lr}")
                else:
                    e("s_barrier")
                    if o["i0d"]:
                        e(f"s_sleep {o['i0d']}")
                e(f"{lm}:\n{probe}\ns_mov_b64 exec, -1")
                self.stamp("I0pr" + X)
                e(f"buffer_load_dwordx4 v[8:11], {aI0LD}, {srd(S_WS)}, {sA} offen sc1\nbuffer_load_dwordx4 v[12:15], {aI0LD}, {srd(S_WS)}, {sB} offen sc1")
                if L == 0:
                    e(f"buffer_load_dwordx4 v[20:23], {aCSLD}, {srd(S_WS)}, 0 offen sc1\nbuffer_load_dwordx4 v[24:27], {aCSLD}, {srd(S_WS)}, {sD} offen sc1")
                e(f"s_waitcnt vmcnt({4 if L == 0 else 2})\ns_mov_b64 exec, 0xffff\n{ptest}\ns_cbranch_vccnz {lr}")
                if L == 0:
                    e(f"v_and_b32 v7, 15, v16\nv_cmp_ne_u32 vcc, {sXCC}, v7\ns_cmp_eq_u64 vcc, 0\ns_cselect_b32 {sPLAIN}, 1, 0")
                e("s_mov_b64 exec, -1")
                for k in (1, 2, 4, 8):
                    e(f"v_add_f32_dpp v16, v16, v16 {DP[k]} {DPPM}\nv_add_f32_dpp v18, v18, v18 {DP[k]} {DPPM}")
                e(f"v_mul_f32 v18, {f32(1/512)}, v18\nv_mov_b32 v17, {f32(1e-5)}\nv_fmac_f32 v17, {f32(1/512)}, v16\nv_fma_f32 v17, -v18, v18, v17\nv_rsq_f32 v17, v17")
                e(f"v_readfirstlane_b32 {sMEAN}, v18\nv_readfirstlane_b32 {sRSTD}, v17")
                e("s_waitcnt vmcnt(0)")
                self.check(list(range(8, 16)) + (list(range(20, 28)) if L == 0 else []), sTB, sFF, "v6")
                e(f"s_cbranch_vccnz {lr}")
                self.stamp("I0got" + X)
                if L == 0:
                    l1, l2 = self.lab("rs"), self.lab("rt")
                    e(f"s_cmp_eq_u32 {sPLAIN}, 0\ns_cbranch_scc1 {l1}\n{l2}:")
                    self.cold.append(f"{l1}:\ns_cmp_ge_u32 {sW}, 4\ns_cbranch_scc1 {l2}\n{restore}\ns_branch {l2}")
                self.canary_set(L, aCANW, o["lead_s1"] == 1)
                grp = [8] + ([20] if L == 0 else [])
                for b in grp:
                    for k in range(4):
                        e(f"v_add_f32 v{b+k}, v{b+k}, v{b+4+k}")
                for b in grp:
                    e(f"v_permlane32_swap_b32 v{b}, v{b+2}\nv_permlane32_swap_b32 v{b+1}, v{b+3}")
                for b in grp:
                    e(f"v_add_f32 v{b}, v{b}, v{b+2}\nv_add_f32 v{b+1}, v{b+1}, v{b+3}")
                for b in grp:
                    e(f"v_permlane16_swap_b32 v{b}, v{b+1}")
                for b in grp:
                    e(f"v_add_f32 v{b}, v{b}, v{b+1}")
                e(f"v_add_f32_dpp v8, v8, v8 row_ror:8 {DPPM}")
                if L == 0:
                    e(f"v_add_f32_dpp {vCS}, v20, v20 row_ror:8 {DPPM}")
                e(f"v_fma_f32 v8, -{sMEAN}, {vCS}, v8\nv_mul_f32 v8, {sRSTD}, v8\nv_cvt_pk_bf16_f32 v8, v8, v8\nds_write_b16 {aQW}, v8")
                self.bar()
                l = self.lab("p1b")
                e(f"s_and_b32 {sA}, {sW}, 6\ns_cmp_lg_u32 {sA}, 4\ns_cbranch_scc1 {l}")
                for u in range(2 if o["smf"] & 1 else 4):
                    e(f"ds_read_b128 {R(8+4*u,4)}, {aQR} offset:{u*64}")
                e(f"s_mov_b32 {sA}, {S1R(L)}\ns_mov_b32 {sB}, {f32(128**-0.5*math.log2(math.e))}")
                if o["smf"] & 1:
                    for t in range(4):
                        e(f"v_mov_b32 v{212+4*t}, 0\nv_mov_b32 v{213+4*t}, 0")
                    for u in range(2):
                        e(f"s_waitcnt lgkmcnt({1-u})")
                        for t in range(4):
                            self.smf(212 + 4 * t, 8 + 4 * u, KG[t, u], vIDX)
                    for t in range(4):
                        e(f"v_add_f32 v{24+t}, v{212+4*t}, v{213+4*t}")
                    for t in range(4):
                        e(f"v_mul_f32 v{24+t}, {sB}, v{24+t}")
                else:
                    for u in range(4):
                        e(f"s_waitcnt lgkmcnt({3-u})")
                        for t in range(4):
                            self.mfma(212 + 4 * t, 8 + 4 * u, wuk(t, u), None if u == 0 else 212 + 4 * t)
                    for t in range(4):
                        e(f"v_mul_f32 v{24+t}, {sB}, v{212+4*t}")
            self.pack_near("v8", "v24", "v25", "v10", "v11", Q0, K0)
            self.pack_near("v9", "v26", "v27", "v12", "v13", Q1, K1)
            e(f"s_mov_b32 {sB}, {S1R(L)+8192}\nbuffer_store_dwordx2 v[8:9], {aS1ST}, {srd(S_WS)}, {sA} offen sc1\nbuffer_store_dwordx2 v[8:9], {aS1ST}, {srd(S_WS)}, {sB} offen sc1")
            e(f"{l}:")
            self.stamp("S1pub" + X)
            if L == 0:
                for b, sz in ((S_WUV, 4 << 20), (S_WO, 4 << 20), (S_OUT, 2048)):
                    self.fin_srd(b, sz)
                if o["adelay"]:
                    e(f"s_sleep {o['adelay']}")
                e(f"s_lshl_b32 {sA}, {sCS}, 3\ns_add_u32 {sA}, {sA}, {sW}\ns_lshl_b32 {sA}, {sA}, 9\ns_add_u32 {sA}, {sA}, {sH}\ns_lshl_b32 {sA}, {sA}, 8")
                e(f"v_lshlrev_b32 v6, 13, {vG}\nv_lshl_add_u32 v6, {vC}, 4, v6\nv_add_u32 v6, {sA}, v6\ns_mul_i32 {sC}, {sW}, 4224")
                for q in range(4):
                    e(f"s_mov_b32 {sA}, {q*32768}\ns_add_u32 m0, {sC}, {A_WUV + q*1056}\nbuffer_load_dwordx4 v6, {srd(S_WUV)}, {sA} offen lds")
                e(f"v_lshlrev_b32 v7, 4, {vL}\nv_bfe_u32 {vr}, {vL}, 2, 2\nv_and_b32 {vq}, 3, {vL}\nv_mov_b32 v13, {OOB}")
                e(f"v_bfe_u32 v10, {vC}, 2, 1\nv_lshlrev_b32 v11, 4, {vG}\nv_and_b32 v9, 7, {vL}\nv_lshlrev_b32 v9, 4, v9")
                if o["smf"] & 2:
                    e(f"v_and_b32 v6, 1, {vC}\nv_lshl_add_u32 v6, v6, 7, v11\nv_lshl_add_u32 v6, v10, 8, v6\nv_add_u32 {aCCR}, {A_CC}, v6")
                else:
                    e(f"v_lshl_add_u32 v6, v10, 8, v11\nv_add_u32 {aCCR}, {A_CC}, v6")
                self.cons_pats(PC)
                e(f"v_lshlrev_b32 v6, 3, {vq}\nv_lshrrev_b32 {vTL}, v6, {vT}")
                e(f"s_and_b32 {sA}, {sH}, 15\ns_lshl_b32 {sA}, {sA}, 2\ns_add_u32 {sA}, {sA}, {sCS}\ns_lshl_b32 {sA}, {sA}, 4\ns_and_b32 {sC}, {sW}, 4\ns_add_u32 {sA}, {sA}, {sC}\ns_add_u32 {sA}, {sA}, {sW}\ns_lshl_b32 {sA}, {sA}, 11\nv_add_u32 {aS2LD}, {sA}, v7")
                if o["dma2"]:
                    e(f"v_lshlrev_b32 v6, 5, {vG}\nv_xor_b32 {aS2LD}, v6, {aS2LD}\nv_xor_b32 {aS2B}, 128, {aS2LD}\ns_lshl_b32 s75, {sW}, 11\nv_add_u32 {aOSW}, s75, v7")
                    e(f"v_lshlrev_b32 v6, 1, {vG}\nv_xor_b32 v6, v6, {vL}\nv_and_b32 v6, 3, v6\nv_lshlrev_b32 v6, 3, v6\nv_lshrrev_b32 v6, v6, {vT}")
                    for k in range(4):
                        self.pat(PS[k], "v6", 2 * k)
                else:
                    e(f"s_mul_i32 {sA}, {sW}, {8*288}\nv_mul_u32_u24 v6, 288, {vG}\nv_lshl_add_u32 v6, {vC}, 4, v6\nv_add_u32 {aOSW}, {sA}, v6")
                e(f"s_lshr_b32 {sA}, {sJ}, 2\ns_lshl_b32 {sA}, {sA}, 12\ns_and_b32 {sC}, {sH}, 15\ns_lshl_b32 {sC}, {sC}, 3\ns_add_u32 {sA}, {sA}, {sC}")
                e(f"v_lshrrev_b32 v6, 5, {vL}\nv_and_b32 v12, 31, {vL}\nv_lshlrev_b32 v12, 7, v12\nv_lshl_add_u32 v12, v6, 14, v12\nv_add_u32 {aLSE}, {sA}, v12")
                e(f"v_lshlrev_b32 v6, 6, v6\nv_lshl_add_u32 v6, {vr}, 4, v6\nv_and_b32 v12, 1, {vG}\nv_lshl_add_u32 v6, v12, 3, v6\nv_lshl_add_u32 v6, {vq}, 1, v6\nv_add_u32 {aWW}, {A_WW}, v6")
                e(f"v_add_u32 v6, {A_WW}, v11\nv_add_u32 v12, {A_WW+128}, v11")
                self.sel(aWA0, f"v_cmp_eq_u32 vcc, 0, {vC}", "v12", "v6")
                e("v_add_u32 v6, 64, v6")
                self.sel(aWA1, f"v_cmp_eq_u32 vcc, 4, {vC}", "v12", "v6")
                e("s_barrier")
                e(f"s_lshl_b32 {sA}, {sJ}, 19\ns_lshl_b32 {sB}, {sW}, 16\ns_add_u32 {sA}, {sA}, {sB}\ns_lshl_b32 {sB}, {sI}, 6\ns_add_u32 {sA}, {sA}, {sB}")
                e(f"v_lshrrev_b32 v12, 2, {vL}\nv_lshlrev_b32 v6, 10, v12\nv_lshl_add_u32 v6, {vq}, 4, v6\nv_add_u32 v6, {sA}, v6\ns_lshl_b32 {sC}, {sW}, 12")
                e(f"s_and_b32 {sD}, {sI}, 1\ns_lshl_b32 {sD}, {sD}, 11\nv_mov_b32 v23, v6")

                def wo(qs):
                    for q in qs:
                        e(f"s_xor_b32 {sA}, {sD}, {q*1024}\ns_add_u32 m0, {sA}, s74\ns_lshl_b32 {sA}, {sA}, 4\nbuffer_load_dwordx4 v23, {srd(S_WO)}, {sA} offen lds")
                e(f"s_add_u32 s74, {sC}, {A_WO}")
                wo((0, 1))
                for k in range(len(PRET2)):
                    e(f"v_mov_b32 v{24+k}, {PRET2[k]}\nbuffer_load_dword v{24+k}, v{24+k}, {srd(S_WS)}, 0 offen")
                self.fin_srd(S_X, 2048)
                e(f"v_and_b32 v8, 1, {vG}\nv_lshlrev_b32 v8, 10, v8\nv_lshl_add_u32 v8, {vC}, 1, v8\nv_add_u32 v8, {sB}, v8")
                e(f"buffer_load_ushort v18, v8, {srd(S_X)}, 0 offen\nbuffer_load_ushort v19, v8, {srd(S_X)}, 0 offen offset:32")
                e(f"s_lshl_b32 {sA}, {sW}, 5")
                if o["dma2"]:
                    e(f"v_and_b32 v6, 7, v12\nv_xor_b32 v6, {sW}, v6\nv_lshlrev_b32 v6, 5, v6\nv_lshl_add_u32 v6, v12, 8, v6\nv_lshl_add_u32 {aOTR}, {vq}, 3, v6")
                else:
                    e(f"v_mul_u32_u24 v6, 288, v12\nv_lshl_add_u32 v6, {vq}, 3, v6\nv_add_u32 {aOTR}, {sA}, v6")
                if o["dma45"]:
                    e(f"v_bfe_u32 v6, v12, 1, 2\nv_lshlrev_b32 v6, 5, v6\nv_lshl_add_u32 v6, v12, 7, v6\nv_lshl_add_u32 v6, {vq}, 3, v6\nv_add_u32 {aXTR}, {A_XR}, v6")
                    for T in range(1, 4):
                        e(f"v_xor_b32 v{100+T}, {32*T}, {aXTR}")
                else:
                    e(f"v_mul_u32_u24 v6, 160, v12\nv_lshl_add_u32 v6, {vq}, 3, v6\nv_add_u32 {aXTR}, {A_XR}, v6")
                if o["smf"] & 2:
                    e(f"s_lshl_b32 {sA}, {sW}, 4\ns_add_u32 {sA}, {sA}, {A_CC}\nv_bfe_u32 v6, {vC}, 1, 1\nv_lshlrev_b32 v6, 7, v6\nv_lshl_add_u32 v6, {vG}, 8, v6\nv_and_b32 v8, 12, {vC}\nv_add_u32 v6, v6, v8\nv_and_b32 v8, 1, {vC}\nv_lshl_add_u32 v6, v8, 1, v6\nv_add_u32 v6, {sA}, v6\nv_mov_b32 v12, {A_DUM}")
                else:
                    e(f"s_add_u32 {sA}, {sA}, {A_CC}\nv_lshlrev_b32 v6, 8, {vG}\nv_lshl_add_u32 v6, {vC}, 1, v6\nv_add_u32 v6, {sA}, v6\nv_mov_b32 v12, {A_DUM}")
                self.sel(aCCW, f"v_cmp_gt_u32 vcc, 32, {vL}", "v12", "v6")
                e(f"s_lshl_b32 {sB}, {sW}, 8\ns_add_u32 {sB}, {sB}, {A_RR}\nv_lshlrev_b32 v6, 3, {vL}\nv_add_u32 v6, {sB}, v6\nv_cndmask_b32 {aRRW}, v12, v6, vcc")
                e(f"v_lshlrev_b32 v6, 3, {vL}\nv_lshrrev_b32 v8, 5, {vL}\nv_mul_u32_u24 v8, 768, v8\nv_add3_u32 {aRRR}, v6, v8, 0\nv_add_u32 {aRRR}, {A_RR}, {aRRR}\nv_lshlrev_b32 v8, 2, {vL}")
                if o["i1b"]:
                    e(f"v_and_b32 v16, 1, {vC}\nv_lshlrev_b32 v16, 2, v16\nv_bfe_u32 v17, {vC}, 1, 2\nv_and_or_b32 v17, {vC}, 8, v17\nv_add_u32 v16, v16, v17")
                    e(f"s_lshl_b32 {sB}, {sPA}, 2\ns_add_u32 {sB}, {sB}, {sW}\ns_lshl_b32 {sB}, {sB}, 7\nv_lshl_add_u32 v6, {vG}, 4, v16\nv_lshl_add_u32 v6, v6, 2, {sB}\nv_cndmask_b32 {aI1ST}, v13, v6, vcc")
                    e(f"v_lshlrev_b32 v16, 1, v16\nv_lshrrev_b32 v16, v16, {vT}")
                    self.pat(P1, "v16", 0)
                else:
                    e(f"s_lshl_b32 {sB}, {sPA}, 10\ns_lshl_b32 {sC}, {sW}, 7\ns_add_u32 {sB}, {sB}, {sC}\nv_add_u32 v6, {sB}, v8\nv_cndmask_b32 {aI1ST}, v13, v6, vcc")
                if o["warm"]:
                    for rg in (I1R(0), I1R(1)):
                        e(f"s_mov_b32 {sB}, {rg}\nbuffer_load_dword v27, {aI1ST}, {srd(S_WS)}, {sB} offen")
                    if o["wqf"]:
                        e(f"s_lshl_b32 {sB}, {sPA}, 8\ns_add_u32 {sB}, {sB}, {I0R(1)}\nbuffer_load_dword v27, v8, {srd(S_WS)}, {sB} offen")
                    else:
                        e(f"s_mov_b32 {sB}, {I0S(1)}\nbuffer_load_dword v27, {aSTST}, {srd(S_WS)}, {sB} offen")
                        e(f"s_lshl_b32 {sB}, {sPA}, 12\ns_add_u32 {sB}, {sB}, {I0R(1)}\nv_lshlrev_b32 v6, 3, v0\nbuffer_load_dword v27, v6, {srd(S_WS)}, {sB} offen")
                e(f"s_and_b32 {sB}, {sPA}, 64\ns_add_u32 {sB}, {sB}, {sPA}\ns_lshl_b32 {sB}, {sB}, 7\nv_add_u32 v6, {sB}, v8\nv_cndmask_b32 {aS3ST}, v13, v6, vcc")
                if o["i1b"]:
                    e(f"s_lshl_b32 {sB}, {sJ}, 13\ns_lshl_b32 {sC}, {sW}, 8\ns_add_u32 {sB}, {sB}, {sC}")
                    e(f"v_lshrrev_b32 v6, 2, {vC}\nv_lshlrev_b32 v6, 11, v6\nv_lshrrev_b32 v16, 1, {vG}\nv_lshl_add_u32 v6, v16, 7, v6\nv_bfe_u32 v16, {vC}, 1, 1\nv_lshl_add_u32 v6, v16, 6, v6")
                    e(f"v_and_b32 v16, 1, {vG}\nv_and_b32 v17, 1, {vC}\nv_lshl_add_u32 v16, v16, 1, v17\nv_lshl_add_u32 v6, v16, 4, v6\nv_add_u32 {aI1LD}, {sB}, v6")
                    e(f"v_lshlrev_b32 v16, 3, v16\nv_lshrrev_b32 v16, v16, {vT}")
                    for k in range(4):
                        self.pat(PD[k], "v16", 2 * k)
                    e(f"s_lshl_b32 {sB}, {sW}, 8\ns_add_u32 {sB}, {sB}, {A_RR}\nv_lshrrev_b32 v6, 1, {vG}\nv_lshl_add_u32 v6, v6, 4, {vC}\nv_and_b32 v16, 1, {vG}\nv_lshl_add_u32 v6, v6, 1, v16\nv_lshl_add_u32 {aRRW}, v6, 2, {sB}")
                else:
                    e(f"s_lshl_b32 {sB}, {sJ}, 14\ns_lshl_b32 {sC}, {sW}, 9\ns_add_u32 {sB}, {sB}, {sC}")
                    e(f"v_lshlrev_b32 v6, 12, {vG}\nv_lshl_add_u32 v6, {vC}, 4, v6\nv_add_u32 {aI1LD}, {sB}, v6")
                e(f"s_lshl_b32 {sA}, {sW}, 8\ns_add_u32 {sA}, {sA}, {A_CT}\nv_lshlrev_b32 v6, 7, v10\nv_add_u32 v6, {sA}, v6")
                if o["smf"] & 4:
                    e(f"v_and_b32 v8, 1, {vC}\nv_lshl_add_u32 v8, v8, 6, v11\nv_add_u32 {aCTR}, v6, v8")
                    e(f"v_lshrrev_b32 v8, 1, {vG}\nv_lshl_add_u32 v6, v8, 5, v6\nv_lshrrev_b32 v8, 3, {vC}\nv_lshl_add_u32 v6, v8, 4, v6\nv_lshl_add_u32 v6, {vq}, 2, v6\nv_and_b32 v8, 1, {vG}\nv_lshl_add_u32 {aCTW}, v8, 6, v6")
                else:
                    e(f"v_add_u32 {aCTR}, v6, v11")
                    e(f"v_lshrrev_b32 v8, 1, {vG}\nv_lshl_add_u32 v6, v8, 6, v6\nv_lshrrev_b32 v8, 3, {vC}\nv_lshl_add_u32 v6, v8, 5, v6\nv_lshl_add_u32 v6, {vq}, 3, v6\nv_and_b32 v8, 1, {vG}\nv_lshl_add_u32 {aCTW}, v8, 2, v6")
                if o["dma45"]:
                    e(f"v_lshrrev_b32 v8, 3, v0\nv_lshlrev_b32 v6, 4, v0\nv_add_u32 {aXRW}, {A_XR}, v6\nv_lshlrev_b32 v6, 5, {vG}\nv_xor_b32 v9, v9, v6")
                else:
                    e(f"v_lshrrev_b32 v8, 3, v0\nv_mul_u32_u24 v6, 160, v8\nv_add_u32 v6, v6, v9\nv_add_u32 {aXRW}, {A_XR}, v6")
                e(f"s_lshl_b32 {sA}, {sI}, 7\nv_and_b32 v6, 60, v8\nv_add_u32 v6, v6, v8\nv_lshl_add_u32 v6, v6, 11, v9\nv_add_u32 {aXLD}, {sA}, v6")
                e(f"v_cmp_gt_u32 {sMASK}, 43, v8\nv_lshrrev_b32 v8, 3, v8\nv_cmp_eq_u32 vcc, 6, v8\ns_or_b64 {sMASK}, {sMASK}, vcc")
                e(f"v_lshlrev_b32 v6, 7, v10\nv_lshl_add_u32 v6, {vG}, 4, v6\nv_add_u32 v6, {A_XS}, v6\nv_and_b32 v8, 11, {vC}")
                self.sel(aXSW, "v_cmp_eq_u32 vcc, 0, v8", "v12", "v6")
                l = self.lab("k")
                e(f"s_cmp_lg_u32 {sW}, 0\ns_cbranch_scc1 {l}\nv_cndmask_b32 {aOUT}, v13, {aXOFF}, vcc\n{l}:")
                e(f"v_mov_b32 v6, 0x3f803f80\nv_mov_b32 v8, 0\nv_mov_b32 v9, 0\nv_mov_b32 v10, 0\nv_mov_b32 v11, 0")
                e(f"v_lshlrev_b32 v6, 2, {vC}\nv_add_u32 v6, {A_WW+128}, v6\nds_write_b32 v6, v8")
                e(f"s_mov_b64 exec, {sMASK}\ns_not_b64 exec, exec\nds_write_b128 {aXRW}, v[8:11]\ns_mov_b64 exec, -1")
                e("s_barrier")
                wo((2, 3))
                if o["stamps"] and "Wuv" in self.names:
                    self.stamp("Wuv")
                self.place_wait(26)
                e(f"v_add_u32 {aLSE}, {sSIDE}, {aLSE}\nv_add_u32 {aXLD}, {sSIDE}, {aXLD}\nv_add_u32 {aCANR}, {sSIDE}, {aCANR}")
                e(f"s_add_u32 {sA}, {sWW}, {sJ}\ns_lshl_b32 {sA}, {sA}, 1\ns_xor_b32 {sA}, {sA}, {sWW}\ns_and_b32 {sA}, {sA}, 8\ns_lshl_b32 {sA}, {sA}, 10\nv_add_u32 {aS2LD}, {sA}, {aS2LD}\nv_add_u32 {aS2B}, {sA}, {aS2B}")
                e("s_waitcnt lgkmcnt(0)\ns_barrier")
                lw4 = self.lab("k")
                e(f"s_cmp_ge_u32 {sW}, 4\ns_cbranch_scc1 {lw4}")
                e(f"v_lshlrev_b32 v18, 16, v18\nv_lshlrev_b32 v19, 16, v19\nv_mul_f32 v244, {f32(0.125)}, v18\nv_mul_f32 v245, {f32(0.125)}, v19")
                e(f"v_mov_b32 v6, 0x3f803f80\nv_mov_b32 v8, 0")
                self.sel(R(SEL0), f"v_cmp_eq_u32 vcc, 0, {vC}", "v8", "v6")
                self.sel(R(SEL4), f"v_cmp_eq_u32 vcc, 4, {vC}", "v8", "v6")
                for k in range(1, 4):
                    e(f"v_mov_b32 v{SEL0+k}, v{SEL0}\nv_mov_b32 v{SEL4+k}, v{SEL4}")
                e(f"v_lshrrev_b32 v6, 1, {vG}\nv_lshl_add_u32 v6, {vr}, 2, v6\nv_mul_u32_u24 v6, 1056, v6\nv_and_b32 v7, 1, {vG}\nv_lshl_add_u32 v6, v7, 9, v6")
                if o["i1b"]:
                    e(f"s_and_b32 {sA}, {sW}, 3\ns_lshl_b32 {sA}, {sA}, 6\ns_add_u32 {sA}, {sA}, {A_WUV}\nv_lshl_add_u32 v6, {vq}, 3, v6\nv_add_u32 v6, {sA}, v6")
                else:
                    e(f"s_lshl_b32 {sA}, {sW}, 5\ns_add_u32 {sA}, {sA}, {A_WUV}\nv_lshl_add_u32 v6, {vq}, 3, v6\nv_add_u32 v6, {sA}, v6")
                for t in range(2 if o["i1b"] else 1):
                    for u in range(4):
                        off = (16 * (u >> 1) + 2 * (u & 1)) * 1056 + 32 * t
                        e(f"ds_read_b64_tr_b16 {R(WUV+16*t+4*u,2)}, v6 offset:{off}\nds_read_b64_tr_b16 {R(WUV+16*t+4*u+2,2)}, v6 offset:{off+256}")
                e(f"{lw4}:")
                if o["i1b"]:
                    e(f"v_and_b32 v8, 1, {vr}\nv_lshlrev_b32 v8, 4, v8\nv_lshl_add_u32 v8, {vG}, 2, v8\nv_lshrrev_b32 v9, 1, {vr}\nv_add_u32 v8, v8, v9")
                else:
                    e(f"v_lshl_add_u32 v8, {vG}, 3, {vr}")
                e(f"v_lshlrev_b32 v8, 6, v8\nv_lshl_add_u32 v8, {vq}, 3, v8\ns_lshl_b32 {sA}, {sW}, 12\ns_add_u32 {sA}, {sA}, {A_WO}\nv_add_u32 v8, {sA}, v8")
                for t in range(2):
                    for u in range(2):
                        off = u * 2048 + t * 32
                        e(f"ds_read_b64_tr_b16 {R(WO+8*t+4*u,2)}, v8 offset:{off}\nds_read_b64_tr_b16 {R(WO+8*t+4*u+2,2)}, v8 offset:{off+(128 if o['i1b'] else 256)}")
                e("s_waitcnt lgkmcnt(0)")
                self.stamp("Wo")
            else:
                if o["wqf"]:
                    l = self.lab("k")
                    e(f"s_cmp_lg_u32 {sW}, 0\ns_cbranch_scc1 {l}\nv_and_b32 v6, 31, {vL}\nv_lshlrev_b32 v6, 3, v6\nv_add_u32 v6, {A_XS}, v6\nds_read_b64 v[244:245], v6\n{l}:")
                else:
                    l = self.lab("k")
                    e(f"s_cmp_lg_u32 {sW}, 0\ns_cbranch_scc1 {l}")
                    for hf in range(2):
                        for r in range(4):
                            e(f"v_mul_f32 v{244+4*hf+r}, {f32(0.125)}, v{244+4*hf+r}\nds_write_b32 {aXSW}, v{244+4*hf+r} offset:{(r&1)*4 + (8*hf + (r>>1))*8}")
                    e(f"v_and_b32 v6, 31, {vL}\nv_lshlrev_b32 v6, 3, v6\nv_add_u32 v6, {A_XS}, v6\nds_read_b64 v[244:245], v6\n{l}:")
            e(f"v_lshlrev_b32 v6, 1, {vC}\nv_lshrrev_b32 v6, v6, {vT}")
            self.pat(P3, "v6", 0, K3)
            self.canary_wait(2 + L, aCANR, o["d_s2" if L == 0 else "e_s2"])
            self.stamp("S2can" + X)
            l, l0, l1 = self.lab("s2"), self.lab("s2w"), self.lab("s2x")
            e(f"s_mov_b32 {sA}, {S2R(L)}\ns_mov_b32 {sB}, {LSE(L)}\ns_cmp_eq_u32 {sW}, 0\ns_cbranch_scc1 {l0}")
            if o["dma2"]:
                ld2 = f"s_mov_b32 m0, s75\nbuffer_load_dwordx4 {aS2LD}, {srd(S_WS)}, {sA} offen sc1 lds\nbuffer_load_dwordx4 {aS2B}, {srd(S_WS)}, {sA} offen offset:1024 sc1 lds"
                st2 = f"ds_read_b128 v[8:11], {aOSW}\nds_read_b128 v[12:15], {aOSW} offset:1024\ns_waitcnt lgkmcnt(0)"
                P2_, RS = PS, 256
            else:
                ld2 = f"buffer_load_dwordx4 v[8:11], {aS2LD}, {srd(S_WS)}, {sA} offen sc1\nbuffer_load_dwordx4 v[12:15], {aS2LD}, {srd(S_WS)}, {sA} offen offset:1024 sc1"
                st2 = f"ds_write_b128 {aOSW}, v[8:11] offset:{A_OS}\nds_write_b128 {aOSW}, v[12:15] offset:{A_OS+4*288}"
                P2_, RS = PC, 288
            self.retry_head(l)
            e(f"{ld2}\ns_waitcnt vmcnt(0)\n{st2}")
            self.check(list(range(8, 16)), P2_, sM, "v6")
            e(f"s_cbranch_vccnz {l}\ns_branch {l1}")
            e(f"{l0}:")
            l0 = self.lab("s2v")
            self.retry_head(l0)
            e(f"buffer_load_dwordx2 v[16:17], {aLSE}, {srd(S_WS)}, {sB} offen sc1\n{ld2}\ns_waitcnt vmcnt(2)")
            e(f"v_xor_b32 v7, {vT}, v17\nv_mov_b32 v18, v16")
            self.allred(["v18"], "v_max_f32", ["v19"], [1, 2, 4, 8, 16])
            e("v_sub_f32 v16, v16, v18\nv_exp_f32 v16, v16\ns_nop 0\nv_mov_b32 v18, v16")
            self.allred(["v18"], "v_add_f32", ["v19"], [1, 2, 4, 8, 16])
            e(f"v_rcp_f32 v18, v18\ns_nop 0\nv_mul_f32 v16, v16, v18\nv_cvt_pk_bf16_f32 v16, v16, v16\nds_write_b16 {aWW}, v16\ns_waitcnt vmcnt(0)\n{st2}")
            self.check(list(range(8, 16)), P2_, sM, "v6", extra="v7")
            e(f"s_cbranch_vccnz {l0}")
            e(f"{l1}:")
            self.stamp("S2got" + X)
            self.bar()
            e(f"ds_read_b128 v[8:11], {aWA0}\nds_read_b64_tr_b16 v[16:17], {aOTR} offset:{A_OS}\nds_read_b64_tr_b16 v[18:19], {aOTR} offset:{A_OS+16*RS}")
            e(f"ds_read_b128 v[12:15], {aWA1}\nds_read_b64_tr_b16 v[20:21], {aOTR} offset:{A_OS+32*RS}\nds_read_b64_tr_b16 v[22:23], {aOTR} offset:{A_OS+48*RS}")
            e("s_waitcnt lgkmcnt(3)")
            self.mfma(24, 8, 16)
            e("s_waitcnt lgkmcnt(0)")
            self.mfma(24, 12, 20, 24)
            e(f"s_mov_b32 {sB}, {I1R(L)}")
            e(f"v_cvt_pk_bf16_f32 v8, v24, v24\nds_write_b16 {aCCW}, v8")
            self.bar()
            if o["i1b"]:
                lsk = self.lab("k")
                e(f"s_cmp_ge_u32 {sW}, 4\ns_cbranch_scc1 {lsk}")
                e(f"ds_read_b128 v[8:11], {aCCR}\nds_read_b128 v[12:15], {aCCR} offset:64\nv_mov_b32 v16, 0\nv_mov_b32 v17, 0\nv_mov_b32 v20, 0\nv_mov_b32 v21, 0\ns_waitcnt lgkmcnt(1)")
                self.smf(16, 8, WUV, vIDX)
                self.smf(20, 8, WUV + 16, vIDX)
                e("s_waitcnt lgkmcnt(0)")
                self.smf(16, 12, WUV + 8, vIDX)
                self.smf(20, 12, WUV + 24, vIDX)
                e("v_add_f32 v16, v16, v17\nv_add_f32 v20, v20, v21")
                self.pack_ovw("v8", "v16", "v20", P1)
                self.store_intra([f"buffer_store_dword v8, {aI1ST}, {srd(S_WS)}, {sB} offen"])
                e(f"{lsk}:")
                self.stamp("I1pub" + X)
                for k in range(8):
                    e(f"v_mov_b32 v{16+k}, 0")
                l = self.lab("i1")
                e(f"{l}:")
                self.guard()
                e(f"buffer_load_dwordx4 v[8:11], {aI1LD}, {srd(S_WS)}, {sB} offen sc1\ns_waitcnt vmcnt(0)")
                self.check(list(range(8, 12)), PD, sM, "v6")
                e(f"s_cbranch_vccnz {l}")
                self.stamp("I1got" + X)
                self.smf(16, 8, WO, vIDX)
                self.smf(20, 8, WO + 8, vIDX)
                self.canary_set(4 + L, aCANW, o["lead_s3"] == 1)
                e("v_add_f32 v16, v16, v17\nv_add_f32 v18, v18, v19\nv_add_f32 v20, v20, v21\nv_add_f32 v22, v22, v23")
                e("v_permlane32_swap_b32 v16, v18\nv_permlane32_swap_b32 v20, v22\nv_add_f32 v16, v16, v18\nv_add_f32 v20, v20, v22")
                e(f"v_permlane16_swap_b32 v16, v20\nv_add_f32 v16, v16, v20\nds_write_b32 {aRRW}, v16")
            else:
                if o["smf"] & 2:
                    e(f"ds_read_b128 v[8:11], {aCCR}\nds_read_b128 v[12:15], {aCCR} offset:64\nv_mov_b32 v24, 0\nv_mov_b32 v25, 0\ns_waitcnt lgkmcnt(1)")
                    self.smf(24, 8, WUV, vIDX)
                    e("s_waitcnt lgkmcnt(0)")
                    self.smf(24, 12, WUV + 8, vIDX)
                    e("v_add_f32 v24, v24, v25")
                else:
                    for u in range(4):
                        e(f"ds_read_b128 {R(8+4*u,4)}, {aCCR} offset:{u*64}")
                    for u in range(4):
                        e(f"s_waitcnt lgkmcnt({3-u})")
                        self.mfma(24, 8 + 4 * u, WUV + 4 * u, None if u == 0 else 24)
                e(f"v_bfi_b32 v8, {sFF}, {vTL}, v24")
                self.store_intra([f"buffer_store_dword v8, {aI1ST}, {srd(S_WS)}, {sB} offen"])
                self.stamp("I1pub" + X)
                l = self.lab("i1")
                e(f"{l}:")
                self.guard()
                e(f"buffer_load_dwordx4 v[8:11], {aI1LD}, {srd(S_WS)}, {sB} offen sc1\nbuffer_load_dwordx4 v[12:15], {aI1LD}, {srd(S_WS)}, {sB} offen offset:256 sc1\ns_waitcnt vmcnt(0)")
                self.check(list(range(8, 16)), sTB, sFF, "v6")
                e(f"s_cbranch_vccnz {l}")
                self.stamp("I1got" + X)
                self.canary_set(4 + L, aCANW, o["lead_s3"] == 1)
                for k in range(4):
                    e(f"v_permlane32_swap_b32 v{8+k}, v{12+k}")
                for k in range(4):
                    e(f"v_add_f32 v{8+k}, v{8+k}, v{12+k}")
                e("v_permlane16_swap_b32 v8, v10\nv_permlane16_swap_b32 v9, v11\nv_add_f32 v8, v8, v10\nv_add_f32 v9, v9, v11")
                e(f"v_cvt_pk_bf16_f32 v8, v8, v9\nds_write_b32 {aCTW}, v8")
                if o["smf"] & 4:
                    e(f"ds_read_b128 v[8:11], {aCTR}\nv_mov_b32 v16, 0\nv_mov_b32 v17, 0\nv_mov_b32 v20, 0\nv_mov_b32 v21, 0\ns_waitcnt lgkmcnt(0)")
                    self.smf(16, 8, WO, vIDX)
                    self.smf(20, 8, WO + 8, vIDX)
                    e(f"v_add_f32 v16, v16, v17\nv_add_f32 v17, v20, v21\nds_write_b64 {aRRW}, v[16:17]")
                else:
                    e(f"ds_read_b128 v[8:11], {aCTR}\nds_read_b128 v[12:15], {aCTR} offset:64\ns_waitcnt lgkmcnt(1)")
                    self.mfma(16, 8, WO)
                    self.mfma(20, 8, WO + 8)
                    e("s_waitcnt lgkmcnt(0)")
                    self.mfma(16, 12, WO + 4, 16)
                    self.mfma(20, 12, WO + 12, 20)
                    e(f"v_mov_b32 v17, v20\nds_write_b64 {aRRW}, v[16:17]")
            self.bar()
            l = self.lab("fin")
            e(f"s_cmp_lg_u32 {sW}, 0\ns_cbranch_scc1 {l}")
            for k in range(4):
                e(f"ds_read_b64 {R(8+2*k,2)}, {aRRR} offset:{k*256}")
            e(f"s_mov_b32 {sA}, {S3R(L)}\ns_waitcnt lgkmcnt(2)\nv_add_f32 v8, v8, v10\nv_add_f32 v9, v9, v11\ns_waitcnt lgkmcnt(0)\nv_add_f32 v12, v12, v14\nv_add_f32 v13, v13, v15")
            e("v_add_f32 v8, v8, v12\nv_add_f32 v9, v9, v13\nv_mov_b32 v10, v8\nv_mov_b32 v11, v9\nv_permlane32_swap_b32 v8, v10\nv_permlane32_swap_b32 v9, v11")
            e("v_add_f32 v8, v8, v244\nv_add_f32 v9, v9, v245\nv_add_f32 v24, v8, v10\nv_add_f32 v25, v9, v11")
            self.pack_near("v8", "v24", "v25", "v10", "v11", P3, K3)
            e(f"s_mov_b32 {sB}, {S3R(L)+8192}\nbuffer_store_dword v8, {aS3ST}, {srd(S_WS)}, {sA} offen sc1\nbuffer_store_dword v8, {aS3ST}, {srd(S_WS)}, {sB} offen sc1")
            self.canary_set(4 + L, aCANW, o["lead_s3"] == 0)
            e(f"{l}:")
            self.stamp("S3pub" + X)
            if L == 1:
                l = self.lab("ex")
                e(f"s_and_b32 {sA}, {sI}, 7\ns_cmp_eq_u32 {sA}, {sJ}\ns_cbranch_scc1 {l}")
                self.dump_stamps()
                e(f"s_endpgm\n{l}:")
            if L == 0 and o["wqf"]:
                e(f"s_lshl_b32 {sA}, {sW}, 9\ns_add_u32 {sA}, {sA}, {sH}\ns_lshl_b32 {sA}, {sA}, 8\nv_lshlrev_b32 v9, 4, {vC}\nv_lshl_add_u32 v9, {vG}, 15, v9\nv_add_u32 v9, {sA}, v9\ns_mul_i32 {sD}, {sW}, 4160\ns_barrier")

                def wqdma(n):
                    for q in range(4):
                        e(f"s_mov_b32 {sA}, {q*8192 + (n << 20)}\ns_add_u32 m0, {sD}, {A_WUV + (n & 1)*33280 + q*1040}\nbuffer_load_dwordx4 v9, {srd(S_WQ)}, {sA} offen lds")

                def wqfill(n):
                    e(f"s_waitcnt vmcnt({4 if n < 3 else 0})\ns_barrier")
                    for sl in range(4):
                        off = (n & 1) * 33280 + sl * 8320
                        e(f"ds_read_b64_tr_b16 {R(32+16*n+4*sl,2)}, v10 offset:{off}\nds_read_b64_tr_b16 {R(34+16*n+4*sl,2)}, v10 offset:{off+512}")
                    e("s_waitcnt lgkmcnt(0)")
                wqdma(0)
                wqdma(1)
                e(f"v_bfe_u32 {vr}, {vL}, 2, 2\nv_and_b32 {vq}, 3, {vL}\nv_mov_b32 v13, {OOB}\nv_lshlrev_b32 v11, 4, {vG}\nv_bfe_u32 v12, {vC}, 2, 1")
                e(f"v_and_b32 v6, 1, {vr}\nv_lshlrev_b32 v6, 2, v6\nv_lshrrev_b32 v8, 1, {vr}\nv_add_u32 v6, v6, v8\nv_and_b32 v8, 1, {vG}\nv_lshl_add_u32 v6, v8, 1, v6\nv_mul_u32_u24 v6, 1040, v6")
                e(f"v_lshrrev_b32 v8, 1, {vG}\nv_lshl_add_u32 v6, v8, 8, v6\nv_lshl_add_u32 v6, {vq}, 3, v6\ns_lshl_b32 {sA}, {sW}, 5\ns_add_u32 {sA}, {sA}, {A_WUV}\nv_add_u32 v10, {sA}, v6")
                e(f"s_and_b32 {sA}, {sW}, 1\ns_lshl_b32 {sB}, {sA}, 5\nv_xor_b32 v110, {sB}, {aXTR}\nv_xor_b32 v111, 64, v110\ns_lshl_b32 {sB}, {sA}, 6\nv_add_u32 {aXSW}, {sB}, {aXSW}")
                e(f"s_lshl_b32 {sB}, {sPA}, 8\ns_lshl_b32 {sA}, {sA}, 4\ns_add_u32 {sB}, {sB}, {sA}\ns_add_u32 {sB}, {sB}, {I0R(1)}\nv_lshlrev_b32 v6, 7, v12\nv_lshl_add_u32 v6, {vG}, 5, v6\nv_add_u32 v6, {sB}, v6\nv_and_b32 v8, 11, {vC}\nv_cmp_eq_u32 vcc, 0, v8\nv_cndmask_b32 {aWROW}, v13, v6, vcc")
                e(f"v_add_u32 v6, {sA}, {aXOFF}\nv_cndmask_b32 {aOUT}, v13, v6, vcc")
                e(f"s_lshl_b32 {sA}, {sJ}, 12\nv_lshlrev_b32 v6, 4, v0\nv_add_u32 {aI0LD}, {sA}, v6")
                e(f"v_bfe_u32 v6, v0, 3, 1\nv_mul_u32_u24 v6, 1152, v6\nv_lshrrev_b32 v8, 4, v0\nv_lshl_add_u32 v6, v8, 5, v6\nv_bfe_u32 v8, v0, 2, 1\nv_lshl_add_u32 v6, v8, 4, v6\nv_lshl_add_u32 v6, {vq}, 2, v6\nv_add_u32 {aCSLD}, {A_CT}, v6")
                e(f"v_and_b32 v8, 1, {vC}\nv_lshl_add_u32 v6, v12, 1, v8\nv_mul_u32_u24 v6, 576, v6\nv_add_u32 v6, v6, v11\nv_add_u32 v6, {A_CT}, v6\nv_mov_b32 v16, {A_ONE}\nv_lshrrev_b32 v17, 1, {vC}")
                self.sel(aSTLD, "v_cmp_eq_u32 vcc, 1, v17", "v6", "v16")
                e(f"v_lshl_add_u32 v6, v8, 7, v11\nv_lshlrev_b32 v16, 8, v12\nv_mov_b32 v17, 0x200\nv_and_b32 v8, 2, {vC}\nv_cmp_ne_u32 vcc, 0, v8\nv_cndmask_b32 v16, v16, v17, vcc\nv_add3_u32 {aQR}, v6, v16, 0\nv_add_u32 {aQR}, {A_Q}, {aQR}")
                e(f"v_add_u32 {aQW}, {A_Q - A_CC + (1 << 32)}, {aCCW}")
                e(f"s_lshl_b32 {sA}, {sW}, 3\ns_add_u32 {sA}, {sA}, {A_ST}\nv_lshlrev_b32 v6, 2, {vL}\nv_add_u32 v6, {sA}, v6\nv_mov_b32 v8, {A_DUM}\ns_cmp_lt_u32 {sW}, 4\ns_cselect_b32 vcc_lo, 0x101, 0\ns_mov_b32 vcc_hi, 0\nv_cndmask_b32 {aSTST}, v8, v6, vcc")
                e(f"v_and_b32 v6, 1, {vG}\nv_lshlrev_b32 v6, 5, v6\nv_add_u32 {aI0ST1}, {A_ST}, v6")
                e(f"s_and_b32 {sA}, {sW}, 1\ns_mul_i32 {sA}, {sA}, {16*1056}\ns_add_u32 {sA}, {sA}, {A_WUK}\nv_mul_u32_u24 v6, 1056, {vC}\nv_add3_u32 {aI0ST0}, {sA}, v6, v11")
                e(f"v_and_b32 v6, 127, v0\nv_lshlrev_b32 v6, 2, v6\nv_add_u32 v6, {A_ONE}, v6\nv_mov_b32 v8, 0x3f803f80\nds_write_b32 v6, v8")
                for n in range(4):
                    wqfill(n)
                    if n < 2:
                        e("s_barrier")
                        wqdma(n + 2)
                self.stamp("WqF")
            e(f"s_mov_b32 {sB}, {S45(L)}\ns_cmp_eq_u32 {sW}, 6\ns_cselect_b32 {sB}, {S3R(L) - 12*16384}, {sB}\ns_lshl_b32 {sC}, {sW}, 10\ns_add_u32 {sC}, {sC}, {A_XR}")
            self.canary_wait(6 + L, aCANR, o["d_s45" if L == 0 else "e_s45"])
            self.stamp("S45can" + X)
            l, l2 = self.lab("s45"), self.lab("s45n")
            e(f"s_mov_b64 exec, {sMASK}\ns_cbranch_execz {l2}")
            self.retry_head(l)
            if o["dma45"]:
                e(f"s_mov_b32 m0, {sC}\nbuffer_load_dwordx4 {aXLD}, {srd(S_WS)}, {sB} offen sc1 lds\ns_waitcnt vmcnt(0)\nds_read_b128 v[8:11], {aXRW}\ns_waitcnt lgkmcnt(0)")
                self.check(list(range(8, 12)), PS, sM, "v6")
            else:
                e(f"buffer_load_dwordx4 v[8:11], {aXLD}, {srd(S_WS)}, {sB} offen sc1\ns_waitcnt vmcnt(0)")
                e(f"ds_write_b128 {aXRW}, v[8:11]")
                self.check(list(range(8, 12)), PC, sM, "v6")
            e(f"s_cbranch_vccnz {l}")
            e(f"{l2}:\ns_mov_b64 exec, -1")
            self.stamp("S45got" + X)
            self.bar()
            if o["wqf"]:
                lsk = self.lab("k")
                if L == 1:
                    e(f"s_cmp_lt_u32 {sW}, 2\ns_cbranch_scc1 {lsk}")
                    self.dump_stamps()
                    e(f"s_endpgm\n{lsk}:")
                else:
                    e(f"s_cmp_ge_u32 {sW}, 2\ns_cbranch_scc1 {lsk}")
                for n in range(4):
                    e(f"ds_read_b64_tr_b16 {R(8+4*n,2)}, v{110+(n&1)} offset:{(n >> 1)*4096}\nds_read_b64_tr_b16 {R(10+4*n,2)}, v{110+(n&1)} offset:{(n >> 1)*4096 + 2048}")
                for n in range(4):
                    e(f"s_waitcnt lgkmcnt({6-2*n})")
                    self.mfma(244, 8 + 4 * n, SEL4 if n & 1 else SEL0, None if n == 0 else 244)
                if L == 0:
                    for k in range(4):
                        e(f"v_bfi_b32 v{8+k}, {sFF}, {TB[k]}, v{244+k}")
                    self.store_intra([f"buffer_store_dwordx4 v[8:11], {aWROW}, {srd(S_WS)}, 0 offen"])
                    self.stamp("P1a'")
                    for r in range(4):
                        e(f"v_mul_f32 v{244+r}, {f32(0.125)}, v{244+r}\nds_write_b32 {aXSW}, v{244+r} offset:{(r&1)*4 + (r>>1)*8}")
                    e(f"{lsk}:")
                else:
                    e("v_cvt_pk_bf16_f32 v8, v244, v246\nv_cvt_pk_bf16_f32 v9, v245, v247")
                    e(f"buffer_store_dword v8, {aOUT}, {srd(S_OUT)}, 0 offen\nbuffer_store_dword v9, {aOUT}, {srd(S_OUT)}, 0 offen offset:32")
            else:
                lsk = self.lab("k")
                if L == 1:
                    e(f"s_cmp_eq_u32 {sW}, 0\ns_cbranch_scc1 {lsk}")
                    self.dump_stamps()
                    e(f"s_endpgm\n{lsk}:")
                else:
                    e(f"s_cmp_ge_u32 {sW}, 4\ns_cbranch_scc1 {lsk}")
                XT = [8, 12, 16, 20, 212, 216, 220, 224]
                for n in range(8):
                    if o["dma45"]:
                        ad = aXTR if n & 3 == 0 else f"v{100 + (n & 3)}"
                        e(f"ds_read_b64_tr_b16 {R(XT[n],2)}, {ad} offset:{(n >> 2)*4096}\nds_read_b64_tr_b16 {R(XT[n]+2,2)}, {ad} offset:{(n >> 2)*4096 + 2048}")
                    else:
                        off = (n >> 2) * 5120 + 32 * (n & 3)
                        e(f"ds_read_b64_tr_b16 {R(XT[n],2)}, {aXTR} offset:{off}\nds_read_b64_tr_b16 {R(XT[n]+2,2)}, {aXTR} offset:{off+2560}")
                    if n >= 5:
                        T = n - 5
                        e("s_waitcnt lgkmcnt(10)")
                        self.mfma(244 + 4 * (T & 1), XT[T], SEL0 if T < 2 else SEL4, None if T < 2 else 244 + 4 * (T & 1))
                for n in range(3, 8):
                    T = n & 3
                    e(f"s_waitcnt lgkmcnt({14-2*n})")
                    self.mfma(244 + 4 * (T & 1), XT[n], SEL0 if T < 2 else SEL4, 244 + 4 * (T & 1))
                if L == 0:
                    for k in range(4):
                        e(f"v_cvt_pk_bf16_f32 v{XOP+k}, v{244+2*k}, v{245+2*k}")
                    for k in range(4):
                        e(f"v_or_b32 v{XOP+k}, {vONE}, v{XOP+k}")
                    e(f"{lsk}:")
                else:
                    e("v_cvt_pk_bf16_f32 v8, v244, v246\nv_cvt_pk_bf16_f32 v9, v245, v247\nv_cvt_pk_bf16_f32 v10, v248, v250\nv_cvt_pk_bf16_f32 v11, v249, v251")
                    for k, off in enumerate((0, 32, 16, 48)):
                        e(f"buffer_store_dword v{8+k}, {aOUT}, {srd(S_OUT)}, 0 offen offset:{off}")
            if L == 1:
                e(f"s_lshl_b32 {sA}, s2, 9\nv_add_u32 v6, {sA}, v0\nv_mov_b32 v7, {OOB}\nv_cmp_eq_u32 vcc, 0, v6\nv_cndmask_b32 v6, v7, v6, vcc\nbuffer_store_dword {vT}, v6, {srd(S_WS)}, 0 offen sc1")
                self.stamp("end")
                if o["amp"]:
                    e(f"s_waitcnt vmcnt(0)\ns_memrealtime s[96:97]\ns_waitcnt lgkmcnt(0)\ns_sub_u32 s94, s96, s98\ns_mul_i32 s94, s94, {o['amp']}\nL_spin:\ns_sleep 8\ns_memrealtime s[92:93]\ns_waitcnt lgkmcnt(0)\ns_sub_u32 s95, s92, s96\ns_cmp_lt_u32 s95, s94\ns_cbranch_scc1 L_spin")
                self.dump_stamps()
                e("s_endpgm")

    def roleB(self):
        e, o = self.e, self.o
        CS_, CP, FG, FD = 32, 96, 160, 192
        (aS1LD, aQAW, aQAR, aMX, aLR, aPW, aPR, aS2ST, aLSEST, aCAN, aCANR, aS3LD, aXPW, aXPR, aRBW, aRBR, aSTW, aSTR, aHW, aHR, aS45,
         vCG, vCU, Q0, Q1, P45, aTCH) = ["v%d" % (224 + k) for k in range(27)]
        PC = ["v251", "v252", "v253", "v254"]
        sB_, sHG, sSP, sF = "s68", "s69", "s76", "s77"
        vr, vq = "v14", "v15"
        for b, slot in ((S_WUK, 3), (S_CKV, 1)):
            e(f"s_load_dwordx2 s[{b}:{b+1}], s[0:1], {slot*8}")
        e(f"v_lshrrev_b32 v6, 6, v0\nv_and_b32 {vL}, 63, v0\ns_and_b32 {sJ}, s2, 7\nv_readfirstlane_b32 {sW}, v6\ns_sub_u32 {sI}, {sI}, 16")
        e(f"v_lshrrev_b32 v6, 3, v0\nv_lshlrev_b32 v6, 13, v6\nv_and_b32 v8, 7, v0\nv_lshl_add_u32 v8, v8, 7, v6\ns_lshl_b32 {sE}, {sI}, 8\ns_add_u32 {sE}, {sE}, {sJ}\ns_lshl_b32 {sE}, {sE}, 10")
        self.fin_srd(S_WUK, 4 << 20)
        self.fin_srd(S_CKV, 8 << 20)
        e(f"s_lshr_b32 {sB_}, {sJ}, 2\ns_and_b32 {sHG}, {sI}, 1\ns_and_b32 {sA}, {sJ}, 3\ns_lshl_b32 {sA}, {sA}, 3\ns_lshr_b32 {sSP}, {sI}, 1\ns_add_u32 {sSP}, {sSP}, {sA}")
        e(f"v_lshlrev_b32 v7, 4, {vL}\ns_lshl_b32 {sA}, {sB_}, 22\ns_lshl_b32 {sB}, {sSP}, 17\ns_add_u32 {sA}, {sA}, {sB}\ns_lshl_b32 {sB}, {sW}, 14\ns_add_u32 {sA}, {sA}, {sB}\nv_add_u32 v31, {sA}, v7")
        e(f"s_mul_i32 s74, {sW}, {16*1056}\ns_lshl_b32 s75, {sHG}, 12")
        e(f"s_sub_u32 {sF}, s2, 128\ns_getreg_b32 {sXCC}, hwreg(HW_REG_XCC_ID)\ns_and_b32 {sXCC}, {sXCC}, 15")
        self.calib(sF)
        e("s_waitcnt lgkmcnt(0)")
        self.stamp('karg')
        l, l2 = self.lab("nv"), self.lab("nw")
        e(f"s_cmp_eq_u32 {sW}, 7\ns_cbranch_scc1 {l}")
        self.calib_run()
        e(f"v_mov_b32 v6, {sC}\ns_lshl_b32 {sA}, {sW}, 2\ns_add_u32 {sA}, {sA}, {B_DUM}\nv_mov_b32 v9, {sA}\nds_write_b32 v9, v6\ns_waitcnt lgkmcnt(0)\ns_barrier")
        if o["bdelay"]:
            e(f"s_sleep {o['bdelay']}")
        if o["bhelp"]:
            lh = self.lab("nh")
            e(f"s_cmp_ge_u32 {sW}, {o['bhelp']}\ns_cbranch_scc1 {lh}\nbuffer_load_dword v255, v8, {srd(S_WUK)}, {sE} offen\n{lh}:")
        self.epoch_load()
        self.fin_srd(S_WS, 0x10000000)
        e(f"s_waitcnt lgkmcnt(0)")
        self.tags()
        e(f"s_branch {l2}\n{l}:")
        self.epoch_load()
        e(f"s_getpc_b64 s[72:73]\nL_pc:\ns_sub_u32 s72, s72, L_pc-{NAME}_kernel\ns_subb_u32 s73, s73, 0\ns_lshl_b32 {sA}, {sI}, 11")
        e(f"v_lshlrev_b32 v6, 5, {vL}\nv_add_u32 v6, {sA}, v6\nv_min_u32 v6, L_code_end-{NAME}_kernel-4, v6\nglobal_load_dword v255, v6, s[72:73]")
        self.fin_srd(S_WS, 0x10000000)
        e(f"v_mov_b32 v6, {B_DUM}\ns_lshr_b32 {sA}, {sXCC}, 2\ns_lshl_b32 {sB}, {sF}, 2\ns_waitcnt lgkmcnt(0)")
        self.tags()
        e(f"s_barrier\nds_read_b128 v[8:11], v6\nds_read_b128 v[12:15], v6 offset:16\nv_mov_b32 v6, {VOTES}\ns_waitcnt lgkmcnt(0)")
        e(f"v_min3_u32 v8, v8, v10, v12\nv_min3_u32 v9, v9, v11, v13\nv_min_u32 v8, v8, v14\nv_cmp_lt_u32 vcc, v9, v8\nv_cndmask_b32 v8, 0, 1, vcc\nv_xor_b32 v8, {sA}, v8\nv_lshlrev_b32 v8, 31, v8\nv_xor_b32 v8, {vT}, v8")
        e(f"s_mov_b64 exec, 1\nbuffer_store_dword v8, v6, {srd(S_WS)}, {sB} offen sc1\ns_mov_b64 exec, -1\n{l2}:")
        for b, slot in ((S_WO, 5), (S_WG, 7), (S_WU, 8), (S_WD, 9)):
            e(f"s_load_dwordx2 s[{b}:{b+1}], s[0:1], {slot*8}")
        if o["bdelay2"]:
            e(f"s_sleep {o['bdelay2']}")
        e("s_barrier")

        def ckv(qs):
            for q in qs:
                e(f"s_xor_b32 {sA}, s75, {((q & 3) + 8*((q >> 2) & 1) + 4*(q >> 3))*1024}\ns_add_u32 m0, s74, {B_CKV + q*1056}\nbuffer_load_dwordx4 v31, {srd(S_CKV)}, {sA} offen lds")
        self.stamp("ckv0")
        ckv(range(8))
        self.stamp("ckv8")
        self.consts()
        e(f"v_and_b32 {vC}, 15, v0\nv_bfe_u32 {vG}, v0, 4, 2\nv_mov_b32 v13, {OOB}\nv_mov_b32 v12, {B_DUM}\nv_bfe_u32 {vr}, {vL}, 2, 2\nv_and_b32 {vq}, 3, {vL}")
        for b, sz in ((S_WO, 4 << 20), (S_WG, 1409024), (S_WU, 1409024), (S_WD, 1409024)):
            self.fin_srd(b, sz)
        e(f"s_lshl_b32 {sA}, {sB_}, 16\ns_lshl_b32 {sB}, {sHG}, 15\ns_add_u32 {sA}, {sA}, {sB}\ns_and_b32 {sB}, {sW}, 4\ns_add_u32 {sB}, {sB}, {sW}\ns_lshl_b32 {sB}, {sB}, 11\ns_add_u32 {sA}, {sA}, {sB}\nv_add_u32 {aS1LD}, {sA}, v7")
        e(f"s_mul_i32 {sA}, {sW}, 2112\ns_add_u32 {sA}, {sA}, {B_QA}\nv_add_u32 {aQAW}, {sA}, v7")
        e(f"v_lshlrev_b32 v11, 4, {vG}\nv_mul_u32_u24 v6, 1056, {vC}\nv_add_u32 v6, v6, v11\nv_add_u32 {aQAR}, {B_QA}, v6")
        e(f"s_mul_i32 {sA}, {sW}, {16*1056}\nv_add_u32 v30, {sA}, v6")
        e(f"v_lshlrev_b32 v6, 5, {vC}\nv_add_u32 {aMX}, {B_MX}, v6\ns_lshl_b32 {sA}, {sW}, 6\ns_add_u32 {sA}, {sA}, {B_LI}\nv_add_u32 {aLR}, {sA}, v11")
        e(f"v_mul_u32_u24 v6, 288, {vC}\nv_add_u32 v6, v6, v11\nv_add_u32 {aPR}, {B_P}, v6")
        e(f"s_lshr_b32 {sA}, {sW}, 1\ns_lshl_b32 {sA}, {sA}, 6\ns_and_b32 {sB}, {sW}, 1\ns_lshl_b32 {sC}, {sB}, 3\ns_add_u32 {sA}, {sA}, {sC}\nv_add_u32 {aPW}, {sA}, {aPR}")
        e(f"s_lshr_b32 {sC}, {sW}, 1\ns_lshl_b32 {sA}, {sC}, 15\ns_lshl_b32 {sC}, {sB_}, 14\ns_add_u32 {sA}, {sA}, {sC}")
        e(f"s_lshl_b32 {sC}, {sSP}, 8\ns_add_u32 {sA}, {sA}, {sC}\ns_lshl_b32 {sC}, {sB}, 7\ns_add_u32 {sA}, {sA}, {sC}")
        e(f"v_lshlrev_b32 v6, 19, {vG}\nv_lshl_add_u32 v6, {vC}, 3, v6\nv_add_u32 {aS2ST}, {sA}, v6")
        e(f"s_lshl_b32 {sA}, {sB_}, 2\ns_add_u32 {sA}, {sA}, {sHG}\ns_lshl_b32 {sA}, {sA}, 5\ns_add_u32 {sA}, {sA}, {sSP}\ns_lshl_b32 {sA}, {sA}, 7\nv_lshlrev_b32 v6, 3, {vC}\nv_lshl_add_u32 v6, {vG}, 13, v6\nv_add_u32 {aLSEST}, {sA}, v6")
        self.can_addr(aCAN, aCANR, sI)
        e(f"s_lshl_b32 {sA}, {sW}, 8\nv_lshlrev_b32 v6, 11, {vG}\nv_lshl_add_u32 v6, {vC}, 4, v6\nv_add_u32 {aS3LD}, {sA}, v6")
        e(f"v_bfe_u32 v10, {vC}, 2, 1\ns_add_u32 {sB}, {sA}, {B_XP}\nv_lshlrev_b32 v6, 7, v10\nv_add_u32 v6, {sB}, v6\nv_add_u32 v9, v6, v11")
        e(f"v_lshrrev_b32 v8, 3, {vC}\nv_lshl_add_u32 v6, v8, 6, v6\nv_lshl_add_u32 v6, {vq}, 4, v6\nv_lshl_add_u32 {aXPW}, {vG}, 2, v6")
        if o["smf"] & 8:
            e(f"v_lshlrev_b32 v6, 7, v10\nv_add_u32 v6, {sB}, v6\nv_and_b32 v9, 1, {vC}\nv_lshl_add_u32 v9, v9, 6, v11\nv_add_u32 v9, v9, v6")
            e(f"v_and_b32 v16, 1, {vG}\nv_lshl_add_u32 v6, v16, 6, v6\nv_lshl_add_u32 v6, v8, 5, v6\nv_lshrrev_b32 v16, 1, {vq}\nv_lshl_add_u32 v6, v16, 4, v6\nv_and_b32 v16, 1, {vq}\nv_lshl_add_u32 v6, v16, 3, v6\nv_lshrrev_b32 v16, 1, {vG}\nv_lshl_add_u32 {aXPW}, v16, 2, v6")
            e(f"v_mov_b32 v6, {B_ONES}\nv_lshrrev_b32 v16, 1, {vC}")
            self.sel(aXPR, "v_cmp_eq_u32 vcc, 4, v16", "v9", "v6")
        else:
            e(f"v_mov_b32 v6, {B_ONES}")
            self.sel(aXPR, f"v_cmp_eq_u32 vcc, 8, {vC}", "v9", "v6")
        e(f"s_mul_i32 {sB}, {sW}, 768\ns_add_u32 {sB}, {sB}, {B_RB}\nv_add_u32 v6, {sB}, v7\nv_lshlrev_b32 v9, 2, {vL}")
        self.sel(aRBW, f"v_cmp_gt_u32 vcc, 48, {vL}", "v12", "v6")
        e(f"v_and_b32 v8, 1, {vG}\nv_lshlrev_b32 v8, 3, v8\nv_lshl_add_u32 v8, {vC}, 4, v8\nv_lshrrev_b32 v6, 5, {vL}\nv_lshl_add_u32 v8, v6, 8, v8\nv_add_u32 {aRBR}, {B_RB}, v8")
        e(f"v_lshlrev_b32 v6, 6, v6\nv_add_u32 {aSTR}, {B_ST}, v6")
        e(f"v_lshrrev_b32 v6, 3, {vL}\nv_lshlrev_b32 v6, 5, v6\ns_lshl_b32 {sB}, {sW}, 2\ns_add_u32 {sB}, {sB}, {B_ST}\nv_add_u32 v6, {sB}, v6\ns_mov_b32 vcc_lo, 0x01100101\ns_mov_b32 vcc_hi, 0\nv_cndmask_b32 {aSTW}, v12, v6, vcc")
        if o["smf"] & 8:
            e(f"v_lshlrev_b32 v6, 4, {vL}\nv_add_u32 v6, {sB}, v6\ns_mov_b32 vcc_lo, 0x11\nv_cndmask_b32 {aSTW}, v12, v6, vcc")
            e(f"v_and_b32 v6, 1, {vC}\nv_mul_u32_u24 {aTCH}, 0xaaaa, v6\nv_add_u32 {aTCH}, 0x4444, {aTCH}")
        e(f"s_lshl_b32 {sB}, {sW}, 7\ns_add_u32 {sB}, {sB}, {B_H}\nv_lshlrev_b32 v6, 1, {vL}\nv_add_u32 {aHW}, {sB}, v6")
        e(f"v_lshl_add_u32 v6, v10, 6, v11\nv_add_u32 {aHR}, {sB}, v6")
        e(f"s_and_b32 {sB}, {sF}, 60\ns_add_u32 {sB}, {sB}, {sF}\ns_lshl_b32 {sB}, {sB}, 11\ns_lshl_b32 {sA}, {sW}, 9\ns_add_u32 {sB}, {sB}, {sA}\nv_add_u32 {aS45}, {sB}, v9")
        e(f"v_mov_b32 v8, 0x3f803f80\nv_and_b32 v6, 31, {vL}\nv_lshlrev_b32 v6, 2, v6\nv_add_u32 v6, {B_ONES}, v6\nds_write_b32 v6, v8")
        e(f"v_lshrrev_b32 v6, 2, {vL}\nv_mul_u32_u24 v6, 1056, v6\nv_lshl_add_u32 v6, {vq}, 3, v6\ns_lshl_b32 {sA}, {sW}, 7\nv_add_u32 v28, {sA}, v6\nv_add_u32 v29, {64*1056}, v28")
        e("s_waitcnt lgkmcnt(0)")
        self.stamp("E")
        self.cons_pats(PC)
        e(f"v_and_b32 v6, 7, {vC}\nv_lshlrev_b32 v6, 2, v6\nv_lshrrev_b32 v6, v6, {vT}")
        self.pat(Q0, "v6", 0)
        self.pat(Q1, "v6", 2)
        e(f"v_lshlrev_b32 v6, 1, {vC}\nv_lshrrev_b32 v6, v6, {vT}")
        self.pat(P45, "v6", 0)
        e("s_barrier")
        ckv(range(8, 16))
        for k, a in enumerate((PRET,) + PRET2):
            e(f"v_mov_b32 v{16+k}, {a}\nbuffer_load_dword v{16+k}, v{16+k}, {srd(S_WS)}, 0 offen")
        self.place_load(20)
        e(f"s_mul_i32 s74, {sW}, 2112\ns_add_u32 s74, s74, {B_QA}")
        self.stamp('ckviss')
        for L in range(2):
            X = "'" * L
            l = self.lab("s1")
            if L == 0:
                e(f"s_lshl_b32 {sE}, {sJ}, 4\ns_add_u32 {sE}, {sE}, {sI}\ns_lshl_b32 {sE}, {sE}, 15")

            def apply_place():
                e(f"s_lshr_b32 {sA}, {sWW}, 3\ns_lshr_b32 {sB}, {sXCC}, 2\ns_xor_b32 {sA}, {sA}, {sB}\ns_and_b32 {sA}, {sA}, 1\ns_lshl_b32 {sSIDE}, {sA}, 13")
                e(f"v_add_u32 {aS1LD}, {sSIDE}, {aS1LD}\nv_add_u32 {aS3LD}, {sSIDE}, {aS3LD}\nv_add_u32 {aCANR}, {sSIDE}, {aCANR}")
                e(f"s_lshl_b32 {sA}, {sHG}, 2\ns_add_u32 {sA}, {sA}, {sWW}\nv_add_u32 v6, {sA}, {vG}\nv_lshlrev_b32 v6, 1, v6\nv_xor_b32 v6, {sWW}, v6\nv_and_b32 v6, 8, v6\nv_lshl_add_u32 {aS2ST}, v6, 10, {aS2ST}")

            def place():
                lq = self.lab("pq")
                e(f"s_waitcnt vmcnt(0)")
                for u in range(16):
                    e(f"ds_read_b128 {R(CS_+4*u,4)}, v30 offset:{B_CKV+u*64}")
                e(f"v_readfirstlane_b32 {sPLAIN}, v20\nv_readfirstlane_b32 {sWW}, v21\ns_cmp_lg_u32 {sPLAIN}, {sT}\ns_cbranch_scc1 {lq}")
                apply_place()
                e(f"{lq}:")
            self.canary_wait(L, aCANR, o["d_s1" if L == 0 else "e_s1"], pre=place if L == 0 else None, wsel=7 if L == 0 else 0)
            self.stamp("S1can" + X)
            e(f"s_mov_b32 {sA}, {S1R(L)}")
            ld = f"buffer_load_dwordx4 v[8:11], {aS1LD}, {srd(S_WS)}, {sA} offen sc1\nbuffer_load_dwordx4 v[12:15], {aS1LD}, {srd(S_WS)}, {sA} offen offset:1024 sc1"
            if o["dma1"]:
                ld = f"s_mov_b32 m0, s74\nbuffer_load_dwordx4 {aS1LD}, {srd(S_WS)}, {sA} offen sc1 lds\ns_add_u32 m0, s74, 32\nbuffer_load_dwordx4 {aS1LD}, {srd(S_WS)}, {sA} offen offset:1024 sc1 lds"
            if L == 0:
                e(ld)
                if o["early"] == 1:
                    lx = self.lab("wx")
                    e(f"s_cmp_ge_u32 {sW}, 4\ns_cbranch_scc1 {lx}\nv_lshlrev_b32 v6, 7, v0\nbuffer_load_dword v255, v6, {srd(S_WO)}, {sE} offen\n{lx}:")
                if o["early"] == 2:
                    self.ffn_touch(sI, "v255")
                    e(f"s_mov_b32 {sA}, {S1R(L)}")
                for u in range(4):
                    for t in range(4):
                        base, off = ("v28", u * 32 * 1056) if u < 2 else ("v29", (u - 2) * 32 * 1056)
                        e(f"ds_read_b64_tr_b16 {R(CP+16*u+4*t,2)}, {base} offset:{off+32*t}\nds_read_b64_tr_b16 {R(CP+16*u+4*t+2,2)}, {base} offset:{off+32*t+16*1056}")
                l2 = self.lab("in")
                e(f"{l2}:")

                def stub():
                    e(f"{l}:")
                    self.guard()
                    e(f"s_sleep {o['backoff']}\n{ld}\ns_waitcnt vmcnt(0)\ns_branch {l2}")
                self.oob(stub)
            else:
                self.retry_head(l)
                e(ld)
            if L == 0 and o["early"]:
                lz = self.lab("wz")
                e(f"s_cmp_ge_u32 {sW}, 4\ns_cbranch_scc1 {lz}\ns_waitcnt vmcnt(1)\ns_branch {lz}_\n{lz}:\ns_waitcnt vmcnt(0)\n{lz}_:")
            else:
                e("s_waitcnt vmcnt(0)")
            if o["dma1"]:
                e(f"ds_read_b128 v[8:11], {aQAW}\nds_read_b128 v[12:15], {aQAW} offset:1056\ns_waitcnt lgkmcnt(0)")
            else:
                e(f"ds_write_b128 {aQAW}, v[8:11]\nds_write_b128 {aQAW}, v[12:15] offset:1056")
            self.check(list(range(8, 16)), PC, sM, "v6")
            e(f"s_cbranch_vccnz {l}")
            self.stamp('S1got' + X)
            self.bar()
            for u in range(4):
                e(f"ds_read_b128 {R(8+4*u,4)}, {aQAR} offset:{u*64}")
            for u in range(16):
                e(f"s_waitcnt lgkmcnt({min(3, 15-u)})")
                self.mfma(24, CS_ + 4 * u, 8 + 4 * (u & 3), None if u == 0 else 24)
                if u + 4 < 16:
                    e(f"ds_read_b128 {R(8+4*(u&3),4)}, {aQAR} offset:{(u+4)*64}")
            e(f"s_lshl_b32 {sA}, {sW}, 2\nv_add_u32 v7, {sA}, {aMX}\nv_max3_f32 v8, v24, v25, v26\nv_max_f32 v8, v8, v27")
            self.allred(["v8"], "v_max_f32", ["v9"], [16, 32])
            e(f"ds_write_b32 v7, v8")
            self.bar()
            self.stamp('Y2' + X)
            if L == 0 and o["wohelp"] == 2:
                if o["early"] == 2:
                    lx = self.lab("fy")
                    e(f"s_add_u32 {sE}, {sI}, 10\ns_cmp_lt_u32 {sE}, 16\ns_cbranch_scc1 {lx}\ns_cmp_ge_u32 {sE}, 24\ns_cbranch_scc1 {lx}")
                    self.ffn_touch(sE, "v255")
                    e(f"{lx}:")
                else:
                    self.ffn_touch(sI, "v255")
            if L == 0:
                l1, l2 = self.lab("lp"), self.lab("lq")
                e(f"s_cmp_lg_u32 {sPLAIN}, {sT}\ns_cbranch_scc1 {l1}\n{l2}:")

                def late():
                    e(f"{l1}:")
                    self.guard()
                    self.place_load(20)
                    e(f"s_waitcnt vmcnt(0)\nv_readfirstlane_b32 {sPLAIN}, v20\nv_readfirstlane_b32 {sWW}, v21\ns_cmp_lg_u32 {sPLAIN}, {sT}\ns_cbranch_scc1 {l1}")
                    apply_place()
                    e(f"s_branch {l2}")
                self.oob(late)
            self.canary_set(2 + L, aCAN, o['lead_s2'] == 2)
            e(f"ds_read_b128 v[8:11], {aMX}\nds_read_b128 v[12:15], {aMX} offset:16\ns_waitcnt lgkmcnt(1)")
            e("v_max3_f32 v8, v8, v9, v10\ns_waitcnt lgkmcnt(0)\nv_max3_f32 v12, v12, v13, v14\nv_max3_f32 v8, v8, v11, v15\nv_max_f32 v5, v8, v12")
            for r in range(4):
                e(f"v_sub_f32 v{24+r}, v{24+r}, v5")
            for r in range(4):
                e(f"v_exp_f32 v{24+r}, v{24+r}")
            e("v_cvt_pk_bf16_f32 v8, v24, v25\nv_cvt_pk_bf16_f32 v9, v26, v27\nv_add_f32 v10, v24, v25\nv_add_f32 v11, v26, v27")
            e(f"ds_write_b64 {aPW}, v[8:9]\nv_add_f32 v10, v10, v11")
            self.allred(["v10"], "v_add_f32", ["v11"], [16, 32])
            e(f"ds_write_b32 v7, v10 offset:512")
            self.bar()
            self.stamp('Y3' + X)
            self.canary_set(2 + L, aCAN, o['lead_s2'] == 1)
            e(f"ds_read_b128 v[24:27], {aMX} offset:512\nds_read_b128 v[28:31], {aMX} offset:528\nds_read_b128 v[8:11], {aPR}\nds_read_b128 v[12:15], {aPR} offset:64")
            e(f"v_lshlrev_b32 v7, 2, {vC}\ns_lshl_b32 {sA}, {sW}, 6\ns_add_u32 {sA}, {sA}, {B_LI}\nv_add_u32 v7, {sA}, v7\ns_waitcnt lgkmcnt(1)")
            D = [16, 20, 24, 28]
            self.mfma(D[0], 8, CP)
            self.mfma(D[1], 8, CP + 4)
            e("v_add_f32 v24, v24, v25\nv_add_f32 v26, v26, v27\nv_add_f32 v28, v28, v29\nv_add_f32 v30, v30, v31\nv_add_f32 v24, v24, v26\nv_add_f32 v28, v28, v30\nv_add_f32 v6, v24, v28")
            self.mfma(D[2], 8, CP + 8)
            self.mfma(D[3], 8, CP + 12)
            e(f"ds_read_b128 v[8:11], {aPR} offset:128\ns_waitcnt lgkmcnt(1)")
            for t in range(4):
                self.mfma(D[t], 12, CP + 16 + 4 * t, D[t])
            e(f"ds_read_b128 v[12:15], {aPR} offset:192\nds_write_b32 v7, v6")
            l = self.lab("k")
            e(f"s_cmp_lg_u32 {sW}, 0\ns_cbranch_scc1 {l}\nv_log_f32 v6, v6\nv_mov_b32 v7, {vT}\ns_mov_b32 {sA}, {LSE(L)}\nv_add_f32 v6, v6, v5\ns_mov_b32 exec_hi, 0")
            e(f"buffer_store_dwordx2 v[6:7], {aLSEST}, {srd(S_WS)}, {sA} offen sc1\ns_mov_b64 exec, -1\n{l}:")
            e("s_waitcnt lgkmcnt(2)")
            for t in range(4):
                self.mfma(D[t], 8, CP + 32 + 4 * t, D[t])
            e(f"ds_read_b128 v[8:11], {aLR}\ns_waitcnt lgkmcnt(2)")
            for t in range(4):
                self.mfma(D[t], 12, CP + 48 + 4 * t, D[t])
            e("s_waitcnt lgkmcnt(0)")
            for r in range(4):
                e(f"v_rcp_f32 v{8+r}, v{8+r}")
            for r in range(4):
                e(f"s_mov_b32 {sA}, {S2R(L) + r*131072}")
                for t in range(4):
                    e(f"v_mul_f32 v{D[t]+r}, v{D[t]+r}, v{8+r}")
                self.pack_ovw(f"v{12+2*(r&1)}", f"v{D[0]+r}", f"v{D[1]+r}", Q0)
                self.pack_ovw(f"v{13+2*(r&1)}", f"v{D[2]+r}", f"v{D[3]+r}", Q1)
                e(f"buffer_store_dwordx2 {R(12+2*(r&1),2)}, {aS2ST}, {srd(S_WS)}, {sA} offen sc1")
            self.canary_set(2 + L, aCAN, o['lead_s2'] == 0)
            self.stamp('S2pub' + X)
            lnf = self.lab("nf")
            if L == 0:
                e("s_barrier")
                if o["fhelp"] and o["early"] != 2:
                    lx = self.lab("fy")
                    e(f"s_add_u32 {sE}, {sI}, 10\ns_cmp_lt_u32 {sE}, 16\ns_cbranch_scc1 {lx}\ns_cmp_ge_u32 {sE}, 24\ns_cbranch_scc1 {lx}")
                    self.ffn_touch(sE, "v255")
                    e(f"{lx}:")
            if L == 0 and o["retouch"]:
                lx = self.lab("rt")
                e(f"s_cmp_lg_u32 {sW}, 7\ns_cbranch_scc1 {lx}\ns_getpc_b64 s[72:73]\nL_pc2:\ns_sub_u32 s72, s72, L_pc2-{NAME}_kernel\ns_subb_u32 s73, s73, 0\ns_lshl_b32 {sA}, {sI}, 11")
                e(f"v_lshlrev_b32 v6, 5, {vL}\nv_add_u32 v6, {sA}, v6\nv_min_u32 v6, L_code_end-{NAME}_kernel-4, v6\nglobal_load_dword v255, v6, s[72:73] sc1\n{lx}:")
            e(f"s_cmp_ge_u32 {sF}, 43\ns_cbranch_scc1 {lnf}")
            if L == 0:
                e(f"v_lshrrev_b32 v6, 2, {vL}\ns_lshl_b32 {sA}, {sW}, 6\nv_add_u32 v6, {sA}, v6\nv_mul_u32_u24 v6, 2752, v6\nv_and_b32 v15, 3, {vL}\nv_lshl_add_u32 v6, v15, 4, v6\ns_lshl_b32 {sA}, {sF}, 6\nv_add_u32 v6, {sA}, v6")
                e(f"s_lshl_b32 {sC}, {sW}, 12")
                for sr, base in ((S_WG, B_FG), (S_WU, B_FU)):
                    for q in range(4):
                        e(f"s_mov_b32 {sA}, {q*16*2752}\ns_add_u32 m0, {sC}, {base + q*1024}\nbuffer_load_dwordx4 v6, {srd(sr)}, {sA} offen lds")
                    e("s_barrier")
                e(f"v_lshrrev_b32 v6, 3, {vL}\nv_lshlrev_b32 v6, 10, v6\nv_and_b32 v7, 7, {vL}\nv_lshl_add_u32 v6, v7, 4, v6\ns_lshl_b32 {sA}, {sF}, 15\ns_lshl_b32 {sB}, {sW}, 7\ns_add_u32 {sA}, {sA}, {sB}\nv_add_u32 v6, {sA}, v6")
                for q in range(4):
                    e(f"s_mov_b32 {sA}, {q*8192}\ns_add_u32 m0, {sC}, {B_FD + q*1024}\nbuffer_load_dwordx4 v6, {srd(S_WD)}, {sA} offen lds")
                e(f"v_bfe_u32 v14, {vL}, 2, 2\nv_and_b32 v6, 1, v14\nv_lshlrev_b32 v6, 4, v6\nv_lshl_add_u32 v6, {vG}, 2, v6\nv_lshrrev_b32 v7, 1, v14\nv_add_u32 v6, v6, v7\nv_lshlrev_b32 v6, 6, v6\nv_lshl_add_u32 v6, v15, 3, v6\nv_add_u32 v6, {sC}, v6")
                e(f"v_lshl_add_u32 v7, {vG}, 3, v14\nv_lshlrev_b32 v7, 7, v7\nv_lshl_add_u32 v7, v15, 3, v7\ns_and_b32 {sA}, {sW}, 3\ns_lshl_b32 {sA}, {sA}, 13\ns_add_u32 {sA}, {sA}, {B_FD}\nv_add_u32 v7, {sA}, v7")
                e("s_waitcnt vmcnt(4)")
                for mi, base in enumerate((B_FG, B_FU)):
                    for tt in range(2):
                        for u in range(2):
                            rg = FG + 8 * (2 * tt + mi) + 4 * u
                            off = base + u * 2048 + 32 * tt
                            e(f"ds_read_b64_tr_b16 {R(rg,2)}, v6 offset:{off}\nds_read_b64_tr_b16 {R(rg+2,2)}, v6 offset:{off+128}")
                e("s_waitcnt vmcnt(0)\ns_barrier")
                for tt in range(8):
                    off = (tt >> 2) * 4096 + 32 * (tt & 3)
                    e(f"ds_read_b64_tr_b16 {R(FD+4*tt,2)}, v7 offset:{off}\nds_read_b64_tr_b16 {R(FD+4*tt+2,2)}, v7 offset:{off+512}")
                e("s_waitcnt lgkmcnt(0)")
                self.stamp('ffnW')
            self.canary_wait(4 + L, aCANR, o["d_s3" if L == 0 else "e_s3"])
            self.stamp('S3can' + X)
            l = self.lab("s3")
            e(f"s_mov_b32 {sA}, {S3R(L)}\ns_mov_b32 {sB}, {S3R(L)+16384}")
            self.retry_head(l)
            e(f"buffer_load_dwordx4 v[8:11], {aS3LD}, {srd(S_WS)}, {sA} offen sc1\nbuffer_load_dwordx4 v[12:15], {aS3LD}, {srd(S_WS)}, {sB} offen sc1\ns_waitcnt vmcnt(0)")
            self.check(list(range(8, 16)), PC, sM, "v6")
            e(f"s_cbranch_vccnz {l}")
            self.canary_set(6 + L, aCAN, o['lead_s45'] == 2)
            self.stamp('S3got' + X)
            for k in range(4):
                e(f"v_lshlrev_b32 v{16+2*k}, 16, v{8+k}\nv_and_b32 v{17+2*k}, 0xffff0000, v{8+k}\nv_lshlrev_b32 v{24+2*k}, 16, v{12+k}\nv_and_b32 v{25+2*k}, 0xffff0000, v{12+k}")
            for k in range(8):
                e(f"v_add_f32 v{16+k}, v{16+k}, v{24+k}")
            for k in range(4):
                e(f"v_permlane32_swap_b32 v{16+k}, v{20+k}")
            for k in range(4):
                e(f"v_add_f32 v{16+k}, v{16+k}, v{20+k}")
            e("v_permlane16_swap_b32 v16, v18\nv_permlane16_swap_b32 v17, v19\nv_add_f32 v16, v16, v18\nv_add_f32 v17, v17, v19")
            e(f"v_cvt_pk_bf16_f32 v6, v16, v17\nds_write_b32 {aXPW}, v6")
            DD = [16, 20, 24, 28]
            if o["smf"] & 8:
                e(f"ds_read_b128 v[8:11], {aXPR}")
                e("v_lshlrev_b32 v12, 16, v6\nv_and_b32 v13, 0xffff0000, v6\nv_add_f32 v7, v12, v13\nv_mul_f32 v6, v12, v12\nv_fmac_f32 v6, v13, v13")
                for t in range(4):
                    e(f"v_mov_b32 v{DD[t]}, 0\nv_mov_b32 v{DD[t]+1}, 0")
                e("s_waitcnt lgkmcnt(0)")
                for t in range(4):
                    self.smf(DD[t], 8, FG + 8 * t, aTCH)
                self.allred(["v6", "v7"], "v_add_f32", ["v12", "v13"], [1, 2, 8, 16, 32])
                e(f"v_add_f32 v16, v16, v17\nv_add_f32 v17, v20, v21\nv_add_f32 v18, v24, v25\nv_add_f32 v19, v28, v29\nds_write_b128 {aRBW}, v[16:19]\nds_write_b32 {aSTW}, v6\nds_write_b32 {aSTW}, v7 offset:32")
            else:
                e(f"ds_read_b128 v[8:11], {aXPR}\nds_read_b128 v[12:15], {aXPR} offset:64\ns_waitcnt lgkmcnt(1)")
                for t in range(4):
                    self.mfma(DD[t], 8, FG + 8 * t)
                e("s_waitcnt lgkmcnt(0)")
                for t in range(4):
                    self.mfma(DD[t], 12, FG + 8 * t + 4, DD[t])
                e("v_mfma_f32_16x16x32_bf16 v[8:11], v[8:11], v[8:11], 0")
                e("v_mfma_f32_16x16x32_bf16 v[8:11], v[12:15], v[12:15], v[8:11]")
                e(f"v_mov_b32 v17, v20\nv_mov_b32 v18, v24\nv_mov_b32 v19, v28\nds_write_b128 {aRBW}, v[16:19]\nds_write_b32 {aSTW}, v8")
            self.bar()
            self.stamp('Z1' + X)
            self.canary_set(6 + L, aCAN, o['lead_s45'] == 1)
            e(f"s_cmp_ge_u32 {sW}, 4\ns_cbranch_scc1 {lnf}")
            if L == 0:
                e(f"v_lshrrev_b32 v6, 5, {vL}\nv_lshlrev_b32 v6, 8, v6\nv_sub_u32 v6, {aRBR}, v6")
                for k in range(8):
                    e(f"ds_read_b64 {R(8+2*k,2)}, v6 offset:{768*k+512}")
                e(f"s_waitcnt lgkmcnt(0)\nv_add_f32 {vCG}, v8, v10\nv_add_f32 {vCU}, v9, v11")
                for k in range(2, 8):
                    e(f"v_add_f32 {vCG}, {vCG}, v{8+2*k}\nv_add_f32 {vCU}, {vCU}, v{9+2*k}")
            e(f"ds_read_b128 v[24:27], {aSTR}\nds_read_b128 v[28:31], {aSTR} offset:16")
            for k in range(4):
                e(f"ds_read_b64 {R(8+2*k,2)}, {aRBR} offset:{768*k}")
            e("s_waitcnt lgkmcnt(4)\nv_add_f32 v24, v24, v25\nv_add_f32 v26, v26, v27\nv_add_f32 v28, v28, v29\nv_add_f32 v30, v30, v31\nv_add_f32 v24, v24, v26\nv_add_f32 v28, v28, v30\nv_add_f32 v6, v24, v28")
            e(f"ds_read_b128 v[24:27], {aSTR} offset:32\nds_read_b128 v[28:31], {aSTR} offset:48")
            for k in range(4, 8):
                e(f"ds_read_b64 {R(8+2*k,2)}, {aRBR} offset:{768*k}")
            e("s_waitcnt lgkmcnt(6)\nv_add_f32 v8, v8, v10\nv_add_f32 v9, v9, v11\nv_add_f32 v12, v12, v14\nv_add_f32 v13, v13, v15\nv_add_f32 v8, v8, v12\nv_add_f32 v9, v9, v13")
            e("s_waitcnt lgkmcnt(4)\nv_add_f32 v24, v24, v25\nv_add_f32 v26, v26, v27\nv_add_f32 v28, v28, v29\nv_add_f32 v30, v30, v31\nv_add_f32 v24, v24, v26\nv_add_f32 v28, v28, v30\nv_add_f32 v7, v24, v28")
            e(f"v_mul_f32 v7, {f32(1/512)}, v7\nv_mov_b32 v12, {f32(1e-5)}\nv_fmac_f32 v12, {f32(1/512)}, v6\nv_fma_f32 v12, -v7, v7, v12\nv_rsq_f32 v12, v12\ns_waitcnt lgkmcnt(0)")
            e("v_add_f32 v16, v16, v18\nv_add_f32 v17, v17, v19\nv_add_f32 v20, v20, v22\nv_add_f32 v21, v21, v23\nv_add_f32 v8, v8, v16\nv_add_f32 v9, v9, v17\nv_add_f32 v8, v8, v20\nv_add_f32 v9, v9, v21")
            e(f"v_fma_f32 v8, -v7, {vCG}, v8\nv_fma_f32 v9, -v7, {vCU}, v9\nv_mul_f32 v8, v8, v12\nv_mul_f32 v9, v9, v12")
            c1 = -2 * 0.7978845608028654 * math.log2(math.e)
            e(f"v_mul_f32 v10, v8, v8\nv_mov_b32 v11, {f32(c1)}\nv_fmac_f32 v11, {f32(c1*0.044715)}, v10\nv_mul_f32 v10, v11, v8\nv_exp_f32 v10, v10")
            e(f"v_mul_f32 v8, v8, v9\nv_add_f32 v10, 1.0, v10\nv_rcp_f32 v10, v10\ns_mov_b32 {sA}, {S45(L)}\ns_mov_b32 {sB}, {S45(L)+8192}\nv_mul_f32 v8, v8, v10")
            e(f"v_cvt_pk_bf16_f32 v8, v8, v8\nds_write_b16 {aHW}, v8\nds_read_b128 v[8:11], {aHR}\ns_waitcnt lgkmcnt(0)")
            for t in range(8):
                self.mfma(12 + 2 * t, 8, FD + 4 * t)
            for hf in range(2):
                self.pack_ovw(f"v{8+2*hf}", f"v{12+8*hf}", f"v{14+8*hf}", P45)
                self.pack_ovw(f"v{9+2*hf}", f"v{16+8*hf}", f"v{18+8*hf}", P45)
                e(f"v_permlane32_swap_b32 v{8+2*hf}, v{9+2*hf}\nbuffer_store_dword v{8+2*hf}, {aS45}, {srd(S_WS)}, {sA} offen offset:{256*hf} sc1\nbuffer_store_dword v{8+2*hf}, {aS45}, {srd(S_WS)}, {sB} offen offset:{256*hf} sc1")
            self.canary_set(6 + L, aCAN, o['lead_s45'] == 0)
            self.stamp('S45pub' + X)
            e(f"{lnf}:")
        self.dump_stamps()


if __name__ == "__main__":
    import argparse
    ap = argparse.ArgumentParser()
    ap.add_argument("-o", default=f"cdna_kernels/{NAME}.s")
    ap.add_argument("--opt", action="append", default=[])
    a = ap.parse_args()
    opts = {k: int(v) for k, v in (x.split("=") for x in a.opt)}
    open(a.o, "w").write(Gen(**opts).build())
```

```python
import sys, math, struct
sys.path.insert(0, "scratch")
from asmlib import hazard_pass

NAME = "interleave_layers__compressed_kv_cla__glu_gated_geglu__decode"
f32 = lambda x: "0x%08x" % struct.unpack("<I", struct.pack("<f", x))[0]

WADR = 0x80
VOTES = 0x200
PRET = 0x800
CAN = 0x4000
LSE = lambda L: 0x8000 + L * 0x8000
S1R = lambda L: 0x18000 + L * 0x20000
S3R = lambda L: 0x58000 + L * 0x8000
S45 = lambda L: 0x68000 + L * 0x2C000
CAL = 0x100000
I0R = lambda L: 0x200000 + L * 0x80000
COLS = 0x300000
I1R = lambda L: 0x340000 + L * 0x20000
I0S = lambda L: 0x380000 + L * 0x4000
S2R = lambda L: 0x400000 + L * 0x400000
PRET2 = (0x3F0000,)
STAMP = 0xE000000
OOB = 0x7FFFFF00
A_WQ = 0
A_OS = 0
A_XR = 18432
A_WUK = 34048
A_WUV = 67840
A_WO = 101632
A_Q = 134400
A_WW = A_Q + 768
A_CC = A_WW + 256
A_CT = A_CC + 512
A_RR = A_CT + 2304
A_XS = A_RR + 2048
A_ST = A_XS + 256
A_ONE = A_ST + 64
A_DUM = A_ONE + 512
B_CKV = 0
B_QA = 135168
B_MX = 152064
B_LI = B_MX + 1024
B_P = B_LI + 512
B_ONES = B_P + 4608
B_DUM = B_ONES + 128
LDS_BYTES = B_DUM + 256
B_FG = 0
B_FU = 32768
B_FD = 65536
B_XP = 98304
B_H = B_XP + 2048
B_RB = B_H + 1024
B_ST = B_RB + 6144

S_WS, S_X, S_CKV, S_WQ, S_WUK, S_WUV, S_WO, S_WG, S_WU, S_WD, S_OUT = [4 + 4 * k for k in range(11)]
sT1, sT2, sT3, sBW = "s48", "s49", "s50", "s51"
sJ, sI, sW, sT, sM, sFF, sSEL, sGUARD, sPLAIN, sXCC, sPA, sE = ["s%d" % (52 + k) for k in range(12)]
sA, sB, sC, sD = "s64", "s65", "s66", "s67"
sH, sCS = "s68", "s69"
sMASK = "s[70:71]"
sMEAN, sRSTD = "s72", "s73"
sSIDE, sWW = "s100", "s101"
STAMP0 = 78
srd = lambda b: f"s[{b}:{b+3}]"
vL, vC, vG, vT = "v1", "v2", "v3", "v4"
DPPM = "row_mask:0xf bank_mask:0xf"
DP = {1: "quad_perm:[1,0,3,2]", 2: "quad_perm:[2,3,0,1]", 4: "row_half_mirror", 8: "row_ror:8"}

PROFILES = [
    (["start", "Wq", "P1a", "I0got", "S1pub", "Wo", "S2can", "S2got", "I1got", "S3pub", "S45got"],
     ["start", "ckv", "S1can", "S1got", "Y2", "Y3", "S2pub", "ffnW", "S3can", "S3got", "S45pub"]),
    (["start", "S45got", "P1a'", "I0got'", "S1pub'", "S2can'", "S2got'", "I1pub'", "I1got'", "S3pub'", "end"],
     ["start", "S45pub", "S1can'", "S1got'", "Y2'", "Y3'", "S2pub'", "S3can'", "S3got'", "Z1'", "S45pub'"]),
    (["start", "karg", "E", "Wq", "Wuk", "P1a", "I0pr", "I0got", "S1pub", "Wo", "S2can"],
     ["start", "karg", "E", "ckv0", "ckv8", "ckviss", "ckv", "S1can", "S1got", "Y2", "S2pub"]),
    (["start", "end", "S45got"], ["start"]),
    (["start", "S45can", "S45got", "I0got'", "S2can'", "S2got'", "I1got'", "S2can", "S2got", "I1got", "I0got"],
     ["start", "S1can", "S1got", "S3can", "S3got", "S1can'", "S1got'", "S3can'", "S3got'", "Y2", "Y3"]),
    (["start", "S45got", "P1a'", "I0got'", "Xb", "Qs", "Qw", "Qb", "S1pub'", "S2got'", "end"], ["start"] + ["x"] * 10),
    (["start", "S1pub", "Wuv", "WqF", "Wo", "S2can", "S2got", "I1pub", "I1got", "S3pub", "S45got"],
     ["start", "ckviss", "ckv", "S1can", "S1got", "Y2", "S2pub", "ffnW", "S3can", "S3got", "S45pub"]),
]


def R(a, n=1):
    return f"v{a}" if n == 1 else f"v[{a}:{a+n-1}]"


class Gen:
    def __init__(self, **o):
        self.o = dict(stamps=0, bdelay=4, bdelay2=6, adelay=2, d_s1=2, d_s2=5, d_s3=4, d_s45=3, e_s1=2, e_s2=8, e_s3=5, e_s45=4, guard=0x400000, backoff=1,
                      lead_s1=1, lead_s2=1, lead_s3=1, lead_s45=1, prof=0, i0tries=24, bhelp=4, wohelp=2, fhelp=1, amp=0, warm=1, wukdelay=20, vdelay=16, forcec=-1, i0d=1, dma1=1, dma2=1, dma45=1, smf=15, early=0, i1b=1, wqf=1, xd=1, retouch=1)
        self.o.update(o)
        for h in ('s1', 's2', 's3', 's45'):
            self.o.setdefault('e_' + h, self.o['d_' + h])
        self.L = []
        self.uid = 0
        self.nst = 0
        self.cold = []
        self.NA, self.NB = PROFILES[self.o["prof"]]
        self.names = self.NA

    def e(self, s):
        for ln in s.split("\n"):
            self.L.append(ln)

    def lab(self, p):
        self.uid += 1
        return f"L_{p}_{self.uid}"

    def stamp(self, name):
        if self.o["stamps"] and name in self.names:
            k = self.names.index(name)
            if self.o.get("gst") and name != "start":
                self.e(f"s_mov_b32 s{STAMP0+2*k}, {sGUARD}")
            else:
                self.e(f"s_memrealtime s[{STAMP0+2*k}:{STAMP0+2*k+1}]")

    def dump_stamps(self):
        if not self.o["stamps"]:
            return
        e = self.e
        e("s_waitcnt lgkmcnt(0)")
        for k in range(11):
            e(f"v_mov_b32 v{8+k}, s{STAMP0+2*k}")
        e(f"s_lshl_b32 {sA}, s2, 9\ns_lshl_b32 {sB}, {sW}, 6\ns_add_u32 {sA}, {sA}, {sB}\ns_add_u32 {sA}, {sA}, {STAMP}")
        e(f"v_mov_b32 v6, {OOB}\nv_cmp_eq_u32 vcc, 0, {vL}\nv_cndmask_b32 v6, v6, {vL}, vcc")
        e(f"v_mov_b32 v20, {sGUARD}\nv_mov_b32 v21, {sT}\nv_mov_b32 v22, {sPLAIN}\nv_mov_b32 v23, s3")
        for k in range(4):
            e(f"buffer_store_dwordx4 v[{8+4*k}:{11+4*k}], v6, {srd(S_WS)}, {sA} offen offset:{16*k}")

    def mfma(self, d, a, b, c=None):
        self.e(f"v_mfma_f32_16x16x32_bf16 {R(d,4)}, {R(a,4)}, {R(b,4)}, {'0' if c is None else R(c,4)}")

    def smf(self, d, a, b, idx):
        self.e(f"v_smfmac_f32_16x16x64_bf16 {R(d,4)}, {R(a,4)}, {R(b,8)}, {idx}")

    def bar(self):
        self.e("s_waitcnt lgkmcnt(0)\ns_barrier")

    def guard(self):
        if self.o["stamps"]:
            self.nst += 1
            self.e(f"s_movk_i32 s3, {self.nst}")
        self.e(f"s_sub_u32 {sGUARD}, {sGUARD}, 1\ns_cbranch_scc1 {'L_bail' if self.o['stamps'] else 'L_end'}")

    def sel(self, dst, cond, a, b):
        self.e(cond)
        self.e(f"v_cndmask_b32 {dst}, {a}, {b}, vcc")

    def check(self, regs, pats, mask, acc, extra=None):
        e = self.e
        e(f"v_xor_b32 {acc}, {pats[0]}, v{regs[0]}")
        for n, r in enumerate(regs[1:], 1):
            e(f"v_bitop3_b32 {acc}, v{r}, {pats[n & 3]}, {acc} bitop3:0xbe")
        e(f"v_and_or_b32 {acc}, {acc}, {mask}, {extra}" if extra else f"v_and_b32 {acc}, {mask}, {acc}")
        e(f"v_cmp_ne_u32 vcc, 0, {acc}")

    def pat(self, dst, src, sh, kk=None):
        e = self.e
        e(f"v_bfe_u32 {dst}, {src}, {sh}, 2\nv_lshl_or_b32 {dst}, {dst}, 15, {dst}")
        if kk:
            e(f"v_not_b32 {kk[1]}, {dst}\nv_and_b32 {kk[0]}, 1, {kk[1]}\nv_lshlrev_b32 {kk[0]}, 16, {kk[0]}\nv_and_b32 {kk[1]}, 0x10000, {kk[1]}")

    def cons_pats(self, P):
        self.e(f"v_and_b32 v6, 3, {vL}\nv_lshlrev_b32 v6, 3, v6\nv_lshrrev_b32 v6, v6, {vT}")
        for k in range(4):
            self.pat(P[k], "v6", 2 * k)

    def pack_near(self, dst, lo, hi, t0, t1, p, kk):
        e = self.e
        e(f"v_add_u32 {t0}, {kk[0]}, {lo}\nv_add_u32 {t1}, {kk[1]}, {hi}")
        e(f"v_perm_b32 {t0}, {t1}, {t0}, {sSEL}\nv_bfi_b32 {dst}, {sM}, {p}, {t0}")

    def pack_ovw(self, dst, lo, hi, p):
        self.e(f"v_cvt_pk_bf16_f32 {dst}, {lo}, {hi}\nv_bfi_b32 {dst}, {sM}, {p}, {dst}")

    def allred(self, regs, op, tmps, steps):
        e = self.e
        for s in steps:
            if s in DP:
                for r in regs:
                    e(f"{op}_dpp {r}, {r}, {r} {DP[s]} {DPPM}")
            else:
                for r, t in zip(regs, tmps):
                    e(f"v_mov_b32 {t}, {r}")
                for r, t in zip(regs, tmps):
                    e(f"v_permlane{s}_swap_b32 {r}, {t}")
                for r, t in zip(regs, tmps):
                    e(f"{op} {r}, {r}, {t}")

    def can_addr(self, vw, vr, sidx):
        e = self.e
        e(f"s_lshl_b32 {sA}, {sidx}, 9\nv_add_u32 v6, {sA}, v0\ns_lshl_b32 {sA}, {sJ}, 7\ns_add_u32 {sA}, {sA}, {CAN}\nv_lshl_add_u32 v8, v0, 13, {sA}\nv_cmp_gt_u32 vcc, 2, v6\nv_cndmask_b32 {vw}, v13, v8, vcc")
        e(f"v_and_b32 v6, 7, v0\nv_lshlrev_b32 v6, 7, v6\nv_add_u32 {vr}, {CAN}, v6")

    def place_load(self, v):
        self.e(f"v_mov_b32 v{v}, {WADR}\nbuffer_load_dwordx2 v[{v}:{v+1}], v{v}, {srd(S_WS)}, 0 offen sc1")

    def place_wait(self, v, first=False):
        e = self.e
        l, l2 = self.lab("pw"), self.lab("px")
        if not first:
            self.place_load(v)
        e(f"{l2}:\ns_waitcnt vmcnt(0)\nv_readfirstlane_b32 {sA}, v{v}\nv_readfirstlane_b32 {sWW}, v{v+1}\ns_cmp_lg_u32 {sA}, {sT}\ns_cbranch_scc1 {l}")

        def stub():
            e(f"{l}:")
            self.guard()
            e("s_sleep 2")
            self.place_load(v)
            e(f"s_branch {l2}")
        self.oob(stub)
        e(f"s_lshr_b32 {sA}, {sWW}, 3\ns_lshr_b32 {sB}, {sXCC}, 2\ns_xor_b32 {sA}, {sA}, {sB}\ns_and_b32 {sA}, {sA}, 1\ns_lshl_b32 {sSIDE}, {sA}, 13")

    def canary_wait(self, idx, vr, delay, pre=None, wsel=0):
        e = self.e
        l, l2 = self.lab("can"), self.lab("cb")
        e(f"s_cmp_lg_u32 {sW}, {wsel}\ns_cbranch_scc1 {l2}\ns_movk_i32 {sA}, {idx*1024}\ns_mov_b64 exec, 0xff")
        e(f"{l}:")
        self.guard()
        e(f"buffer_load_dword v6, {vr}, {srd(S_WS)}, {sA} offen sc1\ns_waitcnt vmcnt(0)")
        e(f"v_cmp_ne_u32 vcc, v6, {vT}\ns_cbranch_vccnz {l}\ns_mov_b64 exec, -1")
        if delay:
            e(f"s_sleep {delay}")
        e(f"{l2}:")
        if pre:
            pre()
            self.stamp("ckv")
        e("s_barrier")

    def canary_set(self, idx, vw, cond=True):
        if cond:
            self.e(f"s_movk_i32 {sD}, {idx*1024}\nbuffer_store_dword {vT}, {vw}, {srd(S_WS)}, {sD} offen sc1")

    def oob(self, fn):
        keep, self.L = self.L, []
        fn()
        self.cold.append("\n".join(self.L))
        self.L = keep

    def retry_head(self, l, mult=1):
        l2 = self.lab("in")
        self.e(f"{l2}:")

        def stub():
            self.e(f"{l}:")
            self.guard()
            self.e(f"s_sleep {mult*self.o['backoff']}\ns_branch {l2}")
        self.oob(stub)

    def store_intra(self, ins):
        e = self.e
        l1, l2 = self.lab("sc"), self.lab("sd")
        e(f"s_cmp_eq_u32 {sPLAIN}, 0\ns_cbranch_scc1 {l1}")
        for i in ins:
            e(i)
        e(f"{l2}:")
        self.cold.append(f"{l1}:\n" + "\n".join(i + " sc1" for i in ins) + f"\ns_branch {l2}")

    def consts(self):
        self.e(f"s_mov_b32 {sM}, 0x00010001\ns_movk_i32 {sFF}, 0xff\ns_mov_b32 {sSEL}, 0x07060302\ns_mov_b32 {sGUARD}, {self.o['guard']}")

    def fin_srd(self, b, size):
        self.e(f"s_mov_b32 s{b+2}, {size}\ns_mov_b32 s{b+3}, 0x20000")

    def epoch_load(self):
        self.e(f"s_load_dword {sT}, s[{S_WS}:{S_WS+1}], 0")

    def calib(self, sidx):
        e = self.e
        e(f"s_lshl_b32 {sA}, {sidx}, 2\ns_lshr_b32 {sB}, {sW}, 1\ns_add_u32 {sA}, {sA}, {sB}\ns_lshr_b32 {sB}, {sA}, 6\ns_lshl_b32 {sB}, {sB}, 1\ns_and_b32 {sC}, {sW}, 1\ns_add_u32 {sB}, {sB}, {sC}\ns_lshl_b32 {sB}, {sB}, 6")
        e(f"s_and_b32 {sA}, {sA}, 63\ns_add_u32 {sA}, {sA}, {sB}\ns_lshl_b32 {sA}, {sA}, 7\ns_add_u32 {sA}, {sA}, {CAL}")

    def calib_run(self):
        self.e(f"s_memtime s[72:73]\ns_load_dword {sB}, s[{S_WS}:{S_WS+1}], {sA}\ns_waitcnt lgkmcnt(0)\ns_memtime s[70:71]\ns_waitcnt lgkmcnt(0)\ns_sub_u32 {sC}, s70, s72")

    def ffn_touch(self, sK, dst):
        e = self.e
        lx, l1, l2 = self.lab("fx"), self.lab("fa"), self.lab("fb")
        e(f"s_cmp_ge_u32 {sW}, 4\ns_cbranch_scc1 {lx}\ns_mul_i32 {sA}, {sK}, 43\ns_lshr_b32 {sA}, {sA}, 8\ns_mul_i32 {sB}, {sA}, 6\ns_sub_u32 {sB}, {sK}, {sB}\ns_lshl_b32 {sB}, {sB}, 3\ns_add_u32 {sB}, {sB}, {sJ}")
        e(f"s_cmp_ge_u32 {sB}, 43\ns_cselect_b32 {sB}, 0x8000, {sB}\ns_cmp_eq_u32 {sA}, 3\ns_cbranch_scc1 {l1}")
        e(f"v_mul_u32_u24 v6, 2752, v0\ns_lshl_b32 {sB}, {sB}, 6\ns_cmp_eq_u32 {sA}, 1\ns_cselect_b32 {sC}, 0, {256*2752}\ns_add_u32 {sB}, {sB}, {sC}\ns_cmp_eq_u32 {sA}, 0\ns_cbranch_scc1 {l2}")
        e(f"buffer_load_dword {dst}, v6, {srd(S_WU)}, {sB} offen\ns_branch {lx}\n{l2}:\nbuffer_load_dword {dst}, v6, {srd(S_WG)}, {sB} offen\ns_branch {lx}")
        e(f"{l1}:\nv_lshlrev_b32 v6, 7, v0\ns_lshl_b32 {sB}, {sB}, 15\nbuffer_load_dword {dst}, v6, {srd(S_WD)}, {sB} offen\n{lx}:")

    def tags(self):
        self.e(f"s_add_u32 {sT}, {sT}, 1\nv_mov_b32 {vT}, {sT}")

    def build(self):
        e = self.e
        K = NAME + "_kernel"
        e(f"; @launch grid=(256,1,1) block=(512,1,1) lds={LDS_BYTES}")
        e('.amdgcn_target "amdgcn-amd-amdhsa--gfx950"\n.text')
        e(f".globl {K}\n.p2align 8\n.type {K},@function\n{K}:")
        self.stamp('start')
        if self.o["amp"]:
            e("s_memrealtime s[98:99]")
        e("s_cmp_ge_u32 s2, 256\ns_cbranch_scc1 L_end")
        e(f"s_load_dwordx2 s[{S_WS}:{S_WS+1}], s[0:1], 96")
        e(f"s_lshr_b32 {sI}, s2, 3\ns_cmp_ge_u32 {sI}, 16\ns_cbranch_scc1 L_roleB")
        self.roleA()
        e("L_roleB:")
        self.names = self.NB
        self.roleB()
        e("s_endpgm")
        for c in self.cold:
            e(c)
        if self.o["stamps"]:
            e("L_bail:\ns_mov_b64 exec, -1")
            e(f"s_lshl_b32 {sA}, s2, 14\ns_add_u32 {sA}, {sA}, 0xC000000\nv_lshlrev_b32 v6, 5, v0\nbuffer_store_dwordx4 v[8:11], v6, {srd(S_WS)}, {sA} offen\nbuffer_store_dwordx4 v[12:15], v6, {srd(S_WS)}, {sA} offen offset:16\ns_waitcnt vmcnt(0)")
            self.dump_stamps()
        e("L_end:\ns_endpgm\nL_code_end:")
        body = hazard_pass(self.L)
        body.append(f""".section .rodata,"a"
.p2align 6
.amdhsa_kernel {K}
  .amdhsa_next_free_vgpr 256
  .amdhsa_next_free_sgpr 102
  .amdhsa_accum_offset 256
  .amdhsa_group_segment_fixed_size 0
  .amdhsa_kernarg_size 104
  .amdhsa_user_sgpr_count 2
  .amdhsa_user_sgpr_kernarg_segment_ptr 1
  .amdhsa_system_sgpr_workgroup_id_x 1
.end_amdhsa_kernel""")
        return "\n".join(body) + "\n"

    def roleA(self):
        e, o = self.e, self.o
        WQ, WUK, WUV, WO, XOP, SEL0, SEL4 = 32, 32, 128, 144, 160, 164, 168
        vCS, vONE, vTL = "v172", "v173", "v28"
        (aXOFF, aWROW, aI0ST0, aI0ST1, aI0LD, aCSLD, aSTLD, aSTST, aQW, aQR, aS1ST, aS2LD, aOSW, aLSE, aWW, aWA0, aWA1,
         aOTR, aCCW, aCCR, aI1ST, aI1LD, aCTW, aCTR, aRRW, aRRR, aS3ST, aXLD, aXRW, aXTR, aXSW, aCANW, aCANR, aOUT) = ["v%d" % (174 + k) for k in range(34)]
        TB = [vT, "v208", "v209", "v210"]
        PC = ["v240", "v241", "v242", "v243"]
        PS, aS2B, PX = ["v96", "v97", "v98", "v99"], "v100", ["v104", "v105", "v106", "v107"]
        vIDX, P1, PD = "v108", "v109", ["v104", "v105", "v106", "v107"]
        if o["i1b"]:
            WUV = 112
        KG = {(0, 0): 112, (1, 0): 120, (2, 0): 128, (3, 0): 136, (0, 1): 160, (1, 1): 244, (2, 1): 32, (3, 1): 40}
        wuk = lambda t, u: KG[t, u >> 1] + 4 * (u & 1)
        Q0, Q1, K0, K1 = "v252", "v253", ("v254", "v255"), ("v211", "v5")
        P3, K3 = "v30", ("v31", "v29")
        sTB = [sT, sT1, sT2, sT3]
        vr, vq = "v14", "v15"
        e(f"s_load_dwordx2 s[{S_WQ}:{S_WQ+1}], s[0:1], 16\ns_load_dwordx2 s[{S_WUK}:{S_WUK+1}], s[0:1], 24\ns_load_dwordx2 s[{S_X}:{S_X+1}], s[0:1], 0")
        e(f"v_lshrrev_b32 v6, 6, v0\nv_and_b32 {vC}, 15, v0\ns_and_b32 {sJ}, s2, 7\nv_readfirstlane_b32 {sW}, v6\nv_bfe_u32 {vG}, v0, 4, 2\nv_lshlrev_b32 v7, 4, {vC}")
        self.fin_srd(S_WQ, 4 << 20)
        self.fin_srd(S_WUK, 4 << 20)
        e(f"s_and_b32 {sBW}, {sI}, 3\ns_lshl_b32 {sH}, {sJ}, 2\ns_add_u32 {sH}, {sH}, {sBW}\ns_lshr_b32 {sCS}, {sI}, 2\ns_mul_i32 {sD}, {sW}, 8448")
        ljn = self.lab("jn")
        e(f"s_cmp_ge_u32 {sW}, 4\ns_cbranch_scc1 {ljn}")
        e(f"s_lshl_b32 {sA}, {sI}, 8\ns_add_u32 {sA}, {sA}, {sJ}\ns_lshl_b32 {sA}, {sA}, 2\ns_add_u32 {sA}, {sA}, {sW}\ns_lshl_b32 {sA}, {sA}, 8\nv_lshl_add_u32 v9, {vG}, 15, v7\nv_add_u32 v9, {sA}, v9")
        e(f"v_bfe_u32 v10, {vC}, 2, 1\nv_lshlrev_b32 v6, 10, v10\nv_lshl_add_u32 v6, {vG}, 2, v6\ns_lshl_b32 {sB}, {sI}, 6\nv_add_u32 {aXOFF}, {sB}, v6")
        self.fin_srd(S_X, 2048)
        e("s_waitcnt lgkmcnt(0)")
        self.stamp("karg")
        for k, off in enumerate((0, 32, 16, 48)):
            e(f"buffer_load_dword v{24+k}, {aXOFF}, {srd(S_X)}, 0 offen offset:{off}")
        for q in range(8):
            e(f"s_mov_b32 {sA}, {((q & 3) + 16*(q >> 2))*8192}\ns_add_u32 m0, {sD}, {A_WQ + q*1056}\nbuffer_load_dwordx4 v9, {srd(S_WQ)}, {sA} offen lds")
        e(f"{ljn}:\ns_waitcnt lgkmcnt(0)")
        self.epoch_load()
        for b, slot in ((S_WUV, 4), (S_WO, 5), (S_OUT, 10)):
            e(f"s_load_dwordx2 s[{b}:{b+1}], s[0:1], {slot*8}")
        self.fin_srd(S_WS, 0x10000000)
        e(f"v_and_b32 {vL}, 63, v0\nv_mov_b32 v13, {OOB}")
        self.consts()
        e(f"s_getreg_b32 {sXCC}, hwreg(HW_REG_XCC_ID)\ns_and_b32 {sXCC}, {sXCC}, 15\ns_lshl_b32 {sPA}, {sJ}, 4\ns_add_u32 {sPA}, {sPA}, {sI}\ns_mov_b32 {sPLAIN}, 0")
        e(f"v_lshlrev_b32 v7, 4, {vL}\nv_bfe_u32 v10, {vC}, 2, 1\nv_lshlrev_b32 v11, 4, {vG}\nv_bfe_u32 {vr}, {vL}, 2, 2\nv_and_b32 {vq}, 3, {vL}")
        e(f"v_and_b32 v6, 1, {vr}\nv_lshlrev_b32 v6, 2, v6\nv_lshrrev_b32 v8, 1, {vr}\nv_add_u32 v6, v6, v8\nv_and_b32 v8, 1, {vG}\nv_lshl_add_u32 v6, v8, 1, v6\nv_mul_u32_u24 v6, 1056, v6")
        e(f"v_lshrrev_b32 v8, 1, {vG}\nv_lshl_add_u32 v6, v8, 8, v6\nv_lshl_add_u32 v6, {vq}, 3, v6\nv_add_u32 v31, {sD}, v6")
        e(f"s_lshl_b32 {sA}, {sPA}, 2\ns_add_u32 {sA}, {sA}, {sW}\ns_lshl_b32 {sB}, {sA}, 10\ns_add_u32 {sB}, {sB}, {I0R(0)}\nv_add_u32 v6, {sB}, v7\nv_cmp_gt_u32 vcc, 32, {vL}")
        e(f"s_lshl_b32 {sB}, {sA}, 9\ns_add_u32 {sB}, {sB}, {COLS - 512}\nv_cndmask_b32 {aI0ST1}, v13, v6, vcc\nv_add_u32 v6, {sB}, v7")
        e(f"s_and_b32 {sA}, {sH}, 24\ns_add_u32 {sA}, {sA}, {sH}\ns_lshl_b32 {sA}, {sA}, 2\ns_add_u32 {sA}, {sA}, {sCS}\ns_lshl_b32 {sB}, {sA}, 1\ns_and_b32 {sC}, {sW}, 1\ns_add_u32 {sB}, {sB}, {sC}\ns_lshl_b32 {sB}, {sB}, 7")
        e(f"v_lshlrev_b32 v8, 16, {vG}\nv_lshl_add_u32 v8, {vC}, 3, v8\nv_add_u32 v8, {sB}, v8\nv_cndmask_b32 {aS1ST}, v13, v8, vcc")
        self.sel(aI0ST0, f"v_cmp_eq_u32 vcc, 2, {vG}", aI0ST1, "v6")
        e(f"v_add_u32 v6, 256, {aI0ST0}\nv_add_u32 v8, 512, {aI0ST0}\nv_cndmask_b32 {aOUT}, v8, v6, vcc")
        e(f"v_lshrrev_b32 v6, 3, {vL}\nv_sub_u32 v8, {vL}, v6\nv_add_u32 v8, 3, v8\ns_mov_b32 vcc_lo, 0x01100101\ns_mov_b32 vcc_hi, 0\nv_cndmask_b32 v6, v8, v6, vcc")
        e(f"s_lshl_b32 {sA}, {sPA}, 7\nv_lshl_add_u32 v6, v6, 3, {sA}\ns_cmp_eq_u32 {sW}, 0\ns_cselect_b32 vcc_lo, 0x01103fff, 0\nv_cndmask_b32 {aSTST}, v13, v6, vcc")
        e(f"v_lshrrev_b32 v8, 3, {vL}\nv_and_b32 v9, 7, {vL}\nv_lshlrev_b32 v9, 4, v9")
        e(f"s_lshl_b32 {sA}, {sJ}, 6\ns_add_u32 {sA}, {sA}, {sBW}\ns_lshl_b32 {sB}, {sA}, 3\ns_add_u32 {sB}, {sB}, {sW}\ns_lshl_b32 {sB}, {sB}, 7")
        e(f"v_lshl_add_u32 v6, v8, 12, v9\nv_add_u32 {aI0LD}, {sB}, v6")
        e(f"s_lshr_b32 {sC}, {sW}, 2\ns_lshl_b32 {sA}, {sA}, 1\ns_add_u32 {sA}, {sA}, {sC}\ns_lshl_b32 {sA}, {sA}, 1\ns_and_b32 {sE}, {sW}, 1\ns_add_u32 {sA}, {sA}, {sE}\ns_lshl_b32 {sA}, {sA}, 7\ns_add_u32 {sA}, {sA}, {COLS}")
        e(f"v_lshl_add_u32 v6, v8, 11, v9\nv_add_u32 {aCSLD}, {sA}, v6")
        e(f"s_bfe_u32 {sB}, {sW}, 0x10001\ns_lshl_b32 {sA}, {sJ}, 7\ns_add_u32 {sA}, {sA}, {sB}\ns_lshl_b32 {sA}, {sA}, 4\nv_lshlrev_b32 v6, 7, {vC}\nv_add_u32 {aSTLD}, {sA}, v6")
        e(f"v_and_b32 v6, 1, {vC}\nv_mul_u32_u24 {vIDX}, 0xaaaa, v6\nv_add_u32 {vIDX}, 0x4444, {vIDX}")
        if o["smf"] & 1:
            e(f"s_lshl_b32 {sA}, {sB}, 2\ns_add_u32 {sA}, {sA}, {sC}\ns_lshl_b32 {sA}, {sA}, 3\ns_add_u32 {sA}, {sA}, {sE}\ns_lshl_b32 {sA}, {sA}, 3\ns_add_u32 {sA}, {sA}, {A_Q}")
            e(f"v_bfe_u32 v8, {vL}, 1, 1\nv_lshl_add_u32 v8, v8, 7, v11\nv_lshl_add_u32 v8, v6, 1, v8\nv_and_b32 v12, 4, {vL}\nv_add3_u32 {aQW}, v8, v12, {sA}")
            e(f"v_lshl_add_u32 v6, v6, 7, v11\nv_lshl_add_u32 v6, v10, 8, v6\nv_add_u32 {aQR}, {A_Q}, v6")
        else:
            e(f"s_lshl_b32 {sA}, {sB}, 1\ns_add_u32 {sA}, {sA}, {sC}\ns_lshl_b32 {sA}, {sA}, 3\ns_add_u32 {sA}, {sA}, {sE}\ns_lshl_b32 {sA}, {sA}, 4\ns_add_u32 {sA}, {sA}, {A_Q}")
            e(f"v_lshrrev_b32 v6, 3, v9\nv_lshl_add_u32 v6, {vG}, 5, v6\nv_add_u32 {aQW}, {sA}, v6")
            e(f"v_lshl_add_u32 v6, v10, 8, v11\nv_add_u32 {aQR}, {A_Q}, v6")
        e(f"v_mov_b32 v6, 0x3f803f80\nv_cmp_eq_u32 vcc, 8, {vC}\nv_mov_b32 v8, 0\nv_cndmask_b32 {vONE}, v8, v6, vcc")
        self.can_addr(aCANW, aCANR, sI)
        lsk = self.lab("k")
        e(f"s_cmp_lt_u32 {sW}, 4\ns_cbranch_scc1 {lsk}")
        lw = self.lab("k")
        e(f"s_cmp_lg_u32 {sW}, 4\ns_cbranch_scc1 {lw}\ns_lshl_b32 {sA}, {sPA}, 12\ns_add_u32 {sA}, {sA}, {I0R(0)}\ns_lshl_b32 {sB}, {sPA}, 11\ns_add_u32 {sB}, {sB}, {COLS - 4096}\ns_lshl_b32 {sC}, {sPA}, 7\ns_add_u32 {sC}, {sC}, {I0S(0)}")
        e(f"v_lshlrev_b32 v6, 7, {vL}\nv_add_u32 v8, {sA}, v6\nv_add_u32 v6, {sB}, v6\nv_cmp_gt_u32 vcc, 32, {vL}\nv_cndmask_b32 v6, v6, v8, vcc\nv_mov_b32 v8, {sC}\nv_cmp_gt_u32 vcc, 48, {vL}\nv_cndmask_b32 v6, v8, v6, vcc")
        e(f"buffer_load_dword v28, v6, {srd(S_WS)}, 0 offen\n{lw}:")
        e(f"s_cmp_ge_u32 {sW}, 6\ns_cbranch_scc1 {lsk}")
        e(f"s_lshl_b32 {sA}, {sCS}, 1\ns_add_u32 {sA}, {sA}, {sW}\ns_sub_u32 {sA}, {sA}, 4\ns_lshl_b32 {sA}, {sA}, 11\ns_add_u32 {sA}, {sA}, {sH}\ns_lshl_b32 {sA}, {sA}, 8\nv_lshlrev_b32 v9, 4, {vC}\nv_lshl_add_u32 v9, {vG}, 13, v9\nv_add_u32 v9, {sA}, v9")
        e(f"s_lshl_b32 {sD}, {sD}, 1\ns_sub_u32 {sD}, {sD}, {8*8448 - A_WUK}")
        if o["wukdelay"]:
            e(f"s_sleep {o['wukdelay']}")
        for q in range(16):
            e(f"s_mov_b32 {sA}, {q*32768}\ns_add_u32 m0, {sD}, {q*1056}\nbuffer_load_dwordx4 v9, {srd(S_WUK)}, {sA} offen lds")
        e(f"{lsk}:\ns_waitcnt lgkmcnt(0)")
        self.stamp("E")
        self.tags()
        for k in range(1, 4):
            e(f"v_lshrrev_b32 {TB[k]}, {8*k}, {vT}\ns_lshr_b32 {sTB[k]}, {sT}, {8*k}")
        e(f"v_and_b32 v6, 7, {vC}\nv_lshlrev_b32 v6, 2, v6\nv_lshrrev_b32 v6, v6, {vT}")
        self.pat(Q0, "v6", 0, K0)
        self.pat(Q1, "v6", 2, K1)
        lsk = self.lab("k")
        e(f"s_cmp_ge_u32 {sW}, 4\ns_cbranch_scc1 {lsk}\ns_waitcnt vmcnt(0)")
        self.stamp("Wq")
        for t in range(8):
            e(f"ds_read_b64_tr_b16 {R(WQ+4*t,2)}, v31 offset:{A_WQ+32*t}\nds_read_b64_tr_b16 {R(WQ+4*t+2,2)}, v31 offset:{A_WQ+32*t+512}")
        e(f"s_mov_b32 {sA}, 0x05040100\nv_mov_b32 v6, 0x3f803f80\nv_cmp_eq_u32 vcc, 8, {vC}")
        e(f"v_perm_b32 v20, v25, v24, {sA}\nv_perm_b32 v21, v25, v24, {sSEL}\nv_perm_b32 v22, v27, v26, {sA}\nv_perm_b32 v23, v27, v26, {sSEL}")
        for k in range(4):
            e(f"v_cndmask_b32 v{XOP+k}, v{20+k}, v6, vcc")
        lsk2 = self.lab("k")
        e(f"s_waitcnt lgkmcnt(0)\ns_branch {lsk2}\n{lsk}:\ns_cmp_ge_u32 {sW}, 6\ns_cbranch_scc1 {lsk2}")
        e(f"v_mul_u32_u24 v6, 1056, {vC}\nv_lshlrev_b32 v7, 4, {vG}\nv_add3_u32 v6, {sD}, v6, v7\ns_waitcnt vmcnt(0)")
        self.stamp("Wuk")
        for u in range(4):
            for t in range(4):
                e(f"ds_read_b128 {R(wuk(t, u),4)}, v6 offset:{t*256+u*64}")
        e(f"{lsk2}:")
        ld = self.lab("nd")
        e(f"s_lshl_b32 {sA}, s2, 3\ns_add_u32 {sA}, {sA}, {sW}\ns_cmp_lg_u32 {sA}, 7\ns_cbranch_scc1 {ld}")
        e(f"s_sleep {o['vdelay']}\ns_load_dwordx16 s[32:47], s[{S_WS}:{S_WS+1}], {VOTES}")
        VS = list(range(32, 48))
        if not o["stamps"]:
            e(f"s_load_dwordx16 s[80:95], s[{S_WS}:{S_WS+1}], {VOTES+64}")
            VS += list(range(80, 96))
        e(f"s_mov_b32 {sA}, 0\ns_mov_b32 {sB}, 0\ns_xor_b32 {sC}, {sT}, 0x80000000\ns_waitcnt lgkmcnt(0)")
        for k in VS:
            e(f"s_cmp_eq_u32 s{k}, {sT}\ns_addc_u32 {sA}, {sA}, 0\ns_cmp_eq_u32 s{k}, {sC}\ns_addc_u32 {sB}, {sB}, 0")
        e(f"s_load_dwordx2 s[{S_OUT}:{S_OUT+1}], s[0:1], 80")
        if o.get("vprobe"):
            e(f"s_mul_i32 s94, {sA if o['vprobe'] == 1 else sB}, 1000\ns_cmp_eq_u32 {sA}, {sA}\ns_memrealtime s[96:97]\ns_waitcnt lgkmcnt(0)")
        if o["stamps"]:
            e(f"s_lshl_b32 s3, {sA}, 8\ns_or_b32 s3, s3, {sB}\nv_mov_b32 v10, s3")
        e(f"s_cmp_gt_u32 {sB}, {sA}\ns_cselect_b32 {sA}, 8, 0\ns_and_b32 {sB}, {sXCC}, 7\ns_or_b32 {sA}, {sA}, {sB}")
        if o["forcec"] >= 0:
            e(f"s_andn2_b32 {sA}, {sA}, 8\ns_or_b32 {sA}, {sA}, {8*o['forcec']}")
        e(f"v_mov_b32 v9, {sA}\nv_mov_b32 v8, {vT}\nv_mov_b32 v6, {WADR}\ns_mov_b64 exec, 1\nbuffer_store_dwordx2 v[8:9], v6, {srd(S_WS)}, 0 offen sc1")
        if o["stamps"]:
            e(f"buffer_store_dword v10, v6, {srd(S_WS)}, 0 offen offset:128")
        e(f"s_mov_b64 exec, -1\ns_waitcnt lgkmcnt(0)")
        if o.get("vprobe"):
            e("L_spin2:\ns_sleep 8\ns_memrealtime s[92:93]\ns_waitcnt lgkmcnt(0)\ns_sub_u32 s95, s92, s96\ns_cmp_lt_u32 s95, s94\ns_cbranch_scc1 L_spin2")
        e(f"{ld}:")

        for L in range(2):
            X = "'" * L
            if L == 1 and o["wqf"]:
                for k in range(16):
                    e(f"v_mov_b32 v{212+k}, 0")
                for k in range(4):
                    e(f"v_mov_b32 v{16+k}, 0")
                lsk, l = self.lab("k"), self.lab("xg")
                e(f"s_mov_b32 {sA}, {I0R(1)}\ns_cmp_ge_u32 {sW}, 4\ns_cbranch_scc1 {lsk}")
                if o["xd"]:
                    e(f"s_sleep {o['xd']}")
                e(f"{l}:")
                self.guard()
                e(f"buffer_load_dwordx4 v[8:11], {aI0LD}, {srd(S_WS)}, {sA} offen sc1\ns_waitcnt vmcnt(0)")
                e(f"v_cvt_pk_bf16_f32 v12, v8, v9\nv_cvt_pk_bf16_f32 v13, v10, v11\nds_write_b32 {aCSLD}, v12\nds_write_b32 {aCSLD}, v13 offset:576")
                self.check(list(range(8, 12)), sTB, sFF, "v6")
                e(f"s_cbranch_vccnz {l}\n{lsk}:")
                self.stamp("I0got'")
                self.bar()
                self.stamp("Xb")
                XB = [20, 24, 228, 232]
                for U in range(4):
                    e(f"ds_read_b128 {R(XB[U],4)}, {aSTLD} offset:{U*64}")
                fill = [f"v_add_f32_dpp v6, v6, v6 {DP[k]} {DPPM}\nv_add_f32_dpp v7, v7, v7 {DP[k]} {DPPM}" for k in (1, 2, 4)]
                fill += ["v_mov_b32 v12, v6\nv_mov_b32 v13, v7", "v_permlane16_swap_b32 v6, v12\nv_permlane16_swap_b32 v7, v13", "v_add_f32 v6, v6, v12\nv_add_f32 v7, v7, v13\nv_mov_b32 v12, v6\nv_mov_b32 v13, v7",
                         "v_permlane32_swap_b32 v6, v12\nv_permlane32_swap_b32 v7, v13", "v_add_f32 v6, v6, v12\nv_add_f32 v7, v7, v13"]

                def qpass(stats):
                    for U in range(8):
                        e(f"s_waitcnt lgkmcnt({min(3, 7-U)})")
                        self.smf(16, XB[U & 3], 32 + 8 * U, vIDX)
                        if U < 4:
                            e(f"ds_read_b128 {R(XB[U],4)}, {aSTLD} offset:{(U+4)*64}")
                        if stats:
                            e(fill[U])
                    self.stamp("Qs")
                lsk, lsk2 = self.lab("k"), self.lab("k")
                e(f"s_cmp_ge_u32 {sW}, 4\ns_cbranch_scc1 {lsk}")
                e("v_add_f32 v7, v8, v9\nv_mul_f32 v6, v8, v8\nv_add_f32 v12, v10, v11\nv_fmac_f32 v6, v9, v9\nv_add_f32 v7, v7, v12\nv_fmac_f32 v6, v10, v10\nv_fmac_f32 v6, v11, v11")
                qpass(True)
                e(f"ds_write_b64 {aSTST}, v[6:7]\ns_branch {lsk2}\n{lsk}:")
                qpass(False)
                e(f"s_cmp_ge_u32 {sW}, 6\ns_cbranch_scc1 {lsk2}")
                for t in range(2, 4):
                    for u in range(2, 4):
                        e(f"ds_read_b128 {R(wuk(t, u),4)}, {aI0ST0} offset:{t*256+u*64}")
                e(f"{lsk2}:\nv_add_f32 v16, v16, v17\nv_add_f32 v18, v18, v19\nv_cvt_pk_bf16_f32 v16, v16, v18\ns_mov_b32 exec_hi, 0")
                e(f"ds_write_b16 {aQW}, v16\ns_mov_b64 exec, 0xffff\nds_write_b16_d16_hi {aQW}, v16 offset:512\ns_mov_b64 exec, -1")
                self.stamp("Qw")
                self.bar()
                self.stamp("Qb")
                self.canary_set(L, aCANW, o["lead_s1"] == 1)
                l = self.lab("p1b")
                e(f"s_and_b32 {sA}, {sW}, 6\ns_cmp_lg_u32 {sA}, 4\ns_cbranch_scc1 {l}")
                e(f"ds_read_b128 v[8:11], {aQR}\nds_read_b128 v[12:15], {aQR} offset:64\nds_read_b128 v[16:19], {aI0ST1}\nds_read_b128 v[20:23], {aI0ST1} offset:16")
                e(f"s_mov_b32 {sA}, {S1R(L)}\ns_mov_b32 {sB}, {f32(128**-0.5*math.log2(math.e))}")
                for u in range(2):
                    e(f"s_waitcnt lgkmcnt({3-u})")
                    for t in range(4):
                        self.smf(212 + 4 * t, 8 + 4 * u, KG[t, u], vIDX)
                e("s_waitcnt lgkmcnt(0)\nv_add_f32 v16, v16, v18\nv_add_f32 v17, v17, v19\nv_add_f32 v20, v20, v22\nv_add_f32 v21, v21, v23\nv_add_f32 v16, v16, v20\nv_add_f32 v17, v17, v21")
                e(f"v_mul_f32 v17, {f32(1/512)}, v17\nv_mov_b32 v18, {f32(1e-5)}\nv_fmac_f32 v18, {f32(1/512)}, v16\nv_fma_f32 v18, -v17, v17, v18\nv_rsq_f32 v18, v18\ns_nop 0\nv_mul_f32 v18, {sB}, v18")
                for t in range(4):
                    e(f"v_add_f32 v{24+t}, v{212+4*t}, v{213+4*t}\nv_add_f32 v{20+t}, v{214+4*t}, v{215+4*t}")
                for t in range(4):
                    e(f"v_fma_f32 v{24+t}, -v17, v{20+t}, v{24+t}")
                for t in range(4):
                    e(f"v_mul_f32 v{24+t}, v18, v{24+t}")
            else:
                lsk = self.lab("k")
                e(f"s_cmp_ge_u32 {sW}, 4\ns_cbranch_scc1 {lsk}")
                D = [8, 12, 16, 20, 212, 216, 220, 224]
                self.mfma(228, XOP, XOP)
                for t in range(8):
                    self.mfma(D[t], XOP, WQ + 4 * t)
                e(f"s_mov_b32 {sB}, {I0R(L)-I0R(0)}\ns_mov_b32 {sC}, {I0S(L)}\nv_mov_b32 v229, {vT}")
                if L == 0:
                    e(f"v_mov_b32 v6, {sXCC}\nv_bfi_b32 v228, 15, v6, v228")
                for t in range(8):
                    e(f"v_bfi_b32 v{232+t}, {sFF}, {TB[t & 3]}, v{D[t]}")
                if L == 0:
                    first = [f"buffer_store_dwordx4 v[232:235], {aI0ST0}, {srd(S_WS)}, 0 offen", f"buffer_store_dwordx4 v[236:239], {aOUT}, {srd(S_WS)}, 0 offen",
                             f"buffer_store_dwordx2 v[228:229], {aSTST}, {srd(S_WS)}, {sC} offen"]
                    e("\n".join(x + (" sc1" if o.get("allsc1") else "") for x in first))
                else:
                    self.store_intra([f"buffer_store_dwordx4 v[232:235], {aI0ST1}, {srd(S_WS)}, {sB} offen",
                                      f"buffer_store_dwordx4 v[236:239], {aI0ST1}, {srd(S_WS)}, {sB} offen offset:512",
                                      f"buffer_store_dwordx2 v[228:229], {aSTST}, {srd(S_WS)}, {sC} offen"])
                e(f"{lsk}:")
                self.stamp("P1a" + X)
                lp, lr, lm = self.lab("i0p"), self.lab("i0r"), self.lab("i0m")
                e(f"s_mov_b32 {sA}, {I0R(L)}\ns_mov_b32 {sB}, {I0R(L)+32768}\ns_mov_b32 {sC}, {I0S(L)}\ns_movk_i32 {sD}, 16384")
                probe = f"s_mov_b64 exec, 0xffff\nbuffer_load_dwordx4 v[16:19], {aSTLD}, {srd(S_WS)}, {sC} offen sc1"
                ptest = f"v_xor_b32 v7, {vT}, v17\nv_bitop3_b32 v7, v19, {vT}, v7 bitop3:0xbe\nv_cmp_ne_u32 vcc, 0, v7"
                if L == 0:
                    restore = "\n".join(x + " sc1" for x in first)
                    e(f"s_movk_i32 {sE}, {o['i0tries']}")

                def stub():
                    e(f"{lr}:")
                    self.guard()
                    if L == 0:
                        e(f"s_sub_u32 {sE}, {sE}, 1\ns_cmp_lg_u32 {sE}, 0\ns_cbranch_scc1 {lp}\ns_cmp_ge_u32 {sW}, 4\ns_cbranch_scc1 {lp}\ns_mov_b64 exec, -1\n{restore}\n{lp}:")
                    e(f"{probe}\ns_waitcnt vmcnt(0)\n{ptest}\ns_cbranch_vccnz {lr}\ns_branch {lm}")
                self.oob(stub)
                if L == 0 or o["i0d"] < 0:
                    e(f"s_branch {lr}")
                else:
                    e("s_barrier")
                    if o["i0d"]:
                        e(f"s_sleep {o['i0d']}")
                e(f"{lm}:\n{probe}\ns_mov_b64 exec, -1")
                self.stamp("I0pr" + X)
                e(f"buffer_load_dwordx4 v[8:11], {aI0LD}, {srd(S_WS)}, {sA} offen sc1\nbuffer_load_dwordx4 v[12:15], {aI0LD}, {srd(S_WS)}, {sB} offen sc1")
                if L == 0:
                    e(f"buffer_load_dwordx4 v[20:23], {aCSLD}, {srd(S_WS)}, 0 offen sc1\nbuffer_load_dwordx4 v[24:27], {aCSLD}, {srd(S_WS)}, {sD} offen sc1")
                e(f"s_waitcnt vmcnt({4 if L == 0 else 2})\ns_mov_b64 exec, 0xffff\n{ptest}\ns_cbranch_vccnz {lr}")
                if L == 0:
                    e(f"v_and_b32 v7, 15, v16\nv_cmp_ne_u32 vcc, {sXCC}, v7\ns_cmp_eq_u64 vcc, 0\ns_cselect_b32 {sPLAIN}, {0 if o.get('allsc1') else 1}, 0")
                e("s_mov_b64 exec, -1")
                for k in (1, 2, 4, 8):
                    e(f"v_add_f32_dpp v16, v16, v16 {DP[k]} {DPPM}\nv_add_f32_dpp v18, v18, v18 {DP[k]} {DPPM}")
                e(f"v_mul_f32 v18, {f32(1/512)}, v18\nv_mov_b32 v17, {f32(1e-5)}\nv_fmac_f32 v17, {f32(1/512)}, v16\nv_fma_f32 v17, -v18, v18, v17\nv_rsq_f32 v17, v17")
                e(f"v_readfirstlane_b32 {sMEAN}, v18\nv_readfirstlane_b32 {sRSTD}, v17")
                e("s_waitcnt vmcnt(0)")
                self.check(list(range(8, 16)) + (list(range(20, 28)) if L == 0 else []), sTB, sFF, "v6")
                e(f"s_cbranch_vccnz {lr}")
                self.stamp("I0got" + X)
                if L == 0:
                    l1, l2 = self.lab("rs"), self.lab("rt")
                    e(f"s_cmp_eq_u32 {sPLAIN}, 0\ns_cbranch_scc1 {l1}\n{l2}:")
                    self.cold.append(f"{l1}:\ns_cmp_ge_u32 {sW}, 4\ns_cbranch_scc1 {l2}\n{restore}\ns_branch {l2}")
                self.canary_set(L, aCANW, o["lead_s1"] == 1)
                grp = [8] + ([20] if L == 0 else [])
                for b in grp:
                    for k in range(4):
                        e(f"v_add_f32 v{b+k}, v{b+k}, v{b+4+k}")
                for b in grp:
                    e(f"v_permlane32_swap_b32 v{b}, v{b+2}\nv_permlane32_swap_b32 v{b+1}, v{b+3}")
                for b in grp:
                    e(f"v_add_f32 v{b}, v{b}, v{b+2}\nv_add_f32 v{b+1}, v{b+1}, v{b+3}")
                for b in grp:
                    e(f"v_permlane16_swap_b32 v{b}, v{b+1}")
                for b in grp:
                    e(f"v_add_f32 v{b}, v{b}, v{b+1}")
                e(f"v_add_f32_dpp v8, v8, v8 row_ror:8 {DPPM}")
                if L == 0:
                    e(f"v_add_f32_dpp {vCS}, v20, v20 row_ror:8 {DPPM}")
                e(f"v_fma_f32 v8, -{sMEAN}, {vCS}, v8\nv_mul_f32 v8, {sRSTD}, v8\nv_cvt_pk_bf16_f32 v8, v8, v8\nds_write_b16 {aQW}, v8")
                self.bar()
                l = self.lab("p1b")
                e(f"s_and_b32 {sA}, {sW}, 6\ns_cmp_lg_u32 {sA}, 4\ns_cbranch_scc1 {l}")
                for u in range(2 if o["smf"] & 1 else 4):
                    e(f"ds_read_b128 {R(8+4*u,4)}, {aQR} offset:{u*64}")
                e(f"s_mov_b32 {sA}, {S1R(L)}\ns_mov_b32 {sB}, {f32(128**-0.5*math.log2(math.e))}")
                if o["smf"] & 1:
                    for t in range(4):
                        e(f"v_mov_b32 v{212+4*t}, 0\nv_mov_b32 v{213+4*t}, 0")
                    for u in range(2):
                        e(f"s_waitcnt lgkmcnt({1-u})")
                        for t in range(4):
                            self.smf(212 + 4 * t, 8 + 4 * u, KG[t, u], vIDX)
                    for t in range(4):
                        e(f"v_add_f32 v{24+t}, v{212+4*t}, v{213+4*t}")
                    for t in range(4):
                        e(f"v_mul_f32 v{24+t}, {sB}, v{24+t}")
                else:
                    for u in range(4):
                        e(f"s_waitcnt lgkmcnt({3-u})")
                        for t in range(4):
                            self.mfma(212 + 4 * t, 8 + 4 * u, wuk(t, u), None if u == 0 else 212 + 4 * t)
                    for t in range(4):
                        e(f"v_mul_f32 v{24+t}, {sB}, v{212+4*t}")
            self.pack_near("v8", "v24", "v25", "v10", "v11", Q0, K0)
            self.pack_near("v9", "v26", "v27", "v12", "v13", Q1, K1)
            e(f"s_mov_b32 {sB}, {S1R(L)+8192}\nbuffer_store_dwordx2 v[8:9], {aS1ST}, {srd(S_WS)}, {sA} offen sc1\nbuffer_store_dwordx2 v[8:9], {aS1ST}, {srd(S_WS)}, {sB} offen sc1")
            e(f"{l}:")
            self.stamp("S1pub" + X)
            if L == 0:
                for b, sz in ((S_WUV, 4 << 20), (S_WO, 4 << 20), (S_OUT, 2048)):
                    self.fin_srd(b, sz)
                if o["adelay"]:
                    e(f"s_sleep {o['adelay']}")
                e(f"s_lshl_b32 {sA}, {sCS}, 3\ns_add_u32 {sA}, {sA}, {sW}\ns_lshl_b32 {sA}, {sA}, 9\ns_add_u32 {sA}, {sA}, {sH}\ns_lshl_b32 {sA}, {sA}, 8")
                e(f"v_lshlrev_b32 v6, 13, {vG}\nv_lshl_add_u32 v6, {vC}, 4, v6\nv_add_u32 v6, {sA}, v6\ns_mul_i32 {sC}, {sW}, 4224")
                for q in range(4):
                    e(f"s_mov_b32 {sA}, {q*32768}\ns_add_u32 m0, {sC}, {A_WUV + q*1056}\nbuffer_load_dwordx4 v6, {srd(S_WUV)}, {sA} offen lds")
                e(f"v_lshlrev_b32 v7, 4, {vL}\nv_bfe_u32 {vr}, {vL}, 2, 2\nv_and_b32 {vq}, 3, {vL}\nv_mov_b32 v13, {OOB}")
                e(f"v_bfe_u32 v10, {vC}, 2, 1\nv_lshlrev_b32 v11, 4, {vG}\nv_and_b32 v9, 7, {vL}\nv_lshlrev_b32 v9, 4, v9")
                if o["smf"] & 2:
                    e(f"v_and_b32 v6, 1, {vC}\nv_lshl_add_u32 v6, v6, 7, v11\nv_lshl_add_u32 v6, v10, 8, v6\nv_add_u32 {aCCR}, {A_CC}, v6")
                else:
                    e(f"v_lshl_add_u32 v6, v10, 8, v11\nv_add_u32 {aCCR}, {A_CC}, v6")
                self.cons_pats(PC)
                e(f"v_lshlrev_b32 v6, 3, {vq}\nv_lshrrev_b32 {vTL}, v6, {vT}")
                e(f"s_and_b32 {sA}, {sH}, 15\ns_lshl_b32 {sA}, {sA}, 2\ns_add_u32 {sA}, {sA}, {sCS}\ns_lshl_b32 {sA}, {sA}, 4\ns_and_b32 {sC}, {sW}, 4\ns_add_u32 {sA}, {sA}, {sC}\ns_add_u32 {sA}, {sA}, {sW}\ns_lshl_b32 {sA}, {sA}, 11\nv_add_u32 {aS2LD}, {sA}, v7")
                if o["dma2"]:
                    e(f"v_lshlrev_b32 v6, 5, {vG}\nv_xor_b32 {aS2LD}, v6, {aS2LD}\nv_xor_b32 {aS2B}, 128, {aS2LD}\ns_lshl_b32 s75, {sW}, 11\nv_add_u32 {aOSW}, s75, v7")
                    e(f"v_lshlrev_b32 v6, 1, {vG}\nv_xor_b32 v6, v6, {vL}\nv_and_b32 v6, 3, v6\nv_lshlrev_b32 v6, 3, v6\nv_lshrrev_b32 v6, v6, {vT}")
                    for k in range(4):
                        self.pat(PS[k], "v6", 2 * k)
                else:
                    e(f"s_mul_i32 {sA}, {sW}, {8*288}\nv_mul_u32_u24 v6, 288, {vG}\nv_lshl_add_u32 v6, {vC}, 4, v6\nv_add_u32 {aOSW}, {sA}, v6")
                e(f"s_lshr_b32 {sA}, {sJ}, 2\ns_lshl_b32 {sA}, {sA}, 12\ns_and_b32 {sC}, {sH}, 15\ns_lshl_b32 {sC}, {sC}, 3\ns_add_u32 {sA}, {sA}, {sC}")
                e(f"v_lshrrev_b32 v6, 5, {vL}\nv_and_b32 v12, 31, {vL}\nv_lshlrev_b32 v12, 7, v12\nv_lshl_add_u32 v12, v6, 14, v12\nv_add_u32 {aLSE}, {sA}, v12")
                e(f"v_lshlrev_b32 v6, 6, v6\nv_lshl_add_u32 v6, {vr}, 4, v6\nv_and_b32 v12, 1, {vG}\nv_lshl_add_u32 v6, v12, 3, v6\nv_lshl_add_u32 v6, {vq}, 1, v6\nv_add_u32 {aWW}, {A_WW}, v6")
                e(f"v_add_u32 v6, {A_WW}, v11\nv_add_u32 v12, {A_WW+128}, v11")
                self.sel(aWA0, f"v_cmp_eq_u32 vcc, 0, {vC}", "v12", "v6")
                e("v_add_u32 v6, 64, v6")
                self.sel(aWA1, f"v_cmp_eq_u32 vcc, 4, {vC}", "v12", "v6")
                e("s_barrier")
                e(f"s_lshl_b32 {sA}, {sJ}, 19\ns_lshl_b32 {sB}, {sW}, 16\ns_add_u32 {sA}, {sA}, {sB}\ns_lshl_b32 {sB}, {sI}, 6\ns_add_u32 {sA}, {sA}, {sB}")
                e(f"v_lshrrev_b32 v12, 2, {vL}\nv_lshlrev_b32 v6, 10, v12\nv_lshl_add_u32 v6, {vq}, 4, v6\nv_add_u32 v6, {sA}, v6\ns_lshl_b32 {sC}, {sW}, 12")
                e(f"s_and_b32 {sD}, {sI}, 1\ns_lshl_b32 {sD}, {sD}, 11\nv_mov_b32 v23, v6")

                def wo(qs):
                    for q in qs:
                        e(f"s_xor_b32 {sA}, {sD}, {q*1024}\ns_add_u32 m0, {sA}, s74\ns_lshl_b32 {sA}, {sA}, 4\nbuffer_load_dwordx4 v23, {srd(S_WO)}, {sA} offen lds")
                e(f"s_add_u32 s74, {sC}, {A_WO}")
                wo((0, 1))
                for k in range(len(PRET2)):
                    e(f"v_mov_b32 v{24+k}, {PRET2[k]}\nbuffer_load_dword v{24+k}, v{24+k}, {srd(S_WS)}, 0 offen")
                self.fin_srd(S_X, 2048)
                e(f"v_and_b32 v8, 1, {vG}\nv_lshlrev_b32 v8, 10, v8\nv_lshl_add_u32 v8, {vC}, 1, v8\nv_add_u32 v8, {sB}, v8")
                e(f"buffer_load_ushort v18, v8, {srd(S_X)}, 0 offen\nbuffer_load_ushort v19, v8, {srd(S_X)}, 0 offen offset:32")
                e(f"s_lshl_b32 {sA}, {sW}, 5")
                if o["dma2"]:
                    e(f"v_and_b32 v6, 7, v12\nv_xor_b32 v6, {sW}, v6\nv_lshlrev_b32 v6, 5, v6\nv_lshl_add_u32 v6, v12, 8, v6\nv_lshl_add_u32 {aOTR}, {vq}, 3, v6")
                else:
                    e(f"v_mul_u32_u24 v6, 288, v12\nv_lshl_add_u32 v6, {vq}, 3, v6\nv_add_u32 {aOTR}, {sA}, v6")
                if o["dma45"]:
                    e(f"v_bfe_u32 v6, v12, 1, 2\nv_lshlrev_b32 v6, 5, v6\nv_lshl_add_u32 v6, v12, 7, v6\nv_lshl_add_u32 v6, {vq}, 3, v6\nv_add_u32 {aXTR}, {A_XR}, v6")
                    for T in range(1, 4):
                        e(f"v_xor_b32 v{100+T}, {32*T}, {aXTR}")
                else:
                    e(f"v_mul_u32_u24 v6, 160, v12\nv_lshl_add_u32 v6, {vq}, 3, v6\nv_add_u32 {aXTR}, {A_XR}, v6")
                if o["smf"] & 2:
                    e(f"s_lshl_b32 {sA}, {sW}, 4\ns_add_u32 {sA}, {sA}, {A_CC}\nv_bfe_u32 v6, {vC}, 1, 1\nv_lshlrev_b32 v6, 7, v6\nv_lshl_add_u32 v6, {vG}, 8, v6\nv_and_b32 v8, 12, {vC}\nv_add_u32 v6, v6, v8\nv_and_b32 v8, 1, {vC}\nv_lshl_add_u32 v6, v8, 1, v6\nv_add_u32 v6, {sA}, v6\nv_mov_b32 v12, {A_DUM}")
                else:
                    e(f"s_add_u32 {sA}, {sA}, {A_CC}\nv_lshlrev_b32 v6, 8, {vG}\nv_lshl_add_u32 v6, {vC}, 1, v6\nv_add_u32 v6, {sA}, v6\nv_mov_b32 v12, {A_DUM}")
                self.sel(aCCW, f"v_cmp_gt_u32 vcc, 32, {vL}", "v12", "v6")
                e(f"s_lshl_b32 {sB}, {sW}, 8\ns_add_u32 {sB}, {sB}, {A_RR}\nv_lshlrev_b32 v6, 3, {vL}\nv_add_u32 v6, {sB}, v6\nv_cndmask_b32 {aRRW}, v12, v6, vcc")
                e(f"v_lshlrev_b32 v6, 3, {vL}\nv_lshrrev_b32 v8, 5, {vL}\nv_mul_u32_u24 v8, 768, v8\nv_add3_u32 {aRRR}, v6, v8, 0\nv_add_u32 {aRRR}, {A_RR}, {aRRR}\nv_lshlrev_b32 v8, 2, {vL}")
                if o["i1b"]:
                    e(f"v_and_b32 v16, 1, {vC}\nv_lshlrev_b32 v16, 2, v16\nv_bfe_u32 v17, {vC}, 1, 2\nv_and_or_b32 v17, {vC}, 8, v17\nv_add_u32 v16, v16, v17")
                    e(f"s_lshl_b32 {sB}, {sPA}, 2\ns_add_u32 {sB}, {sB}, {sW}\ns_lshl_b32 {sB}, {sB}, 7\nv_lshl_add_u32 v6, {vG}, 4, v16\nv_lshl_add_u32 v6, v6, 2, {sB}\nv_cndmask_b32 {aI1ST}, v13, v6, vcc")
                    e(f"v_lshlrev_b32 v16, 1, v16\nv_lshrrev_b32 v16, v16, {vT}")
                    self.pat(P1, "v16", 0)
                else:
                    e(f"s_lshl_b32 {sB}, {sPA}, 10\ns_lshl_b32 {sC}, {sW}, 7\ns_add_u32 {sB}, {sB}, {sC}\nv_add_u32 v6, {sB}, v8\nv_cndmask_b32 {aI1ST}, v13, v6, vcc")
                if o["warm"]:
                    for rg in (I1R(0), I1R(1)):
                        e(f"s_mov_b32 {sB}, {rg}\nbuffer_load_dword v27, {aI1ST}, {srd(S_WS)}, {sB} offen")
                    if o["wqf"]:
                        e(f"s_lshl_b32 {sB}, {sPA}, 8\ns_add_u32 {sB}, {sB}, {I0R(1)}\nbuffer_load_dword v27, v8, {srd(S_WS)}, {sB} offen")
                    else:
                        e(f"s_mov_b32 {sB}, {I0S(1)}\nbuffer_load_dword v27, {aSTST}, {srd(S_WS)}, {sB} offen")
                        e(f"s_lshl_b32 {sB}, {sPA}, 12\ns_add_u32 {sB}, {sB}, {I0R(1)}\nv_lshlrev_b32 v6, 3, v0\nbuffer_load_dword v27, v6, {srd(S_WS)}, {sB} offen")
                e(f"s_and_b32 {sB}, {sPA}, 64\ns_add_u32 {sB}, {sB}, {sPA}\ns_lshl_b32 {sB}, {sB}, 7\nv_add_u32 v6, {sB}, v8\nv_cndmask_b32 {aS3ST}, v13, v6, vcc")
                if o["i1b"]:
                    e(f"s_lshl_b32 {sB}, {sJ}, 13\ns_lshl_b32 {sC}, {sW}, 8\ns_add_u32 {sB}, {sB}, {sC}")
                    e(f"v_lshrrev_b32 v6, 2, {vC}\nv_lshlrev_b32 v6, 11, v6\nv_lshrrev_b32 v16, 1, {vG}\nv_lshl_add_u32 v6, v16, 7, v6\nv_bfe_u32 v16, {vC}, 1, 1\nv_lshl_add_u32 v6, v16, 6, v6")
                    e(f"v_and_b32 v16, 1, {vG}\nv_and_b32 v17, 1, {vC}\nv_lshl_add_u32 v16, v16, 1, v17\nv_lshl_add_u32 v6, v16, 4, v6\nv_add_u32 {aI1LD}, {sB}, v6")
                    e(f"v_lshlrev_b32 v16, 3, v16\nv_lshrrev_b32 v16, v16, {vT}")
                    for k in range(4):
                        self.pat(PD[k], "v16", 2 * k)
                    e(f"s_lshl_b32 {sB}, {sW}, 8\ns_add_u32 {sB}, {sB}, {A_RR}\nv_lshrrev_b32 v6, 1, {vG}\nv_lshl_add_u32 v6, v6, 4, {vC}\nv_and_b32 v16, 1, {vG}\nv_lshl_add_u32 v6, v6, 1, v16\nv_lshl_add_u32 {aRRW}, v6, 2, {sB}")
                else:
                    e(f"s_lshl_b32 {sB}, {sJ}, 14\ns_lshl_b32 {sC}, {sW}, 9\ns_add_u32 {sB}, {sB}, {sC}")
                    e(f"v_lshlrev_b32 v6, 12, {vG}\nv_lshl_add_u32 v6, {vC}, 4, v6\nv_add_u32 {aI1LD}, {sB}, v6")
                e(f"s_lshl_b32 {sA}, {sW}, 8\ns_add_u32 {sA}, {sA}, {A_CT}\nv_lshlrev_b32 v6, 7, v10\nv_add_u32 v6, {sA}, v6")
                if o["smf"] & 4:
                    e(f"v_and_b32 v8, 1, {vC}\nv_lshl_add_u32 v8, v8, 6, v11\nv_add_u32 {aCTR}, v6, v8")
                    e(f"v_lshrrev_b32 v8, 1, {vG}\nv_lshl_add_u32 v6, v8, 5, v6\nv_lshrrev_b32 v8, 3, {vC}\nv_lshl_add_u32 v6, v8, 4, v6\nv_lshl_add_u32 v6, {vq}, 2, v6\nv_and_b32 v8, 1, {vG}\nv_lshl_add_u32 {aCTW}, v8, 6, v6")
                else:
                    e(f"v_add_u32 {aCTR}, v6, v11")
                    e(f"v_lshrrev_b32 v8, 1, {vG}\nv_lshl_add_u32 v6, v8, 6, v6\nv_lshrrev_b32 v8, 3, {vC}\nv_lshl_add_u32 v6, v8, 5, v6\nv_lshl_add_u32 v6, {vq}, 3, v6\nv_and_b32 v8, 1, {vG}\nv_lshl_add_u32 {aCTW}, v8, 2, v6")
                if o["dma45"]:
                    e(f"v_lshrrev_b32 v8, 3, v0\nv_lshlrev_b32 v6, 4, v0\nv_add_u32 {aXRW}, {A_XR}, v6\nv_lshlrev_b32 v6, 5, {vG}\nv_xor_b32 v9, v9, v6")
                else:
                    e(f"v_lshrrev_b32 v8, 3, v0\nv_mul_u32_u24 v6, 160, v8\nv_add_u32 v6, v6, v9\nv_add_u32 {aXRW}, {A_XR}, v6")
                e(f"s_lshl_b32 {sA}, {sI}, 7\nv_and_b32 v6, 60, v8\nv_add_u32 v6, v6, v8\nv_lshl_add_u32 v6, v6, 11, v9\nv_add_u32 {aXLD}, {sA}, v6")
                e(f"v_cmp_gt_u32 {sMASK}, 43, v8\nv_lshrrev_b32 v8, 3, v8\nv_cmp_eq_u32 vcc, 6, v8\ns_or_b64 {sMASK}, {sMASK}, vcc")
                e(f"v_lshlrev_b32 v6, 7, v10\nv_lshl_add_u32 v6, {vG}, 4, v6\nv_add_u32 v6, {A_XS}, v6\nv_and_b32 v8, 11, {vC}")
                self.sel(aXSW, "v_cmp_eq_u32 vcc, 0, v8", "v12", "v6")
                l = self.lab("k")
                e(f"s_cmp_lg_u32 {sW}, 0\ns_cbranch_scc1 {l}\nv_cndmask_b32 {aOUT}, v13, {aXOFF}, vcc\n{l}:")
                e(f"v_mov_b32 v6, 0x3f803f80\nv_mov_b32 v8, 0\nv_mov_b32 v9, 0\nv_mov_b32 v10, 0\nv_mov_b32 v11, 0")
                e(f"v_lshlrev_b32 v6, 2, {vC}\nv_add_u32 v6, {A_WW+128}, v6\nds_write_b32 v6, v8")
                e(f"s_mov_b64 exec, {sMASK}\ns_not_b64 exec, exec\nds_write_b128 {aXRW}, v[8:11]\ns_mov_b64 exec, -1")
                e("s_barrier")
                wo((2, 3))
                if o["stamps"] and "Wuv" in self.names:
                    self.stamp("Wuv")
                self.place_wait(26)
                e(f"v_add_u32 {aLSE}, {sSIDE}, {aLSE}\nv_add_u32 {aXLD}, {sSIDE}, {aXLD}\nv_add_u32 {aCANR}, {sSIDE}, {aCANR}")
                e(f"s_add_u32 {sA}, {sWW}, {sJ}\ns_lshl_b32 {sA}, {sA}, 1\ns_xor_b32 {sA}, {sA}, {sWW}\ns_and_b32 {sA}, {sA}, 8\ns_lshl_b32 {sA}, {sA}, 10\nv_add_u32 {aS2LD}, {sA}, {aS2LD}\nv_add_u32 {aS2B}, {sA}, {aS2B}")
                e("s_waitcnt lgkmcnt(0)\ns_barrier")
                lw4 = self.lab("k")
                e(f"s_cmp_ge_u32 {sW}, 4\ns_cbranch_scc1 {lw4}")
                e(f"v_lshlrev_b32 v18, 16, v18\nv_lshlrev_b32 v19, 16, v19\nv_mul_f32 v244, {f32(0.125)}, v18\nv_mul_f32 v245, {f32(0.125)}, v19")
                e(f"v_mov_b32 v6, 0x3f803f80\nv_mov_b32 v8, 0")
                self.sel(R(SEL0), f"v_cmp_eq_u32 vcc, 0, {vC}", "v8", "v6")
                self.sel(R(SEL4), f"v_cmp_eq_u32 vcc, 4, {vC}", "v8", "v6")
                for k in range(1, 4):
                    e(f"v_mov_b32 v{SEL0+k}, v{SEL0}\nv_mov_b32 v{SEL4+k}, v{SEL4}")
                e(f"v_lshrrev_b32 v6, 1, {vG}\nv_lshl_add_u32 v6, {vr}, 2, v6\nv_mul_u32_u24 v6, 1056, v6\nv_and_b32 v7, 1, {vG}\nv_lshl_add_u32 v6, v7, 9, v6")
                if o["i1b"]:
                    e(f"s_and_b32 {sA}, {sW}, 3\ns_lshl_b32 {sA}, {sA}, 6\ns_add_u32 {sA}, {sA}, {A_WUV}\nv_lshl_add_u32 v6, {vq}, 3, v6\nv_add_u32 v6, {sA}, v6")
                else:
                    e(f"s_lshl_b32 {sA}, {sW}, 5\ns_add_u32 {sA}, {sA}, {A_WUV}\nv_lshl_add_u32 v6, {vq}, 3, v6\nv_add_u32 v6, {sA}, v6")
                for t in range(2 if o["i1b"] else 1):
                    for u in range(4):
                        off = (16 * (u >> 1) + 2 * (u & 1)) * 1056 + 32 * t
                        e(f"ds_read_b64_tr_b16 {R(WUV+16*t+4*u,2)}, v6 offset:{off}\nds_read_b64_tr_b16 {R(WUV+16*t+4*u+2,2)}, v6 offset:{off+256}")
                e(f"{lw4}:")
                if o["i1b"]:
                    e(f"v_and_b32 v8, 1, {vr}\nv_lshlrev_b32 v8, 4, v8\nv_lshl_add_u32 v8, {vG}, 2, v8\nv_lshrrev_b32 v9, 1, {vr}\nv_add_u32 v8, v8, v9")
                else:
                    e(f"v_lshl_add_u32 v8, {vG}, 3, {vr}")
                e(f"v_lshlrev_b32 v8, 6, v8\nv_lshl_add_u32 v8, {vq}, 3, v8\ns_lshl_b32 {sA}, {sW}, 12\ns_add_u32 {sA}, {sA}, {A_WO}\nv_add_u32 v8, {sA}, v8")
                for t in range(2):
                    for u in range(2):
                        off = u * 2048 + t * 32
                        e(f"ds_read_b64_tr_b16 {R(WO+8*t+4*u,2)}, v8 offset:{off}\nds_read_b64_tr_b16 {R(WO+8*t+4*u+2,2)}, v8 offset:{off+(128 if o['i1b'] else 256)}")
                e("s_waitcnt lgkmcnt(0)")
                self.stamp("Wo")
            else:
                if o["wqf"]:
                    l = self.lab("k")
                    e(f"s_cmp_lg_u32 {sW}, 0\ns_cbranch_scc1 {l}\nv_and_b32 v6, 31, {vL}\nv_lshlrev_b32 v6, 3, v6\nv_add_u32 v6, {A_XS}, v6\nds_read_b64 v[244:245], v6\n{l}:")
                else:
                    l = self.lab("k")
                    e(f"s_cmp_lg_u32 {sW}, 0\ns_cbranch_scc1 {l}")
                    for hf in range(2):
                        for r in range(4):
                            e(f"v_mul_f32 v{244+4*hf+r}, {f32(0.125)}, v{244+4*hf+r}\nds_write_b32 {aXSW}, v{244+4*hf+r} offset:{(r&1)*4 + (8*hf + (r>>1))*8}")
                    e(f"v_and_b32 v6, 31, {vL}\nv_lshlrev_b32 v6, 3, v6\nv_add_u32 v6, {A_XS}, v6\nds_read_b64 v[244:245], v6\n{l}:")
            if L == 1:
                e(f"s_lshl_b32 {sA}, s2, 9\nv_add_u32 v6, {sA}, v0\nv_mov_b32 v7, {OOB}\nv_cmp_eq_u32 vcc, 0, v6\nv_cndmask_b32 v6, v7, v6, vcc\nbuffer_store_dword {vT}, v6, {srd(S_WS)}, 0 offen sc1")
            e(f"v_lshlrev_b32 v6, 1, {vC}\nv_lshrrev_b32 v6, v6, {vT}")
            self.pat(P3, "v6", 0, K3)
            self.canary_wait(2 + L, aCANR, o["d_s2" if L == 0 else "e_s2"])
            self.stamp("S2can" + X)
            l, l0, l1 = self.lab("s2"), self.lab("s2w"), self.lab("s2x")
            e(f"s_mov_b32 {sA}, {S2R(L)}\ns_mov_b32 {sB}, {LSE(L)}\ns_cmp_eq_u32 {sW}, 0\ns_cbranch_scc1 {l0}")
            if o["dma2"]:
                ld2 = f"s_mov_b32 m0, s75\nbuffer_load_dwordx4 {aS2LD}, {srd(S_WS)}, {sA} offen sc1 lds\nbuffer_load_dwordx4 {aS2B}, {srd(S_WS)}, {sA} offen offset:1024 sc1 lds"
                st2 = f"ds_read_b128 v[8:11], {aOSW}\nds_read_b128 v[12:15], {aOSW} offset:1024\ns_waitcnt lgkmcnt(0)"
                P2_, RS = PS, 256
            else:
                ld2 = f"buffer_load_dwordx4 v[8:11], {aS2LD}, {srd(S_WS)}, {sA} offen sc1\nbuffer_load_dwordx4 v[12:15], {aS2LD}, {srd(S_WS)}, {sA} offen offset:1024 sc1"
                st2 = f"ds_write_b128 {aOSW}, v[8:11] offset:{A_OS}\nds_write_b128 {aOSW}, v[12:15] offset:{A_OS+4*288}"
                P2_, RS = PC, 288
            self.retry_head(l)
            e(f"{ld2}\ns_waitcnt vmcnt(0)\n{st2}")
            self.check(list(range(8, 16)), P2_, sM, "v6")
            e(f"s_cbranch_vccnz {l}\ns_branch {l1}")
            e(f"{l0}:")
            l0 = self.lab("s2v")
            self.retry_head(l0)
            e(f"buffer_load_dwordx2 v[16:17], {aLSE}, {srd(S_WS)}, {sB} offen sc1\n{ld2}\ns_waitcnt vmcnt(2)")
            e(f"v_xor_b32 v7, {vT}, v17\nv_mov_b32 v18, v16")
            self.allred(["v18"], "v_max_f32", ["v19"], [1, 2, 4, 8, 16])
            e("v_sub_f32 v16, v16, v18\nv_exp_f32 v16, v16\ns_nop 0\nv_mov_b32 v18, v16")
            self.allred(["v18"], "v_add_f32", ["v19"], [1, 2, 4, 8, 16])
            e(f"v_rcp_f32 v18, v18\ns_nop 0\nv_mul_f32 v16, v16, v18\nv_cvt_pk_bf16_f32 v16, v16, v16\nds_write_b16 {aWW}, v16\ns_waitcnt vmcnt(0)\n{st2}")
            self.check(list(range(8, 16)), P2_, sM, "v6", extra="v7")
            e(f"s_cbranch_vccnz {l0}")
            e(f"{l1}:")
            self.stamp("S2got" + X)
            self.bar()
            e(f"ds_read_b128 v[8:11], {aWA0}\nds_read_b64_tr_b16 v[16:17], {aOTR} offset:{A_OS}\nds_read_b64_tr_b16 v[18:19], {aOTR} offset:{A_OS+16*RS}")
            e(f"ds_read_b128 v[12:15], {aWA1}\nds_read_b64_tr_b16 v[20:21], {aOTR} offset:{A_OS+32*RS}\nds_read_b64_tr_b16 v[22:23], {aOTR} offset:{A_OS+48*RS}")
            e("s_waitcnt lgkmcnt(3)")
            self.mfma(24, 8, 16)
            e("s_waitcnt lgkmcnt(0)")
            self.mfma(24, 12, 20, 24)
            e(f"s_mov_b32 {sB}, {I1R(L)}")
            e(f"v_cvt_pk_bf16_f32 v8, v24, v24\nds_write_b16 {aCCW}, v8")
            self.bar()
            if o["i1b"]:
                lsk = self.lab("k")
                e(f"s_cmp_ge_u32 {sW}, 4\ns_cbranch_scc1 {lsk}")
                e(f"ds_read_b128 v[8:11], {aCCR}\nds_read_b128 v[12:15], {aCCR} offset:64\nv_mov_b32 v16, 0\nv_mov_b32 v17, 0\nv_mov_b32 v20, 0\nv_mov_b32 v21, 0\ns_waitcnt lgkmcnt(1)")
                self.smf(16, 8, WUV, vIDX)
                self.smf(20, 8, WUV + 16, vIDX)
                e("s_waitcnt lgkmcnt(0)")
                self.smf(16, 12, WUV + 8, vIDX)
                self.smf(20, 12, WUV + 24, vIDX)
                e("v_add_f32 v16, v16, v17\nv_add_f32 v20, v20, v21")
                self.pack_ovw("v8", "v16", "v20", P1)
                self.store_intra([f"buffer_store_dword v8, {aI1ST}, {srd(S_WS)}, {sB} offen"])
                e(f"{lsk}:")
                self.stamp("I1pub" + X)
                for k in range(8):
                    e(f"v_mov_b32 v{16+k}, 0")
                l = self.lab("i1")
                e(f"{l}:")
                self.guard()
                e(f"buffer_load_dwordx4 v[8:11], {aI1LD}, {srd(S_WS)}, {sB} offen sc1\ns_waitcnt vmcnt(0)")
                self.check(list(range(8, 12)), PD, sM, "v6")
                e(f"s_cbranch_vccnz {l}")
                self.stamp("I1got" + X)
                self.smf(16, 8, WO, vIDX)
                self.smf(20, 8, WO + 8, vIDX)
                self.canary_set(4 + L, aCANW, o["lead_s3"] == 1)
                e("v_add_f32 v16, v16, v17\nv_add_f32 v18, v18, v19\nv_add_f32 v20, v20, v21\nv_add_f32 v22, v22, v23")
                e("v_permlane32_swap_b32 v16, v18\nv_permlane32_swap_b32 v20, v22\nv_add_f32 v16, v16, v18\nv_add_f32 v20, v20, v22")
                e(f"v_permlane16_swap_b32 v16, v20\nv_add_f32 v16, v16, v20\nds_write_b32 {aRRW}, v16")
            else:
                if o["smf"] & 2:
                    e(f"ds_read_b128 v[8:11], {aCCR}\nds_read_b128 v[12:15], {aCCR} offset:64\nv_mov_b32 v24, 0\nv_mov_b32 v25, 0\ns_waitcnt lgkmcnt(1)")
                    self.smf(24, 8, WUV, vIDX)
                    e("s_waitcnt lgkmcnt(0)")
                    self.smf(24, 12, WUV + 8, vIDX)
                    e("v_add_f32 v24, v24, v25")
                else:
                    for u in range(4):
                        e(f"ds_read_b128 {R(8+4*u,4)}, {aCCR} offset:{u*64}")
                    for u in range(4):
                        e(f"s_waitcnt lgkmcnt({3-u})")
                        self.mfma(24, 8 + 4 * u, WUV + 4 * u, None if u == 0 else 24)
                e(f"v_bfi_b32 v8, {sFF}, {vTL}, v24")
                self.store_intra([f"buffer_store_dword v8, {aI1ST}, {srd(S_WS)}, {sB} offen"])
                self.stamp("I1pub" + X)
                l = self.lab("i1")
                e(f"{l}:")
                self.guard()
                e(f"buffer_load_dwordx4 v[8:11], {aI1LD}, {srd(S_WS)}, {sB} offen sc1\nbuffer_load_dwordx4 v[12:15], {aI1LD}, {srd(S_WS)}, {sB} offen offset:256 sc1\ns_waitcnt vmcnt(0)")
                self.check(list(range(8, 16)), sTB, sFF, "v6")
                e(f"s_cbranch_vccnz {l}")
                self.stamp("I1got" + X)
                self.canary_set(4 + L, aCANW, o["lead_s3"] == 1)
                for k in range(4):
                    e(f"v_permlane32_swap_b32 v{8+k}, v{12+k}")
                for k in range(4):
                    e(f"v_add_f32 v{8+k}, v{8+k}, v{12+k}")
                e("v_permlane16_swap_b32 v8, v10\nv_permlane16_swap_b32 v9, v11\nv_add_f32 v8, v8, v10\nv_add_f32 v9, v9, v11")
                e(f"v_cvt_pk_bf16_f32 v8, v8, v9\nds_write_b32 {aCTW}, v8")
                if o["smf"] & 4:
                    e(f"ds_read_b128 v[8:11], {aCTR}\nv_mov_b32 v16, 0\nv_mov_b32 v17, 0\nv_mov_b32 v20, 0\nv_mov_b32 v21, 0\ns_waitcnt lgkmcnt(0)")
                    self.smf(16, 8, WO, vIDX)
                    self.smf(20, 8, WO + 8, vIDX)
                    e(f"v_add_f32 v16, v16, v17\nv_add_f32 v17, v20, v21\nds_write_b64 {aRRW}, v[16:17]")
                else:
                    e(f"ds_read_b128 v[8:11], {aCTR}\nds_read_b128 v[12:15], {aCTR} offset:64\ns_waitcnt lgkmcnt(1)")
                    self.mfma(16, 8, WO)
                    self.mfma(20, 8, WO + 8)
                    e("s_waitcnt lgkmcnt(0)")
                    self.mfma(16, 12, WO + 4, 16)
                    self.mfma(20, 12, WO + 12, 20)
                    e(f"v_mov_b32 v17, v20\nds_write_b64 {aRRW}, v[16:17]")
            self.bar()
            l = self.lab("fin")
            e(f"s_cmp_lg_u32 {sW}, 0\ns_cbranch_scc1 {l}")
            for k in range(4):
                e(f"ds_read_b64 {R(8+2*k,2)}, {aRRR} offset:{k*256}")
            e(f"s_mov_b32 {sA}, {S3R(L)}\ns_waitcnt lgkmcnt(2)\nv_add_f32 v8, v8, v10\nv_add_f32 v9, v9, v11\ns_waitcnt lgkmcnt(0)\nv_add_f32 v12, v12, v14\nv_add_f32 v13, v13, v15")
            e("v_add_f32 v8, v8, v12\nv_add_f32 v9, v9, v13\nv_mov_b32 v10, v8\nv_mov_b32 v11, v9\nv_permlane32_swap_b32 v8, v10\nv_permlane32_swap_b32 v9, v11")
            e("v_add_f32 v8, v8, v244\nv_add_f32 v9, v9, v245\nv_add_f32 v24, v8, v10\nv_add_f32 v25, v9, v11")
            self.pack_near("v8", "v24", "v25", "v10", "v11", P3, K3)
            e(f"s_mov_b32 {sB}, {S3R(L)+8192}\nbuffer_store_dword v8, {aS3ST}, {srd(S_WS)}, {sA} offen sc1\nbuffer_store_dword v8, {aS3ST}, {srd(S_WS)}, {sB} offen sc1")
            self.canary_set(4 + L, aCANW, o["lead_s3"] == 0)
            e(f"{l}:")
            self.stamp("S3pub" + X)
            if L == 1:
                l = self.lab("ex")
                e(f"s_and_b32 {sA}, {sI}, 7\ns_cmp_eq_u32 {sA}, {sJ}\ns_cbranch_scc1 {l}")
                self.dump_stamps()
                e(f"s_endpgm\n{l}:")
            if L == 0 and o["wqf"]:
                e(f"s_lshl_b32 {sA}, {sW}, 9\ns_add_u32 {sA}, {sA}, {sH}\ns_lshl_b32 {sA}, {sA}, 8\nv_lshlrev_b32 v9, 4, {vC}\nv_lshl_add_u32 v9, {vG}, 15, v9\nv_add_u32 v9, {sA}, v9\ns_mul_i32 {sD}, {sW}, 4160\ns_barrier")

                def wqdma(n):
                    for q in range(4):
                        e(f"s_mov_b32 {sA}, {q*8192 + (n << 20)}\ns_add_u32 m0, {sD}, {A_WUV + (n & 1)*33280 + q*1040}\nbuffer_load_dwordx4 v9, {srd(S_WQ)}, {sA} offen lds")

                def wqfill(n):
                    e(f"s_waitcnt vmcnt({4 if n < 3 else 0})\ns_barrier")
                    for sl in range(4):
                        off = (n & 1) * 33280 + sl * 8320
                        e(f"ds_read_b64_tr_b16 {R(32+16*n+4*sl,2)}, v10 offset:{off}\nds_read_b64_tr_b16 {R(34+16*n+4*sl,2)}, v10 offset:{off+512}")
                    e("s_waitcnt lgkmcnt(0)")
                wqdma(0)
                wqdma(1)
                e(f"v_bfe_u32 {vr}, {vL}, 2, 2\nv_and_b32 {vq}, 3, {vL}\nv_mov_b32 v13, {OOB}\nv_lshlrev_b32 v11, 4, {vG}\nv_bfe_u32 v12, {vC}, 2, 1")
                e(f"v_and_b32 v6, 1, {vr}\nv_lshlrev_b32 v6, 2, v6\nv_lshrrev_b32 v8, 1, {vr}\nv_add_u32 v6, v6, v8\nv_and_b32 v8, 1, {vG}\nv_lshl_add_u32 v6, v8, 1, v6\nv_mul_u32_u24 v6, 1040, v6")
                e(f"v_lshrrev_b32 v8, 1, {vG}\nv_lshl_add_u32 v6, v8, 8, v6\nv_lshl_add_u32 v6, {vq}, 3, v6\ns_lshl_b32 {sA}, {sW}, 5\ns_add_u32 {sA}, {sA}, {A_WUV}\nv_add_u32 v10, {sA}, v6")
                e(f"s_and_b32 {sA}, {sW}, 1\ns_lshl_b32 {sB}, {sA}, 5\nv_xor_b32 v110, {sB}, {aXTR}\nv_xor_b32 v111, 64, v110\ns_lshl_b32 {sB}, {sA}, 6\nv_add_u32 {aXSW}, {sB}, {aXSW}")
                e(f"s_lshl_b32 {sB}, {sPA}, 8\ns_lshl_b32 {sA}, {sA}, 4\ns_add_u32 {sB}, {sB}, {sA}\ns_add_u32 {sB}, {sB}, {I0R(1)}\nv_lshlrev_b32 v6, 7, v12\nv_lshl_add_u32 v6, {vG}, 5, v6\nv_add_u32 v6, {sB}, v6\nv_and_b32 v8, 11, {vC}\nv_cmp_eq_u32 vcc, 0, v8\nv_cndmask_b32 {aWROW}, v13, v6, vcc")
                e(f"v_add_u32 v6, {sA}, {aXOFF}\nv_cndmask_b32 {aOUT}, v13, v6, vcc")
                e(f"s_lshl_b32 {sA}, {sJ}, 12\nv_lshlrev_b32 v6, 4, v0\nv_add_u32 {aI0LD}, {sA}, v6")
                e(f"v_bfe_u32 v6, v0, 3, 1\nv_mul_u32_u24 v6, 1152, v6\nv_lshrrev_b32 v8, 4, v0\nv_lshl_add_u32 v6, v8, 5, v6\nv_bfe_u32 v8, v0, 2, 1\nv_lshl_add_u32 v6, v8, 4, v6\nv_lshl_add_u32 v6, {vq}, 2, v6\nv_add_u32 {aCSLD}, {A_CT}, v6")
                e(f"v_and_b32 v8, 1, {vC}\nv_lshl_add_u32 v6, v12, 1, v8\nv_mul_u32_u24 v6, 576, v6\nv_add_u32 v6, v6, v11\nv_add_u32 v6, {A_CT}, v6\nv_mov_b32 v16, {A_ONE}\nv_lshrrev_b32 v17, 1, {vC}")
                self.sel(aSTLD, "v_cmp_eq_u32 vcc, 1, v17", "v6", "v16")
                e(f"v_lshl_add_u32 v6, v8, 7, v11\nv_lshlrev_b32 v16, 8, v12\nv_mov_b32 v17, 0x200\nv_and_b32 v8, 2, {vC}\nv_cmp_ne_u32 vcc, 0, v8\nv_cndmask_b32 v16, v16, v17, vcc\nv_add3_u32 {aQR}, v6, v16, 0\nv_add_u32 {aQR}, {A_Q}, {aQR}")
                e(f"v_add_u32 {aQW}, {A_Q - A_CC + (1 << 32)}, {aCCW}")
                e(f"s_lshl_b32 {sA}, {sW}, 3\ns_add_u32 {sA}, {sA}, {A_ST}\nv_lshlrev_b32 v6, 2, {vL}\nv_add_u32 v6, {sA}, v6\nv_mov_b32 v8, {A_DUM}\ns_cmp_lt_u32 {sW}, 4\ns_cselect_b32 vcc_lo, 0x101, 0\ns_mov_b32 vcc_hi, 0\nv_cndmask_b32 {aSTST}, v8, v6, vcc")
                e(f"v_and_b32 v6, 1, {vG}\nv_lshlrev_b32 v6, 5, v6\nv_add_u32 {aI0ST1}, {A_ST}, v6")
                e(f"s_and_b32 {sA}, {sW}, 1\ns_mul_i32 {sA}, {sA}, {16*1056}\ns_add_u32 {sA}, {sA}, {A_WUK}\nv_mul_u32_u24 v6, 1056, {vC}\nv_add3_u32 {aI0ST0}, {sA}, v6, v11")
                e(f"v_and_b32 v6, 127, v0\nv_lshlrev_b32 v6, 2, v6\nv_add_u32 v6, {A_ONE}, v6\nv_mov_b32 v8, 0x3f803f80\nds_write_b32 v6, v8")
                for n in range(4):
                    wqfill(n)
                    if n < 2:
                        e("s_barrier")
                        wqdma(n + 2)
                self.stamp("WqF")
            e(f"s_mov_b32 {sB}, {S45(L)}\ns_cmp_eq_u32 {sW}, 6\ns_cselect_b32 {sB}, {S3R(L) - 12*16384}, {sB}\ns_lshl_b32 {sC}, {sW}, 10\ns_add_u32 {sC}, {sC}, {A_XR}")
            self.canary_wait(6 + L, aCANR, o["d_s45" if L == 0 else "e_s45"])
            self.stamp("S45can" + X)
            l, l2 = self.lab("s45"), self.lab("s45n")
            e(f"s_mov_b64 exec, {sMASK}\ns_cbranch_execz {l2}")
            self.retry_head(l)
            if o["dma45"]:
                e(f"s_mov_b32 m0, {sC}\nbuffer_load_dwordx4 {aXLD}, {srd(S_WS)}, {sB} offen sc1 lds\ns_waitcnt vmcnt(0)\nds_read_b128 v[8:11], {aXRW}\ns_waitcnt lgkmcnt(0)")
                self.check(list(range(8, 12)), PS, sM, "v6")
            else:
                e(f"buffer_load_dwordx4 v[8:11], {aXLD}, {srd(S_WS)}, {sB} offen sc1\ns_waitcnt vmcnt(0)")
                e(f"ds_write_b128 {aXRW}, v[8:11]")
                self.check(list(range(8, 12)), PC, sM, "v6")
            e(f"s_cbranch_vccnz {l}")
            e(f"{l2}:\ns_mov_b64 exec, -1")
            self.stamp("S45got" + X)
            self.bar()
            if o["wqf"]:
                lsk = self.lab("k")
                if L == 1:
                    e(f"s_cmp_lt_u32 {sW}, 2\ns_cbranch_scc1 {lsk}")
                    self.dump_stamps()
                    e(f"s_endpgm\n{lsk}:")
                else:
                    e(f"s_cmp_ge_u32 {sW}, 2\ns_cbranch_scc1 {lsk}")
                for n in range(4):
                    e(f"ds_read_b64_tr_b16 {R(8+4*n,2)}, v{110+(n&1)} offset:{(n >> 1)*4096}\nds_read_b64_tr_b16 {R(10+4*n,2)}, v{110+(n&1)} offset:{(n >> 1)*4096 + 2048}")
                for n in range(4):
                    e(f"s_waitcnt lgkmcnt({6-2*n})")
                    self.mfma(244, 8 + 4 * n, SEL4 if n & 1 else SEL0, None if n == 0 else 244)
                if L == 0:
                    for k in range(4):
                        e(f"v_bfi_b32 v{8+k}, {sFF}, {TB[k]}, v{244+k}")
                    self.store_intra([f"buffer_store_dwordx4 v[8:11], {aWROW}, {srd(S_WS)}, 0 offen"])
                    self.stamp("P1a'")
                    for r in range(4):
                        e(f"v_mul_f32 v{244+r}, {f32(0.125)}, v{244+r}\nds_write_b32 {aXSW}, v{244+r} offset:{(r&1)*4 + (r>>1)*8}")
                    e(f"{lsk}:")
                else:
                    e("v_cvt_pk_bf16_f32 v8, v244, v246\nv_cvt_pk_bf16_f32 v9, v245, v247")
                    e(f"buffer_store_dword v8, {aOUT}, {srd(S_OUT)}, 0 offen\nbuffer_store_dword v9, {aOUT}, {srd(S_OUT)}, 0 offen offset:32")
            else:
                lsk = self.lab("k")
                if L == 1:
                    e(f"s_cmp_eq_u32 {sW}, 0\ns_cbranch_scc1 {lsk}")
                    self.dump_stamps()
                    e(f"s_endpgm\n{lsk}:")
                else:
                    e(f"s_cmp_ge_u32 {sW}, 4\ns_cbranch_scc1 {lsk}")
                XT = [8, 12, 16, 20, 212, 216, 220, 224]
                for n in range(8):
                    if o["dma45"]:
                        ad = aXTR if n & 3 == 0 else f"v{100 + (n & 3)}"
                        e(f"ds_read_b64_tr_b16 {R(XT[n],2)}, {ad} offset:{(n >> 2)*4096}\nds_read_b64_tr_b16 {R(XT[n]+2,2)}, {ad} offset:{(n >> 2)*4096 + 2048}")
                    else:
                        off = (n >> 2) * 5120 + 32 * (n & 3)
                        e(f"ds_read_b64_tr_b16 {R(XT[n],2)}, {aXTR} offset:{off}\nds_read_b64_tr_b16 {R(XT[n]+2,2)}, {aXTR} offset:{off+2560}")
                    if n >= 5:
                        T = n - 5
                        e("s_waitcnt lgkmcnt(10)")
                        self.mfma(244 + 4 * (T & 1), XT[T], SEL0 if T < 2 else SEL4, None if T < 2 else 244 + 4 * (T & 1))
                for n in range(3, 8):
                    T = n & 3
                    e(f"s_waitcnt lgkmcnt({14-2*n})")
                    self.mfma(244 + 4 * (T & 1), XT[n], SEL0 if T < 2 else SEL4, 244 + 4 * (T & 1))
                if L == 0:
                    for k in range(4):
                        e(f"v_cvt_pk_bf16_f32 v{XOP+k}, v{244+2*k}, v{245+2*k}")
                    for k in range(4):
                        e(f"v_or_b32 v{XOP+k}, {vONE}, v{XOP+k}")
                    e(f"{lsk}:")
                else:
                    e("v_cvt_pk_bf16_f32 v8, v244, v246\nv_cvt_pk_bf16_f32 v9, v245, v247\nv_cvt_pk_bf16_f32 v10, v248, v250\nv_cvt_pk_bf16_f32 v11, v249, v251")
                    for k, off in enumerate((0, 32, 16, 48)):
                        e(f"buffer_store_dword v{8+k}, {aOUT}, {srd(S_OUT)}, 0 offen offset:{off}")
            if L == 1:
                self.stamp("end")
                if o["amp"]:
                    e(f"s_waitcnt vmcnt(0)\ns_memrealtime s[96:97]\ns_waitcnt lgkmcnt(0)\ns_sub_u32 s94, s96, s98\ns_mul_i32 s94, s94, {o['amp']}\nL_spin:\ns_sleep 8\ns_memrealtime s[92:93]\ns_waitcnt lgkmcnt(0)\ns_sub_u32 s95, s92, s96\ns_cmp_lt_u32 s95, s94\ns_cbranch_scc1 L_spin")
                self.dump_stamps()
                e("s_endpgm")

    def roleB(self):
        e, o = self.e, self.o
        CS_, CP, FG, FD = 32, 96, 160, 192
        (aS1LD, aQAW, aQAR, aMX, aLR, aPW, aPR, aS2ST, aLSEST, aCAN, aCANR, aS3LD, aXPW, aXPR, aRBW, aRBR, aSTW, aSTR, aHW, aHR, aS45,
         vCG, vCU, Q0, Q1, P45, aTCH) = ["v%d" % (224 + k) for k in range(27)]
        PC = ["v251", "v252", "v253", "v254"]
        sB_, sHG, sSP, sF = "s68", "s69", "s76", "s77"
        vr, vq = "v14", "v15"
        for b, slot in ((S_WUK, 3), (S_CKV, 1)):
            e(f"s_load_dwordx2 s[{b}:{b+1}], s[0:1], {slot*8}")
        e(f"v_lshrrev_b32 v6, 6, v0\nv_and_b32 {vL}, 63, v0\ns_and_b32 {sJ}, s2, 7\nv_readfirstlane_b32 {sW}, v6\ns_sub_u32 {sI}, {sI}, 16")
        e(f"v_lshrrev_b32 v6, 3, v0\nv_lshlrev_b32 v6, 13, v6\nv_and_b32 v8, 7, v0\nv_lshl_add_u32 v8, v8, 7, v6\ns_lshl_b32 {sE}, {sI}, 8\ns_add_u32 {sE}, {sE}, {sJ}\ns_lshl_b32 {sE}, {sE}, 10")
        self.fin_srd(S_WUK, 4 << 20)
        self.fin_srd(S_CKV, 8 << 20)
        e(f"s_lshr_b32 {sB_}, {sJ}, 2\ns_and_b32 {sHG}, {sI}, 1\ns_and_b32 {sA}, {sJ}, 3\ns_lshl_b32 {sA}, {sA}, 3\ns_lshr_b32 {sSP}, {sI}, 1\ns_add_u32 {sSP}, {sSP}, {sA}")
        e(f"v_lshlrev_b32 v7, 4, {vL}\ns_lshl_b32 {sA}, {sB_}, 22\ns_lshl_b32 {sB}, {sSP}, 17\ns_add_u32 {sA}, {sA}, {sB}\ns_lshl_b32 {sB}, {sW}, 14\ns_add_u32 {sA}, {sA}, {sB}\nv_add_u32 v31, {sA}, v7")
        e(f"s_mul_i32 s74, {sW}, {16*1056}\ns_lshl_b32 s75, {sHG}, 12")
        e(f"s_sub_u32 {sF}, s2, 128\ns_getreg_b32 {sXCC}, hwreg(HW_REG_XCC_ID)\ns_and_b32 {sXCC}, {sXCC}, 15")
        self.calib(sF)
        e("s_waitcnt lgkmcnt(0)")
        self.stamp('karg')
        l, l2 = self.lab("nv"), self.lab("nw")
        e(f"s_cmp_eq_u32 {sW}, 7\ns_cbranch_scc1 {l}")
        self.calib_run()
        e(f"v_mov_b32 v6, {sC}\ns_lshl_b32 {sA}, {sW}, 2\ns_add_u32 {sA}, {sA}, {B_DUM}\nv_mov_b32 v9, {sA}\nds_write_b32 v9, v6\ns_waitcnt lgkmcnt(0)\ns_barrier")
        if o["bdelay"]:
            e(f"s_sleep {o['bdelay']}")
        if o["bhelp"]:
            lh = self.lab("nh")
            e(f"s_cmp_ge_u32 {sW}, {o['bhelp']}\ns_cbranch_scc1 {lh}\nbuffer_load_dword v255, v8, {srd(S_WUK)}, {sE} offen\n{lh}:")
        self.epoch_load()
        self.fin_srd(S_WS, 0x10000000)
        e(f"s_waitcnt lgkmcnt(0)")
        self.tags()
        e(f"s_branch {l2}\n{l}:")
        self.epoch_load()
        e(f"s_getpc_b64 s[72:73]\nL_pc:\ns_sub_u32 s72, s72, L_pc-{NAME}_kernel\ns_subb_u32 s73, s73, 0\ns_lshl_b32 {sA}, {sI}, 11")
        e(f"v_lshlrev_b32 v6, 5, {vL}\nv_add_u32 v6, {sA}, v6\nv_min_u32 v6, L_code_end-{NAME}_kernel-4, v6\nglobal_load_dword v255, v6, s[72:73]")
        self.fin_srd(S_WS, 0x10000000)
        e(f"v_mov_b32 v6, {B_DUM}\ns_lshr_b32 {sA}, {sXCC}, 2\ns_lshl_b32 {sB}, {sF}, 2\ns_waitcnt lgkmcnt(0)")
        self.tags()
        e(f"s_barrier\nds_read_b128 v[8:11], v6\nds_read_b128 v[12:15], v6 offset:16\nv_mov_b32 v6, {VOTES}\ns_waitcnt lgkmcnt(0)")
        e(f"v_min3_u32 v8, v8, v10, v12\nv_min3_u32 v9, v9, v11, v13\nv_min_u32 v8, v8, v14\nv_cmp_lt_u32 vcc, v9, v8\nv_cndmask_b32 v8, 0, 1, vcc\nv_xor_b32 v8, {sA}, v8\nv_lshlrev_b32 v8, 31, v8\nv_xor_b32 v8, {vT}, v8")
        e(f"s_mov_b64 exec, 1\nbuffer_store_dword v8, v6, {srd(S_WS)}, {sB} offen sc1\ns_mov_b64 exec, -1\n{l2}:")
        for b, slot in ((S_WO, 5), (S_WG, 7), (S_WU, 8), (S_WD, 9)):
            e(f"s_load_dwordx2 s[{b}:{b+1}], s[0:1], {slot*8}")
        if o["bdelay2"]:
            e(f"s_sleep {o['bdelay2']}")
        e("s_barrier")

        def ckv(qs):
            for q in qs:
                e(f"s_xor_b32 {sA}, s75, {((q & 3) + 8*((q >> 2) & 1) + 4*(q >> 3))*1024}\ns_add_u32 m0, s74, {B_CKV + q*1056}\nbuffer_load_dwordx4 v31, {srd(S_CKV)}, {sA} offen lds")
        self.stamp("ckv0")
        ckv(range(8))
        self.stamp("ckv8")
        self.consts()
        e(f"v_and_b32 {vC}, 15, v0\nv_bfe_u32 {vG}, v0, 4, 2\nv_mov_b32 v13, {OOB}\nv_mov_b32 v12, {B_DUM}\nv_bfe_u32 {vr}, {vL}, 2, 2\nv_and_b32 {vq}, 3, {vL}")
        for b, sz in ((S_WO, 4 << 20), (S_WG, 1409024), (S_WU, 1409024), (S_WD, 1409024)):
            self.fin_srd(b, sz)
        e(f"s_lshl_b32 {sA}, {sB_}, 16\ns_lshl_b32 {sB}, {sHG}, 15\ns_add_u32 {sA}, {sA}, {sB}\ns_and_b32 {sB}, {sW}, 4\ns_add_u32 {sB}, {sB}, {sW}\ns_lshl_b32 {sB}, {sB}, 11\ns_add_u32 {sA}, {sA}, {sB}\nv_add_u32 {aS1LD}, {sA}, v7")
        e(f"s_mul_i32 {sA}, {sW}, 2112\ns_add_u32 {sA}, {sA}, {B_QA}\nv_add_u32 {aQAW}, {sA}, v7")
        e(f"v_lshlrev_b32 v11, 4, {vG}\nv_mul_u32_u24 v6, 1056, {vC}\nv_add_u32 v6, v6, v11\nv_add_u32 {aQAR}, {B_QA}, v6")
        e(f"s_mul_i32 {sA}, {sW}, {16*1056}\nv_add_u32 v30, {sA}, v6")
        e(f"v_lshlrev_b32 v6, 5, {vC}\nv_add_u32 {aMX}, {B_MX}, v6\ns_lshl_b32 {sA}, {sW}, 6\ns_add_u32 {sA}, {sA}, {B_LI}\nv_add_u32 {aLR}, {sA}, v11")
        e(f"v_mul_u32_u24 v6, 288, {vC}\nv_add_u32 v6, v6, v11\nv_add_u32 {aPR}, {B_P}, v6")
        e(f"s_lshr_b32 {sA}, {sW}, 1\ns_lshl_b32 {sA}, {sA}, 6\ns_and_b32 {sB}, {sW}, 1\ns_lshl_b32 {sC}, {sB}, 3\ns_add_u32 {sA}, {sA}, {sC}\nv_add_u32 {aPW}, {sA}, {aPR}")
        e(f"s_lshr_b32 {sC}, {sW}, 1\ns_lshl_b32 {sA}, {sC}, 15\ns_lshl_b32 {sC}, {sB_}, 14\ns_add_u32 {sA}, {sA}, {sC}")
        e(f"s_lshl_b32 {sC}, {sSP}, 8\ns_add_u32 {sA}, {sA}, {sC}\ns_lshl_b32 {sC}, {sB}, 7\ns_add_u32 {sA}, {sA}, {sC}")
        e(f"v_lshlrev_b32 v6, 19, {vG}\nv_lshl_add_u32 v6, {vC}, 3, v6\nv_add_u32 {aS2ST}, {sA}, v6")
        e(f"s_lshl_b32 {sA}, {sB_}, 2\ns_add_u32 {sA}, {sA}, {sHG}\ns_lshl_b32 {sA}, {sA}, 5\ns_add_u32 {sA}, {sA}, {sSP}\ns_lshl_b32 {sA}, {sA}, 7\nv_lshlrev_b32 v6, 3, {vC}\nv_lshl_add_u32 v6, {vG}, 13, v6\nv_add_u32 {aLSEST}, {sA}, v6")
        self.can_addr(aCAN, aCANR, sI)
        e(f"s_lshl_b32 {sA}, {sW}, 8\nv_lshlrev_b32 v6, 11, {vG}\nv_lshl_add_u32 v6, {vC}, 4, v6\nv_add_u32 {aS3LD}, {sA}, v6")
        e(f"v_bfe_u32 v10, {vC}, 2, 1\ns_add_u32 {sB}, {sA}, {B_XP}\nv_lshlrev_b32 v6, 7, v10\nv_add_u32 v6, {sB}, v6\nv_add_u32 v9, v6, v11")
        e(f"v_lshrrev_b32 v8, 3, {vC}\nv_lshl_add_u32 v6, v8, 6, v6\nv_lshl_add_u32 v6, {vq}, 4, v6\nv_lshl_add_u32 {aXPW}, {vG}, 2, v6")
        if o["smf"] & 8:
            e(f"v_lshlrev_b32 v6, 7, v10\nv_add_u32 v6, {sB}, v6\nv_and_b32 v9, 1, {vC}\nv_lshl_add_u32 v9, v9, 6, v11\nv_add_u32 v9, v9, v6")
            e(f"v_and_b32 v16, 1, {vG}\nv_lshl_add_u32 v6, v16, 6, v6\nv_lshl_add_u32 v6, v8, 5, v6\nv_lshrrev_b32 v16, 1, {vq}\nv_lshl_add_u32 v6, v16, 4, v6\nv_and_b32 v16, 1, {vq}\nv_lshl_add_u32 v6, v16, 3, v6\nv_lshrrev_b32 v16, 1, {vG}\nv_lshl_add_u32 {aXPW}, v16, 2, v6")
            e(f"v_mov_b32 v6, {B_ONES}\nv_lshrrev_b32 v16, 1, {vC}")
            self.sel(aXPR, "v_cmp_eq_u32 vcc, 4, v16", "v9", "v6")
        else:
            e(f"v_mov_b32 v6, {B_ONES}")
            self.sel(aXPR, f"v_cmp_eq_u32 vcc, 8, {vC}", "v9", "v6")
        e(f"s_mul_i32 {sB}, {sW}, 768\ns_add_u32 {sB}, {sB}, {B_RB}\nv_add_u32 v6, {sB}, v7\nv_lshlrev_b32 v9, 2, {vL}")
        self.sel(aRBW, f"v_cmp_gt_u32 vcc, 48, {vL}", "v12", "v6")
        e(f"v_and_b32 v8, 1, {vG}\nv_lshlrev_b32 v8, 3, v8\nv_lshl_add_u32 v8, {vC}, 4, v8\nv_lshrrev_b32 v6, 5, {vL}\nv_lshl_add_u32 v8, v6, 8, v8\nv_add_u32 {aRBR}, {B_RB}, v8")
        e(f"v_lshlrev_b32 v6, 6, v6\nv_add_u32 {aSTR}, {B_ST}, v6")
        e(f"v_lshrrev_b32 v6, 3, {vL}\nv_lshlrev_b32 v6, 5, v6\ns_lshl_b32 {sB}, {sW}, 2\ns_add_u32 {sB}, {sB}, {B_ST}\nv_add_u32 v6, {sB}, v6\ns_mov_b32 vcc_lo, 0x01100101\ns_mov_b32 vcc_hi, 0\nv_cndmask_b32 {aSTW}, v12, v6, vcc")
        if o["smf"] & 8:
            e(f"v_lshlrev_b32 v6, 4, {vL}\nv_add_u32 v6, {sB}, v6\ns_mov_b32 vcc_lo, 0x11\nv_cndmask_b32 {aSTW}, v12, v6, vcc")
            e(f"v_and_b32 v6, 1, {vC}\nv_mul_u32_u24 {aTCH}, 0xaaaa, v6\nv_add_u32 {aTCH}, 0x4444, {aTCH}")
        e(f"s_lshl_b32 {sB}, {sW}, 7\ns_add_u32 {sB}, {sB}, {B_H}\nv_lshlrev_b32 v6, 1, {vL}\nv_add_u32 {aHW}, {sB}, v6")
        e(f"v_lshl_add_u32 v6, v10, 6, v11\nv_add_u32 {aHR}, {sB}, v6")
        e(f"s_and_b32 {sB}, {sF}, 60\ns_add_u32 {sB}, {sB}, {sF}\ns_lshl_b32 {sB}, {sB}, 11\ns_lshl_b32 {sA}, {sW}, 9\ns_add_u32 {sB}, {sB}, {sA}\nv_add_u32 {aS45}, {sB}, v9")
        e(f"v_mov_b32 v8, 0x3f803f80\nv_and_b32 v6, 31, {vL}\nv_lshlrev_b32 v6, 2, v6\nv_add_u32 v6, {B_ONES}, v6\nds_write_b32 v6, v8")
        e(f"v_lshrrev_b32 v6, 2, {vL}\nv_mul_u32_u24 v6, 1056, v6\nv_lshl_add_u32 v6, {vq}, 3, v6\ns_lshl_b32 {sA}, {sW}, 7\nv_add_u32 v28, {sA}, v6\nv_add_u32 v29, {64*1056}, v28")
        e("s_waitcnt lgkmcnt(0)")
        self.stamp("E")
        self.cons_pats(PC)
        e(f"v_and_b32 v6, 7, {vC}\nv_lshlrev_b32 v6, 2, v6\nv_lshrrev_b32 v6, v6, {vT}")
        self.pat(Q0, "v6", 0)
        self.pat(Q1, "v6", 2)
        e(f"v_lshlrev_b32 v6, 1, {vC}\nv_lshrrev_b32 v6, v6, {vT}")
        self.pat(P45, "v6", 0)
        e("s_barrier")
        ckv(range(8, 16))
        for k, a in enumerate((PRET,) + PRET2):
            e(f"v_mov_b32 v{16+k}, {a}\nbuffer_load_dword v{16+k}, v{16+k}, {srd(S_WS)}, 0 offen")
        self.place_load(20)
        e(f"s_mul_i32 s74, {sW}, 2112\ns_add_u32 s74, s74, {B_QA}")
        self.stamp('ckviss')
        for L in range(2):
            X = "'" * L
            l = self.lab("s1")
            if L == 0:
                e(f"s_lshl_b32 {sE}, {sJ}, 4\ns_add_u32 {sE}, {sE}, {sI}\ns_lshl_b32 {sE}, {sE}, 15")

            def apply_place():
                e(f"s_lshr_b32 {sA}, {sWW}, 3\ns_lshr_b32 {sB}, {sXCC}, 2\ns_xor_b32 {sA}, {sA}, {sB}\ns_and_b32 {sA}, {sA}, 1\ns_lshl_b32 {sSIDE}, {sA}, 13")
                e(f"v_add_u32 {aS1LD}, {sSIDE}, {aS1LD}\nv_add_u32 {aS3LD}, {sSIDE}, {aS3LD}\nv_add_u32 {aCANR}, {sSIDE}, {aCANR}")
                e(f"s_lshl_b32 {sA}, {sHG}, 2\ns_add_u32 {sA}, {sA}, {sWW}\nv_add_u32 v6, {sA}, {vG}\nv_lshlrev_b32 v6, 1, v6\nv_xor_b32 v6, {sWW}, v6\nv_and_b32 v6, 8, v6\nv_lshl_add_u32 {aS2ST}, v6, 10, {aS2ST}")

            def place():
                lq = self.lab("pq")
                e(f"s_waitcnt vmcnt(0)")
                for u in range(16):
                    e(f"ds_read_b128 {R(CS_+4*u,4)}, v30 offset:{B_CKV+u*64}")
                e(f"v_readfirstlane_b32 {sPLAIN}, v20\nv_readfirstlane_b32 {sWW}, v21\ns_cmp_lg_u32 {sPLAIN}, {sT}\ns_cbranch_scc1 {lq}")
                apply_place()
                e(f"{lq}:")
            self.canary_wait(L, aCANR, o["d_s1" if L == 0 else "e_s1"], pre=place if L == 0 else None, wsel=7 if L == 0 else 0)
            self.stamp("S1can" + X)
            e(f"s_mov_b32 {sA}, {S1R(L)}")
            ld = f"buffer_load_dwordx4 v[8:11], {aS1LD}, {srd(S_WS)}, {sA} offen sc1\nbuffer_load_dwordx4 v[12:15], {aS1LD}, {srd(S_WS)}, {sA} offen offset:1024 sc1"
            if o["dma1"]:
                ld = f"s_mov_b32 m0, s74\nbuffer_load_dwordx4 {aS1LD}, {srd(S_WS)}, {sA} offen sc1 lds\ns_add_u32 m0, s74, 32\nbuffer_load_dwordx4 {aS1LD}, {srd(S_WS)}, {sA} offen offset:1024 sc1 lds"
            if L == 0:
                e(ld)
                if o["early"] == 1:
                    lx = self.lab("wx")
                    e(f"s_cmp_ge_u32 {sW}, 4\ns_cbranch_scc1 {lx}\nv_lshlrev_b32 v6, 7, v0\nbuffer_load_dword v255, v6, {srd(S_WO)}, {sE} offen\n{lx}:")
                if o["early"] == 2:
                    self.ffn_touch(sI, "v255")
                    e(f"s_mov_b32 {sA}, {S1R(L)}")
                for u in range(4):
                    for t in range(4):
                        base, off = ("v28", u * 32 * 1056) if u < 2 else ("v29", (u - 2) * 32 * 1056)
                        e(f"ds_read_b64_tr_b16 {R(CP+16*u+4*t,2)}, {base} offset:{off+32*t}\nds_read_b64_tr_b16 {R(CP+16*u+4*t+2,2)}, {base} offset:{off+32*t+16*1056}")
                l2 = self.lab("in")
                e(f"{l2}:")

                def stub():
                    e(f"{l}:")
                    self.guard()
                    e(f"s_sleep {o['backoff']}\n{ld}\ns_waitcnt vmcnt(0)\ns_branch {l2}")
                self.oob(stub)
            else:
                self.retry_head(l)
                e(ld)
            if L == 0 and o["early"]:
                lz = self.lab("wz")
                e(f"s_cmp_ge_u32 {sW}, 4\ns_cbranch_scc1 {lz}\ns_waitcnt vmcnt(1)\ns_branch {lz}_\n{lz}:\ns_waitcnt vmcnt(0)\n{lz}_:")
            else:
                e("s_waitcnt vmcnt(0)")
            if o["dma1"]:
                e(f"ds_read_b128 v[8:11], {aQAW}\nds_read_b128 v[12:15], {aQAW} offset:1056\ns_waitcnt lgkmcnt(0)")
            else:
                e(f"ds_write_b128 {aQAW}, v[8:11]\nds_write_b128 {aQAW}, v[12:15] offset:1056")
            self.check(list(range(8, 16)), PC, sM, "v6")
            e(f"s_cbranch_vccnz {l}")
            self.stamp('S1got' + X)
            self.bar()
            for u in range(4):
                e(f"ds_read_b128 {R(8+4*u,4)}, {aQAR} offset:{u*64}")
            for u in range(16):
                e(f"s_waitcnt lgkmcnt({min(3, 15-u)})")
                self.mfma(24, CS_ + 4 * u, 8 + 4 * (u & 3), None if u == 0 else 24)
                if u + 4 < 16:
                    e(f"ds_read_b128 {R(8+4*(u&3),4)}, {aQAR} offset:{(u+4)*64}")
            e(f"s_lshl_b32 {sA}, {sW}, 2\nv_add_u32 v7, {sA}, {aMX}\nv_max3_f32 v8, v24, v25, v26\nv_max_f32 v8, v8, v27")
            self.allred(["v8"], "v_max_f32", ["v9"], [16, 32])
            e(f"ds_write_b32 v7, v8")
            self.bar()
            self.stamp('Y2' + X)
            if L == 0 and o["wohelp"] == 2:
                if o["early"] == 2:
                    lx = self.lab("fy")
                    e(f"s_add_u32 {sE}, {sI}, 10\ns_cmp_lt_u32 {sE}, 16\ns_cbranch_scc1 {lx}\ns_cmp_ge_u32 {sE}, 24\ns_cbranch_scc1 {lx}")
                    self.ffn_touch(sE, "v255")
                    e(f"{lx}:")
                else:
                    self.ffn_touch(sI, "v255")
            if L == 0:
                l1, l2 = self.lab("lp"), self.lab("lq")
                e(f"s_cmp_lg_u32 {sPLAIN}, {sT}\ns_cbranch_scc1 {l1}\n{l2}:")

                def late():
                    e(f"{l1}:")
                    self.guard()
                    self.place_load(20)
                    e(f"s_waitcnt vmcnt(0)\nv_readfirstlane_b32 {sPLAIN}, v20\nv_readfirstlane_b32 {sWW}, v21\ns_cmp_lg_u32 {sPLAIN}, {sT}\ns_cbranch_scc1 {l1}")
                    apply_place()
                    e(f"s_branch {l2}")
                self.oob(late)
            self.canary_set(2 + L, aCAN, o['lead_s2'] == 2)
            e(f"ds_read_b128 v[8:11], {aMX}\nds_read_b128 v[12:15], {aMX} offset:16\ns_waitcnt lgkmcnt(1)")
            e("v_max3_f32 v8, v8, v9, v10\ns_waitcnt lgkmcnt(0)\nv_max3_f32 v12, v12, v13, v14\nv_max3_f32 v8, v8, v11, v15\nv_max_f32 v5, v8, v12")
            for r in range(4):
                e(f"v_sub_f32 v{24+r}, v{24+r}, v5")
            for r in range(4):
                e(f"v_exp_f32 v{24+r}, v{24+r}")
            e("v_cvt_pk_bf16_f32 v8, v24, v25\nv_cvt_pk_bf16_f32 v9, v26, v27\nv_add_f32 v10, v24, v25\nv_add_f32 v11, v26, v27")
            e(f"ds_write_b64 {aPW}, v[8:9]\nv_add_f32 v10, v10, v11")
            self.allred(["v10"], "v_add_f32", ["v11"], [16, 32])
            e(f"ds_write_b32 v7, v10 offset:512")
            self.bar()
            self.stamp('Y3' + X)
            self.canary_set(2 + L, aCAN, o['lead_s2'] == 1)
            e(f"ds_read_b128 v[24:27], {aMX} offset:512\nds_read_b128 v[28:31], {aMX} offset:528\nds_read_b128 v[8:11], {aPR}\nds_read_b128 v[12:15], {aPR} offset:64")
            e(f"v_lshlrev_b32 v7, 2, {vC}\ns_lshl_b32 {sA}, {sW}, 6\ns_add_u32 {sA}, {sA}, {B_LI}\nv_add_u32 v7, {sA}, v7\ns_waitcnt lgkmcnt(1)")
            D = [16, 20, 24, 28]
            self.mfma(D[0], 8, CP)
            self.mfma(D[1], 8, CP + 4)
            e("v_add_f32 v24, v24, v25\nv_add_f32 v26, v26, v27\nv_add_f32 v28, v28, v29\nv_add_f32 v30, v30, v31\nv_add_f32 v24, v24, v26\nv_add_f32 v28, v28, v30\nv_add_f32 v6, v24, v28")
            self.mfma(D[2], 8, CP + 8)
            self.mfma(D[3], 8, CP + 12)
            e(f"ds_read_b128 v[8:11], {aPR} offset:128\ns_waitcnt lgkmcnt(1)")
            for t in range(4):
                self.mfma(D[t], 12, CP + 16 + 4 * t, D[t])
            e(f"ds_read_b128 v[12:15], {aPR} offset:192\nds_write_b32 v7, v6")
            l = self.lab("k")
            e(f"s_cmp_lg_u32 {sW}, 0\ns_cbranch_scc1 {l}\nv_log_f32 v6, v6\nv_mov_b32 v7, {vT}\ns_mov_b32 {sA}, {LSE(L)}\nv_add_f32 v6, v6, v5\ns_mov_b32 exec_hi, 0")
            e(f"buffer_store_dwordx2 v[6:7], {aLSEST}, {srd(S_WS)}, {sA} offen sc1\ns_mov_b64 exec, -1\n{l}:")
            e("s_waitcnt lgkmcnt(2)")
            for t in range(4):
                self.mfma(D[t], 8, CP + 32 + 4 * t, D[t])
            e(f"ds_read_b128 v[8:11], {aLR}\ns_waitcnt lgkmcnt(2)")
            for t in range(4):
                self.mfma(D[t], 12, CP + 48 + 4 * t, D[t])
            e("s_waitcnt lgkmcnt(0)")
            for r in range(4):
                e(f"v_rcp_f32 v{8+r}, v{8+r}")
            for r in range(4):
                e(f"s_mov_b32 {sA}, {S2R(L) + r*131072}")
                for t in range(4):
                    e(f"v_mul_f32 v{D[t]+r}, v{D[t]+r}, v{8+r}")
                self.pack_ovw(f"v{12+2*(r&1)}", f"v{D[0]+r}", f"v{D[1]+r}", Q0)
                self.pack_ovw(f"v{13+2*(r&1)}", f"v{D[2]+r}", f"v{D[3]+r}", Q1)
                e(f"buffer_store_dwordx2 {R(12+2*(r&1),2)}, {aS2ST}, {srd(S_WS)}, {sA} offen sc1")
            self.canary_set(2 + L, aCAN, o['lead_s2'] == 0)
            self.stamp('S2pub' + X)
            lnf = self.lab("nf")
            if L == 0:
                e("s_barrier")
                if o["fhelp"] and o["early"] != 2:
                    lx = self.lab("fy")
                    e(f"s_add_u32 {sE}, {sI}, 10\ns_cmp_lt_u32 {sE}, 16\ns_cbranch_scc1 {lx}\ns_cmp_ge_u32 {sE}, 24\ns_cbranch_scc1 {lx}")
                    self.ffn_touch(sE, "v255")
                    e(f"{lx}:")
            if L == 0 and o["retouch"]:
                lx = self.lab("rt")
                e(f"s_cmp_lg_u32 {sW}, 7\ns_cbranch_scc1 {lx}\ns_getpc_b64 s[72:73]\nL_pc2:\ns_sub_u32 s72, s72, L_pc2-{NAME}_kernel\ns_subb_u32 s73, s73, 0\ns_lshl_b32 {sA}, {sI}, 11")
                e(f"v_lshlrev_b32 v6, 5, {vL}\nv_add_u32 v6, {sA}, v6\nv_min_u32 v6, L_code_end-{NAME}_kernel-4, v6\nglobal_load_dword v255, v6, s[72:73] sc1\n{lx}:")
            e(f"s_cmp_ge_u32 {sF}, 43\ns_cbranch_scc1 {lnf}")
            if L == 0:
                e(f"v_lshrrev_b32 v6, 2, {vL}\ns_lshl_b32 {sA}, {sW}, 6\nv_add_u32 v6, {sA}, v6\nv_mul_u32_u24 v6, 2752, v6\nv_and_b32 v15, 3, {vL}\nv_lshl_add_u32 v6, v15, 4, v6\ns_lshl_b32 {sA}, {sF}, 6\nv_add_u32 v6, {sA}, v6")
                e(f"s_lshl_b32 {sC}, {sW}, 12")
                for sr, base in ((S_WG, B_FG), (S_WU, B_FU)):
                    for q in range(4):
                        e(f"s_mov_b32 {sA}, {q*16*2752}\ns_add_u32 m0, {sC}, {base + q*1024}\nbuffer_load_dwordx4 v6, {srd(sr)}, {sA} offen lds")
                    e("s_barrier")
                e(f"v_lshrrev_b32 v6, 3, {vL}\nv_lshlrev_b32 v6, 10, v6\nv_and_b32 v7, 7, {vL}\nv_lshl_add_u32 v6, v7, 4, v6\ns_lshl_b32 {sA}, {sF}, 15\ns_lshl_b32 {sB}, {sW}, 7\ns_add_u32 {sA}, {sA}, {sB}\nv_add_u32 v6, {sA}, v6")
                for q in range(4):
                    e(f"s_mov_b32 {sA}, {q*8192}\ns_add_u32 m0, {sC}, {B_FD + q*1024}\nbuffer_load_dwordx4 v6, {srd(S_WD)}, {sA} offen lds")
                e(f"v_bfe_u32 v14, {vL}, 2, 2\nv_and_b32 v6, 1, v14\nv_lshlrev_b32 v6, 4, v6\nv_lshl_add_u32 v6, {vG}, 2, v6\nv_lshrrev_b32 v7, 1, v14\nv_add_u32 v6, v6, v7\nv_lshlrev_b32 v6, 6, v6\nv_lshl_add_u32 v6, v15, 3, v6\nv_add_u32 v6, {sC}, v6")
                e(f"v_lshl_add_u32 v7, {vG}, 3, v14\nv_lshlrev_b32 v7, 7, v7\nv_lshl_add_u32 v7, v15, 3, v7\ns_and_b32 {sA}, {sW}, 3\ns_lshl_b32 {sA}, {sA}, 13\ns_add_u32 {sA}, {sA}, {B_FD}\nv_add_u32 v7, {sA}, v7")
                e("s_waitcnt vmcnt(4)")
                for mi, base in enumerate((B_FG, B_FU)):
                    for tt in range(2):
                        for u in range(2):
                            rg = FG + 8 * (2 * tt + mi) + 4 * u
                            off = base + u * 2048 + 32 * tt
                            e(f"ds_read_b64_tr_b16 {R(rg,2)}, v6 offset:{off}\nds_read_b64_tr_b16 {R(rg+2,2)}, v6 offset:{off+128}")
                e("s_waitcnt vmcnt(0)\ns_barrier")
                for tt in range(8):
                    off = (tt >> 2) * 4096 + 32 * (tt & 3)
                    e(f"ds_read_b64_tr_b16 {R(FD+4*tt,2)}, v7 offset:{off}\nds_read_b64_tr_b16 {R(FD+4*tt+2,2)}, v7 offset:{off+512}")
                e("s_waitcnt lgkmcnt(0)")
                self.stamp('ffnW')
            self.canary_wait(4 + L, aCANR, o["d_s3" if L == 0 else "e_s3"])
            self.stamp('S3can' + X)
            l = self.lab("s3")
            e(f"s_mov_b32 {sA}, {S3R(L)}\ns_mov_b32 {sB}, {S3R(L)+16384}")
            self.retry_head(l)
            e(f"buffer_load_dwordx4 v[8:11], {aS3LD}, {srd(S_WS)}, {sA} offen sc1\nbuffer_load_dwordx4 v[12:15], {aS3LD}, {srd(S_WS)}, {sB} offen sc1\ns_waitcnt vmcnt(0)")
            self.check(list(range(8, 16)), PC, sM, "v6")
            e(f"s_cbranch_vccnz {l}")
            self.canary_set(6 + L, aCAN, o['lead_s45'] == 2)
            self.stamp('S3got' + X)
            for k in range(4):
                e(f"v_lshlrev_b32 v{16+2*k}, 16, v{8+k}\nv_and_b32 v{17+2*k}, 0xffff0000, v{8+k}\nv_lshlrev_b32 v{24+2*k}, 16, v{12+k}\nv_and_b32 v{25+2*k}, 0xffff0000, v{12+k}")
            for k in range(8):
                e(f"v_add_f32 v{16+k}, v{16+k}, v{24+k}")
            for k in range(4):
                e(f"v_permlane32_swap_b32 v{16+k}, v{20+k}")
            for k in range(4):
                e(f"v_add_f32 v{16+k}, v{16+k}, v{20+k}")
            e("v_permlane16_swap_b32 v16, v18\nv_permlane16_swap_b32 v17, v19\nv_add_f32 v16, v16, v18\nv_add_f32 v17, v17, v19")
            e(f"v_cvt_pk_bf16_f32 v6, v16, v17\nds_write_b32 {aXPW}, v6")
            DD = [16, 20, 24, 28]
            if o["smf"] & 8:
                e(f"ds_read_b128 v[8:11], {aXPR}")
                e("v_lshlrev_b32 v12, 16, v6\nv_and_b32 v13, 0xffff0000, v6\nv_add_f32 v7, v12, v13\nv_mul_f32 v6, v12, v12\nv_fmac_f32 v6, v13, v13")
                for t in range(4):
                    e(f"v_mov_b32 v{DD[t]}, 0\nv_mov_b32 v{DD[t]+1}, 0")
                e("s_waitcnt lgkmcnt(0)")
                for t in range(4):
                    self.smf(DD[t], 8, FG + 8 * t, aTCH)
                self.allred(["v6", "v7"], "v_add_f32", ["v12", "v13"], [1, 2, 8, 16, 32])
                e(f"v_add_f32 v16, v16, v17\nv_add_f32 v17, v20, v21\nv_add_f32 v18, v24, v25\nv_add_f32 v19, v28, v29\nds_write_b128 {aRBW}, v[16:19]\nds_write_b32 {aSTW}, v6\nds_write_b32 {aSTW}, v7 offset:32")
            else:
                e(f"ds_read_b128 v[8:11], {aXPR}\nds_read_b128 v[12:15], {aXPR} offset:64\ns_waitcnt lgkmcnt(1)")
                for t in range(4):
                    self.mfma(DD[t], 8, FG + 8 * t)
                e("s_waitcnt lgkmcnt(0)")
                for t in range(4):
                    self.mfma(DD[t], 12, FG + 8 * t + 4, DD[t])
                e("v_mfma_f32_16x16x32_bf16 v[8:11], v[8:11], v[8:11], 0")
                e("v_mfma_f32_16x16x32_bf16 v[8:11], v[12:15], v[12:15], v[8:11]")
                e(f"v_mov_b32 v17, v20\nv_mov_b32 v18, v24\nv_mov_b32 v19, v28\nds_write_b128 {aRBW}, v[16:19]\nds_write_b32 {aSTW}, v8")
            self.bar()
            self.stamp('Z1' + X)
            self.canary_set(6 + L, aCAN, o['lead_s45'] == 1)
            e(f"s_cmp_ge_u32 {sW}, 4\ns_cbranch_scc1 {lnf}")
            if L == 0:
                e(f"v_lshrrev_b32 v6, 5, {vL}\nv_lshlrev_b32 v6, 8, v6\nv_sub_u32 v6, {aRBR}, v6")
                for k in range(8):
                    e(f"ds_read_b64 {R(8+2*k,2)}, v6 offset:{768*k+512}")
                e(f"s_waitcnt lgkmcnt(0)\nv_add_f32 {vCG}, v8, v10\nv_add_f32 {vCU}, v9, v11")
                for k in range(2, 8):
                    e(f"v_add_f32 {vCG}, {vCG}, v{8+2*k}\nv_add_f32 {vCU}, {vCU}, v{9+2*k}")
            e(f"ds_read_b128 v[24:27], {aSTR}\nds_read_b128 v[28:31], {aSTR} offset:16")
            for k in range(4):
                e(f"ds_read_b64 {R(8+2*k,2)}, {aRBR} offset:{768*k}")
            e("s_waitcnt lgkmcnt(4)\nv_add_f32 v24, v24, v25\nv_add_f32 v26, v26, v27\nv_add_f32 v28, v28, v29\nv_add_f32 v30, v30, v31\nv_add_f32 v24, v24, v26\nv_add_f32 v28, v28, v30\nv_add_f32 v6, v24, v28")
            e(f"ds_read_b128 v[24:27], {aSTR} offset:32\nds_read_b128 v[28:31], {aSTR} offset:48")
            for k in range(4, 8):
                e(f"ds_read_b64 {R(8+2*k,2)}, {aRBR} offset:{768*k}")
            e("s_waitcnt lgkmcnt(6)\nv_add_f32 v8, v8, v10\nv_add_f32 v9, v9, v11\nv_add_f32 v12, v12, v14\nv_add_f32 v13, v13, v15\nv_add_f32 v8, v8, v12\nv_add_f32 v9, v9, v13")
            e("s_waitcnt lgkmcnt(4)\nv_add_f32 v24, v24, v25\nv_add_f32 v26, v26, v27\nv_add_f32 v28, v28, v29\nv_add_f32 v30, v30, v31\nv_add_f32 v24, v24, v26\nv_add_f32 v28, v28, v30\nv_add_f32 v7, v24, v28")
            e(f"v_mul_f32 v7, {f32(1/512)}, v7\nv_mov_b32 v12, {f32(1e-5)}\nv_fmac_f32 v12, {f32(1/512)}, v6\nv_fma_f32 v12, -v7, v7, v12\nv_rsq_f32 v12, v12\ns_waitcnt lgkmcnt(0)")
            e("v_add_f32 v16, v16, v18\nv_add_f32 v17, v17, v19\nv_add_f32 v20, v20, v22\nv_add_f32 v21, v21, v23\nv_add_f32 v8, v8, v16\nv_add_f32 v9, v9, v17\nv_add_f32 v8, v8, v20\nv_add_f32 v9, v9, v21")
            e(f"v_fma_f32 v8, -v7, {vCG}, v8\nv_fma_f32 v9, -v7, {vCU}, v9\nv_mul_f32 v8, v8, v12\nv_mul_f32 v9, v9, v12")
            c1 = -2 * 0.7978845608028654 * math.log2(math.e)
            e(f"v_mul_f32 v10, v8, v8\nv_mov_b32 v11, {f32(c1)}\nv_fmac_f32 v11, {f32(c1*0.044715)}, v10\nv_mul_f32 v10, v11, v8\nv_exp_f32 v10, v10")
            e(f"v_mul_f32 v8, v8, v9\nv_add_f32 v10, 1.0, v10\nv_rcp_f32 v10, v10\ns_mov_b32 {sA}, {S45(L)}\ns_mov_b32 {sB}, {S45(L)+8192}\nv_mul_f32 v8, v8, v10")
            e(f"v_cvt_pk_bf16_f32 v8, v8, v8\nds_write_b16 {aHW}, v8\nds_read_b128 v[8:11], {aHR}\ns_waitcnt lgkmcnt(0)")
            for t in range(8):
                self.mfma(12 + 2 * t, 8, FD + 4 * t)
            for hf in range(2):
                self.pack_ovw(f"v{8+2*hf}", f"v{12+8*hf}", f"v{14+8*hf}", P45)
                self.pack_ovw(f"v{9+2*hf}", f"v{16+8*hf}", f"v{18+8*hf}", P45)
                e(f"v_permlane32_swap_b32 v{8+2*hf}, v{9+2*hf}\nbuffer_store_dword v{8+2*hf}, {aS45}, {srd(S_WS)}, {sA} offen offset:{256*hf} sc1\nbuffer_store_dword v{8+2*hf}, {aS45}, {srd(S_WS)}, {sB} offen offset:{256*hf} sc1")
            self.canary_set(6 + L, aCAN, o['lead_s45'] == 0)
            self.stamp('S45pub' + X)
            e(f"{lnf}:")
        self.dump_stamps()


if __name__ == "__main__":
    import argparse
    ap = argparse.ArgumentParser()
    ap.add_argument("-o", default=f"cdna_kernels/{NAME}.s")
    ap.add_argument("--opt", action="append", default=[])
    a = ap.parse_args()
    opts = {k: int(v) for k, v in (x.split("=") for x in a.opt)}
    open(a.o, "w").write(Gen(**opts).build())
```

```python
import sys, math, struct
sys.path.insert(0, "scratch")
from asmlib import hazard_pass

NAME = "interleave_layers__compressed_kv_cla__glu_gated_geglu__decode"
f32 = lambda x: "0x%08x" % struct.unpack("<I", struct.pack("<f", x))[0]

WADR = 0x80
VOTES = 0x200
PRET = 0x800
CAN = 0x4000
LSE = lambda L: 0x8000 + L * 0x8000
S1R = lambda L: 0x18000 + L * 0x20000
S3R = lambda L: 0x58000 + L * 0x8000
S45 = lambda L: 0x68000 + L * 0x2C000
CAL = 0x100000
I0R = lambda L: 0x200000 + L * 0x80000
COLS = 0x300000
I1R = lambda L: 0x340000 + L * 0x20000
I0S = lambda L: 0x380000 + L * 0x4000
S2R = lambda L: 0x400000 + L * 0x400000
PRET2 = (0x3F0000,)
STAMP = 0xE000000
OOB = 0x7FFFFF00
A_WQ = 0
A_OS = 0
A_XR = 18432
A_WUK = 34048
A_WUV = 67840
A_WO = 101632
A_Q = 134400
A_WW = A_Q + 768
A_CC = A_WW + 256
A_CT = A_CC + 512
A_RR = A_CT + 2304
A_XS = A_RR + 2048
A_ST = A_XS + 256
A_ONE = A_ST + 64
A_DUM = A_ONE + 512
B_CKV = 0
B_QA = 135168
B_MX = 152064
B_LI = B_MX + 1024
B_LS = B_LI + 512
B_P = B_LS + 2304
B_ONES = B_P + 4608
B_DUM = B_ONES + 128
LDS_BYTES = B_DUM + 256
B_FG = 0
B_FU = 32768
B_FD = 65536
B_XP = 98304
B_H = B_XP + 2048
B_RB = B_H + 1024
B_ST = B_RB + 6144

S_WS, S_X, S_CKV, S_WQ, S_WUK, S_WUV, S_WO, S_WG, S_WU, S_WD, S_OUT = [4 + 4 * k for k in range(11)]
sT1, sT2, sT3, sBW = "s48", "s49", "s50", "s51"
sJ, sI, sW, sT, sM, sFF, sSEL, sGUARD, sPLAIN, sXCC, sPA, sE = ["s%d" % (52 + k) for k in range(12)]
sA, sB, sC, sD = "s64", "s65", "s66", "s67"
sH, sCS = "s68", "s69"
sMASK = "s[70:71]"
sMEAN, sRSTD = "s72", "s73"
sSIDE, sWW = "s100", "s101"
STAMP0 = 78
srd = lambda b: f"s[{b}:{b+3}]"
vL, vC, vG, vT = "v1", "v2", "v3", "v4"
DPPM = "row_mask:0xf bank_mask:0xf"
DP = {1: "quad_perm:[1,0,3,2]", 2: "quad_perm:[2,3,0,1]", 4: "row_half_mirror", 8: "row_ror:8"}

PROFILES = [
    (["start", "Wq", "P1a", "I0got", "S1pub", "Wo", "S2can", "S2got", "I1got", "S3pub", "S45got"],
     ["start", "ckv", "S1can", "S1got", "Y2", "Y3", "S2pub", "ffnW", "S3can", "S3got", "S45pub"]),
    (["start", "S45got", "P1a'", "I0got'", "S1pub'", "S2can'", "S2got'", "I1pub'", "I1got'", "S3pub'", "end"],
     ["start", "S45pub", "S1can'", "S1got'", "Y2'", "Y3'", "S2pub'", "S3can'", "S3got'", "Z1'", "S45pub'"]),
    (["start", "karg", "E", "Wq", "Wuk", "P1a", "I0pr", "I0got", "S1pub", "Wo", "S2can"],
     ["start", "karg", "E", "ckv0", "ckv8", "ckviss", "ckv", "S1can", "S1got", "Y2", "S2pub"]),
    (["start", "end", "S45got"], ["start"]),
    (["start", "S45can", "S45got", "I0got'", "S2can'", "S2got'", "I1got'", "S2can", "S2got", "I1got", "I0got"],
     ["start", "S1can", "S1got", "S3can", "S3got", "S1can'", "S1got'", "S3can'", "S3got'", "Y2", "Y3"]),
    (["start", "S45got", "P1a'", "I0got'", "Xb", "Qs", "Qw", "Qb", "S1pub'", "S2got'", "end"], ["start"] + ["x"] * 10),
    (["start", "S1pub", "Wuv", "WqF", "Wo", "S2can", "S2got", "I1pub", "I1got", "S3pub", "S45got"],
     ["start", "ckviss", "ckv", "S1can", "S1got", "Y2", "S2pub", "ffnW", "S3can", "S3got", "S45pub"]),
]


def R(a, n=1):
    return f"v{a}" if n == 1 else f"v[{a}:{a+n-1}]"


class Gen:
    def __init__(self, **o):
        self.o = dict(stamps=0, bdelay=4, bdelay2=6, adelay=2, d_s1=2, d_s2=5, d_s3=4, d_s45=3, e_s1=2, e_s2=8, e_s3=5, e_s45=4, guard=0x400000, backoff=1,
                      lead_s1=1, lead_s2=1, lead_s3=1, lead_s45=1, prof=0, i0tries=24, bhelp=4, wohelp=2, fhelp=1, amp=0, warm=1, wukdelay=20, vdelay=16, forcec=-1, i0d=1, dma1=0, dma2=1, dma45=1, smf=15, early=0, i1b=1, wqf=1, xd=1, retouch=1, nt=0, prio=0, both=0, pv2=0)
        self.o.update(o)
        for h in ('s1', 's2', 's3', 's45'):
            self.o.setdefault('e_' + h, self.o['d_' + h])
        self.L = []
        self.uid = 0
        self.nst = 0
        self.cold = []
        self.NA, self.NB = PROFILES[self.o["prof"]]
        self.names = self.NA

    def e(self, s):
        for ln in s.split("\n"):
            self.L.append(ln)

    def lab(self, p):
        self.uid += 1
        return f"L_{p}_{self.uid}"

    def stamp(self, name):
        if self.o["stamps"] and name in self.names:
            k = self.names.index(name)
            if self.o.get("gst") and name != "start":
                self.e(f"s_mov_b32 s{STAMP0+2*k}, {sGUARD}")
            else:
                self.e(f"s_memrealtime s[{STAMP0+2*k}:{STAMP0+2*k+1}]")

    def dump_stamps(self):
        if not self.o["stamps"]:
            return
        e = self.e
        e("s_waitcnt lgkmcnt(0)")
        for k in range(11):
            e(f"v_mov_b32 v{8+k}, s{STAMP0+2*k}")
        e(f"s_lshl_b32 {sA}, s2, 9\ns_lshl_b32 {sB}, {sW}, 6\ns_add_u32 {sA}, {sA}, {sB}\ns_add_u32 {sA}, {sA}, {STAMP}")
        e(f"v_mov_b32 v6, {OOB}\nv_cmp_eq_u32 vcc, 0, {vL}\nv_cndmask_b32 v6, v6, {vL}, vcc")
        e(f"v_mov_b32 v20, {sGUARD}\nv_mov_b32 v21, {sT}\nv_mov_b32 v22, {sPLAIN}\nv_mov_b32 v23, s3")
        for k in range(4):
            e(f"buffer_store_dwordx4 v[{8+4*k}:{11+4*k}], v6, {srd(S_WS)}, {sA} offen offset:{16*k}")

    def mfma(self, d, a, b, c=None):
        self.e(f"v_mfma_f32_16x16x32_bf16 {R(d,4)}, {R(a,4)}, {R(b,4)}, {'0' if c is None else R(c,4)}")

    def smf(self, d, a, b, idx):
        self.e(f"v_smfmac_f32_16x16x64_bf16 {R(d,4)}, {R(a,4)}, {R(b,8)}, {idx}")

    def bar(self):
        self.e("s_waitcnt lgkmcnt(0)\ns_barrier")

    def guard(self):
        if self.o["stamps"]:
            self.nst += 1
            self.e(f"s_movk_i32 s3, {self.nst}")
        self.e(f"s_sub_u32 {sGUARD}, {sGUARD}, 1\ns_cbranch_scc1 {'L_bail' if self.o['stamps'] else 'L_end'}")

    def sel(self, dst, cond, a, b):
        self.e(cond)
        self.e(f"v_cndmask_b32 {dst}, {a}, {b}, vcc")

    def check(self, regs, pats, mask, acc, extra=None):
        e = self.e
        e(f"v_xor_b32 {acc}, {pats[0]}, v{regs[0]}")
        for n, r in enumerate(regs[1:], 1):
            e(f"v_bitop3_b32 {acc}, v{r}, {pats[n & 3]}, {acc} bitop3:0xbe")
        e(f"v_and_or_b32 {acc}, {acc}, {mask}, {extra}" if extra else f"v_and_b32 {acc}, {mask}, {acc}")
        e(f"v_cmp_ne_u32 vcc, 0, {acc}")

    def xcheck(self, regs, pats, mask, acc, mid=None):
        e = self.e
        for n, r in enumerate(regs):
            e(f"v_xor_b32 v{r}, {pats[n & 3]}, v{r}")
        if mid:
            e(mid)
        e(f"v_or3_b32 {acc}, v{regs[0]}, v{regs[1]}, v{regs[2]}")
        rest = regs[3:]
        while len(rest) > 1:
            e(f"v_or3_b32 {acc}, v{rest[0]}, v{rest[1]}, {acc}")
            rest = rest[2:]
        e(f"v_bitop3_b32 {acc}, v{rest[0]}, {acc}, {mask} bitop3:0xa8\nv_cmp_ne_u32 vcc, 0, {acc}")

    def pat(self, dst, src, sh):
        self.e(f"v_bfe_u32 {dst}, {src}, {sh}, 2\nv_lshl_or_b32 {dst}, {dst}, 15, {dst}\nv_and_b32 {dst}, {sM}, {dst}")

    def cons_pats(self, P):
        self.e(f"v_and_b32 v6, 3, {vL}\nv_lshlrev_b32 v6, 3, v6\nv_lshrrev_b32 v6, v6, {vT}")
        for k in range(4):
            self.pat(P[k], "v6", 2 * k)

    def pack_near(self, dst, lo, hi, t0, t1, p):
        e = self.e
        e(f"v_add_u32 {t0}, 0x10000, {lo}\nv_add_u32 {t1}, 0x10000, {hi}")
        e(f"v_perm_b32 {t0}, {t1}, {t0}, {sSEL}\nv_bfi_b32 {dst}, {sM}, {p}, {t0}")

    def pack_ovw(self, dst, lo, hi, p):
        self.e(f"v_cvt_pk_bf16_f32 {dst}, {lo}, {hi}\nv_bfi_b32 {dst}, {sM}, {p}, {dst}")

    def allred(self, regs, op, tmps, steps):
        e = self.e
        for s in steps:
            if s in DP:
                for r in regs:
                    e(f"{op}_dpp {r}, {r}, {r} {DP[s]} {DPPM}")
            else:
                for r, t in zip(regs, tmps):
                    e(f"v_mov_b32 {t}, {r}")
                for r, t in zip(regs, tmps):
                    e(f"v_permlane{s}_swap_b32 {r}, {t}")
                for r, t in zip(regs, tmps):
                    e(f"{op} {r}, {r}, {t}")

    def can_addr(self, vw, vr, sidx):
        e = self.e
        e(f"s_lshl_b32 {sA}, {sidx}, 9\nv_add_u32 v6, {sA}, v0\ns_lshl_b32 {sA}, {sJ}, 7\ns_add_u32 {sA}, {sA}, {CAN}\nv_lshl_add_u32 v8, v0, 13, {sA}\nv_cmp_gt_u32 vcc, 2, v6\nv_cndmask_b32 {vw}, v13, v8, vcc")
        e(f"v_and_b32 v6, 7, v0\nv_lshlrev_b32 v6, 7, v6\nv_add_u32 {vr}, {CAN}, v6")

    def place_load(self, v):
        self.e(f"v_mov_b32 v{v}, {WADR}\nbuffer_load_dwordx2 v[{v}:{v+1}], v{v}, {srd(S_WS)}, 0 offen sc1")

    def place_wait(self, v, first=False):
        e = self.e
        l, l2 = self.lab("pw"), self.lab("px")
        if not first:
            self.place_load(v)
        e(f"{l2}:\ns_waitcnt vmcnt(0)\nv_readfirstlane_b32 {sA}, v{v}\nv_readfirstlane_b32 {sWW}, v{v+1}\ns_cmp_lg_u32 {sA}, {sT}\ns_cbranch_scc1 {l}")

        def stub():
            e(f"{l}:")
            self.guard()
            e("s_sleep 2")
            self.place_load(v)
            e(f"s_branch {l2}")
        self.oob(stub)
        e(f"s_lshr_b32 {sA}, {sWW}, 3\ns_lshr_b32 {sB}, {sXCC}, 2\ns_xor_b32 {sA}, {sA}, {sB}\ns_and_b32 {sA}, {sA}, 1\ns_lshl_b32 {sSIDE}, {sA}, 13")

    def canary_wait(self, idx, vr, delay, pre=None, wsel=0, both=False):
        e = self.e
        l, l2 = self.lab("can"), self.lab("cb")
        e(f"s_cmp_lg_u32 {sW}, {wsel}\ns_cbranch_scc1 {l2}\ns_movk_i32 {sA}, {idx*1024}")
        if both:
            e(f"v_and_b32 v7, 8, v0\nv_lshl_add_u32 v7, v7, 10, {vr}\ns_mov_b64 exec, 0xffff")
            vr = "v7"
        else:
            e("s_mov_b64 exec, 0xff")
        e(f"{l}:")
        self.guard()
        e(f"buffer_load_dword v6, {vr}, {srd(S_WS)}, {sA} offen sc1\ns_waitcnt vmcnt(0)\nv_cmp_ne_u32 vcc, v6, {vT}")
        if both:
            e(f"s_and_b32 {sB}, vcc_lo, 0xff\ns_lshr_b32 {sC}, vcc_lo, 8\ns_min_u32 {sB}, {sB}, {sC}\ns_cmp_lg_u32 {sB}, 0\ns_cbranch_scc1 {l}\ns_mov_b64 exec, -1")
        else:
            e(f"s_cbranch_vccnz {l}\ns_mov_b64 exec, -1")
        if delay:
            e(f"s_sleep {delay}")
        e(f"{l2}:")
        if pre:
            pre()
            self.stamp("ckv")
        e("s_barrier")

    def canary_set(self, idx, vw, cond=True):
        if cond:
            self.e(f"s_movk_i32 {sD}, {idx*1024}\nbuffer_store_dword {vT}, {vw}, {srd(S_WS)}, {sD} offen sc1")

    def oob(self, fn):
        keep, self.L = self.L, []
        fn()
        self.cold.append("\n".join(self.L))
        self.L = keep

    def retry_head(self, l, mult=1):
        l2 = self.lab("in")
        self.e(f"{l2}:")

        def stub():
            self.e(f"{l}:")
            self.guard()
            self.e(f"s_sleep {mult*self.o['backoff']}\ns_branch {l2}")
        self.oob(stub)

    def store_intra(self, ins):
        e = self.e
        l1, l2 = self.lab("sc"), self.lab("sd")
        e(f"s_cmp_eq_u32 {sPLAIN}, 0\ns_cbranch_scc1 {l1}")
        for i in ins:
            e(i)
        e(f"{l2}:")
        self.cold.append(f"{l1}:\n" + "\n".join(i + " sc1" for i in ins) + f"\ns_branch {l2}")

    def consts(self):
        self.e(f"s_mov_b32 {sM}, 0x00010001\ns_movk_i32 {sFF}, 0xff\ns_mov_b32 {sSEL}, 0x07060302\ns_mov_b32 {sGUARD}, {self.o['guard']}")

    def fin_srd(self, b, size):
        self.e(f"s_mov_b32 s{b+2}, {size}\ns_mov_b32 s{b+3}, 0x20000")

    def epoch_load(self):
        self.e(f"s_load_dword {sT}, s[{S_WS}:{S_WS+1}], 0")

    def calib(self, sidx):
        e = self.e
        e(f"s_lshl_b32 {sA}, {sidx}, 2\ns_lshr_b32 {sB}, {sW}, 1\ns_add_u32 {sA}, {sA}, {sB}\ns_lshr_b32 {sB}, {sA}, 6\ns_lshl_b32 {sB}, {sB}, 1\ns_and_b32 {sC}, {sW}, 1\ns_add_u32 {sB}, {sB}, {sC}\ns_lshl_b32 {sB}, {sB}, 6")
        e(f"s_and_b32 {sA}, {sA}, 63\ns_add_u32 {sA}, {sA}, {sB}\ns_lshl_b32 {sA}, {sA}, 7\ns_add_u32 {sA}, {sA}, {CAL}")

    def calib_run(self):
        self.e(f"s_memtime s[72:73]\ns_load_dword {sB}, s[{S_WS}:{S_WS+1}], {sA}\ns_waitcnt lgkmcnt(0)\ns_memtime s[70:71]\ns_waitcnt lgkmcnt(0)\ns_sub_u32 {sC}, s70, s72")

    def ffn_touch(self, sK, dst):
        e = self.e
        lx, l1, l2 = self.lab("fx"), self.lab("fa"), self.lab("fb")
        e(f"s_cmp_ge_u32 {sW}, 4\ns_cbranch_scc1 {lx}\ns_mul_i32 {sA}, {sK}, 43\ns_lshr_b32 {sA}, {sA}, 8\ns_mul_i32 {sB}, {sA}, 6\ns_sub_u32 {sB}, {sK}, {sB}\ns_lshl_b32 {sB}, {sB}, 3\ns_add_u32 {sB}, {sB}, {sJ}")
        e(f"s_cmp_ge_u32 {sB}, 43\ns_cselect_b32 {sB}, 0x8000, {sB}\ns_cmp_eq_u32 {sA}, 3\ns_cbranch_scc1 {l1}")
        e(f"v_mul_u32_u24 v6, 2752, v0\ns_lshl_b32 {sB}, {sB}, 6\ns_cmp_eq_u32 {sA}, 1\ns_cselect_b32 {sC}, 0, {256*2752}\ns_add_u32 {sB}, {sB}, {sC}\ns_cmp_eq_u32 {sA}, 0\ns_cbranch_scc1 {l2}")
        e(f"buffer_load_dword {dst}, v6, {srd(S_WU)}, {sB} offen\ns_branch {lx}\n{l2}:\nbuffer_load_dword {dst}, v6, {srd(S_WG)}, {sB} offen\ns_branch {lx}")
        e(f"{l1}:\nv_lshlrev_b32 v6, 7, v0\ns_lshl_b32 {sB}, {sB}, 15\nbuffer_load_dword {dst}, v6, {srd(S_WD)}, {sB} offen\n{lx}:")

    def tags(self):
        self.e(f"s_add_u32 {sT}, {sT}, 1\nv_mov_b32 {vT}, {sT}")

    def build(self):
        e = self.e
        K = NAME + "_kernel"
        e(f"; @launch grid=(256,1,1) block=(512,1,1) lds={LDS_BYTES}")
        e('.amdgcn_target "amdgcn-amd-amdhsa--gfx950"\n.text')
        e(f".globl {K}\n.p2align 8\n.type {K},@function\n{K}:")
        self.stamp('start')
        if self.o["amp"]:
            e("s_memrealtime s[98:99]")
        e("s_cmp_ge_u32 s2, 256\ns_cbranch_scc1 L_end")
        e(f"s_load_dwordx2 s[{S_WS}:{S_WS+1}], s[0:1], 96")
        e(f"s_lshr_b32 {sI}, s2, 3\ns_cmp_ge_u32 {sI}, 16\ns_cbranch_scc1 L_roleB")
        self.roleA()
        e("L_roleB:")
        self.names = self.NB
        self.roleB()
        e("s_endpgm")
        for c in self.cold:
            e(c)
        if self.o["stamps"]:
            e("L_bail:\ns_mov_b64 exec, -1")
            e(f"s_lshl_b32 {sA}, s2, 14\ns_add_u32 {sA}, {sA}, 0xC000000\nv_lshlrev_b32 v6, 5, v0\nbuffer_store_dwordx4 v[8:11], v6, {srd(S_WS)}, {sA} offen\nbuffer_store_dwordx4 v[12:15], v6, {srd(S_WS)}, {sA} offen offset:16\ns_waitcnt vmcnt(0)")
            self.dump_stamps()
        e("L_end:\ns_endpgm\nL_code_end:")
        body = hazard_pass(self.L)
        body.append(f""".section .rodata,"a"
.p2align 6
.amdhsa_kernel {K}
  .amdhsa_next_free_vgpr 256
  .amdhsa_next_free_sgpr 102
  .amdhsa_accum_offset 256
  .amdhsa_group_segment_fixed_size 0
  .amdhsa_kernarg_size 104
  .amdhsa_user_sgpr_count 2
  .amdhsa_user_sgpr_kernarg_segment_ptr 1
  .amdhsa_system_sgpr_workgroup_id_x 1
.end_amdhsa_kernel""")
        return "\n".join(body) + "\n"

    def roleA(self):
        e, o = self.e, self.o
        NT = lambda b: ' nt' if o['nt'] >> b & 1 else ''
        WQ, WUK, WUV, WO, XOP, SEL0, SEL4 = 32, 32, 128, 144, 160, 164, 168
        vCS, vONE, vTL = "v172", "v173", "v28"
        (aXOFF, aWROW, aI0ST0, aI0ST1, aI0LD, aCSLD, aSTLD, aSTST, aQW, aQR, aS1ST, aS2LD, aOSW, aLSE, aWW, aWA0, aWA1,
         aOTR, aCCW, aCCR, aI1ST, aI1LD, aCTW, aCTR, aRRW, aRRR, aS3ST, aXLD, aXRW, aXTR, aXSW, aCANW, aCANR, aOUT) = ["v%d" % (174 + k) for k in range(34)]
        TB = [vT, "v208", "v209", "v210"]
        PC = ["v240", "v241", "v242", "v243"]
        PS, aS2B, PX = ["v96", "v97", "v98", "v99"], "v100", ["v104", "v105", "v106", "v107"]
        vIDX, P1, PD = "v108", "v109", ["v104", "v105", "v106", "v107"]
        if o["i1b"]:
            WUV = 112
        KG = {(0, 0): 112, (1, 0): 120, (2, 0): 128, (3, 0): 136, (0, 1): 160, (1, 1): 244, (2, 1): 32, (3, 1): 40}
        wuk = lambda t, u: KG[t, u >> 1] + 4 * (u & 1)
        Q0, Q1 = "v252", "v253"
        P3 = "v254"
        sTB, sNM = ["s76", sT1, sT2, sT3], "s77"
        vr, vq = "v14", "v15"
        e(f"s_load_dwordx2 s[{S_WQ}:{S_WQ+1}], s[0:1], 16\ns_load_dwordx2 s[{S_WUK}:{S_WUK+1}], s[0:1], 24\ns_load_dwordx2 s[{S_X}:{S_X+1}], s[0:1], 0")
        e(f"v_lshrrev_b32 v6, 6, v0\nv_and_b32 {vC}, 15, v0\ns_and_b32 {sJ}, s2, 7\nv_readfirstlane_b32 {sW}, v6\nv_bfe_u32 {vG}, v0, 4, 2\nv_lshlrev_b32 v7, 4, {vC}")
        self.fin_srd(S_WQ, 4 << 20)
        self.fin_srd(S_WUK, 4 << 20)
        e(f"s_and_b32 {sBW}, {sI}, 3\ns_lshl_b32 {sH}, {sJ}, 2\ns_add_u32 {sH}, {sH}, {sBW}\ns_lshr_b32 {sCS}, {sI}, 2\ns_mul_i32 {sD}, {sW}, 8448")
        ljn = self.lab("jn")
        e(f"s_cmp_ge_u32 {sW}, 4\ns_cbranch_scc1 {ljn}")
        e(f"s_lshl_b32 {sA}, {sI}, 8\ns_add_u32 {sA}, {sA}, {sJ}\ns_lshl_b32 {sA}, {sA}, 2\ns_add_u32 {sA}, {sA}, {sW}\ns_lshl_b32 {sA}, {sA}, 8\nv_lshl_add_u32 v9, {vG}, 15, v7\nv_add_u32 v9, {sA}, v9")
        e(f"v_bfe_u32 v10, {vC}, 2, 1\nv_lshlrev_b32 v6, 10, v10\nv_lshl_add_u32 v6, {vG}, 2, v6\ns_lshl_b32 {sB}, {sI}, 6\nv_add_u32 {aXOFF}, {sB}, v6")
        self.fin_srd(S_X, 2048)
        e("s_waitcnt lgkmcnt(0)")
        self.stamp("karg")
        for k, off in enumerate((0, 32, 16, 48)):
            e(f"buffer_load_dword v{24+k}, {aXOFF}, {srd(S_X)}, 0 offen offset:{off}")
        for q in range(8):
            e(f"s_mov_b32 {sA}, {((q & 3) + 16*(q >> 2))*8192}\ns_add_u32 m0, {sD}, {A_WQ + q*1056}\nbuffer_load_dwordx4 v9, {srd(S_WQ)}, {sA} offen{NT(0)} lds")
        e(f"{ljn}:\ns_waitcnt lgkmcnt(0)")
        self.epoch_load()
        for b, slot in ((S_WUV, 4), (S_WO, 5), (S_OUT, 10)):
            e(f"s_load_dwordx2 s[{b}:{b+1}], s[0:1], {slot*8}")
        self.fin_srd(S_WS, 0x10000000)
        e(f"v_and_b32 {vL}, 63, v0\nv_mov_b32 v13, {OOB}")
        self.consts()
        e(f"s_getreg_b32 {sXCC}, hwreg(HW_REG_XCC_ID)\ns_and_b32 {sXCC}, {sXCC}, 15\ns_lshl_b32 {sPA}, {sJ}, 4\ns_add_u32 {sPA}, {sPA}, {sI}\ns_mov_b32 {sPLAIN}, 0")
        e(f"v_lshlrev_b32 v7, 4, {vL}\nv_bfe_u32 v10, {vC}, 2, 1\nv_lshlrev_b32 v11, 4, {vG}\nv_bfe_u32 {vr}, {vL}, 2, 2\nv_and_b32 {vq}, 3, {vL}")
        e(f"v_and_b32 v6, 1, {vr}\nv_lshlrev_b32 v6, 2, v6\nv_lshrrev_b32 v8, 1, {vr}\nv_add_u32 v6, v6, v8\nv_and_b32 v8, 1, {vG}\nv_lshl_add_u32 v6, v8, 1, v6\nv_mul_u32_u24 v6, 1056, v6")
        e(f"v_lshrrev_b32 v8, 1, {vG}\nv_lshl_add_u32 v6, v8, 8, v6\nv_lshl_add_u32 v6, {vq}, 3, v6\nv_add_u32 v31, {sD}, v6")
        e(f"s_lshl_b32 {sA}, {sPA}, 2\ns_add_u32 {sA}, {sA}, {sW}\ns_lshl_b32 {sB}, {sA}, 10\ns_add_u32 {sB}, {sB}, {I0R(0)}\nv_add_u32 v6, {sB}, v7\nv_cmp_gt_u32 vcc, 32, {vL}")
        e(f"s_lshl_b32 {sB}, {sA}, 9\ns_add_u32 {sB}, {sB}, {COLS - 512}\nv_cndmask_b32 {aI0ST1}, v13, v6, vcc\nv_add_u32 v6, {sB}, v7")
        e(f"s_and_b32 {sA}, {sH}, 24\ns_add_u32 {sA}, {sA}, {sH}\ns_lshl_b32 {sA}, {sA}, 2\ns_add_u32 {sA}, {sA}, {sCS}\ns_lshl_b32 {sB}, {sA}, 1\ns_and_b32 {sC}, {sW}, 1\ns_add_u32 {sB}, {sB}, {sC}\ns_lshl_b32 {sB}, {sB}, 7")
        e(f"v_lshlrev_b32 v8, 16, {vG}\nv_lshl_add_u32 v8, {vC}, 3, v8\nv_add_u32 v8, {sB}, v8\nv_cndmask_b32 {aS1ST}, v13, v8, vcc")
        self.sel(aI0ST0, f"v_cmp_eq_u32 vcc, 2, {vG}", aI0ST1, "v6")
        e(f"v_add_u32 v6, 256, {aI0ST0}\nv_add_u32 v8, 512, {aI0ST0}\nv_cndmask_b32 {aOUT}, v8, v6, vcc")
        e(f"v_lshrrev_b32 v6, 3, {vL}\nv_sub_u32 v8, {vL}, v6\nv_add_u32 v8, 3, v8\ns_mov_b32 vcc_lo, 0x01100101\ns_mov_b32 vcc_hi, 0\nv_cndmask_b32 v6, v8, v6, vcc")
        e(f"s_lshl_b32 {sA}, {sPA}, 7\nv_lshl_add_u32 v6, v6, 3, {sA}\ns_cmp_eq_u32 {sW}, 0\ns_cselect_b32 vcc_lo, 0x01103fff, 0\nv_cndmask_b32 {aSTST}, v13, v6, vcc")
        e(f"v_lshrrev_b32 v8, 3, {vL}\nv_and_b32 v9, 7, {vL}\nv_lshlrev_b32 v9, 4, v9")
        e(f"s_lshl_b32 {sA}, {sJ}, 6\ns_add_u32 {sA}, {sA}, {sBW}\ns_lshl_b32 {sB}, {sA}, 3\ns_add_u32 {sB}, {sB}, {sW}\ns_lshl_b32 {sB}, {sB}, 7")
        e(f"v_lshl_add_u32 v6, v8, 12, v9\nv_add_u32 {aI0LD}, {sB}, v6")
        e(f"s_lshr_b32 {sC}, {sW}, 2\ns_lshl_b32 {sA}, {sA}, 1\ns_add_u32 {sA}, {sA}, {sC}\ns_lshl_b32 {sA}, {sA}, 1\ns_and_b32 {sE}, {sW}, 1\ns_add_u32 {sA}, {sA}, {sE}\ns_lshl_b32 {sA}, {sA}, 7\ns_add_u32 {sA}, {sA}, {COLS}")
        e(f"v_lshl_add_u32 v6, v8, 11, v9\nv_add_u32 {aCSLD}, {sA}, v6")
        e(f"s_bfe_u32 {sB}, {sW}, 0x10001\ns_lshl_b32 {sA}, {sJ}, 7\ns_add_u32 {sA}, {sA}, {sB}\ns_lshl_b32 {sA}, {sA}, 4\nv_lshlrev_b32 v6, 7, {vC}\nv_add_u32 {aSTLD}, {sA}, v6")
        e(f"v_and_b32 v6, 1, {vC}\nv_mul_u32_u24 {vIDX}, 0xaaaa, v6\nv_add_u32 {vIDX}, 0x4444, {vIDX}")
        if o["smf"] & 1:
            e(f"s_lshl_b32 {sA}, {sB}, 2\ns_add_u32 {sA}, {sA}, {sC}\ns_lshl_b32 {sA}, {sA}, 3\ns_add_u32 {sA}, {sA}, {sE}\ns_lshl_b32 {sA}, {sA}, 3\ns_add_u32 {sA}, {sA}, {A_Q}")
            e(f"v_bfe_u32 v8, {vL}, 1, 1\nv_lshl_add_u32 v8, v8, 7, v11\nv_lshl_add_u32 v8, v6, 1, v8\nv_and_b32 v12, 4, {vL}\nv_add3_u32 {aQW}, v8, v12, {sA}")
            e(f"v_lshl_add_u32 v6, v6, 7, v11\nv_lshl_add_u32 v6, v10, 8, v6\nv_add_u32 {aQR}, {A_Q}, v6")
        else:
            e(f"s_lshl_b32 {sA}, {sB}, 1\ns_add_u32 {sA}, {sA}, {sC}\ns_lshl_b32 {sA}, {sA}, 3\ns_add_u32 {sA}, {sA}, {sE}\ns_lshl_b32 {sA}, {sA}, 4\ns_add_u32 {sA}, {sA}, {A_Q}")
            e(f"v_lshrrev_b32 v6, 3, v9\nv_lshl_add_u32 v6, {vG}, 5, v6\nv_add_u32 {aQW}, {sA}, v6")
            e(f"v_lshl_add_u32 v6, v10, 8, v11\nv_add_u32 {aQR}, {A_Q}, v6")
        e(f"v_mov_b32 v6, 0x3f803f80\nv_cmp_eq_u32 vcc, 8, {vC}\nv_mov_b32 v8, 0\nv_cndmask_b32 {vONE}, v8, v6, vcc")
        self.can_addr(aCANW, aCANR, sI)
        lsk = self.lab("k")
        e(f"s_cmp_lt_u32 {sW}, 4\ns_cbranch_scc1 {lsk}")
        lw = self.lab("k")
        e(f"s_cmp_lg_u32 {sW}, 4\ns_cbranch_scc1 {lw}\ns_lshl_b32 {sA}, {sPA}, 12\ns_add_u32 {sA}, {sA}, {I0R(0)}\ns_lshl_b32 {sB}, {sPA}, 11\ns_add_u32 {sB}, {sB}, {COLS - 4096}\ns_lshl_b32 {sC}, {sPA}, 7\ns_add_u32 {sC}, {sC}, {I0S(0)}")
        e(f"v_lshlrev_b32 v6, 7, {vL}\nv_add_u32 v8, {sA}, v6\nv_add_u32 v6, {sB}, v6\nv_cmp_gt_u32 vcc, 32, {vL}\nv_cndmask_b32 v6, v6, v8, vcc\nv_mov_b32 v8, {sC}\nv_cmp_gt_u32 vcc, 48, {vL}\nv_cndmask_b32 v6, v8, v6, vcc")
        e(f"buffer_load_dword v28, v6, {srd(S_WS)}, 0 offen\n{lw}:")
        e(f"s_cmp_ge_u32 {sW}, 6\ns_cbranch_scc1 {lsk}")
        e(f"s_lshl_b32 {sA}, {sCS}, 1\ns_add_u32 {sA}, {sA}, {sW}\ns_sub_u32 {sA}, {sA}, 4\ns_lshl_b32 {sA}, {sA}, 11\ns_add_u32 {sA}, {sA}, {sH}\ns_lshl_b32 {sA}, {sA}, 8\nv_lshlrev_b32 v9, 4, {vC}\nv_lshl_add_u32 v9, {vG}, 13, v9\nv_add_u32 v9, {sA}, v9")
        e(f"s_lshl_b32 {sD}, {sD}, 1\ns_sub_u32 {sD}, {sD}, {8*8448 - A_WUK}")
        if o["wukdelay"]:
            e(f"s_sleep {o['wukdelay']}")
        for q in range(16):
            e(f"s_mov_b32 {sA}, {q*32768}\ns_add_u32 m0, {sD}, {q*1056}\nbuffer_load_dwordx4 v9, {srd(S_WUK)}, {sA} offen{NT(1)} lds")
        e(f"{lsk}:\ns_waitcnt lgkmcnt(0)")
        self.stamp("E")
        self.tags()
        for k in range(1, 4):
            e(f"v_lshrrev_b32 {TB[k]}, {8*k}, {vT}\ns_bfe_u32 {sTB[k]}, {sT}, {0x80000 + 8*k}")
        e(f"s_and_b32 {sTB[0]}, {sT}, 0xff\ns_mov_b32 {sNM}, 0xfffefffe")
        e(f"v_and_b32 v6, 7, {vC}\nv_lshlrev_b32 v6, 2, v6\nv_lshrrev_b32 v6, v6, {vT}")
        self.pat(Q0, "v6", 0)
        self.pat(Q1, "v6", 2)
        lsk = self.lab("k")
        e(f"s_cmp_ge_u32 {sW}, 4\ns_cbranch_scc1 {lsk}\ns_waitcnt vmcnt(0)")
        self.stamp("Wq")
        for t in range(8):
            e(f"ds_read_b64_tr_b16 {R(WQ+4*t,2)}, v31 offset:{A_WQ+32*t}\nds_read_b64_tr_b16 {R(WQ+4*t+2,2)}, v31 offset:{A_WQ+32*t+512}")
        e(f"s_mov_b32 {sA}, 0x05040100\nv_mov_b32 v6, 0x3f803f80\nv_cmp_eq_u32 vcc, 8, {vC}")
        e(f"v_perm_b32 v20, v25, v24, {sA}\nv_perm_b32 v21, v25, v24, {sSEL}\nv_perm_b32 v22, v27, v26, {sA}\nv_perm_b32 v23, v27, v26, {sSEL}")
        for k in range(4):
            e(f"v_cndmask_b32 v{XOP+k}, v{20+k}, v6, vcc")
        lsk2 = self.lab("k")
        e(f"s_waitcnt lgkmcnt(0)\ns_branch {lsk2}\n{lsk}:\ns_cmp_ge_u32 {sW}, 6\ns_cbranch_scc1 {lsk2}")
        e(f"v_mul_u32_u24 v6, 1056, {vC}\nv_lshlrev_b32 v7, 4, {vG}\nv_add3_u32 v6, {sD}, v6, v7\ns_waitcnt vmcnt(0)")
        self.stamp("Wuk")
        for u in range(4):
            for t in range(4):
                e(f"ds_read_b128 {R(wuk(t, u),4)}, v6 offset:{t*256+u*64}")
        e(f"{lsk2}:")
        ld = self.lab("nd")
        e(f"s_lshl_b32 {sA}, s2, 3\ns_add_u32 {sA}, {sA}, {sW}\ns_cmp_lg_u32 {sA}, 7\ns_cbranch_scc1 {ld}")
        e(f"s_sleep {o['vdelay']}\ns_load_dwordx16 s[32:47], s[{S_WS}:{S_WS+1}], {VOTES}")
        VS = list(range(32, 48))
        if not o["stamps"]:
            e(f"s_load_dwordx16 s[80:95], s[{S_WS}:{S_WS+1}], {VOTES+64}")
            VS += list(range(80, 96))
        e(f"s_mov_b32 {sA}, 0\ns_mov_b32 {sB}, 0\ns_xor_b32 {sC}, {sT}, 0x80000000\ns_waitcnt lgkmcnt(0)")
        for k in VS:
            e(f"s_cmp_eq_u32 s{k}, {sT}\ns_addc_u32 {sA}, {sA}, 0\ns_cmp_eq_u32 s{k}, {sC}\ns_addc_u32 {sB}, {sB}, 0")
        e(f"s_load_dwordx2 s[{S_OUT}:{S_OUT+1}], s[0:1], 80")
        if o.get("vprobe"):
            e(f"s_mul_i32 s94, {sA if o['vprobe'] == 1 else sB}, 1000\ns_cmp_eq_u32 {sA}, {sA}\ns_memrealtime s[96:97]\ns_waitcnt lgkmcnt(0)")
        if o["stamps"]:
            e(f"s_lshl_b32 s3, {sA}, 8\ns_or_b32 s3, s3, {sB}\nv_mov_b32 v10, s3")
        e(f"s_cmp_gt_u32 {sB}, {sA}\ns_cselect_b32 {sA}, 8, 0\ns_and_b32 {sB}, {sXCC}, 7\ns_or_b32 {sA}, {sA}, {sB}")
        if o["forcec"] >= 0:
            e(f"s_andn2_b32 {sA}, {sA}, 8\ns_or_b32 {sA}, {sA}, {8*o['forcec']}")
        e(f"v_mov_b32 v9, {sA}\nv_mov_b32 v8, {vT}\nv_mov_b32 v6, {WADR}\ns_mov_b64 exec, 1\nbuffer_store_dwordx2 v[8:9], v6, {srd(S_WS)}, 0 offen sc1")
        if o["stamps"]:
            e(f"buffer_store_dword v10, v6, {srd(S_WS)}, 0 offen offset:128")
        e(f"s_mov_b64 exec, -1\ns_waitcnt lgkmcnt(0)")
        if o.get("vprobe"):
            e("L_spin2:\ns_sleep 8\ns_memrealtime s[92:93]\ns_waitcnt lgkmcnt(0)\ns_sub_u32 s95, s92, s96\ns_cmp_lt_u32 s95, s94\ns_cbranch_scc1 L_spin2")
        e(f"{ld}:")

        for L in range(2):
            X = "'" * L
            if L == 1 and o["wqf"]:
                for k in range(16):
                    e(f"v_mov_b32 v{212+k}, 0")
                for k in range(4):
                    e(f"v_mov_b32 v{16+k}, 0")
                lsk, l = self.lab("k"), self.lab("xg")
                e(f"s_mov_b32 {sA}, {I0R(1)}\ns_cmp_ge_u32 {sW}, 4\ns_cbranch_scc1 {lsk}")
                if o["xd"]:
                    e(f"s_sleep {o['xd']}")
                e(f"{l}:")
                self.guard()
                e(f"buffer_load_dwordx4 v[8:11], {aI0LD}, {srd(S_WS)}, {sA} offen sc1\ns_waitcnt vmcnt(0)")
                self.xcheck(list(range(8, 12)), sTB, sFF, "v6", mid=f"v_cvt_pk_bf16_f32 v12, v8, v9\nv_cvt_pk_bf16_f32 v13, v10, v11\nds_write_b32 {aCSLD}, v12\nds_write_b32 {aCSLD}, v13 offset:576")
                e(f"s_cbranch_vccnz {l}\n{lsk}:")
                self.stamp("I0got'")
                self.bar()
                self.stamp("Xb")
                XB = [20, 24, 228, 232]
                for U in range(4):
                    e(f"ds_read_b128 {R(XB[U],4)}, {aSTLD} offset:{U*64}")
                fill = [f"v_add_f32_dpp v6, v6, v6 {DP[k]} {DPPM}\nv_add_f32_dpp v7, v7, v7 {DP[k]} {DPPM}" for k in (1, 2, 4)]
                fill += ["v_mov_b32 v12, v6\nv_mov_b32 v13, v7", "v_permlane16_swap_b32 v6, v12\nv_permlane16_swap_b32 v7, v13", "v_add_f32 v6, v6, v12\nv_add_f32 v7, v7, v13\nv_mov_b32 v12, v6\nv_mov_b32 v13, v7",
                         "v_permlane32_swap_b32 v6, v12\nv_permlane32_swap_b32 v7, v13", "v_add_f32 v6, v6, v12\nv_add_f32 v7, v7, v13"]

                def qpass(stats):
                    for U in range(8):
                        e(f"s_waitcnt lgkmcnt({min(3, 7-U)})")
                        self.smf(16, XB[U & 3], 32 + 8 * U, vIDX)
                        if U < 4:
                            e(f"ds_read_b128 {R(XB[U],4)}, {aSTLD} offset:{(U+4)*64}")
                        if stats:
                            e(fill[U])
                    self.stamp("Qs")
                lsk, lsk2 = self.lab("k"), self.lab("k")
                e(f"s_cmp_ge_u32 {sW}, 4\ns_cbranch_scc1 {lsk}")
                e("v_add_f32 v7, v8, v9\nv_mul_f32 v6, v8, v8\nv_add_f32 v12, v10, v11\nv_fmac_f32 v6, v9, v9\nv_add_f32 v7, v7, v12\nv_fmac_f32 v6, v10, v10\nv_fmac_f32 v6, v11, v11")
                qpass(True)
                e(f"ds_write_b64 {aSTST}, v[6:7]\ns_branch {lsk2}\n{lsk}:")
                qpass(False)
                e(f"s_cmp_ge_u32 {sW}, 6\ns_cbranch_scc1 {lsk2}")
                for t in range(2, 4):
                    for u in range(2, 4):
                        e(f"ds_read_b128 {R(wuk(t, u),4)}, {aI0ST0} offset:{t*256+u*64}")
                e(f"{lsk2}:\nv_add_f32 v16, v16, v17\nv_add_f32 v18, v18, v19\nv_cvt_pk_bf16_f32 v16, v16, v18\ns_mov_b32 exec_hi, 0")
                e(f"ds_write_b16 {aQW}, v16\ns_mov_b64 exec, 0xffff\nds_write_b16_d16_hi {aQW}, v16 offset:512\ns_mov_b64 exec, -1")
                self.stamp("Qw")
                self.bar()
                self.stamp("Qb")
                self.canary_set(L, aCANW, o["lead_s1"] == 1)
                l = self.lab("p1b")
                e(f"s_and_b32 {sA}, {sW}, 6\ns_cmp_lg_u32 {sA}, 4\ns_cbranch_scc1 {l}")
                e(f"ds_read_b128 v[8:11], {aQR}\nds_read_b128 v[12:15], {aQR} offset:64\nds_read_b128 v[16:19], {aI0ST1}\nds_read_b128 v[20:23], {aI0ST1} offset:16")
                e(f"s_mov_b32 {sA}, {S1R(L)}\ns_mov_b32 {sB}, {f32(128**-0.5*math.log2(math.e))}")
                for u in range(2):
                    e(f"s_waitcnt lgkmcnt({3-u})")
                    for t in range(4):
                        self.smf(212 + 4 * t, 8 + 4 * u, KG[t, u], vIDX)
                e("s_waitcnt lgkmcnt(0)\nv_add_f32 v16, v16, v18\nv_add_f32 v17, v17, v19\nv_add_f32 v20, v20, v22\nv_add_f32 v21, v21, v23\nv_add_f32 v16, v16, v20\nv_add_f32 v17, v17, v21")
                e(f"v_mul_f32 v17, {f32(1/512)}, v17\nv_mov_b32 v18, {f32(1e-5)}\nv_fmac_f32 v18, {f32(1/512)}, v16\nv_fma_f32 v18, -v17, v17, v18\nv_rsq_f32 v18, v18\ns_nop 0\nv_mul_f32 v18, {sB}, v18")
                for t in range(4):
                    e(f"v_add_f32 v{24+t}, v{212+4*t}, v{213+4*t}\nv_add_f32 v{20+t}, v{214+4*t}, v{215+4*t}")
                for t in range(4):
                    e(f"v_fma_f32 v{24+t}, -v17, v{20+t}, v{24+t}")
                for t in range(4):
                    e(f"v_mul_f32 v{24+t}, v18, v{24+t}")
            else:
                lsk = self.lab("k")
                e(f"s_cmp_ge_u32 {sW}, 4\ns_cbranch_scc1 {lsk}")
                D = [8, 12, 16, 20, 212, 216, 220, 224]
                self.mfma(228, XOP, XOP)
                for t in range(8):
                    self.mfma(D[t], XOP, WQ + 4 * t)
                e(f"s_mov_b32 {sB}, {I0R(L)-I0R(0)}\ns_mov_b32 {sC}, {I0S(L)}\nv_mov_b32 v229, {vT}")
                if L == 0:
                    e(f"v_mov_b32 v6, {sXCC}\nv_bfi_b32 v228, 15, v6, v228")
                for t in range(8):
                    e(f"v_bfi_b32 v{232+t}, {sFF}, {TB[t & 3]}, v{D[t]}")
                if L == 0:
                    first = [f"buffer_store_dwordx4 v[232:235], {aI0ST0}, {srd(S_WS)}, 0 offen", f"buffer_store_dwordx4 v[236:239], {aOUT}, {srd(S_WS)}, 0 offen",
                             f"buffer_store_dwordx2 v[228:229], {aSTST}, {srd(S_WS)}, {sC} offen"]
                    e("\n".join(x + (" sc1" if o.get("allsc1") else "") for x in first))
                else:
                    self.store_intra([f"buffer_store_dwordx4 v[232:235], {aI0ST1}, {srd(S_WS)}, {sB} offen",
                                      f"buffer_store_dwordx4 v[236:239], {aI0ST1}, {srd(S_WS)}, {sB} offen offset:512",
                                      f"buffer_store_dwordx2 v[228:229], {aSTST}, {srd(S_WS)}, {sC} offen"])
                e(f"{lsk}:")
                self.stamp("P1a" + X)
                lp, lr, lm = self.lab("i0p"), self.lab("i0r"), self.lab("i0m")
                e(f"s_mov_b32 {sA}, {I0R(L)}\ns_mov_b32 {sB}, {I0R(L)+32768}\ns_mov_b32 {sC}, {I0S(L)}\ns_movk_i32 {sD}, 16384")
                probe = f"s_mov_b64 exec, 0xffff\nbuffer_load_dwordx4 v[16:19], {aSTLD}, {srd(S_WS)}, {sC} offen sc1"
                ptest = f"v_xor_b32 v7, {vT}, v17\nv_bitop3_b32 v7, v19, {vT}, v7 bitop3:0xbe\nv_cmp_ne_u32 vcc, 0, v7"
                if L == 0:
                    restore = "\n".join(x + " sc1" for x in first)
                    e(f"s_movk_i32 {sE}, {o['i0tries']}")

                def stub():
                    e(f"{lr}:")
                    self.guard()
                    if L == 0:
                        e(f"s_sub_u32 {sE}, {sE}, 1\ns_cmp_lg_u32 {sE}, 0\ns_cbranch_scc1 {lp}\ns_cmp_ge_u32 {sW}, 4\ns_cbranch_scc1 {lp}\ns_mov_b64 exec, -1\n{restore}\n{lp}:")
                    e(f"{probe}\ns_waitcnt vmcnt(0)\n{ptest}\ns_cbranch_vccnz {lr}\ns_branch {lm}")
                self.oob(stub)
                if L == 0 or o["i0d"] < 0:
                    e(f"s_branch {lr}")
                else:
                    e("s_barrier")
                    if o["i0d"]:
                        e(f"s_sleep {o['i0d']}")
                e(f"{lm}:\n{probe}\ns_mov_b64 exec, -1")
                self.stamp("I0pr" + X)
                e(f"buffer_load_dwordx4 v[8:11], {aI0LD}, {srd(S_WS)}, {sA} offen sc1\nbuffer_load_dwordx4 v[12:15], {aI0LD}, {srd(S_WS)}, {sB} offen sc1")
                if L == 0:
                    e(f"buffer_load_dwordx4 v[20:23], {aCSLD}, {srd(S_WS)}, 0 offen sc1\nbuffer_load_dwordx4 v[24:27], {aCSLD}, {srd(S_WS)}, {sD} offen sc1")
                e(f"s_waitcnt vmcnt({4 if L == 0 else 2})\ns_mov_b64 exec, 0xffff\n{ptest}\ns_cbranch_vccnz {lr}")
                if L == 0:
                    e(f"v_and_b32 v7, 15, v16\nv_cmp_ne_u32 vcc, {sXCC}, v7\ns_cmp_eq_u64 vcc, 0\ns_cselect_b32 {sPLAIN}, {0 if o.get('allsc1') else 1}, 0\nv_and_b32 v16, -16, v16\nv_and_b32 v18, -16, v18")
                e("s_mov_b64 exec, -1")
                for k in (1, 2, 4, 8):
                    e(f"v_add_f32_dpp v16, v16, v16 {DP[k]} {DPPM}\nv_add_f32_dpp v18, v18, v18 {DP[k]} {DPPM}")
                e(f"v_mul_f32 v18, {f32(1/512)}, v18\nv_mov_b32 v17, {f32(1e-5)}\nv_fmac_f32 v17, {f32(1/512)}, v16\nv_fma_f32 v17, -v18, v18, v17\nv_rsq_f32 v17, v17")
                e(f"v_readfirstlane_b32 {sMEAN}, v18\nv_readfirstlane_b32 {sRSTD}, v17")
                e("s_waitcnt vmcnt(0)")
                self.xcheck(list(range(8, 16)) + (list(range(20, 28)) if L == 0 else []), sTB, sFF, "v6")
                e(f"s_cbranch_vccnz {lr}")
                self.stamp("I0got" + X)
                if L == 0:
                    l1, l2 = self.lab("rs"), self.lab("rt")
                    e(f"s_cmp_eq_u32 {sPLAIN}, 0\ns_cbranch_scc1 {l1}\n{l2}:")
                    self.cold.append(f"{l1}:\ns_cmp_ge_u32 {sW}, 4\ns_cbranch_scc1 {l2}\n{restore}\ns_branch {l2}")
                self.canary_set(L, aCANW, o["lead_s1"] == 1)
                grp = [8] + ([20] if L == 0 else [])
                for b in grp:
                    for k in range(4):
                        e(f"v_add_f32 v{b+k}, v{b+k}, v{b+4+k}")
                for b in grp:
                    e(f"v_permlane32_swap_b32 v{b}, v{b+2}\nv_permlane32_swap_b32 v{b+1}, v{b+3}")
                for b in grp:
                    e(f"v_add_f32 v{b}, v{b}, v{b+2}\nv_add_f32 v{b+1}, v{b+1}, v{b+3}")
                for b in grp:
                    e(f"v_permlane16_swap_b32 v{b}, v{b+1}")
                for b in grp:
                    e(f"v_add_f32 v{b}, v{b}, v{b+1}")
                e(f"v_add_f32_dpp v8, v8, v8 row_ror:8 {DPPM}")
                if L == 0:
                    e(f"v_add_f32_dpp {vCS}, v20, v20 row_ror:8 {DPPM}")
                e(f"v_fma_f32 v8, -{sMEAN}, {vCS}, v8\nv_mul_f32 v8, {sRSTD}, v8\nv_cvt_pk_bf16_f32 v8, v8, v8\nds_write_b16 {aQW}, v8")
                self.bar()
                l = self.lab("p1b")
                e(f"s_and_b32 {sA}, {sW}, 6\ns_cmp_lg_u32 {sA}, 4\ns_cbranch_scc1 {l}")
                for u in range(2 if o["smf"] & 1 else 4):
                    e(f"ds_read_b128 {R(8+4*u,4)}, {aQR} offset:{u*64}")
                e(f"s_mov_b32 {sA}, {S1R(L)}\ns_mov_b32 {sB}, {f32(128**-0.5*math.log2(math.e))}")
                if o["smf"] & 1:
                    for t in range(4):
                        e(f"v_mov_b32 v{212+4*t}, 0\nv_mov_b32 v{213+4*t}, 0")
                    for u in range(2):
                        e(f"s_waitcnt lgkmcnt({1-u})")
                        for t in range(4):
                            self.smf(212 + 4 * t, 8 + 4 * u, KG[t, u], vIDX)
                    for t in range(4):
                        e(f"v_add_f32 v{24+t}, v{212+4*t}, v{213+4*t}")
                    for t in range(4):
                        e(f"v_mul_f32 v{24+t}, {sB}, v{24+t}")
                else:
                    for u in range(4):
                        e(f"s_waitcnt lgkmcnt({3-u})")
                        for t in range(4):
                            self.mfma(212 + 4 * t, 8 + 4 * u, wuk(t, u), None if u == 0 else 212 + 4 * t)
                    for t in range(4):
                        e(f"v_mul_f32 v{24+t}, {sB}, v{212+4*t}")
            self.pack_near("v8", "v24", "v25", "v10", "v11", Q0)
            self.pack_near("v9", "v26", "v27", "v12", "v13", Q1)
            e(f"s_mov_b32 {sB}, {S1R(L)+8192}\nbuffer_store_dwordx2 v[8:9], {aS1ST}, {srd(S_WS)}, {sA} offen sc1\nbuffer_store_dwordx2 v[8:9], {aS1ST}, {srd(S_WS)}, {sB} offen sc1")
            e(f"{l}:")
            self.stamp("S1pub" + X)
            if L == 0:
                for b, sz in ((S_WUV, 4 << 20), (S_WO, 4 << 20), (S_OUT, 2048)):
                    self.fin_srd(b, sz)
                if o["adelay"]:
                    e(f"s_sleep {o['adelay']}")
                e(f"s_lshl_b32 {sA}, {sCS}, 3\ns_add_u32 {sA}, {sA}, {sW}\ns_lshl_b32 {sA}, {sA}, 9\ns_add_u32 {sA}, {sA}, {sH}\ns_lshl_b32 {sA}, {sA}, 8")
                e(f"v_lshlrev_b32 v6, 13, {vG}\nv_lshl_add_u32 v6, {vC}, 4, v6\nv_add_u32 v6, {sA}, v6\ns_mul_i32 {sC}, {sW}, 4224")
                for q in range(4):
                    e(f"s_mov_b32 {sA}, {q*32768}\ns_add_u32 m0, {sC}, {A_WUV + q*1056}\nbuffer_load_dwordx4 v6, {srd(S_WUV)}, {sA} offen{NT(3)} lds")
                e(f"v_lshlrev_b32 v7, 4, {vL}\nv_bfe_u32 {vr}, {vL}, 2, 2\nv_and_b32 {vq}, 3, {vL}\nv_mov_b32 v13, {OOB}")
                e(f"v_bfe_u32 v10, {vC}, 2, 1\nv_lshlrev_b32 v11, 4, {vG}\nv_and_b32 v9, 7, {vL}\nv_lshlrev_b32 v9, 4, v9")
                if o["smf"] & 2:
                    e(f"v_and_b32 v6, 1, {vC}\nv_lshl_add_u32 v6, v6, 7, v11\nv_lshl_add_u32 v6, v10, 8, v6\nv_add_u32 {aCCR}, {A_CC}, v6")
                else:
                    e(f"v_lshl_add_u32 v6, v10, 8, v11\nv_add_u32 {aCCR}, {A_CC}, v6")
                self.cons_pats(PC)
                e(f"v_lshlrev_b32 v6, 3, {vq}\nv_lshrrev_b32 {vTL}, v6, {vT}")
                e(f"s_and_b32 {sA}, {sH}, 15\ns_lshl_b32 {sA}, {sA}, 2\ns_add_u32 {sA}, {sA}, {sCS}\ns_lshl_b32 {sA}, {sA}, 4\ns_and_b32 {sC}, {sW}, 4\ns_add_u32 {sA}, {sA}, {sC}\ns_add_u32 {sA}, {sA}, {sW}\ns_lshl_b32 {sA}, {sA}, 11\nv_add_u32 {aS2LD}, {sA}, v7")
                if o["dma2"]:
                    e(f"v_lshlrev_b32 v6, 5, {vG}\nv_xor_b32 {aS2LD}, v6, {aS2LD}\nv_xor_b32 {aS2B}, 128, {aS2LD}\ns_lshl_b32 s75, {sW}, 11\nv_add_u32 {aOSW}, s75, v7")
                    e(f"v_lshlrev_b32 v6, 1, {vG}\nv_xor_b32 v6, v6, {vL}\nv_and_b32 v6, 3, v6\nv_lshlrev_b32 v6, 3, v6\nv_lshrrev_b32 v6, v6, {vT}")
                    for k in range(4):
                        self.pat(PS[k], "v6", 2 * k)
                else:
                    e(f"s_mul_i32 {sA}, {sW}, {8*288}\nv_mul_u32_u24 v6, 288, {vG}\nv_lshl_add_u32 v6, {vC}, 4, v6\nv_add_u32 {aOSW}, {sA}, v6")
                e(f"s_lshr_b32 {sA}, {sJ}, 2\ns_lshl_b32 {sA}, {sA}, 12\ns_and_b32 {sC}, {sH}, 15\ns_lshl_b32 {sC}, {sC}, 3\ns_add_u32 {sA}, {sA}, {sC}")
                e(f"v_lshrrev_b32 v6, 5, {vL}\nv_and_b32 v12, 31, {vL}\nv_lshlrev_b32 v12, 7, v12\nv_lshl_add_u32 v12, v6, 14, v12\nv_add_u32 {aLSE}, {sA}, v12")
                e(f"v_lshlrev_b32 v6, 6, v6\nv_lshl_add_u32 v6, {vr}, 4, v6\nv_and_b32 v12, 1, {vG}\nv_lshl_add_u32 v6, v12, 3, v6\nv_lshl_add_u32 v6, {vq}, 1, v6\nv_add_u32 {aWW}, {A_WW}, v6")
                e(f"v_add_u32 v6, {A_WW}, v11\nv_add_u32 v12, {A_WW+128}, v11")
                self.sel(aWA0, f"v_cmp_eq_u32 vcc, 0, {vC}", "v12", "v6")
                e("v_add_u32 v6, 64, v6")
                self.sel(aWA1, f"v_cmp_eq_u32 vcc, 4, {vC}", "v12", "v6")
                e("s_barrier")
                e(f"s_lshl_b32 {sA}, {sJ}, 19\ns_lshl_b32 {sB}, {sW}, 16\ns_add_u32 {sA}, {sA}, {sB}\ns_lshl_b32 {sB}, {sI}, 6\ns_add_u32 {sA}, {sA}, {sB}")
                e(f"v_lshrrev_b32 v12, 2, {vL}\nv_lshlrev_b32 v6, 10, v12\nv_lshl_add_u32 v6, {vq}, 4, v6\nv_add_u32 v6, {sA}, v6\ns_lshl_b32 {sC}, {sW}, 12")
                e(f"s_and_b32 {sD}, {sI}, 1\ns_lshl_b32 {sD}, {sD}, 11\nv_mov_b32 v23, v6")

                def wo(qs):
                    for q in qs:
                        e(f"s_xor_b32 {sA}, {sD}, {q*1024}\ns_add_u32 m0, {sA}, s74\ns_lshl_b32 {sA}, {sA}, 4\nbuffer_load_dwordx4 v23, {srd(S_WO)}, {sA} offen lds")
                e(f"s_add_u32 s74, {sC}, {A_WO}")
                wo((0, 1))
                for k in range(len(PRET2)):
                    e(f"v_mov_b32 v{24+k}, {PRET2[k]}\nbuffer_load_dword v{24+k}, v{24+k}, {srd(S_WS)}, 0 offen")
                self.fin_srd(S_X, 2048)
                e(f"v_and_b32 v8, 1, {vG}\nv_lshlrev_b32 v8, 10, v8\nv_lshl_add_u32 v8, {vC}, 1, v8\nv_add_u32 v8, {sB}, v8")
                e(f"buffer_load_ushort v18, v8, {srd(S_X)}, 0 offen\nbuffer_load_ushort v19, v8, {srd(S_X)}, 0 offen offset:32")
                e(f"s_lshl_b32 {sA}, {sW}, 5")
                if o["dma2"]:
                    e(f"v_and_b32 v6, 7, v12\nv_xor_b32 v6, {sW}, v6\nv_lshlrev_b32 v6, 5, v6\nv_lshl_add_u32 v6, v12, 8, v6\nv_lshl_add_u32 {aOTR}, {vq}, 3, v6")
                else:
                    e(f"v_mul_u32_u24 v6, 288, v12\nv_lshl_add_u32 v6, {vq}, 3, v6\nv_add_u32 {aOTR}, {sA}, v6")
                if o["dma45"]:
                    e(f"v_bfe_u32 v6, v12, 1, 2\nv_lshlrev_b32 v6, 5, v6\nv_lshl_add_u32 v6, v12, 7, v6\nv_lshl_add_u32 v6, {vq}, 3, v6\nv_add_u32 {aXTR}, {A_XR}, v6")
                    for T in range(1, 4):
                        e(f"v_xor_b32 v{100+T}, {32*T}, {aXTR}")
                else:
                    e(f"v_mul_u32_u24 v6, 160, v12\nv_lshl_add_u32 v6, {vq}, 3, v6\nv_add_u32 {aXTR}, {A_XR}, v6")
                if o["smf"] & 2:
                    e(f"s_lshl_b32 {sA}, {sW}, 4\ns_add_u32 {sA}, {sA}, {A_CC}\nv_bfe_u32 v6, {vC}, 1, 1\nv_lshlrev_b32 v6, 7, v6\nv_lshl_add_u32 v6, {vG}, 8, v6\nv_and_b32 v8, 12, {vC}\nv_add_u32 v6, v6, v8\nv_and_b32 v8, 1, {vC}\nv_lshl_add_u32 v6, v8, 1, v6\nv_add_u32 v6, {sA}, v6\nv_mov_b32 v12, {A_DUM}")
                else:
                    e(f"s_add_u32 {sA}, {sA}, {A_CC}\nv_lshlrev_b32 v6, 8, {vG}\nv_lshl_add_u32 v6, {vC}, 1, v6\nv_add_u32 v6, {sA}, v6\nv_mov_b32 v12, {A_DUM}")
                self.sel(aCCW, f"v_cmp_gt_u32 vcc, 32, {vL}", "v12", "v6")
                e(f"s_lshl_b32 {sB}, {sW}, 8\ns_add_u32 {sB}, {sB}, {A_RR}\nv_lshlrev_b32 v6, 3, {vL}\nv_add_u32 v6, {sB}, v6\nv_cndmask_b32 {aRRW}, v12, v6, vcc")
                e(f"v_lshlrev_b32 v6, 3, {vL}\nv_lshrrev_b32 v8, 5, {vL}\nv_mul_u32_u24 v8, 768, v8\nv_add3_u32 {aRRR}, v6, v8, 0\nv_add_u32 {aRRR}, {A_RR}, {aRRR}\nv_lshlrev_b32 v8, 2, {vL}")
                if o["i1b"]:
                    e(f"v_and_b32 v16, 1, {vC}\nv_lshlrev_b32 v16, 2, v16\nv_bfe_u32 v17, {vC}, 1, 2\nv_and_or_b32 v17, {vC}, 8, v17\nv_add_u32 v16, v16, v17")
                    e(f"s_lshl_b32 {sB}, {sPA}, 2\ns_add_u32 {sB}, {sB}, {sW}\ns_lshl_b32 {sB}, {sB}, 7\nv_lshl_add_u32 v6, {vG}, 4, v16\nv_lshl_add_u32 v6, v6, 2, {sB}\nv_cndmask_b32 {aI1ST}, v13, v6, vcc")
                    e(f"v_lshlrev_b32 v16, 1, v16\nv_lshrrev_b32 v16, v16, {vT}")
                    self.pat(P1, "v16", 0)
                else:
                    e(f"s_lshl_b32 {sB}, {sPA}, 10\ns_lshl_b32 {sC}, {sW}, 7\ns_add_u32 {sB}, {sB}, {sC}\nv_add_u32 v6, {sB}, v8\nv_cndmask_b32 {aI1ST}, v13, v6, vcc")
                if o["warm"]:
                    for rg in (I1R(0), I1R(1)):
                        e(f"s_mov_b32 {sB}, {rg}\nbuffer_load_dword v27, {aI1ST}, {srd(S_WS)}, {sB} offen")
                    if o["wqf"]:
                        e(f"s_lshl_b32 {sB}, {sPA}, 8\ns_add_u32 {sB}, {sB}, {I0R(1)}\nbuffer_load_dword v27, v8, {srd(S_WS)}, {sB} offen")
                    else:
                        e(f"s_mov_b32 {sB}, {I0S(1)}\nbuffer_load_dword v27, {aSTST}, {srd(S_WS)}, {sB} offen")
                        e(f"s_lshl_b32 {sB}, {sPA}, 12\ns_add_u32 {sB}, {sB}, {I0R(1)}\nv_lshlrev_b32 v6, 3, v0\nbuffer_load_dword v27, v6, {srd(S_WS)}, {sB} offen")
                e(f"s_and_b32 {sB}, {sPA}, 64\ns_add_u32 {sB}, {sB}, {sPA}\ns_lshl_b32 {sB}, {sB}, 7\nv_add_u32 v6, {sB}, v8\nv_cndmask_b32 {aS3ST}, v13, v6, vcc")
                if o["i1b"]:
                    e(f"s_lshl_b32 {sB}, {sJ}, 13\ns_lshl_b32 {sC}, {sW}, 8\ns_add_u32 {sB}, {sB}, {sC}")
                    e(f"v_lshrrev_b32 v6, 2, {vC}\nv_lshlrev_b32 v6, 11, v6\nv_lshrrev_b32 v16, 1, {vG}\nv_lshl_add_u32 v6, v16, 7, v6\nv_bfe_u32 v16, {vC}, 1, 1\nv_lshl_add_u32 v6, v16, 6, v6")
                    e(f"v_and_b32 v16, 1, {vG}\nv_and_b32 v17, 1, {vC}\nv_lshl_add_u32 v16, v16, 1, v17\nv_lshl_add_u32 v6, v16, 4, v6\nv_add_u32 {aI1LD}, {sB}, v6")
                    e(f"v_lshlrev_b32 v16, 3, v16\nv_lshrrev_b32 v16, v16, {vT}")
                    for k in range(4):
                        self.pat(PD[k], "v16", 2 * k)
                    e(f"s_lshl_b32 {sB}, {sW}, 8\ns_add_u32 {sB}, {sB}, {A_RR}\nv_lshrrev_b32 v6, 1, {vG}\nv_lshl_add_u32 v6, v6, 4, {vC}\nv_and_b32 v16, 1, {vG}\nv_lshl_add_u32 v6, v6, 1, v16\nv_lshl_add_u32 {aRRW}, v6, 2, {sB}")
                else:
                    e(f"s_lshl_b32 {sB}, {sJ}, 14\ns_lshl_b32 {sC}, {sW}, 9\ns_add_u32 {sB}, {sB}, {sC}")
                    e(f"v_lshlrev_b32 v6, 12, {vG}\nv_lshl_add_u32 v6, {vC}, 4, v6\nv_add_u32 {aI1LD}, {sB}, v6")
                e(f"s_lshl_b32 {sA}, {sW}, 8\ns_add_u32 {sA}, {sA}, {A_CT}\nv_lshlrev_b32 v6, 7, v10\nv_add_u32 v6, {sA}, v6")
                if o["smf"] & 4:
                    e(f"v_and_b32 v8, 1, {vC}\nv_lshl_add_u32 v8, v8, 6, v11\nv_add_u32 {aCTR}, v6, v8")
                    e(f"v_lshrrev_b32 v8, 1, {vG}\nv_lshl_add_u32 v6, v8, 5, v6\nv_lshrrev_b32 v8, 3, {vC}\nv_lshl_add_u32 v6, v8, 4, v6\nv_lshl_add_u32 v6, {vq}, 2, v6\nv_and_b32 v8, 1, {vG}\nv_lshl_add_u32 {aCTW}, v8, 6, v6")
                else:
                    e(f"v_add_u32 {aCTR}, v6, v11")
                    e(f"v_lshrrev_b32 v8, 1, {vG}\nv_lshl_add_u32 v6, v8, 6, v6\nv_lshrrev_b32 v8, 3, {vC}\nv_lshl_add_u32 v6, v8, 5, v6\nv_lshl_add_u32 v6, {vq}, 3, v6\nv_and_b32 v8, 1, {vG}\nv_lshl_add_u32 {aCTW}, v8, 2, v6")
                if o["dma45"]:
                    e(f"v_lshrrev_b32 v8, 3, v0\nv_lshlrev_b32 v6, 4, v0\nv_add_u32 {aXRW}, {A_XR}, v6\nv_lshlrev_b32 v6, 5, {vG}\nv_xor_b32 v9, v9, v6")
                else:
                    e(f"v_lshrrev_b32 v8, 3, v0\nv_mul_u32_u24 v6, 160, v8\nv_add_u32 v6, v6, v9\nv_add_u32 {aXRW}, {A_XR}, v6")
                e(f"s_lshl_b32 {sA}, {sI}, 7\nv_and_b32 v6, 60, v8\nv_add_u32 v6, v6, v8\nv_lshl_add_u32 v6, v6, 11, v9\nv_add_u32 {aXLD}, {sA}, v6")
                e(f"v_cmp_gt_u32 {sMASK}, 43, v8\nv_lshrrev_b32 v8, 3, v8\nv_cmp_eq_u32 vcc, 6, v8\ns_or_b64 {sMASK}, {sMASK}, vcc")
                e(f"v_lshlrev_b32 v6, 7, v10\nv_lshl_add_u32 v6, {vG}, 4, v6\nv_add_u32 v6, {A_XS}, v6\nv_and_b32 v8, 11, {vC}")
                self.sel(aXSW, "v_cmp_eq_u32 vcc, 0, v8", "v12", "v6")
                l = self.lab("k")
                e(f"s_cmp_lg_u32 {sW}, 0\ns_cbranch_scc1 {l}\nv_cndmask_b32 {aOUT}, v13, {aXOFF}, vcc\n{l}:")
                e(f"v_mov_b32 v6, 0x3f803f80\nv_mov_b32 v8, 0\nv_mov_b32 v9, 0\nv_mov_b32 v10, 0\nv_mov_b32 v11, 0")
                e(f"v_lshlrev_b32 v6, 2, {vC}\nv_add_u32 v6, {A_WW+128}, v6\nds_write_b32 v6, v8")
                e(f"s_mov_b64 exec, {sMASK}\ns_not_b64 exec, exec\nds_write_b128 {aXRW}, v[8:11]\ns_mov_b64 exec, -1")
                e("s_barrier")
                wo((2, 3))
                if o["stamps"] and "Wuv" in self.names:
                    self.stamp("Wuv")
                self.place_wait(26)
                e(f"v_add_u32 {aLSE}, {sSIDE}, {aLSE}\nv_add_u32 {aXLD}, {sSIDE}, {aXLD}\nv_add_u32 {aCANR}, {sSIDE}, {aCANR}")
                e(f"s_add_u32 {sA}, {sWW}, {sJ}\ns_lshl_b32 {sA}, {sA}, 1\ns_xor_b32 {sA}, {sA}, {sWW}\ns_and_b32 {sA}, {sA}, 8\ns_lshl_b32 {sA}, {sA}, 10\nv_add_u32 {aS2LD}, {sA}, {aS2LD}\nv_add_u32 {aS2B}, {sA}, {aS2B}")
                e("s_waitcnt lgkmcnt(0)\ns_barrier")
                lw4 = self.lab("k")
                e(f"s_cmp_ge_u32 {sW}, 4\ns_cbranch_scc1 {lw4}")
                e(f"v_lshlrev_b32 v18, 16, v18\nv_lshlrev_b32 v19, 16, v19\nv_mul_f32 v244, {f32(0.125)}, v18\nv_mul_f32 v245, {f32(0.125)}, v19")
                e(f"v_mov_b32 v6, 0x3f803f80\nv_mov_b32 v8, 0")
                self.sel(R(SEL0), f"v_cmp_eq_u32 vcc, 0, {vC}", "v8", "v6")
                self.sel(R(SEL4), f"v_cmp_eq_u32 vcc, 4, {vC}", "v8", "v6")
                for k in range(1, 4):
                    e(f"v_mov_b32 v{SEL0+k}, v{SEL0}\nv_mov_b32 v{SEL4+k}, v{SEL4}")
                e(f"v_lshrrev_b32 v6, 1, {vG}\nv_lshl_add_u32 v6, {vr}, 2, v6\nv_mul_u32_u24 v6, 1056, v6\nv_and_b32 v7, 1, {vG}\nv_lshl_add_u32 v6, v7, 9, v6")
                if o["i1b"]:
                    e(f"s_and_b32 {sA}, {sW}, 3\ns_lshl_b32 {sA}, {sA}, 6\ns_add_u32 {sA}, {sA}, {A_WUV}\nv_lshl_add_u32 v6, {vq}, 3, v6\nv_add_u32 v6, {sA}, v6")
                else:
                    e(f"s_lshl_b32 {sA}, {sW}, 5\ns_add_u32 {sA}, {sA}, {A_WUV}\nv_lshl_add_u32 v6, {vq}, 3, v6\nv_add_u32 v6, {sA}, v6")
                for t in range(2 if o["i1b"] else 1):
                    for u in range(4):
                        off = (16 * (u >> 1) + 2 * (u & 1)) * 1056 + 32 * t
                        e(f"ds_read_b64_tr_b16 {R(WUV+16*t+4*u,2)}, v6 offset:{off}\nds_read_b64_tr_b16 {R(WUV+16*t+4*u+2,2)}, v6 offset:{off+256}")
                e(f"{lw4}:")
                if o["i1b"]:
                    e(f"v_and_b32 v8, 1, {vr}\nv_lshlrev_b32 v8, 4, v8\nv_lshl_add_u32 v8, {vG}, 2, v8\nv_lshrrev_b32 v9, 1, {vr}\nv_add_u32 v8, v8, v9")
                else:
                    e(f"v_lshl_add_u32 v8, {vG}, 3, {vr}")
                e(f"v_lshlrev_b32 v8, 6, v8\nv_lshl_add_u32 v8, {vq}, 3, v8\ns_lshl_b32 {sA}, {sW}, 12\ns_add_u32 {sA}, {sA}, {A_WO}\nv_add_u32 v8, {sA}, v8")
                for t in range(2):
                    for u in range(2):
                        off = u * 2048 + t * 32
                        e(f"ds_read_b64_tr_b16 {R(WO+8*t+4*u,2)}, v8 offset:{off}\nds_read_b64_tr_b16 {R(WO+8*t+4*u+2,2)}, v8 offset:{off+(128 if o['i1b'] else 256)}")
                e("s_waitcnt lgkmcnt(0)")
                self.stamp("Wo")
            else:
                if o["wqf"]:
                    l = self.lab("k")
                    e(f"s_cmp_lg_u32 {sW}, 0\ns_cbranch_scc1 {l}\nv_and_b32 v6, 31, {vL}\nv_lshlrev_b32 v6, 3, v6\nv_add_u32 v6, {A_XS}, v6\nds_read_b64 v[244:245], v6\n{l}:")
                else:
                    l = self.lab("k")
                    e(f"s_cmp_lg_u32 {sW}, 0\ns_cbranch_scc1 {l}")
                    for hf in range(2):
                        for r in range(4):
                            e(f"v_mul_f32 v{244+4*hf+r}, {f32(0.125)}, v{244+4*hf+r}\nds_write_b32 {aXSW}, v{244+4*hf+r} offset:{(r&1)*4 + (8*hf + (r>>1))*8}")
                    e(f"v_and_b32 v6, 31, {vL}\nv_lshlrev_b32 v6, 3, v6\nv_add_u32 v6, {A_XS}, v6\nds_read_b64 v[244:245], v6\n{l}:")
            if L == 1:
                e(f"s_lshl_b32 {sA}, s2, 9\nv_add_u32 v6, {sA}, v0\nv_mov_b32 v7, {OOB}\nv_cmp_eq_u32 vcc, 0, v6\nv_cndmask_b32 v6, v7, v6, vcc\nbuffer_store_dword {vT}, v6, {srd(S_WS)}, 0 offen sc1")
            if L == 0:
                e(f"v_lshlrev_b32 v6, 1, {vC}\nv_lshrrev_b32 v6, v6, {vT}")
                self.pat(P3, "v6", 0)
            self.canary_wait(2 + L, aCANR, o["d_s2" if L == 0 else "e_s2"])
            self.stamp("S2can" + X)
            l, l0, l1 = self.lab("s2"), self.lab("s2w"), self.lab("s2x")
            e(f"s_mov_b32 {sA}, {S2R(L)}\ns_mov_b32 {sB}, {LSE(L)}\ns_cmp_eq_u32 {sW}, 0\ns_cbranch_scc1 {l0}")
            if o["dma2"]:
                ld2 = f"s_mov_b32 m0, s75\nbuffer_load_dwordx4 {aS2LD}, {srd(S_WS)}, {sA} offen sc1 lds\nbuffer_load_dwordx4 {aS2B}, {srd(S_WS)}, {sA} offen offset:1024 sc1 lds"
                st2 = f"ds_read_b128 v[8:11], {aOSW}\nds_read_b128 v[12:15], {aOSW} offset:1024\ns_waitcnt lgkmcnt(0)"
                P2_, RS = PS, 256
            else:
                ld2 = f"buffer_load_dwordx4 v[8:11], {aS2LD}, {srd(S_WS)}, {sA} offen sc1\nbuffer_load_dwordx4 v[12:15], {aS2LD}, {srd(S_WS)}, {sA} offen offset:1024 sc1"
                st2 = f"ds_write_b128 {aOSW}, v[8:11] offset:{A_OS}\nds_write_b128 {aOSW}, v[12:15] offset:{A_OS+4*288}"
                P2_, RS = PC, 288
            self.retry_head(l)
            e(f"{ld2}\ns_waitcnt vmcnt(0)\n{st2}")
            self.check(list(range(8, 16)), P2_, sM, "v6")
            e(f"s_cbranch_vccnz {l}\ns_branch {l1}")
            e(f"{l0}:")
            l0 = self.lab("s2v")
            self.retry_head(l0)
            e(f"buffer_load_dwordx2 v[16:17], {aLSE}, {srd(S_WS)}, {sB} offen sc1\n{ld2}\ns_waitcnt vmcnt(2)")
            e(f"v_xor_b32 v7, {vT}, v17\nv_mov_b32 v18, v16")
            self.allred(["v18"], "v_max_f32", ["v19"], [1, 2, 4, 8, 16])
            e("v_sub_f32 v16, v16, v18\nv_exp_f32 v16, v16\ns_nop 0\nv_mov_b32 v18, v16")
            self.allred(["v18"], "v_add_f32", ["v19"], [1, 2, 4, 8, 16])
            e(f"v_rcp_f32 v18, v18\ns_nop 0\nv_mul_f32 v16, v16, v18\nv_cvt_pk_bf16_f32 v16, v16, v16\nds_write_b16 {aWW}, v16\ns_waitcnt vmcnt(0)\n{st2}")
            self.check(list(range(8, 16)), P2_, sM, "v6", extra="v7")
            e(f"s_cbranch_vccnz {l0}")
            e(f"{l1}:")
            self.stamp("S2got" + X)
            self.bar()
            e(f"ds_read_b128 v[8:11], {aWA0}\nds_read_b64_tr_b16 v[16:17], {aOTR} offset:{A_OS}\nds_read_b64_tr_b16 v[18:19], {aOTR} offset:{A_OS+16*RS}")
            e(f"ds_read_b128 v[12:15], {aWA1}\nds_read_b64_tr_b16 v[20:21], {aOTR} offset:{A_OS+32*RS}\nds_read_b64_tr_b16 v[22:23], {aOTR} offset:{A_OS+48*RS}")
            e("s_waitcnt lgkmcnt(3)")
            for k in range(4):
                e(f"v_and_b32 v{16+k}, {sNM}, v{16+k}")
            e("s_waitcnt lgkmcnt(0)")
            for k in range(4):
                e(f"v_and_b32 v{20+k}, {sNM}, v{20+k}")
            self.mfma(24, 8, 16)
            self.mfma(24, 12, 20, 24)
            e(f"s_mov_b32 {sB}, {I1R(L)}")
            e(f"v_cvt_pk_bf16_f32 v8, v24, v24\nds_write_b16 {aCCW}, v8")
            self.bar()
            if o["i1b"]:
                lsk = self.lab("k")
                e(f"s_cmp_ge_u32 {sW}, 4\ns_cbranch_scc1 {lsk}")
                e(f"ds_read_b128 v[8:11], {aCCR}\nds_read_b128 v[12:15], {aCCR} offset:64\nv_mov_b32 v16, 0\nv_mov_b32 v17, 0\nv_mov_b32 v20, 0\nv_mov_b32 v21, 0\ns_waitcnt lgkmcnt(1)")
                self.smf(16, 8, WUV, vIDX)
                self.smf(20, 8, WUV + 16, vIDX)
                e("s_waitcnt lgkmcnt(0)")
                self.smf(16, 12, WUV + 8, vIDX)
                self.smf(20, 12, WUV + 24, vIDX)
                e("v_add_f32 v16, v16, v17\nv_add_f32 v20, v20, v21")
                self.pack_ovw("v8", "v16", "v20", P1)
                self.store_intra([f"buffer_store_dword v8, {aI1ST}, {srd(S_WS)}, {sB} offen"])
                e(f"{lsk}:")
                self.stamp("I1pub" + X)
                for k in range(8):
                    e(f"v_mov_b32 v{16+k}, 0")
                l = self.lab("i1")
                e(f"{l}:")
                self.guard()
                e(f"buffer_load_dwordx4 v[8:11], {aI1LD}, {srd(S_WS)}, {sB} offen sc1\ns_waitcnt vmcnt(0)")
                self.xcheck(list(range(8, 12)), PD, sM, "v6")
                e(f"s_cbranch_vccnz {l}")
                self.stamp("I1got" + X)
                self.smf(16, 8, WO, vIDX)
                self.smf(20, 8, WO + 8, vIDX)
                self.canary_set(4 + L, aCANW, o["lead_s3"] == 1)
                e("v_add_f32 v16, v16, v17\nv_add_f32 v18, v18, v19\nv_add_f32 v20, v20, v21\nv_add_f32 v22, v22, v23")
                e("v_permlane32_swap_b32 v16, v18\nv_permlane32_swap_b32 v20, v22\nv_add_f32 v16, v16, v18\nv_add_f32 v20, v20, v22")
                e(f"v_permlane16_swap_b32 v16, v20\nv_add_f32 v16, v16, v20\nds_write_b32 {aRRW}, v16")
            else:
                if o["smf"] & 2:
                    e(f"ds_read_b128 v[8:11], {aCCR}\nds_read_b128 v[12:15], {aCCR} offset:64\nv_mov_b32 v24, 0\nv_mov_b32 v25, 0\ns_waitcnt lgkmcnt(1)")
                    self.smf(24, 8, WUV, vIDX)
                    e("s_waitcnt lgkmcnt(0)")
                    self.smf(24, 12, WUV + 8, vIDX)
                    e("v_add_f32 v24, v24, v25")
                else:
                    for u in range(4):
                        e(f"ds_read_b128 {R(8+4*u,4)}, {aCCR} offset:{u*64}")
                    for u in range(4):
                        e(f"s_waitcnt lgkmcnt({3-u})")
                        self.mfma(24, 8 + 4 * u, WUV + 4 * u, None if u == 0 else 24)
                e(f"v_bfi_b32 v8, {sFF}, {vTL}, v24")
                self.store_intra([f"buffer_store_dword v8, {aI1ST}, {srd(S_WS)}, {sB} offen"])
                self.stamp("I1pub" + X)
                l = self.lab("i1")
                e(f"{l}:")
                self.guard()
                e(f"buffer_load_dwordx4 v[8:11], {aI1LD}, {srd(S_WS)}, {sB} offen sc1\nbuffer_load_dwordx4 v[12:15], {aI1LD}, {srd(S_WS)}, {sB} offen offset:256 sc1\ns_waitcnt vmcnt(0)")
                self.check(list(range(8, 16)), sTB, sFF, "v6")
                e(f"s_cbranch_vccnz {l}")
                self.stamp("I1got" + X)
                self.canary_set(4 + L, aCANW, o["lead_s3"] == 1)
                for k in range(4):
                    e(f"v_permlane32_swap_b32 v{8+k}, v{12+k}")
                for k in range(4):
                    e(f"v_add_f32 v{8+k}, v{8+k}, v{12+k}")
                e("v_permlane16_swap_b32 v8, v10\nv_permlane16_swap_b32 v9, v11\nv_add_f32 v8, v8, v10\nv_add_f32 v9, v9, v11")
                e(f"v_cvt_pk_bf16_f32 v8, v8, v9\nds_write_b32 {aCTW}, v8")
                if o["smf"] & 4:
                    e(f"ds_read_b128 v[8:11], {aCTR}\nv_mov_b32 v16, 0\nv_mov_b32 v17, 0\nv_mov_b32 v20, 0\nv_mov_b32 v21, 0\ns_waitcnt lgkmcnt(0)")
                    self.smf(16, 8, WO, vIDX)
                    self.smf(20, 8, WO + 8, vIDX)
                    e(f"v_add_f32 v16, v16, v17\nv_add_f32 v17, v20, v21\nds_write_b64 {aRRW}, v[16:17]")
                else:
                    e(f"ds_read_b128 v[8:11], {aCTR}\nds_read_b128 v[12:15], {aCTR} offset:64\ns_waitcnt lgkmcnt(1)")
                    self.mfma(16, 8, WO)
                    self.mfma(20, 8, WO + 8)
                    e("s_waitcnt lgkmcnt(0)")
                    self.mfma(16, 12, WO + 4, 16)
                    self.mfma(20, 12, WO + 12, 20)
                    e(f"v_mov_b32 v17, v20\nds_write_b64 {aRRW}, v[16:17]")
            self.bar()
            l = self.lab("fin")
            e(f"s_cmp_lg_u32 {sW}, 0\ns_cbranch_scc1 {l}")
            for k in range(4):
                e(f"ds_read_b64 {R(8+2*k,2)}, {aRRR} offset:{k*256}")
            e(f"s_mov_b32 {sA}, {S3R(L)}\ns_waitcnt lgkmcnt(2)\nv_add_f32 v8, v8, v10\nv_add_f32 v9, v9, v11\ns_waitcnt lgkmcnt(0)\nv_add_f32 v12, v12, v14\nv_add_f32 v13, v13, v15")
            e("v_add_f32 v8, v8, v12\nv_add_f32 v9, v9, v13\nv_mov_b32 v10, v8\nv_mov_b32 v11, v9\nv_permlane32_swap_b32 v8, v10\nv_permlane32_swap_b32 v9, v11")
            e("v_add_f32 v8, v8, v244\nv_add_f32 v9, v9, v245\nv_add_f32 v24, v8, v10\nv_add_f32 v25, v9, v11")
            self.pack_near("v8", "v24", "v25", "v10", "v11", P3)
            e(f"s_mov_b32 {sB}, {S3R(L)+8192}\nbuffer_store_dword v8, {aS3ST}, {srd(S_WS)}, {sA} offen sc1\nbuffer_store_dword v8, {aS3ST}, {srd(S_WS)}, {sB} offen sc1")
            self.canary_set(4 + L, aCANW, o["lead_s3"] == 0)
            e(f"{l}:")
            self.stamp("S3pub" + X)
            if L == 1:
                l = self.lab("ex")
                e(f"s_and_b32 {sA}, {sI}, 7\ns_cmp_eq_u32 {sA}, {sJ}\ns_cbranch_scc1 {l}")
                self.dump_stamps()
                e(f"s_endpgm\n{l}:")
            if L == 0 and o["wqf"]:
                e(f"s_lshl_b32 {sA}, {sW}, 9\ns_add_u32 {sA}, {sA}, {sH}\ns_lshl_b32 {sA}, {sA}, 8\nv_lshlrev_b32 v9, 4, {vC}\nv_lshl_add_u32 v9, {vG}, 15, v9\nv_add_u32 v9, {sA}, v9\ns_mul_i32 {sD}, {sW}, 4160\ns_barrier")

                def wqdma(n):
                    for q in range(4):
                        e(f"s_mov_b32 {sA}, {q*8192 + (n << 20)}\ns_add_u32 m0, {sD}, {A_WUV + (n & 1)*33280 + q*1040}\nbuffer_load_dwordx4 v9, {srd(S_WQ)}, {sA} offen lds")

                def wqfill(n):
                    e(f"s_waitcnt vmcnt({4 if n < 3 else 0})\ns_barrier")
                    for sl in range(4):
                        off = (n & 1) * 33280 + sl * 8320
                        e(f"ds_read_b64_tr_b16 {R(32+16*n+4*sl,2)}, v10 offset:{off}\nds_read_b64_tr_b16 {R(34+16*n+4*sl,2)}, v10 offset:{off+512}")
                    e("s_waitcnt lgkmcnt(0)")
                wqdma(0)
                wqdma(1)
                e(f"v_bfe_u32 {vr}, {vL}, 2, 2\nv_and_b32 {vq}, 3, {vL}\nv_mov_b32 v13, {OOB}\nv_lshlrev_b32 v11, 4, {vG}\nv_bfe_u32 v12, {vC}, 2, 1")
                e(f"v_and_b32 v6, 1, {vr}\nv_lshlrev_b32 v6, 2, v6\nv_lshrrev_b32 v8, 1, {vr}\nv_add_u32 v6, v6, v8\nv_and_b32 v8, 1, {vG}\nv_lshl_add_u32 v6, v8, 1, v6\nv_mul_u32_u24 v6, 1040, v6")
                e(f"v_lshrrev_b32 v8, 1, {vG}\nv_lshl_add_u32 v6, v8, 8, v6\nv_lshl_add_u32 v6, {vq}, 3, v6\ns_lshl_b32 {sA}, {sW}, 5\ns_add_u32 {sA}, {sA}, {A_WUV}\nv_add_u32 v10, {sA}, v6")
                e(f"s_and_b32 {sA}, {sW}, 1\ns_lshl_b32 {sB}, {sA}, 5\nv_xor_b32 v110, {sB}, {aXTR}\nv_xor_b32 v111, 64, v110\ns_lshl_b32 {sB}, {sA}, 6\nv_add_u32 {aXSW}, {sB}, {aXSW}")
                e(f"s_lshl_b32 {sB}, {sPA}, 8\ns_lshl_b32 {sA}, {sA}, 4\ns_add_u32 {sB}, {sB}, {sA}\ns_add_u32 {sB}, {sB}, {I0R(1)}\nv_lshlrev_b32 v6, 7, v12\nv_lshl_add_u32 v6, {vG}, 5, v6\nv_add_u32 v6, {sB}, v6\nv_and_b32 v8, 11, {vC}\nv_cmp_eq_u32 vcc, 0, v8\nv_cndmask_b32 {aWROW}, v13, v6, vcc")
                e(f"v_add_u32 v6, {sA}, {aXOFF}\nv_cndmask_b32 {aOUT}, v13, v6, vcc")
                e(f"s_lshl_b32 {sA}, {sJ}, 12\nv_lshlrev_b32 v6, 4, v0\nv_add_u32 {aI0LD}, {sA}, v6")
                e(f"v_bfe_u32 v6, v0, 3, 1\nv_mul_u32_u24 v6, 1152, v6\nv_lshrrev_b32 v8, 4, v0\nv_lshl_add_u32 v6, v8, 5, v6\nv_bfe_u32 v8, v0, 2, 1\nv_lshl_add_u32 v6, v8, 4, v6\nv_lshl_add_u32 v6, {vq}, 2, v6\nv_add_u32 {aCSLD}, {A_CT}, v6")
                e(f"v_and_b32 v8, 1, {vC}\nv_lshl_add_u32 v6, v12, 1, v8\nv_mul_u32_u24 v6, 576, v6\nv_add_u32 v6, v6, v11\nv_add_u32 v6, {A_CT}, v6\nv_mov_b32 v16, {A_ONE}\nv_lshrrev_b32 v17, 1, {vC}")
                self.sel(aSTLD, "v_cmp_eq_u32 vcc, 1, v17", "v6", "v16")
                e(f"v_lshl_add_u32 v6, v8, 7, v11\nv_lshlrev_b32 v16, 8, v12\nv_mov_b32 v17, 0x200\nv_and_b32 v8, 2, {vC}\nv_cmp_ne_u32 vcc, 0, v8\nv_cndmask_b32 v16, v16, v17, vcc\nv_add3_u32 {aQR}, v6, v16, 0\nv_add_u32 {aQR}, {A_Q}, {aQR}")
                e(f"v_add_u32 {aQW}, {A_Q - A_CC + (1 << 32)}, {aCCW}")
                e(f"s_lshl_b32 {sA}, {sW}, 3\ns_add_u32 {sA}, {sA}, {A_ST}\nv_lshlrev_b32 v6, 2, {vL}\nv_add_u32 v6, {sA}, v6\nv_mov_b32 v8, {A_DUM}\ns_cmp_lt_u32 {sW}, 4\ns_cselect_b32 vcc_lo, 0x101, 0\ns_mov_b32 vcc_hi, 0\nv_cndmask_b32 {aSTST}, v8, v6, vcc")
                e(f"v_and_b32 v6, 1, {vG}\nv_lshlrev_b32 v6, 5, v6\nv_add_u32 {aI0ST1}, {A_ST}, v6")
                e(f"s_and_b32 {sA}, {sW}, 1\ns_mul_i32 {sA}, {sA}, {16*1056}\ns_add_u32 {sA}, {sA}, {A_WUK}\nv_mul_u32_u24 v6, 1056, {vC}\nv_add3_u32 {aI0ST0}, {sA}, v6, v11")
                e(f"v_and_b32 v6, 127, v0\nv_lshlrev_b32 v6, 2, v6\nv_add_u32 v6, {A_ONE}, v6\nv_mov_b32 v8, 0x3f803f80\nds_write_b32 v6, v8")
                for n in range(4):
                    wqfill(n)
                    if n < 2:
                        e("s_barrier")
                        wqdma(n + 2)
                self.stamp("WqF")
            e(f"s_mov_b32 {sB}, {S45(L)}\ns_cmp_eq_u32 {sW}, 6\ns_cselect_b32 {sB}, {S3R(L) - 12*16384}, {sB}\ns_lshl_b32 {sC}, {sW}, 10\ns_add_u32 {sC}, {sC}, {A_XR}")
            self.canary_wait(6 + L, aCANR, o["d_s45" if L == 0 else "e_s45"])
            self.stamp("S45can" + X)
            l, l2 = self.lab("s45"), self.lab("s45n")
            e(f"s_mov_b64 exec, {sMASK}\ns_cbranch_execz {l2}")
            self.retry_head(l)
            if o["dma45"]:
                e(f"buffer_load_dwordx4 v[8:11], {aXLD}, {srd(S_WS)}, {sB} offen sc1\ns_waitcnt vmcnt(0)")
                self.xcheck(list(range(8, 12)), PS, sM, "v6", mid=f"ds_write_b128 {aXRW}, v[8:11]")
            else:
                e(f"buffer_load_dwordx4 v[8:11], {aXLD}, {srd(S_WS)}, {sB} offen sc1\ns_waitcnt vmcnt(0)")
                e(f"ds_write_b128 {aXRW}, v[8:11]")
                self.check(list(range(8, 12)), PC, sM, "v6")
            e(f"s_cbranch_vccnz {l}")
            e(f"{l2}:\ns_mov_b64 exec, -1")
            self.stamp("S45got" + X)
            self.bar()
            if o["wqf"]:
                lsk = self.lab("k")
                if L == 1:
                    e(f"s_cmp_lt_u32 {sW}, 2\ns_cbranch_scc1 {lsk}")
                    self.dump_stamps()
                    e(f"s_endpgm\n{lsk}:")
                else:
                    e(f"s_cmp_ge_u32 {sW}, 2\ns_cbranch_scc1 {lsk}")
                for n in range(4):
                    e(f"ds_read_b64_tr_b16 {R(8+4*n,2)}, v{110+(n&1)} offset:{(n >> 1)*4096}\nds_read_b64_tr_b16 {R(10+4*n,2)}, v{110+(n&1)} offset:{(n >> 1)*4096 + 2048}")
                for n in range(4):
                    e(f"s_waitcnt lgkmcnt({6-2*n})")
                    self.mfma(244, 8 + 4 * n, SEL4 if n & 1 else SEL0, None if n == 0 else 244)
                if L == 0:
                    for k in range(4):
                        e(f"v_bfi_b32 v{8+k}, {sFF}, {TB[k]}, v{244+k}")
                    self.store_intra([f"buffer_store_dwordx4 v[8:11], {aWROW}, {srd(S_WS)}, 0 offen"])
                    self.stamp("P1a'")
                    for r in range(4):
                        e(f"v_mul_f32 v{244+r}, {f32(0.125)}, v{244+r}\nds_write_b32 {aXSW}, v{244+r} offset:{(r&1)*4 + (r>>1)*8}")
                    e(f"{lsk}:")
                else:
                    e("v_cvt_pk_bf16_f32 v8, v244, v246\nv_cvt_pk_bf16_f32 v9, v245, v247")
                    e(f"buffer_store_dword v8, {aOUT}, {srd(S_OUT)}, 0 offen\nbuffer_store_dword v9, {aOUT}, {srd(S_OUT)}, 0 offen offset:32")
            else:
                lsk = self.lab("k")
                if L == 1:
                    e(f"s_cmp_eq_u32 {sW}, 0\ns_cbranch_scc1 {lsk}")
                    self.dump_stamps()
                    e(f"s_endpgm\n{lsk}:")
                else:
                    e(f"s_cmp_ge_u32 {sW}, 4\ns_cbranch_scc1 {lsk}")
                XT = [8, 12, 16, 20, 212, 216, 220, 224]
                for n in range(8):
                    if o["dma45"]:
                        ad = aXTR if n & 3 == 0 else f"v{100 + (n & 3)}"
                        e(f"ds_read_b64_tr_b16 {R(XT[n],2)}, {ad} offset:{(n >> 2)*4096}\nds_read_b64_tr_b16 {R(XT[n]+2,2)}, {ad} offset:{(n >> 2)*4096 + 2048}")
                    else:
                        off = (n >> 2) * 5120 + 32 * (n & 3)
                        e(f"ds_read_b64_tr_b16 {R(XT[n],2)}, {aXTR} offset:{off}\nds_read_b64_tr_b16 {R(XT[n]+2,2)}, {aXTR} offset:{off+2560}")
                    if n >= 5:
                        T = n - 5
                        e("s_waitcnt lgkmcnt(10)")
                        self.mfma(244 + 4 * (T & 1), XT[T], SEL0 if T < 2 else SEL4, None if T < 2 else 244 + 4 * (T & 1))
                for n in range(3, 8):
                    T = n & 3
                    e(f"s_waitcnt lgkmcnt({14-2*n})")
                    self.mfma(244 + 4 * (T & 1), XT[n], SEL0 if T < 2 else SEL4, 244 + 4 * (T & 1))
                if L == 0:
                    for k in range(4):
                        e(f"v_cvt_pk_bf16_f32 v{XOP+k}, v{244+2*k}, v{245+2*k}")
                    for k in range(4):
                        e(f"v_or_b32 v{XOP+k}, {vONE}, v{XOP+k}")
                    e(f"{lsk}:")
                else:
                    e("v_cvt_pk_bf16_f32 v8, v244, v246\nv_cvt_pk_bf16_f32 v9, v245, v247\nv_cvt_pk_bf16_f32 v10, v248, v250\nv_cvt_pk_bf16_f32 v11, v249, v251")
                    for k, off in enumerate((0, 32, 16, 48)):
                        e(f"buffer_store_dword v{8+k}, {aOUT}, {srd(S_OUT)}, 0 offen offset:{off}")
            if L == 1:
                self.stamp("end")
                if o["amp"]:
                    e(f"s_waitcnt vmcnt(0)\ns_memrealtime s[96:97]\ns_waitcnt lgkmcnt(0)\ns_sub_u32 s94, s96, s98\ns_mul_i32 s94, s94, {o['amp']}\nL_spin:\ns_sleep 8\ns_memrealtime s[92:93]\ns_waitcnt lgkmcnt(0)\ns_sub_u32 s95, s92, s96\ns_cmp_lt_u32 s95, s94\ns_cbranch_scc1 L_spin")
                self.dump_stamps()
                e("s_endpgm")

    def roleB(self):
        e, o = self.e, self.o
        NT = lambda b: ' nt' if o['nt'] >> b & 1 else ''
        CS_, CP, FG, FD = 32, 96, 160, 192
        (aS1LD, aQAW, aQAR, aMX, aLR, aPW, aPR, aS2ST, aLSEST, aCAN, aCANR, aS3LD, aXPW, aXPR, aRBW, aRBR, aSTW, aSTR, aHW, aHR, aS45,
         vCG, vCU, Q0, Q1, P45, aTCH) = ["v%d" % (224 + k) for k in range(27)]
        PC = ["v251", "v252", "v253", "v254"]
        sB_, sHG, sSP, sF = "s68", "s69", "s76", "s77"
        vr, vq = "v14", "v15"
        for b, slot in ((S_WUK, 3), (S_CKV, 1)):
            e(f"s_load_dwordx2 s[{b}:{b+1}], s[0:1], {slot*8}")
        e(f"v_lshrrev_b32 v6, 6, v0\nv_and_b32 {vL}, 63, v0\ns_and_b32 {sJ}, s2, 7\nv_readfirstlane_b32 {sW}, v6\ns_sub_u32 {sI}, {sI}, 16")
        e(f"v_lshrrev_b32 v6, 3, v0\nv_lshlrev_b32 v6, 13, v6\nv_and_b32 v8, 7, v0\nv_lshl_add_u32 v8, v8, 7, v6\ns_lshl_b32 {sE}, {sI}, 8\ns_add_u32 {sE}, {sE}, {sJ}\ns_lshl_b32 {sE}, {sE}, 10")
        self.fin_srd(S_WUK, 4 << 20)
        self.fin_srd(S_CKV, 8 << 20)
        e(f"s_lshr_b32 {sB_}, {sJ}, 2\ns_and_b32 {sHG}, {sI}, 1\ns_and_b32 {sA}, {sJ}, 3\ns_lshl_b32 {sA}, {sA}, 3\ns_lshr_b32 {sSP}, {sI}, 1\ns_add_u32 {sSP}, {sSP}, {sA}")
        e(f"v_lshlrev_b32 v7, 4, {vL}\ns_lshl_b32 {sA}, {sB_}, 22\ns_lshl_b32 {sB}, {sSP}, 17\ns_add_u32 {sA}, {sA}, {sB}\ns_lshl_b32 {sB}, {sW}, 14\ns_add_u32 {sA}, {sA}, {sB}\nv_add_u32 v31, {sA}, v7")
        e(f"s_mul_i32 s74, {sW}, {16*1056}\ns_lshl_b32 s75, {sHG}, 12")
        e(f"s_sub_u32 {sF}, s2, 128\ns_getreg_b32 {sXCC}, hwreg(HW_REG_XCC_ID)\ns_and_b32 {sXCC}, {sXCC}, 15")
        self.calib(sF)
        e("s_waitcnt lgkmcnt(0)")
        self.stamp('karg')
        l, l2 = self.lab("nv"), self.lab("nw")
        e(f"s_cmp_eq_u32 {sW}, 7\ns_cbranch_scc1 {l}")
        self.calib_run()
        e(f"v_mov_b32 v6, {sC}\ns_lshl_b32 {sA}, {sW}, 2\ns_add_u32 {sA}, {sA}, {B_DUM}\nv_mov_b32 v9, {sA}\nds_write_b32 v9, v6\ns_waitcnt lgkmcnt(0)\ns_barrier")
        if o["bdelay"]:
            e(f"s_sleep {o['bdelay']}")
        if o["bhelp"]:
            lh = self.lab("nh")
            e(f"s_cmp_ge_u32 {sW}, {o['bhelp']}\ns_cbranch_scc1 {lh}\nbuffer_load_dword v255, v8, {srd(S_WUK)}, {sE} offen\n{lh}:")
        self.epoch_load()
        self.fin_srd(S_WS, 0x10000000)
        e(f"s_waitcnt lgkmcnt(0)")
        self.tags()
        e(f"s_branch {l2}\n{l}:")
        self.epoch_load()
        e(f"s_getpc_b64 s[72:73]\nL_pc:\ns_sub_u32 s72, s72, L_pc-{NAME}_kernel\ns_subb_u32 s73, s73, 0\ns_lshl_b32 {sA}, {sI}, 11")
        e(f"v_lshlrev_b32 v6, 5, {vL}\nv_add_u32 v6, {sA}, v6\nv_min_u32 v6, L_code_end-{NAME}_kernel-4, v6\nglobal_load_dword v255, v6, s[72:73]")
        self.fin_srd(S_WS, 0x10000000)
        e(f"v_mov_b32 v6, {B_DUM}\ns_lshr_b32 {sA}, {sXCC}, 2\ns_lshl_b32 {sB}, {sF}, 2\ns_waitcnt lgkmcnt(0)")
        self.tags()
        e(f"s_barrier\nds_read_b128 v[8:11], v6\nds_read_b128 v[12:15], v6 offset:16\nv_mov_b32 v6, {VOTES}\ns_waitcnt lgkmcnt(0)")
        e(f"v_min3_u32 v8, v8, v10, v12\nv_min3_u32 v9, v9, v11, v13\nv_min_u32 v8, v8, v14\nv_cmp_lt_u32 vcc, v9, v8\nv_cndmask_b32 v8, 0, 1, vcc\nv_xor_b32 v8, {sA}, v8\nv_lshlrev_b32 v8, 31, v8\nv_xor_b32 v8, {vT}, v8")
        e(f"s_mov_b64 exec, 1\nbuffer_store_dword v8, v6, {srd(S_WS)}, {sB} offen sc1\ns_mov_b64 exec, -1\n{l2}:")
        for b, slot in ((S_WO, 5), (S_WG, 7), (S_WU, 8), (S_WD, 9)):
            e(f"s_load_dwordx2 s[{b}:{b+1}], s[0:1], {slot*8}")
        if o["bdelay2"]:
            e(f"s_sleep {o['bdelay2']}")
        e("s_barrier")

        def ckv(qs):
            for q in qs:
                e(f"s_xor_b32 {sA}, s75, {((q & 3) + 8*((q >> 2) & 1) + 4*(q >> 3))*1024}\ns_add_u32 m0, s74, {B_CKV + q*1056}\nbuffer_load_dwordx4 v31, {srd(S_CKV)}, {sA} offen{NT(2) if q >= 8 else NT(5)} lds")
        self.stamp("ckv0")
        ckv(range(8))
        self.stamp("ckv8")
        self.consts()
        e(f"v_and_b32 {vC}, 15, v0\nv_bfe_u32 {vG}, v0, 4, 2\nv_mov_b32 v13, {OOB}\nv_mov_b32 v12, {B_DUM}\nv_bfe_u32 {vr}, {vL}, 2, 2\nv_and_b32 {vq}, 3, {vL}")
        for b, sz in ((S_WO, 4 << 20), (S_WG, 1409024), (S_WU, 1409024), (S_WD, 1409024)):
            self.fin_srd(b, sz)
        e(f"s_lshl_b32 {sA}, {sB_}, 16\ns_lshl_b32 {sB}, {sHG}, 15\ns_add_u32 {sA}, {sA}, {sB}\ns_and_b32 {sB}, {sW}, 4\ns_add_u32 {sB}, {sB}, {sW}\ns_lshl_b32 {sB}, {sB}, 11\ns_add_u32 {sA}, {sA}, {sB}\nv_add_u32 {aS1LD}, {sA}, v7")
        e(f"s_mul_i32 {sA}, {sW}, 2112\ns_add_u32 {sA}, {sA}, {B_QA}\nv_add_u32 {aQAW}, {sA}, v7")
        e(f"v_lshlrev_b32 v11, 4, {vG}\nv_mul_u32_u24 v6, 1056, {vC}\nv_add_u32 v6, v6, v11\nv_add_u32 {aQAR}, {B_QA}, v6")
        e(f"s_mul_i32 {sA}, {sW}, {16*1056}\nv_add_u32 v30, {sA}, v6")
        e(f"v_lshlrev_b32 v6, 5, {vC}\nv_add_u32 {aMX}, {B_MX}, v6\ns_lshl_b32 {sA}, {sW}, 6\ns_add_u32 {sA}, {sA}, {B_LI}\nv_add_u32 {aLR}, {sA}, v11")
        if o["pv2"]:
            e(f"v_mov_b32 {aLR}, v11")
        e(f"v_mul_u32_u24 v6, 288, {vC}\nv_add_u32 v6, v6, v11\nv_add_u32 {aPR}, {B_P}, v6")
        e(f"s_lshr_b32 {sA}, {sW}, 1\ns_lshl_b32 {sA}, {sA}, 6\ns_and_b32 {sB}, {sW}, 1\ns_lshl_b32 {sC}, {sB}, 3\ns_add_u32 {sA}, {sA}, {sC}\nv_add_u32 {aPW}, {sA}, {aPR}")
        e(f"s_lshr_b32 {sC}, {sW}, 1\ns_lshl_b32 {sA}, {sC}, 15\ns_lshl_b32 {sC}, {sB_}, 14\ns_add_u32 {sA}, {sA}, {sC}")
        e(f"s_lshl_b32 {sC}, {sSP}, 8\ns_add_u32 {sA}, {sA}, {sC}\ns_lshl_b32 {sC}, {sB}, 7\ns_add_u32 {sA}, {sA}, {sC}")
        e(f"v_lshlrev_b32 v6, 19, {vG}\nv_lshl_add_u32 v6, {vC}, 3, v6\nv_add_u32 {aS2ST}, {sA}, v6")
        e(f"s_lshl_b32 {sA}, {sB_}, 2\ns_add_u32 {sA}, {sA}, {sHG}\ns_lshl_b32 {sA}, {sA}, 5\ns_add_u32 {sA}, {sA}, {sSP}\ns_lshl_b32 {sA}, {sA}, 7\nv_lshlrev_b32 v6, 3, {vC}\nv_lshl_add_u32 v6, {vG}, 13, v6\nv_add_u32 {aLSEST}, {sA}, v6")
        self.can_addr(aCAN, aCANR, sI)
        e(f"s_lshl_b32 {sA}, {sW}, 8\nv_lshlrev_b32 v6, 11, {vG}\nv_lshl_add_u32 v6, {vC}, 4, v6\nv_add_u32 {aS3LD}, {sA}, v6")
        e(f"v_bfe_u32 v10, {vC}, 2, 1\ns_add_u32 {sB}, {sA}, {B_XP}\nv_lshlrev_b32 v6, 7, v10\nv_add_u32 v6, {sB}, v6\nv_add_u32 v9, v6, v11")
        e(f"v_lshrrev_b32 v8, 3, {vC}\nv_lshl_add_u32 v6, v8, 6, v6\nv_lshl_add_u32 v6, {vq}, 4, v6\nv_lshl_add_u32 {aXPW}, {vG}, 2, v6")
        if o["smf"] & 8:
            e(f"v_lshlrev_b32 v6, 7, v10\nv_add_u32 v6, {sB}, v6\nv_and_b32 v9, 1, {vC}\nv_lshl_add_u32 v9, v9, 6, v11\nv_add_u32 v9, v9, v6")
            e(f"v_and_b32 v16, 1, {vG}\nv_lshl_add_u32 v6, v16, 6, v6\nv_lshl_add_u32 v6, v8, 5, v6\nv_lshrrev_b32 v16, 1, {vq}\nv_lshl_add_u32 v6, v16, 4, v6\nv_and_b32 v16, 1, {vq}\nv_lshl_add_u32 v6, v16, 3, v6\nv_lshrrev_b32 v16, 1, {vG}\nv_lshl_add_u32 {aXPW}, v16, 2, v6")
            e(f"v_mov_b32 v6, {B_ONES}\nv_lshrrev_b32 v16, 1, {vC}")
            self.sel(aXPR, "v_cmp_eq_u32 vcc, 4, v16", "v9", "v6")
        else:
            e(f"v_mov_b32 v6, {B_ONES}")
            self.sel(aXPR, f"v_cmp_eq_u32 vcc, 8, {vC}", "v9", "v6")
        e(f"s_mul_i32 {sB}, {sW}, 768\ns_add_u32 {sB}, {sB}, {B_RB}\nv_add_u32 v6, {sB}, v7\nv_lshlrev_b32 v9, 2, {vL}")
        self.sel(aRBW, f"v_cmp_gt_u32 vcc, 48, {vL}", "v12", "v6")
        e(f"v_and_b32 v8, 1, {vG}\nv_lshlrev_b32 v8, 3, v8\nv_lshl_add_u32 v8, {vC}, 4, v8\nv_lshrrev_b32 v6, 5, {vL}\nv_lshl_add_u32 v8, v6, 8, v8\nv_add_u32 {aRBR}, {B_RB}, v8")
        e(f"v_lshlrev_b32 v6, 6, v6\nv_add_u32 {aSTR}, {B_ST}, v6")
        e(f"v_lshrrev_b32 v6, 3, {vL}\nv_lshlrev_b32 v6, 5, v6\ns_lshl_b32 {sB}, {sW}, 2\ns_add_u32 {sB}, {sB}, {B_ST}\nv_add_u32 v6, {sB}, v6\ns_mov_b32 vcc_lo, 0x01100101\ns_mov_b32 vcc_hi, 0\nv_cndmask_b32 {aSTW}, v12, v6, vcc")
        if o["smf"] & 8:
            e(f"v_lshlrev_b32 v6, 4, {vL}\nv_add_u32 v6, {sB}, v6\ns_mov_b32 vcc_lo, 0x11\nv_cndmask_b32 {aSTW}, v12, v6, vcc")
            e(f"v_and_b32 v6, 1, {vC}\nv_mul_u32_u24 {aTCH}, 0xaaaa, v6\nv_add_u32 {aTCH}, 0x4444, {aTCH}")
        e(f"s_lshl_b32 {sB}, {sW}, 7\ns_add_u32 {sB}, {sB}, {B_H}\nv_lshlrev_b32 v6, 1, {vL}\nv_add_u32 {aHW}, {sB}, v6")
        e(f"v_lshl_add_u32 v6, v10, 6, v11\nv_add_u32 {aHR}, {sB}, v6")
        e(f"s_and_b32 {sB}, {sF}, 60\ns_add_u32 {sB}, {sB}, {sF}\ns_lshl_b32 {sB}, {sB}, 11\ns_lshl_b32 {sA}, {sW}, 9\ns_add_u32 {sB}, {sB}, {sA}\nv_add_u32 {aS45}, {sB}, v9")
        e(f"v_mov_b32 v8, 0x3f803f80\nv_and_b32 v6, 31, {vL}\nv_lshlrev_b32 v6, 2, v6\nv_add_u32 v6, {B_ONES}, v6\nds_write_b32 v6, v8")
        e(f"v_lshrrev_b32 v6, 2, {vL}\nv_mul_u32_u24 v6, 1056, v6\nv_lshl_add_u32 v6, {vq}, 3, v6\ns_lshl_b32 {sA}, {sW}, 7\nv_add_u32 v28, {sA}, v6\nv_add_u32 v29, {64*1056}, v28")
        e("s_waitcnt lgkmcnt(0)")
        self.stamp("E")
        self.cons_pats(PC)
        e(f"v_and_b32 v6, 7, {vC}\nv_lshlrev_b32 v6, 2, v6\nv_lshrrev_b32 v6, v6, {vT}")
        self.pat(Q0, "v6", 0)
        self.pat(Q1, "v6", 2)
        e(f"v_lshlrev_b32 v6, 1, {vC}\nv_lshrrev_b32 v6, v6, {vT}")
        self.pat(P45, "v6", 0)
        e("s_barrier")
        ckv(range(8, 16))
        for k, a in enumerate((PRET,) + PRET2):
            e(f"v_mov_b32 v{16+k}, {a}\nbuffer_load_dword v{16+k}, v{16+k}, {srd(S_WS)}, 0 offen")
        self.place_load(20)
        e(f"s_mul_i32 s74, {sW}, 2112\ns_add_u32 s74, s74, {B_QA}")
        if o["prio"] & 1:
            l = self.lab("pr")
            e(f"s_cmp_lt_u32 {sW}, 4\ns_cbranch_scc1 {l}\ns_setprio 1\n{l}:")
        self.stamp('ckviss')
        for L in range(2):
            X = "'" * L
            l = self.lab("s1")
            if L == 0:
                e(f"s_lshl_b32 {sE}, {sJ}, 4\ns_add_u32 {sE}, {sE}, {sI}\ns_lshl_b32 {sE}, {sE}, 15")

            def apply_place():
                e(f"s_lshr_b32 {sA}, {sWW}, 3\ns_lshr_b32 {sB}, {sXCC}, 2\ns_xor_b32 {sA}, {sA}, {sB}\ns_and_b32 {sA}, {sA}, 1\ns_lshl_b32 {sSIDE}, {sA}, 13")
                e(f"v_add_u32 {aS1LD}, {sSIDE}, {aS1LD}\nv_add_u32 {aS3LD}, {sSIDE}, {aS3LD}\nv_add_u32 {aCANR}, {sSIDE}, {aCANR}")
                e(f"s_lshl_b32 {sA}, {sHG}, 2\ns_add_u32 {sA}, {sA}, {sWW}\nv_add_u32 v6, {sA}, {vG}\nv_lshlrev_b32 v6, 1, v6\nv_xor_b32 v6, {sWW}, v6\nv_and_b32 v6, 8, v6\nv_lshl_add_u32 {aS2ST}, v6, 10, {aS2ST}")

            def place():
                lq = self.lab("pq")
                e(f"s_waitcnt vmcnt(0)")
                for u in range(16):
                    e(f"ds_read_b128 {R(CS_+4*u,4)}, v30 offset:{B_CKV+u*64}")
                e(f"v_readfirstlane_b32 {sPLAIN}, v20\nv_readfirstlane_b32 {sWW}, v21\ns_cmp_lg_u32 {sPLAIN}, {sT}\ns_cbranch_scc1 {lq}")
                apply_place()
                e(f"{lq}:")
            self.canary_wait(L, aCANR, o["d_s1" if L == 0 else "e_s1"], pre=place if L == 0 else None, wsel=7 if L == 0 else 0, both=(L == 0 and o['both']))
            self.stamp("S1can" + X)
            e(f"s_mov_b32 {sA}, {S1R(L)}")
            ld = f"buffer_load_dwordx4 v[8:11], {aS1LD}, {srd(S_WS)}, {sA} offen sc1\nbuffer_load_dwordx4 v[12:15], {aS1LD}, {srd(S_WS)}, {sA} offen offset:1024 sc1"
            if o["dma1"]:
                ld = f"s_mov_b32 m0, s74\nbuffer_load_dwordx4 {aS1LD}, {srd(S_WS)}, {sA} offen sc1 lds\ns_add_u32 m0, s74, 32\nbuffer_load_dwordx4 {aS1LD}, {srd(S_WS)}, {sA} offen offset:1024 sc1 lds"
            if L == 0:
                e(ld)
                if o["early"] == 1:
                    lx = self.lab("wx")
                    e(f"s_cmp_ge_u32 {sW}, 4\ns_cbranch_scc1 {lx}\nv_lshlrev_b32 v6, 7, v0\nbuffer_load_dword v255, v6, {srd(S_WO)}, {sE} offen\n{lx}:")
                if o["early"] == 2:
                    self.ffn_touch(sI, "v255")
                    e(f"s_mov_b32 {sA}, {S1R(L)}")
                for u in range(4):
                    for t in range(4):
                        base, off = ("v28", u * 32 * 1056) if u < 2 else ("v29", (u - 2) * 32 * 1056)
                        e(f"ds_read_b64_tr_b16 {R(CP+16*u+4*t,2)}, {base} offset:{off+32*t}\nds_read_b64_tr_b16 {R(CP+16*u+4*t+2,2)}, {base} offset:{off+32*t+16*1056}")
                l2 = self.lab("in")
                e(f"{l2}:")

                def stub():
                    e(f"{l}:")
                    self.guard()
                    e(f"s_sleep {o['backoff']}\n{ld}\ns_waitcnt vmcnt(0)\ns_branch {l2}")
                self.oob(stub)
            else:
                self.retry_head(l)
                e(ld)
            if L == 0 and o["early"]:
                lz = self.lab("wz")
                e(f"s_cmp_ge_u32 {sW}, 4\ns_cbranch_scc1 {lz}\ns_waitcnt vmcnt(1)\ns_branch {lz}_\n{lz}:\ns_waitcnt vmcnt(0)\n{lz}_:")
            else:
                e("s_waitcnt vmcnt(0)")
            if o["dma1"]:
                e(f"ds_read_b128 v[8:11], {aQAW}\nds_read_b128 v[12:15], {aQAW} offset:1056\ns_waitcnt lgkmcnt(0)")
            self.xcheck(list(range(8, 16)), PC, sM, "v6", mid=f"ds_write_b128 {aQAW}, v[8:11]\nds_write_b128 {aQAW}, v[12:15] offset:1056")
            e(f"s_cbranch_vccnz {l}")
            self.stamp('S1got' + X)
            self.bar()
            for u in range(4):
                e(f"ds_read_b128 {R(8+4*u,4)}, {aQAR} offset:{u*64}")
            for u in range(16):
                e(f"s_waitcnt lgkmcnt({min(3, 15-u)})")
                self.mfma(24, CS_ + 4 * u, 8 + 4 * (u & 3), None if u == 0 else 24)
                if u + 4 < 16:
                    e(f"ds_read_b128 {R(8+4*(u&3),4)}, {aQAR} offset:{(u+4)*64}")
            if o["pv2"]:
                e(f"v_mul_u32_u24 v28, 144, {vC}\ns_lshl_b32 {sA}, {sW}, 4\nv_add_u32 v28, {B_LS}, v28\nv_lshl_add_u32 v29, {vG}, 5, v28\nv_lshl_add_u32 v28, {vG}, 2, v28\nv_add_u32 v28, {sA}, v28")
            e(f"s_lshl_b32 {sA}, {sW}, 2\nv_add_u32 v7, {sA}, {aMX}\nv_max3_f32 v8, v24, v25, v26\nv_max_f32 v8, v8, v27")
            self.allred(["v8"], "v_max_f32", ["v9"], [16, 32])
            e(f"ds_write_b32 v7, v8")
            self.bar()
            self.stamp('Y2' + X)
            if L == 0 and o["wohelp"] == 2:
                if o["early"] == 2:
                    lx = self.lab("fy")
                    e(f"s_add_u32 {sE}, {sI}, 10\ns_cmp_lt_u32 {sE}, 16\ns_cbranch_scc1 {lx}\ns_cmp_ge_u32 {sE}, 24\ns_cbranch_scc1 {lx}")
                    self.ffn_touch(sE, "v255")
                    e(f"{lx}:")
                else:
                    self.ffn_touch(sI, vCG)
            if L == 0:
                l1, l2 = self.lab("lp"), self.lab("lq")
                e(f"s_cmp_lg_u32 {sPLAIN}, {sT}\ns_cbranch_scc1 {l1}\n{l2}:")

                def late():
                    e(f"{l1}:")
                    self.guard()
                    self.place_load(20)
                    e(f"s_waitcnt vmcnt(0)\nv_readfirstlane_b32 {sPLAIN}, v20\nv_readfirstlane_b32 {sWW}, v21\ns_cmp_lg_u32 {sPLAIN}, {sT}\ns_cbranch_scc1 {l1}")
                    apply_place()
                    e(f"s_branch {l2}")
                self.oob(late)
            self.canary_set(2 + L, aCAN, o['lead_s2'] == 2)
            e(f"ds_read_b128 v[8:11], {aMX}\nds_read_b128 v[12:15], {aMX} offset:16\ns_waitcnt lgkmcnt(1)")
            e("v_max3_f32 v8, v8, v9, v10\ns_waitcnt lgkmcnt(0)\nv_max3_f32 v12, v12, v13, v14\nv_max3_f32 v8, v8, v11, v15\nv_max_f32 v5, v8, v12")
            for r in range(4):
                e(f"v_sub_f32 v{24+r}, v{24+r}, v5")
            for r in range(4):
                e(f"v_exp_f32 v{24+r}, v{24+r}")
            e("v_cvt_pk_bf16_f32 v8, v24, v25\nv_cvt_pk_bf16_f32 v9, v26, v27\nv_add_f32 v10, v24, v25\nv_add_f32 v11, v26, v27")
            e(f"ds_write_b64 {aPW}, v[8:9]\nv_add_f32 v10, v10, v11")
            if o["pv2"]:
                e("ds_write_b32 v28, v10")
                self.bar()
                self.stamp('Y3' + X)
                self.canary_set(2 + L, aCAN, o['lead_s2'] == 1)
                IV = ["v5", "v6", "v7", "v255"]
                rdP = lambda u: e(f"ds_read_b128 {R(8+4*(u&1),4)}, {aPR} offset:{(u&3)*64}")
                mm = lambda u, t0: [self.mfma(16 + 4 * t, 8 + 4 * (u & 1), CP + 16 * (u & 3) + 4 * t, None if u & 3 == 0 else 16 + 4 * t) for t in (t0, t0 + 1)]
                rdP(0)
                e("ds_read_b128 v[24:27], v29\nds_read_b128 v[28:31], v29 offset:16")
                rdP(1)
                e("s_waitcnt lgkmcnt(3)")
                mm(0, 0)
                rdP(2)
                e("s_waitcnt lgkmcnt(1)\nv_add_f32 v24, v24, v25\nv_add_f32 v26, v26, v27\nv_add_f32 v28, v28, v29\nv_add_f32 v30, v30, v31")
                mm(1, 0)
                rdP(3)
                e("v_add_f32 v24, v24, v26\nv_add_f32 v28, v28, v30\nv_add_f32 v24, v24, v28\nv_mov_b32 v25, v24\ns_waitcnt lgkmcnt(1)")
                mm(2, 0)
                rdP(4)
                e("v_permlane16_swap_b32 v24, v25\nv_add_f32 v24, v24, v25\nv_mov_b32 v25, v24\ns_waitcnt lgkmcnt(1)")
                mm(3, 0)
                rdP(5)
                e("v_permlane32_swap_b32 v24, v25\nv_add_f32 v6, v24, v25\nv_rcp_f32 v255, v6")
                l = self.lab("k")
                e(f"s_cmp_lg_u32 {sW}, 0\ns_cbranch_scc1 {l}\nv_log_f32 v6, v6\nv_mov_b32 v7, {vT}\ns_mov_b32 {sA}, {LSE(L)}\nv_add_f32 v6, v6, v5\ns_mov_b32 exec_hi, 0")
                e(f"buffer_store_dwordx2 v[6:7], {aLSEST}, {srd(S_WS)}, {sA} offen sc1\ns_mov_b64 exec, -1\n{l}:")
                e("s_waitcnt lgkmcnt(1)")
                mm(4, 2)
                for r in range(4):
                    e(f"ds_bpermute_b32 {IV[r]}, {aLR}, v255 offset:{4*r}")
                rdP(6)
                e("s_waitcnt lgkmcnt(5)")
                mm(5, 2)
                rdP(7)
                e("s_waitcnt lgkmcnt(1)")
                for r in range(4):
                    e(f"v_mul_f32 v{16+r}, v{16+r}, {IV[r]}\nv_mul_f32 v{20+r}, v{20+r}, {IV[r]}")
                mm(6, 2)
                self.pack_ovw("v16", "v16", "v20", Q0)
                self.pack_ovw("v20", "v18", "v22", Q0)
                e("s_waitcnt lgkmcnt(0)")
                mm(7, 2)
                self.pack_ovw("v18", "v17", "v21", Q0)
                self.pack_ovw("v22", "v19", "v23", Q0)
                for r in range(4):
                    e(f"s_mov_b32 {sA}, {S2R(L) + r*131072}\nv_mul_f32 v{24+r}, v{24+r}, {IV[r]}\nv_mul_f32 v{28+r}, v{28+r}, {IV[r]}")
                    self.pack_ovw(f"v{17+2*r}", f"v{24+r}", f"v{28+r}", Q1)
                    e(f"buffer_store_dwordx2 {R(16+2*r,2)}, {aS2ST}, {srd(S_WS)}, {sA} offen sc1")
            else:
                self.allred(["v10"], "v_add_f32", ["v11"], [16, 32])
                e(f"ds_write_b32 v7, v10 offset:512")
                self.bar()
                self.stamp('Y3' + X)
                self.canary_set(2 + L, aCAN, o['lead_s2'] == 1)
                e(f"ds_read_b128 v[24:27], {aMX} offset:512\nds_read_b128 v[28:31], {aMX} offset:528\nds_read_b128 v[8:11], {aPR}\nds_read_b128 v[12:15], {aPR} offset:64")
                e(f"v_lshlrev_b32 v7, 2, {vC}\ns_lshl_b32 {sA}, {sW}, 6\ns_add_u32 {sA}, {sA}, {B_LI}\nv_add_u32 v7, {sA}, v7\ns_waitcnt lgkmcnt(1)")
                D = [16, 20, 24, 28]
                self.mfma(D[0], 8, CP)
                self.mfma(D[1], 8, CP + 4)
                e("v_add_f32 v24, v24, v25\nv_add_f32 v26, v26, v27\nv_add_f32 v28, v28, v29\nv_add_f32 v30, v30, v31\nv_add_f32 v24, v24, v26\nv_add_f32 v28, v28, v30\nv_add_f32 v6, v24, v28")
                self.mfma(D[2], 8, CP + 8)
                self.mfma(D[3], 8, CP + 12)
                e(f"ds_read_b128 v[8:11], {aPR} offset:128\ns_waitcnt lgkmcnt(1)")
                for t in range(4):
                    self.mfma(D[t], 12, CP + 16 + 4 * t, D[t])
                e(f"ds_read_b128 v[12:15], {aPR} offset:192\nds_write_b32 v7, v6")
                l = self.lab("k")
                e(f"s_cmp_lg_u32 {sW}, 0\ns_cbranch_scc1 {l}\nv_log_f32 v6, v6\nv_mov_b32 v7, {vT}\ns_mov_b32 {sA}, {LSE(L)}\nv_add_f32 v6, v6, v5\ns_mov_b32 exec_hi, 0")
                e(f"buffer_store_dwordx2 v[6:7], {aLSEST}, {srd(S_WS)}, {sA} offen sc1\ns_mov_b64 exec, -1\n{l}:")
                e("s_waitcnt lgkmcnt(2)")
                for t in range(4):
                    self.mfma(D[t], 8, CP + 32 + 4 * t, D[t])
                e(f"ds_read_b128 v[8:11], {aLR}\ns_waitcnt lgkmcnt(2)")
                for t in range(4):
                    self.mfma(D[t], 12, CP + 48 + 4 * t, D[t])
                e("s_waitcnt lgkmcnt(0)")
                for r in range(4):
                    e(f"v_rcp_f32 v{8+r}, v{8+r}")
                for r in range(4):
                    e(f"s_mov_b32 {sA}, {S2R(L) + r*131072}")
                    for t in range(4):
                        e(f"v_mul_f32 v{D[t]+r}, v{D[t]+r}, v{8+r}")
                    self.pack_ovw(f"v{12+2*(r&1)}", f"v{D[0]+r}", f"v{D[1]+r}", Q0)
                    self.pack_ovw(f"v{13+2*(r&1)}", f"v{D[2]+r}", f"v{D[3]+r}", Q1)
                    e(f"buffer_store_dwordx2 {R(12+2*(r&1),2)}, {aS2ST}, {srd(S_WS)}, {sA} offen sc1")
            self.canary_set(2 + L, aCAN, o['lead_s2'] == 0)
            self.stamp('S2pub' + X)
            lnf = self.lab("nf")
            if L == 0:
                e("s_barrier")
                if o["fhelp"] and o["early"] != 2:
                    lx = self.lab("fy")
                    e(f"s_add_u32 {sE}, {sI}, 10\ns_cmp_lt_u32 {sE}, 16\ns_cbranch_scc1 {lx}\ns_cmp_ge_u32 {sE}, 24\ns_cbranch_scc1 {lx}")
                    self.ffn_touch(sE, "v255")
                    e(f"{lx}:")
            if L == 0 and o["retouch"]:
                lx = self.lab("rt")
                e(f"s_cmp_lg_u32 {sW}, 7\ns_cbranch_scc1 {lx}\ns_getpc_b64 s[72:73]\nL_pc2:\ns_sub_u32 s72, s72, L_pc2-{NAME}_kernel\ns_subb_u32 s73, s73, 0\ns_lshl_b32 {sA}, {sI}, 11")
                e(f"v_lshlrev_b32 v6, 5, {vL}\nv_add_u32 v6, {sA}, v6\nv_min_u32 v6, L_code_end-{NAME}_kernel-4, v6\nglobal_load_dword v255, v6, s[72:73] sc1\n{lx}:")
            e(f"s_cmp_ge_u32 {sF}, 43\ns_cbranch_scc1 {lnf}")
            if L == 0:
                e(f"v_lshrrev_b32 v6, 2, {vL}\ns_lshl_b32 {sA}, {sW}, 6\nv_add_u32 v6, {sA}, v6\nv_mul_u32_u24 v6, 2752, v6\nv_and_b32 v15, 3, {vL}\nv_lshl_add_u32 v6, v15, 4, v6\ns_lshl_b32 {sA}, {sF}, 6\nv_add_u32 v6, {sA}, v6")
                e(f"s_lshl_b32 {sC}, {sW}, 12")
                for sr, base in ((S_WG, B_FG), (S_WU, B_FU)):
                    for q in range(4):
                        e(f"s_mov_b32 {sA}, {q*16*2752}\ns_add_u32 m0, {sC}, {base + q*1024}\nbuffer_load_dwordx4 v6, {srd(sr)}, {sA} offen{NT(4)} lds")
                    e("s_barrier")
                e(f"v_lshrrev_b32 v6, 3, {vL}\nv_lshlrev_b32 v6, 10, v6\nv_and_b32 v7, 7, {vL}\nv_lshl_add_u32 v6, v7, 4, v6\ns_lshl_b32 {sA}, {sF}, 15\ns_lshl_b32 {sB}, {sW}, 7\ns_add_u32 {sA}, {sA}, {sB}\nv_add_u32 v6, {sA}, v6")
                for q in range(4):
                    e(f"s_mov_b32 {sA}, {q*8192}\ns_add_u32 m0, {sC}, {B_FD + q*1024}\nbuffer_load_dwordx4 v6, {srd(S_WD)}, {sA} offen{NT(4)} lds")
                e(f"v_bfe_u32 v14, {vL}, 2, 2\nv_and_b32 v6, 1, v14\nv_lshlrev_b32 v6, 4, v6\nv_lshl_add_u32 v6, {vG}, 2, v6\nv_lshrrev_b32 v7, 1, v14\nv_add_u32 v6, v6, v7\nv_lshlrev_b32 v6, 6, v6\nv_lshl_add_u32 v6, v15, 3, v6\nv_add_u32 v6, {sC}, v6")
                e(f"v_lshl_add_u32 v7, {vG}, 3, v14\nv_lshlrev_b32 v7, 7, v7\nv_lshl_add_u32 v7, v15, 3, v7\ns_and_b32 {sA}, {sW}, 3\ns_lshl_b32 {sA}, {sA}, 13\ns_add_u32 {sA}, {sA}, {B_FD}\nv_add_u32 v7, {sA}, v7")
                e("s_waitcnt vmcnt(4)")
                for mi, base in enumerate((B_FG, B_FU)):
                    for tt in range(2):
                        for u in range(2):
                            rg = FG + 8 * (2 * tt + mi) + 4 * u
                            off = base + u * 2048 + 32 * tt
                            e(f"ds_read_b64_tr_b16 {R(rg,2)}, v6 offset:{off}\nds_read_b64_tr_b16 {R(rg+2,2)}, v6 offset:{off+128}")
                e("s_waitcnt vmcnt(0)\ns_barrier")
                for tt in range(8):
                    off = (tt >> 2) * 4096 + 32 * (tt & 3)
                    e(f"ds_read_b64_tr_b16 {R(FD+4*tt,2)}, v7 offset:{off}\nds_read_b64_tr_b16 {R(FD+4*tt+2,2)}, v7 offset:{off+512}")
                e("s_waitcnt lgkmcnt(0)")
                self.stamp('ffnW')
            self.canary_wait(4 + L, aCANR, o["d_s3" if L == 0 else "e_s3"])
            self.stamp('S3can' + X)
            l = self.lab("s3")
            e(f"s_mov_b32 {sA}, {S3R(L)}\ns_mov_b32 {sB}, {S3R(L)+16384}\ns_mov_b32 {sC}, 0xfffe")
            self.retry_head(l)
            e(f"buffer_load_dwordx4 v[8:11], {aS3LD}, {srd(S_WS)}, {sA} offen sc1\nbuffer_load_dwordx4 v[12:15], {aS3LD}, {srd(S_WS)}, {sB} offen sc1\ns_waitcnt vmcnt(0)")
            self.check(list(range(8, 16)), PC, sM, "v6")
            e(f"s_cbranch_vccnz {l}")
            self.canary_set(6 + L, aCAN, o['lead_s45'] == 2)
            self.stamp('S3got' + X)
            for k in range(4):
                SD = "dst_sel:WORD_1 dst_unused:UNUSED_PAD src0_sel:WORD_0 src1_sel:WORD_0"
                e(f"v_and_b32_sdwa v{16+2*k}, {sC}, v{8+k} {SD}\nv_and_b32 v{17+2*k}, 0xfffe0000, v{8+k}\nv_and_b32_sdwa v{24+2*k}, {sC}, v{12+k} {SD}\nv_and_b32 v{25+2*k}, 0xfffe0000, v{12+k}")
            for k in range(8):
                e(f"v_add_f32 v{16+k}, v{16+k}, v{24+k}")
            for k in range(4):
                e(f"v_permlane32_swap_b32 v{16+k}, v{20+k}")
            for k in range(4):
                e(f"v_add_f32 v{16+k}, v{16+k}, v{20+k}")
            e("v_permlane16_swap_b32 v16, v18\nv_permlane16_swap_b32 v17, v19\nv_add_f32 v16, v16, v18\nv_add_f32 v17, v17, v19")
            e(f"v_cvt_pk_bf16_f32 v6, v16, v17\nds_write_b32 {aXPW}, v6")
            DD = [16, 20, 24, 28]
            if o["smf"] & 8:
                e(f"ds_read_b128 v[8:11], {aXPR}")
                e("v_lshlrev_b32 v12, 16, v6\nv_and_b32 v13, 0xffff0000, v6\nv_add_f32 v7, v12, v13\nv_mul_f32 v6, v12, v12\nv_fmac_f32 v6, v13, v13")
                for t in range(4):
                    e(f"v_mov_b32 v{DD[t]}, 0\nv_mov_b32 v{DD[t]+1}, 0")
                e("s_waitcnt lgkmcnt(0)")
                for t in range(4):
                    self.smf(DD[t], 8, FG + 8 * t, aTCH)
                self.allred(["v6", "v7"], "v_add_f32", ["v12", "v13"], [1, 2, 8, 16, 32])
                e(f"v_add_f32 v16, v16, v17\nv_add_f32 v17, v20, v21\nv_add_f32 v18, v24, v25\nv_add_f32 v19, v28, v29\nds_write_b128 {aRBW}, v[16:19]\nds_write_b32 {aSTW}, v6\nds_write_b32 {aSTW}, v7 offset:32")
            else:
                e(f"ds_read_b128 v[8:11], {aXPR}\nds_read_b128 v[12:15], {aXPR} offset:64\ns_waitcnt lgkmcnt(1)")
                for t in range(4):
                    self.mfma(DD[t], 8, FG + 8 * t)
                e("s_waitcnt lgkmcnt(0)")
                for t in range(4):
                    self.mfma(DD[t], 12, FG + 8 * t + 4, DD[t])
                e("v_mfma_f32_16x16x32_bf16 v[8:11], v[8:11], v[8:11], 0")
                e("v_mfma_f32_16x16x32_bf16 v[8:11], v[12:15], v[12:15], v[8:11]")
                e(f"v_mov_b32 v17, v20\nv_mov_b32 v18, v24\nv_mov_b32 v19, v28\nds_write_b128 {aRBW}, v[16:19]\nds_write_b32 {aSTW}, v8")
            self.bar()
            self.stamp('Z1' + X)
            self.canary_set(6 + L, aCAN, o['lead_s45'] == 1)
            e(f"s_cmp_ge_u32 {sW}, 4\ns_cbranch_scc1 {lnf}")
            if L == 0:
                e(f"v_lshrrev_b32 v6, 5, {vL}\nv_lshlrev_b32 v6, 8, v6\nv_sub_u32 v6, {aRBR}, v6")
                for k in range(8):
                    e(f"ds_read_b64 {R(8+2*k,2)}, v6 offset:{768*k+512}")
                e(f"s_waitcnt lgkmcnt(0)\nv_add_f32 {vCG}, v8, v10\nv_add_f32 {vCU}, v9, v11")
                for k in range(2, 8):
                    e(f"v_add_f32 {vCG}, {vCG}, v{8+2*k}\nv_add_f32 {vCU}, {vCU}, v{9+2*k}")
            e(f"ds_read_b128 v[24:27], {aSTR}\nds_read_b128 v[28:31], {aSTR} offset:16")
            for k in range(4):
                e(f"ds_read_b64 {R(8+2*k,2)}, {aRBR} offset:{768*k}")
            e("s_waitcnt lgkmcnt(4)\nv_add_f32 v24, v24, v25\nv_add_f32 v26, v26, v27\nv_add_f32 v28, v28, v29\nv_add_f32 v30, v30, v31\nv_add_f32 v24, v24, v26\nv_add_f32 v28, v28, v30\nv_add_f32 v6, v24, v28")
            e(f"ds_read_b128 v[24:27], {aSTR} offset:32\nds_read_b128 v[28:31], {aSTR} offset:48")
            for k in range(4, 8):
                e(f"ds_read_b64 {R(8+2*k,2)}, {aRBR} offset:{768*k}")
            e("s_waitcnt lgkmcnt(6)\nv_add_f32 v8, v8, v10\nv_add_f32 v9, v9, v11\nv_add_f32 v12, v12, v14\nv_add_f32 v13, v13, v15\nv_add_f32 v8, v8, v12\nv_add_f32 v9, v9, v13")
            e("s_waitcnt lgkmcnt(4)\nv_add_f32 v24, v24, v25\nv_add_f32 v26, v26, v27\nv_add_f32 v28, v28, v29\nv_add_f32 v30, v30, v31\nv_add_f32 v24, v24, v26\nv_add_f32 v28, v28, v30\nv_add_f32 v7, v24, v28")
            e(f"v_mul_f32 v7, {f32(1/512)}, v7\nv_mov_b32 v12, {f32(1e-5)}\nv_fmac_f32 v12, {f32(1/512)}, v6\nv_fma_f32 v12, -v7, v7, v12\nv_rsq_f32 v12, v12\ns_waitcnt lgkmcnt(0)")
            e("v_add_f32 v16, v16, v18\nv_add_f32 v17, v17, v19\nv_add_f32 v20, v20, v22\nv_add_f32 v21, v21, v23\nv_add_f32 v8, v8, v16\nv_add_f32 v9, v9, v17\nv_add_f32 v8, v8, v20\nv_add_f32 v9, v9, v21")
            e(f"v_fma_f32 v8, -v7, {vCG}, v8\nv_fma_f32 v9, -v7, {vCU}, v9\nv_mul_f32 v8, v8, v12\nv_mul_f32 v9, v9, v12")
            c1 = -2 * 0.7978845608028654 * math.log2(math.e)
            e(f"v_mul_f32 v10, v8, v8\nv_mov_b32 v11, {f32(c1)}\nv_fmac_f32 v11, {f32(c1*0.044715)}, v10\nv_mul_f32 v10, v11, v8\nv_exp_f32 v10, v10")
            e(f"v_mul_f32 v8, v8, v9\nv_add_f32 v10, 1.0, v10\nv_rcp_f32 v10, v10\ns_mov_b32 {sA}, {S45(L)}\ns_mov_b32 {sB}, {S45(L)+8192}\nv_mul_f32 v8, v8, v10")
            e(f"v_cvt_pk_bf16_f32 v8, v8, v8\nds_write_b16 {aHW}, v8\nds_read_b128 v[8:11], {aHR}\ns_waitcnt lgkmcnt(0)")
            for t in range(8):
                self.mfma(12 + 2 * t, 8, FD + 4 * t)
            for hf in range(2):
                self.pack_ovw(f"v{8+2*hf}", f"v{12+8*hf}", f"v{14+8*hf}", P45)
                self.pack_ovw(f"v{9+2*hf}", f"v{16+8*hf}", f"v{18+8*hf}", P45)
                e(f"v_permlane32_swap_b32 v{8+2*hf}, v{9+2*hf}\nbuffer_store_dword v{8+2*hf}, {aS45}, {srd(S_WS)}, {sA} offen offset:{256*hf} sc1\nbuffer_store_dword v{8+2*hf}, {aS45}, {srd(S_WS)}, {sB} offen offset:{256*hf} sc1")
            self.canary_set(6 + L, aCAN, o['lead_s45'] == 0)
            self.stamp('S45pub' + X)
            e(f"{lnf}:")
        self.dump_stamps()


if __name__ == "__main__":
    import argparse
    ap = argparse.ArgumentParser()
    ap.add_argument("-o", default=f"cdna_kernels/{NAME}.s")
    ap.add_argument("--opt", action="append", default=[])
    a = ap.parse_args()
    opts = {k: int(v) for k, v in (x.split("=") for x in a.opt)}
    open(a.o, "w").write(Gen(**opts).build())
```

```python
import sys, math, struct
sys.path.insert(0, "scratch")
from asmlib import hazard_pass

NAME = "interleave_layers__compressed_kv_cla__glu_gated_geglu__decode"
f32 = lambda x: "0x%08x" % struct.unpack("<I", struct.pack("<f", x))[0]

WADR = 0x80
VOTES = 0x200
PRET = 0x800
CAN = 0x4000
LSE = lambda L: 0x8000 + L * 0x8000
S1R = lambda L: 0x18000 + L * 0x20000
S3R = lambda L: 0x58000 + L * 0x8000
S45 = lambda L: 0x68000 + L * 0x2C000
CAL = 0x100000
I0R = lambda L: 0x200000 + L * 0x80000
COLS = 0x300000
I1R = lambda L: 0x340000 + L * 0x20000
I0S = lambda L: 0x380000 + L * 0x4000
S2R = lambda L: 0x400000 + L * 0x400000
PRET2 = (0x3F0000,)
STAMP = 0xE000000
OOB = 0x7FFFFF00
A_WQ = 0
A_OS = 0
A_XR = 18432
A_WUK = 34048
A_WUV = 67840
A_WO = 101632
A_Q = 134400
A_WW = A_Q + 768
A_CC = A_WW + 256
A_CT = A_CC + 512
A_RR = A_CT + 2304
A_XS = A_RR + 2048
A_ST = A_XS + 256
A_ONE = A_ST + 64
A_DUM = A_ONE + 512
B_CKV = 0
B_QA = 135168
B_MX = 152064
B_LI = B_MX + 1024
B_LS = B_LI + 512
B_P = B_LS + 2304
B_ONES = B_P + 4608
B_DUM = B_ONES + 128
LDS_BYTES = B_DUM + 256
B_FG = 0
B_FU = 32768
B_FD = 65536
B_XP = 98304
B_H = B_XP + 2048
B_RB = B_H + 1024
B_ST = B_RB + 6144

S_WS, S_X, S_CKV, S_WQ, S_WUK, S_WUV, S_WO, S_WG, S_WU, S_WD, S_OUT = [4 + 4 * k for k in range(11)]
sT1, sT2, sT3, sBW = "s48", "s49", "s50", "s51"
sJ, sI, sW, sT, sM, sFF, sSEL, sGUARD, sPLAIN, sXCC, sPA, sE = ["s%d" % (52 + k) for k in range(12)]
sA, sB, sC, sD = "s64", "s65", "s66", "s67"
sH, sCS = "s68", "s69"
sMASK = "s[70:71]"
sMEAN, sRSTD = "s72", "s73"
sSIDE, sWW = "s100", "s101"
STAMP0 = 78
srd = lambda b: f"s[{b}:{b+3}]"
vL, vC, vG, vT = "v1", "v2", "v3", "v4"
DPPM = "row_mask:0xf bank_mask:0xf"
DP = {1: "quad_perm:[1,0,3,2]", 2: "quad_perm:[2,3,0,1]", 4: "row_half_mirror", 8: "row_ror:8"}

PROFILES = [
    (["start", "Wq", "P1a", "I0got", "S1pub", "Wo", "S2can", "S2got", "I1got", "S3pub", "S45got"],
     ["start", "ckv", "S1can", "S1got", "Y2", "Y3", "S2pub", "ffnW", "S3can", "S3got", "S45pub"]),
    (["start", "S45got", "P1a'", "I0got'", "S1pub'", "S2can'", "S2got'", "I1pub'", "I1got'", "S3pub'", "end"],
     ["start", "S45pub", "S1can'", "S1got'", "Y2'", "Y3'", "S2pub'", "S3can'", "S3got'", "Z1'", "S45pub'"]),
    (["start", "karg", "E", "Wq", "Wuk", "P1a", "I0pr", "I0got", "S1pub", "Wo", "S2can"],
     ["start", "karg", "E", "ckv0", "ckv8", "ckviss", "ckv", "S1can", "S1got", "Y2", "S2pub"]),
    (["start", "end", "S45got"], ["start"]),
    (["start", "S45can", "S45got", "I0got'", "S2can'", "S2got'", "I1got'", "S2can", "S2got", "I1got", "I0got"],
     ["start", "S1can", "S1got", "S3can", "S3got", "S1can'", "S1got'", "S3can'", "S3got'", "Y2", "Y3"]),
    (["start", "S45got", "P1a'", "I0got'", "Xb", "Qs", "Qw", "Qb", "S1pub'", "S2got'", "end"], ["start"] + ["x"] * 10),
    (["start", "S1pub", "Wuv", "WqF", "Wo", "S2can", "S2got", "I1pub", "I1got", "S3pub", "S45got"],
     ["start", "ckviss", "ckv", "S1can", "S1got", "Y2", "S2pub", "ffnW", "S3can", "S3got", "S45pub"]),
]


def R(a, n=1):
    return f"v{a}" if n == 1 else f"v[{a}:{a+n-1}]"


class Gen:
    def __init__(self, **o):
        self.o = dict(stamps=0, bdelay=2, bdelay2=4, adelay=12, d_s1=0, d_s2=3, d_s3=4, d_s45=3, e_s1=3, e_s2=11, e_s3=5, e_s45=3, guard=0x400000, backoff=1,
                      lead_s1=1, lead_s2=1, lead_s3=1, lead_s45=1, prof=0, i0tries=24, bhelp=4, wohelp=2, fhelp=1, amp=0, warm=1, wukdelay=20, vdelay=16, forcec=-1, i0d=1, dma1=0, dma2=1, dma45=1, smf=15, early=0, i1b=1, wqf=1, xd=1, retouch=1, nt=0, prio=0, both=0, pv2=0, cdepth=2, cgap=15, wuklate=1, wtries=4)
        self.o.update(o)
        for h in ('s1', 's2', 's3', 's45'):
            self.o.setdefault('e_' + h, self.o['d_' + h])
        self.L = []
        self.uid = 0
        self.nst = 0
        self.cold = []
        self.NA, self.NB = PROFILES[self.o["prof"]]
        self.names = self.NA

    def e(self, s):
        for ln in s.split("\n"):
            self.L.append(ln)

    def lab(self, p):
        self.uid += 1
        return f"L_{p}_{self.uid}"

    def stamp(self, name):
        if self.o["stamps"] and name in self.names:
            k = self.names.index(name)
            if self.o.get("gst") and name != "start":
                self.e(f"s_mov_b32 s{STAMP0+2*k}, {sGUARD}")
            else:
                self.e(f"s_memrealtime s[{STAMP0+2*k}:{STAMP0+2*k+1}]")

    def dump_stamps(self):
        if not self.o["stamps"]:
            return
        e = self.e
        e("s_waitcnt lgkmcnt(0)")
        for k in range(11):
            e(f"v_mov_b32 v{8+k}, s{STAMP0+2*k}")
        e(f"s_lshl_b32 {sA}, s2, 9\ns_lshl_b32 {sB}, {sW}, 6\ns_add_u32 {sA}, {sA}, {sB}\ns_add_u32 {sA}, {sA}, {STAMP}")
        e(f"v_mov_b32 v6, {OOB}\nv_cmp_eq_u32 vcc, 0, {vL}\nv_cndmask_b32 v6, v6, {vL}, vcc")
        e(f"v_mov_b32 v20, {sGUARD}\nv_mov_b32 v21, {sT}\nv_mov_b32 v22, {sPLAIN}\nv_mov_b32 v23, s3")
        for k in range(4):
            e(f"buffer_store_dwordx4 v[{8+4*k}:{11+4*k}], v6, {srd(S_WS)}, {sA} offen offset:{16*k}")

    def mfma(self, d, a, b, c=None):
        self.e(f"v_mfma_f32_16x16x32_bf16 {R(d,4)}, {R(a,4)}, {R(b,4)}, {'0' if c is None else R(c,4)}")

    def smf(self, d, a, b, idx):
        self.e(f"v_smfmac_f32_16x16x64_bf16 {R(d,4)}, {R(a,4)}, {R(b,8)}, {idx}")

    def bar(self):
        self.e("s_waitcnt lgkmcnt(0)\ns_barrier")

    def guard(self):
        if self.o["stamps"]:
            self.nst += 1
            self.e(f"s_movk_i32 s3, {self.nst}")
        self.e(f"s_sub_u32 {sGUARD}, {sGUARD}, 1\ns_cbranch_scc1 {'L_bail' if self.o['stamps'] else 'L_end'}")

    def sel(self, dst, cond, a, b):
        self.e(cond)
        self.e(f"v_cndmask_b32 {dst}, {a}, {b}, vcc")

    def check(self, regs, pats, mask, acc, extra=None):
        e = self.e
        e(f"v_xor_b32 {acc}, {pats[0]}, v{regs[0]}")
        for n, r in enumerate(regs[1:], 1):
            e(f"v_bitop3_b32 {acc}, v{r}, {pats[n & 3]}, {acc} bitop3:0xbe")
        e(f"v_and_or_b32 {acc}, {acc}, {mask}, {extra}" if extra else f"v_and_b32 {acc}, {mask}, {acc}")
        e(f"v_cmp_ne_u32 vcc, 0, {acc}")

    def xcheck(self, regs, pats, mask, acc, mid=None):
        e = self.e
        for n, r in enumerate(regs):
            e(f"v_xor_b32 v{r}, {pats[n & 3]}, v{r}")
        if mid:
            e(mid)
        e(f"v_or3_b32 {acc}, v{regs[0]}, v{regs[1]}, v{regs[2]}")
        rest = regs[3:]
        while len(rest) > 1:
            e(f"v_or3_b32 {acc}, v{rest[0]}, v{rest[1]}, {acc}")
            rest = rest[2:]
        e(f"v_bitop3_b32 {acc}, v{rest[0]}, {acc}, {mask} bitop3:0xa8\nv_cmp_ne_u32 vcc, 0, {acc}")

    def pat(self, dst, src, sh):
        self.e(f"v_bfe_u32 {dst}, {src}, {sh}, 2\nv_lshl_or_b32 {dst}, {dst}, 15, {dst}\nv_and_b32 {dst}, {sM}, {dst}")

    def cons_pats(self, P):
        self.e(f"v_and_b32 v6, 3, {vL}\nv_lshlrev_b32 v6, 3, v6\nv_lshrrev_b32 v6, v6, {vT}")
        for k in range(4):
            self.pat(P[k], "v6", 2 * k)

    def pack_near(self, dst, lo, hi, t0, t1, p):
        e = self.e
        e(f"v_add_u32 {t0}, 0x10000, {lo}\nv_add_u32 {t1}, 0x10000, {hi}")
        e(f"v_perm_b32 {t0}, {t1}, {t0}, {sSEL}\nv_bfi_b32 {dst}, {sM}, {p}, {t0}")

    def pack_ovw(self, dst, lo, hi, p):
        self.e(f"v_cvt_pk_bf16_f32 {dst}, {lo}, {hi}\nv_bfi_b32 {dst}, {sM}, {p}, {dst}")

    def allred(self, regs, op, tmps, steps):
        e = self.e
        for s in steps:
            if s in DP:
                for r in regs:
                    e(f"{op}_dpp {r}, {r}, {r} {DP[s]} {DPPM}")
            else:
                for r, t in zip(regs, tmps):
                    e(f"v_mov_b32 {t}, {r}")
                for r, t in zip(regs, tmps):
                    e(f"v_permlane{s}_swap_b32 {r}, {t}")
                for r, t in zip(regs, tmps):
                    e(f"{op} {r}, {r}, {t}")

    def can_addr(self, vw, vr, sidx):
        e = self.e
        e(f"s_lshl_b32 {sA}, {sidx}, 9\nv_add_u32 v6, {sA}, v0\ns_lshl_b32 {sA}, {sJ}, 7\ns_add_u32 {sA}, {sA}, {CAN}\nv_lshl_add_u32 v8, v0, 13, {sA}\nv_cmp_gt_u32 vcc, 2, v6\nv_cndmask_b32 {vw}, v13, v8, vcc")
        e(f"v_and_b32 v6, 7, v0\nv_lshlrev_b32 v6, 7, v6\nv_add_u32 {vr}, {CAN}, v6")

    def place_load(self, v):
        self.e(f"v_mov_b32 v{v}, {WADR}\nbuffer_load_dwordx2 v[{v}:{v+1}], v{v}, {srd(S_WS)}, 0 offen sc1")

    def place_wait(self, v, first=False):
        e = self.e
        l, l2 = self.lab("pw"), self.lab("px")
        if not first:
            self.place_load(v)
        e(f"{l2}:\ns_waitcnt vmcnt(0)\nv_readfirstlane_b32 {sA}, v{v}\nv_readfirstlane_b32 {sWW}, v{v+1}\ns_cmp_lg_u32 {sA}, {sT}\ns_cbranch_scc1 {l}")

        def stub():
            e(f"{l}:")
            self.guard()
            e("s_sleep 2")
            self.place_load(v)
            e(f"s_branch {l2}")
        self.oob(stub)
        e(f"s_lshr_b32 {sA}, {sWW}, 3\ns_lshr_b32 {sB}, {sXCC}, 2\ns_xor_b32 {sA}, {sA}, {sB}\ns_and_b32 {sA}, {sA}, 1\ns_lshl_b32 {sSIDE}, {sA}, 13")

    def canary_wait(self, idx, vr, delay, pre=None, wsel=0, both=False):
        e = self.e
        l, l2 = self.lab("can"), self.lab("cb")
        e(f"s_cmp_lg_u32 {sW}, {wsel}\ns_cbranch_scc1 {l2}\ns_movk_i32 {sA}, {idx*1024}")
        if both:
            e(f"v_and_b32 v7, 8, v0\nv_lshl_add_u32 v7, v7, 10, {vr}\ns_mov_b64 exec, 0xffff")
            vr = "v7"
        else:
            e("s_mov_b64 exec, 0xff")
        dp = self.o["cdepth"]
        if dp > 1 and not pre:
            lo = self.lab("co")
            regs = [f"v{16+k}" for k in range(dp)]
            ld = lambda r: f"buffer_load_dword {r}, {vr}, {srd(S_WS)}, {sA} offen sc1"
            e("s_waitcnt vmcnt(0)")
            for r in regs[:-1]:
                e(ld(r) + f"\ns_nop {self.o['cgap']}")
            e(f"{l}:")
            self.guard()
            for k in range(dp):
                e(f"{ld(regs[k-1])}\ns_waitcnt vmcnt({dp-1})\nv_cmp_ne_u32 vcc, {regs[k]}, {vT}\n" + (f"s_cbranch_vccz {lo}" if k < dp - 1 else f"s_cbranch_vccnz {l}"))
            e(f"{lo}:\ns_mov_b64 exec, -1")
            if delay:
                e(f"s_sleep {delay}")
            e(f"{l2}:\ns_barrier")
            return
        e(f"{l}:")
        self.guard()
        e(f"buffer_load_dword v6, {vr}, {srd(S_WS)}, {sA} offen sc1\ns_waitcnt vmcnt(0)\nv_cmp_ne_u32 vcc, v6, {vT}")
        if both:
            e(f"s_and_b32 {sB}, vcc_lo, 0xff\ns_lshr_b32 {sC}, vcc_lo, 8\ns_min_u32 {sB}, {sB}, {sC}\ns_cmp_lg_u32 {sB}, 0\ns_cbranch_scc1 {l}\ns_mov_b64 exec, -1")
        else:
            e(f"s_cbranch_vccnz {l}\ns_mov_b64 exec, -1")
        if delay:
            e(f"s_sleep {delay}")
        e(f"{l2}:")
        if pre:
            pre()
            self.stamp("ckv")
        e("s_barrier")

    def canary_set(self, idx, vw, cond=True):
        if cond:
            self.e(f"s_movk_i32 {sD}, {idx*1024}\nbuffer_store_dword {vT}, {vw}, {srd(S_WS)}, {sD} offen sc1")

    def oob(self, fn):
        keep, self.L = self.L, []
        fn()
        self.cold.append("\n".join(self.L))
        self.L = keep

    def retry_head(self, l, mult=1):
        l2 = self.lab("in")
        self.e(f"{l2}:")

        def stub():
            self.e(f"{l}:")
            self.guard()
            self.e(f"s_sleep {mult*self.o['backoff']}\ns_branch {l2}")
        self.oob(stub)

    def store_intra(self, ins):
        e = self.e
        l1, l2 = self.lab("sc"), self.lab("sd")
        e(f"s_cmp_eq_u32 {sPLAIN}, 0\ns_cbranch_scc1 {l1}")
        for i in ins:
            e(i)
        e(f"{l2}:")
        self.cold.append(f"{l1}:\n" + "\n".join(i + " sc1" for i in ins) + f"\ns_branch {l2}")

    def consts(self):
        self.e(f"s_mov_b32 {sM}, 0x00010001\ns_movk_i32 {sFF}, 0xff\ns_mov_b32 {sSEL}, 0x07060302\ns_mov_b32 {sGUARD}, {self.o['guard']}")

    def fin_srd(self, b, size):
        self.e(f"s_mov_b32 s{b+2}, {size}\ns_mov_b32 s{b+3}, 0x20000")

    def epoch_load(self):
        self.e(f"s_load_dword {sT}, s[{S_WS}:{S_WS+1}], 0")

    def calib(self, sidx):
        e = self.e
        e(f"s_lshl_b32 {sA}, {sidx}, 2\ns_lshr_b32 {sB}, {sW}, 1\ns_add_u32 {sA}, {sA}, {sB}\ns_lshr_b32 {sB}, {sA}, 6\ns_lshl_b32 {sB}, {sB}, 1\ns_and_b32 {sC}, {sW}, 1\ns_add_u32 {sB}, {sB}, {sC}\ns_lshl_b32 {sB}, {sB}, 6")
        e(f"s_and_b32 {sA}, {sA}, 63\ns_add_u32 {sA}, {sA}, {sB}\ns_lshl_b32 {sA}, {sA}, 7\ns_add_u32 {sA}, {sA}, {CAL}")

    def calib_run(self):
        self.e(f"s_memtime s[72:73]\ns_load_dword {sB}, s[{S_WS}:{S_WS+1}], {sA}\ns_waitcnt lgkmcnt(0)\ns_memtime s[70:71]\ns_waitcnt lgkmcnt(0)\ns_sub_u32 {sC}, s70, s72")

    def ffn_touch(self, sK, dst):
        e = self.e
        lx, l1, l2 = self.lab("fx"), self.lab("fa"), self.lab("fb")
        e(f"s_cmp_ge_u32 {sW}, 4\ns_cbranch_scc1 {lx}\ns_mul_i32 {sA}, {sK}, 43\ns_lshr_b32 {sA}, {sA}, 8\ns_mul_i32 {sB}, {sA}, 6\ns_sub_u32 {sB}, {sK}, {sB}\ns_lshl_b32 {sB}, {sB}, 3\ns_add_u32 {sB}, {sB}, {sJ}")
        e(f"s_cmp_ge_u32 {sB}, 43\ns_cselect_b32 {sB}, 0x8000, {sB}\ns_cmp_eq_u32 {sA}, 3\ns_cbranch_scc1 {l1}")
        e(f"v_mul_u32_u24 v6, 2752, v0\ns_lshl_b32 {sB}, {sB}, 6\ns_cmp_eq_u32 {sA}, 1\ns_cselect_b32 {sC}, 0, {256*2752}\ns_add_u32 {sB}, {sB}, {sC}\ns_cmp_eq_u32 {sA}, 0\ns_cbranch_scc1 {l2}")
        e(f"buffer_load_dword {dst}, v6, {srd(S_WU)}, {sB} offen\ns_branch {lx}\n{l2}:\nbuffer_load_dword {dst}, v6, {srd(S_WG)}, {sB} offen\ns_branch {lx}")
        e(f"{l1}:\nv_lshlrev_b32 v6, 7, v0\ns_lshl_b32 {sB}, {sB}, 15\nbuffer_load_dword {dst}, v6, {srd(S_WD)}, {sB} offen\n{lx}:")

    def tags(self):
        self.e(f"s_add_u32 {sT}, {sT}, 1\nv_mov_b32 {vT}, {sT}")

    def build(self):
        e = self.e
        K = NAME + "_kernel"
        e(f"; @launch grid=(256,1,1) block=(512,1,1) lds={LDS_BYTES}")
        e('.amdgcn_target "amdgcn-amd-amdhsa--gfx950"\n.text')
        e(f".globl {K}\n.p2align 8\n.type {K},@function\n{K}:")
        self.stamp('start')
        if self.o["amp"]:
            e("s_memrealtime s[98:99]")
        e("s_cmp_ge_u32 s2, 256\ns_cbranch_scc1 L_end")
        e(f"s_load_dwordx2 s[{S_WS}:{S_WS+1}], s[0:1], 96")
        e(f"s_lshr_b32 {sI}, s2, 3\ns_cmp_ge_u32 {sI}, 16\ns_cbranch_scc1 L_roleB")
        self.roleA()
        e("L_roleB:")
        self.names = self.NB
        self.roleB()
        e("s_endpgm")
        for c in self.cold:
            e(c)
        if self.o["stamps"]:
            e("L_bail:\ns_mov_b64 exec, -1")
            e(f"s_lshl_b32 {sA}, s2, 14\ns_add_u32 {sA}, {sA}, 0xC000000\nv_lshlrev_b32 v6, 5, v0\nbuffer_store_dwordx4 v[8:11], v6, {srd(S_WS)}, {sA} offen\nbuffer_store_dwordx4 v[12:15], v6, {srd(S_WS)}, {sA} offen offset:16\ns_waitcnt vmcnt(0)")
            self.dump_stamps()
        e("L_end:\ns_endpgm\nL_code_end:")
        body = hazard_pass(self.L)
        body.append(f""".section .rodata,"a"
.p2align 6
.amdhsa_kernel {K}
  .amdhsa_next_free_vgpr 256
  .amdhsa_next_free_sgpr 102
  .amdhsa_accum_offset 256
  .amdhsa_group_segment_fixed_size 0
  .amdhsa_kernarg_size 104
  .amdhsa_user_sgpr_count 2
  .amdhsa_user_sgpr_kernarg_segment_ptr 1
  .amdhsa_system_sgpr_workgroup_id_x 1
.end_amdhsa_kernel""")
        return "\n".join(body) + "\n"

    def roleA(self):
        e, o = self.e, self.o
        NT = lambda b: ' nt' if o['nt'] >> b & 1 else ''
        WQ, WUK, WUV, WO, XOP, SEL0, SEL4 = 32, 32, 128, 144, 160, 164, 168
        vCS, vONE, vTL = "v172", "v173", "v28"
        (aXOFF, aWROW, aI0ST0, aI0ST1, aI0LD, aCSLD, aSTLD, aSTST, aQW, aQR, aS1ST, aS2LD, aOSW, aLSE, aWW, aWA0, aWA1,
         aOTR, aCCW, aCCR, aI1ST, aI1LD, aCTW, aCTR, aRRW, aRRR, aS3ST, aXLD, aXRW, aXTR, aXSW, aCANW, aCANR, aOUT) = ["v%d" % (174 + k) for k in range(34)]
        TB = [vT, "v208", "v209", "v210"]
        PC = ["v240", "v241", "v242", "v243"]
        PS, aS2B, PX = ["v96", "v97", "v98", "v99"], "v100", ["v104", "v105", "v106", "v107"]
        vIDX, P1, PD = "v108", "v109", ["v104", "v105", "v106", "v107"]
        if o["i1b"]:
            WUV = 112
        KG = {(0, 0): 112, (1, 0): 120, (2, 0): 128, (3, 0): 136, (0, 1): 160, (1, 1): 244, (2, 1): 32, (3, 1): 40}
        wuk = lambda t, u: KG[t, u >> 1] + 4 * (u & 1)
        Q0, Q1 = "v252", "v253"
        P3 = "v254"
        sTB, sNM = ["s76", sT1, sT2, sT3], "s77"
        vr, vq = "v14", "v15"
        e(f"s_load_dwordx2 s[{S_WQ}:{S_WQ+1}], s[0:1], 16\ns_load_dwordx2 s[{S_WUK}:{S_WUK+1}], s[0:1], 24\ns_load_dwordx2 s[{S_X}:{S_X+1}], s[0:1], 0")
        e(f"v_lshrrev_b32 v6, 6, v0\nv_and_b32 {vC}, 15, v0\ns_and_b32 {sJ}, s2, 7\nv_readfirstlane_b32 {sW}, v6\nv_bfe_u32 {vG}, v0, 4, 2\nv_lshlrev_b32 v7, 4, {vC}")
        self.fin_srd(S_WQ, 4 << 20)
        self.fin_srd(S_WUK, 4 << 20)
        e(f"s_and_b32 {sBW}, {sI}, 3\ns_lshl_b32 {sH}, {sJ}, 2\ns_add_u32 {sH}, {sH}, {sBW}\ns_lshr_b32 {sCS}, {sI}, 2\ns_mul_i32 {sD}, {sW}, 8448")
        ljn = self.lab("jn")
        e(f"s_cmp_ge_u32 {sW}, 4\ns_cbranch_scc1 {ljn}")
        e(f"s_lshl_b32 {sA}, {sI}, 8\ns_add_u32 {sA}, {sA}, {sJ}\ns_lshl_b32 {sA}, {sA}, 2\ns_add_u32 {sA}, {sA}, {sW}\ns_lshl_b32 {sA}, {sA}, 8\nv_lshl_add_u32 v9, {vG}, 15, v7\nv_add_u32 v9, {sA}, v9")
        e(f"v_bfe_u32 v10, {vC}, 2, 1\nv_lshlrev_b32 v6, 10, v10\nv_lshl_add_u32 v6, {vG}, 2, v6\ns_lshl_b32 {sB}, {sI}, 6\nv_add_u32 {aXOFF}, {sB}, v6")
        self.fin_srd(S_X, 2048)
        e("s_waitcnt lgkmcnt(0)")
        self.stamp("karg")
        for k, off in enumerate((0, 32, 16, 48)):
            e(f"buffer_load_dword v{24+k}, {aXOFF}, {srd(S_X)}, 0 offen offset:{off}")
        for q in range(8):
            e(f"s_mov_b32 {sA}, {((q & 3) + 16*(q >> 2))*8192}\ns_add_u32 m0, {sD}, {A_WQ + q*1056}\nbuffer_load_dwordx4 v9, {srd(S_WQ)}, {sA} offen{NT(0)} lds")
        e(f"{ljn}:\ns_waitcnt lgkmcnt(0)")
        self.epoch_load()
        for b, slot in ((S_WUV, 4), (S_WO, 5), (S_OUT, 10)):
            e(f"s_load_dwordx2 s[{b}:{b+1}], s[0:1], {slot*8}")
        self.fin_srd(S_WS, 0x10000000)
        e(f"v_and_b32 {vL}, 63, v0\nv_mov_b32 v13, {OOB}")
        self.consts()
        e(f"s_getreg_b32 {sXCC}, hwreg(HW_REG_XCC_ID)\ns_and_b32 {sXCC}, {sXCC}, 15\ns_lshl_b32 {sPA}, {sJ}, 4\ns_add_u32 {sPA}, {sPA}, {sI}\ns_mov_b32 {sPLAIN}, 0")
        e(f"v_lshlrev_b32 v7, 4, {vL}\nv_bfe_u32 v10, {vC}, 2, 1\nv_lshlrev_b32 v11, 4, {vG}\nv_bfe_u32 {vr}, {vL}, 2, 2\nv_and_b32 {vq}, 3, {vL}")
        e(f"v_and_b32 v6, 1, {vr}\nv_lshlrev_b32 v6, 2, v6\nv_lshrrev_b32 v8, 1, {vr}\nv_add_u32 v6, v6, v8\nv_and_b32 v8, 1, {vG}\nv_lshl_add_u32 v6, v8, 1, v6\nv_mul_u32_u24 v6, 1056, v6")
        e(f"v_lshrrev_b32 v8, 1, {vG}\nv_lshl_add_u32 v6, v8, 8, v6\nv_lshl_add_u32 v6, {vq}, 3, v6\nv_add_u32 v31, {sD}, v6")
        e(f"s_lshl_b32 {sA}, {sPA}, 2\ns_add_u32 {sA}, {sA}, {sW}\ns_lshl_b32 {sB}, {sA}, 10\ns_add_u32 {sB}, {sB}, {I0R(0)}\nv_add_u32 v6, {sB}, v7\nv_cmp_gt_u32 vcc, 32, {vL}")
        e(f"s_lshl_b32 {sB}, {sA}, 9\ns_add_u32 {sB}, {sB}, {COLS - 512}\nv_cndmask_b32 {aI0ST1}, v13, v6, vcc\nv_add_u32 v6, {sB}, v7")
        e(f"s_and_b32 {sA}, {sH}, 24\ns_add_u32 {sA}, {sA}, {sH}\ns_lshl_b32 {sA}, {sA}, 2\ns_add_u32 {sA}, {sA}, {sCS}\ns_lshl_b32 {sB}, {sA}, 1\ns_and_b32 {sC}, {sW}, 1\ns_add_u32 {sB}, {sB}, {sC}\ns_lshl_b32 {sB}, {sB}, 7")
        e(f"v_lshlrev_b32 v8, 16, {vG}\nv_lshl_add_u32 v8, {vC}, 3, v8\nv_add_u32 v8, {sB}, v8\nv_cndmask_b32 {aS1ST}, v13, v8, vcc")
        self.sel(aI0ST0, f"v_cmp_eq_u32 vcc, 2, {vG}", aI0ST1, "v6")
        e(f"v_add_u32 v6, 256, {aI0ST0}\nv_add_u32 v8, 512, {aI0ST0}\nv_cndmask_b32 {aOUT}, v8, v6, vcc")
        e(f"v_lshrrev_b32 v6, 3, {vL}\nv_sub_u32 v8, {vL}, v6\nv_add_u32 v8, 3, v8\ns_mov_b32 vcc_lo, 0x01100101\ns_mov_b32 vcc_hi, 0\nv_cndmask_b32 v6, v8, v6, vcc")
        e(f"s_lshl_b32 {sA}, {sPA}, 7\nv_lshl_add_u32 v6, v6, 3, {sA}\ns_cmp_eq_u32 {sW}, 0\ns_cselect_b32 vcc_lo, 0x01103fff, 0\nv_cndmask_b32 {aSTST}, v13, v6, vcc")
        e(f"v_lshrrev_b32 v8, 3, {vL}\nv_and_b32 v9, 7, {vL}\nv_lshlrev_b32 v9, 4, v9")
        e(f"s_lshl_b32 {sA}, {sJ}, 6\ns_add_u32 {sA}, {sA}, {sBW}\ns_lshl_b32 {sB}, {sA}, 3\ns_add_u32 {sB}, {sB}, {sW}\ns_lshl_b32 {sB}, {sB}, 7")
        e(f"v_lshl_add_u32 v6, v8, 12, v9\nv_add_u32 {aI0LD}, {sB}, v6")
        e(f"s_lshr_b32 {sC}, {sW}, 2\ns_lshl_b32 {sA}, {sA}, 1\ns_add_u32 {sA}, {sA}, {sC}\ns_lshl_b32 {sA}, {sA}, 1\ns_and_b32 {sE}, {sW}, 1\ns_add_u32 {sA}, {sA}, {sE}\ns_lshl_b32 {sA}, {sA}, 7\ns_add_u32 {sA}, {sA}, {COLS}")
        e(f"v_lshl_add_u32 v6, v8, 11, v9\nv_add_u32 {aCSLD}, {sA}, v6")
        e(f"s_bfe_u32 {sB}, {sW}, 0x10001\ns_lshl_b32 {sA}, {sJ}, 7\ns_add_u32 {sA}, {sA}, {sB}\ns_lshl_b32 {sA}, {sA}, 4\nv_lshlrev_b32 v6, 7, {vC}\nv_add_u32 {aSTLD}, {sA}, v6")
        e(f"v_and_b32 v6, 1, {vC}\nv_mul_u32_u24 {vIDX}, 0xaaaa, v6\nv_add_u32 {vIDX}, 0x4444, {vIDX}")
        if o["smf"] & 1:
            e(f"s_lshl_b32 {sA}, {sB}, 2\ns_add_u32 {sA}, {sA}, {sC}\ns_lshl_b32 {sA}, {sA}, 3\ns_add_u32 {sA}, {sA}, {sE}\ns_lshl_b32 {sA}, {sA}, 3\ns_add_u32 {sA}, {sA}, {A_Q}")
            e(f"v_bfe_u32 v8, {vL}, 1, 1\nv_lshl_add_u32 v8, v8, 7, v11\nv_lshl_add_u32 v8, v6, 1, v8\nv_and_b32 v12, 4, {vL}\nv_add3_u32 {aQW}, v8, v12, {sA}")
            e(f"v_lshl_add_u32 v6, v6, 7, v11\nv_lshl_add_u32 v6, v10, 8, v6\nv_add_u32 {aQR}, {A_Q}, v6")
        else:
            e(f"s_lshl_b32 {sA}, {sB}, 1\ns_add_u32 {sA}, {sA}, {sC}\ns_lshl_b32 {sA}, {sA}, 3\ns_add_u32 {sA}, {sA}, {sE}\ns_lshl_b32 {sA}, {sA}, 4\ns_add_u32 {sA}, {sA}, {A_Q}")
            e(f"v_lshrrev_b32 v6, 3, v9\nv_lshl_add_u32 v6, {vG}, 5, v6\nv_add_u32 {aQW}, {sA}, v6")
            e(f"v_lshl_add_u32 v6, v10, 8, v11\nv_add_u32 {aQR}, {A_Q}, v6")
        e(f"v_mov_b32 v6, 0x3f803f80\nv_cmp_eq_u32 vcc, 8, {vC}\nv_mov_b32 v8, 0\nv_cndmask_b32 {vONE}, v8, v6, vcc")
        self.can_addr(aCANW, aCANR, sI)
        lsk = self.lab("k")
        e(f"v_mov_b32 v30, v13\ns_mov_b32 s74, 0\ns_cmp_lt_u32 {sW}, 4\ns_cbranch_scc1 {lsk}")
        lw = self.lab("k")
        e(f"s_cmp_lg_u32 {sW}, 4\ns_cbranch_scc1 {lw}\ns_lshl_b32 {sA}, {sPA}, 12\ns_add_u32 {sA}, {sA}, {I0R(0)}\ns_lshl_b32 {sB}, {sPA}, 11\ns_add_u32 {sB}, {sB}, {COLS - 4096}\ns_lshl_b32 {sC}, {sPA}, 7\ns_add_u32 {sC}, {sC}, {I0S(0)}")
        e(f"v_lshlrev_b32 v6, 7, {vL}\nv_add_u32 v8, {sA}, v6\nv_add_u32 v6, {sB}, v6\nv_cmp_gt_u32 vcc, 32, {vL}\nv_cndmask_b32 v6, v6, v8, vcc\nv_mov_b32 v8, {sC}\nv_cmp_gt_u32 vcc, 48, {vL}\nv_cndmask_b32 v6, v8, v6, vcc")
        e(f"buffer_load_dword v28, v6, {srd(S_WS)}, 0 offen\n{lw}:")
        e(f"s_cmp_ge_u32 {sW}, 6\ns_cbranch_scc1 {lsk}")
        e(f"s_lshl_b32 {sA}, {sCS}, 1\ns_add_u32 {sA}, {sA}, {sW}\ns_sub_u32 {sA}, {sA}, 4\ns_lshl_b32 {sA}, {sA}, 11\ns_add_u32 {sA}, {sA}, {sH}\ns_lshl_b32 {sA}, {sA}, 8\nv_lshlrev_b32 v9, 4, {vC}\nv_lshl_add_u32 v9, {vG}, 13, v9\nv_add_u32 v9, {sA}, v9")
        e(f"s_lshl_b32 {sD}, {sD}, 1\ns_sub_u32 {sD}, {sD}, {8*8448 - A_WUK}")
        e(f"v_mov_b32 v30, v9\ns_mov_b32 s74, {sD}")

        def wukdma():
            for q in range(16):
                e(f"s_mov_b32 s75, {q*32768}\ns_add_u32 m0, s74, {q*1056}\nbuffer_load_dwordx4 v30, {srd(S_WUK)}, s75 offen lds")

        def wukfill():
            e(f"v_mul_u32_u24 v6, 1056, {vC}\nv_lshlrev_b32 v7, 4, {vG}\nv_add3_u32 v6, s74, v6, v7\ns_waitcnt vmcnt(0)")
            self.stamp("Wuk")
            for u in range(4):
                for t in range(4):
                    e(f"ds_read_b128 {R(wuk(t, u),4)}, v6 offset:{t*256+u*64}")
        if not o["wuklate"]:
            if o["wukdelay"]:
                e(f"s_sleep {o['wukdelay']}")
            wukdma()
        e(f"{lsk}:\ns_waitcnt lgkmcnt(0)")
        self.stamp("E")
        self.tags()
        for k in range(1, 4):
            e(f"v_lshrrev_b32 {TB[k]}, {8*k}, {vT}\ns_bfe_u32 {sTB[k]}, {sT}, {0x80000 + 8*k}")
        e(f"s_and_b32 {sTB[0]}, {sT}, 0xff\ns_mov_b32 {sNM}, 0xfffefffe")
        e(f"v_and_b32 v6, 7, {vC}\nv_lshlrev_b32 v6, 2, v6\nv_lshrrev_b32 v6, v6, {vT}")
        self.pat(Q0, "v6", 0)
        self.pat(Q1, "v6", 2)
        lsk = self.lab("k")
        e(f"s_cmp_ge_u32 {sW}, 4\ns_cbranch_scc1 {lsk}\ns_waitcnt vmcnt(0)")
        self.stamp("Wq")
        for t in range(8):
            e(f"ds_read_b64_tr_b16 {R(WQ+4*t,2)}, v31 offset:{A_WQ+32*t}\nds_read_b64_tr_b16 {R(WQ+4*t+2,2)}, v31 offset:{A_WQ+32*t+512}")
        e(f"s_mov_b32 {sA}, 0x05040100\nv_mov_b32 v6, 0x3f803f80\nv_cmp_eq_u32 vcc, 8, {vC}")
        e(f"v_perm_b32 v20, v25, v24, {sA}\nv_perm_b32 v21, v25, v24, {sSEL}\nv_perm_b32 v22, v27, v26, {sA}\nv_perm_b32 v23, v27, v26, {sSEL}")
        for k in range(4):
            e(f"v_cndmask_b32 v{XOP+k}, v{20+k}, v6, vcc")
        lsk2 = self.lab("k")
        e(f"s_waitcnt lgkmcnt(0)\ns_branch {lsk2}\n{lsk}:\ns_cmp_ge_u32 {sW}, 6\ns_cbranch_scc1 {lsk2}")
        if not o["wuklate"]:
            wukfill()
        e(f"{lsk2}:")
        ld = self.lab("nd")
        e(f"s_lshl_b32 {sA}, s2, 3\ns_add_u32 {sA}, {sA}, {sW}\ns_cmp_lg_u32 {sA}, 7\ns_cbranch_scc1 {ld}")
        e(f"s_sleep {o['vdelay']}\ns_load_dwordx16 s[32:47], s[{S_WS}:{S_WS+1}], {VOTES}")
        VS = list(range(32, 48))
        if not o["stamps"]:
            e(f"s_load_dwordx16 s[80:95], s[{S_WS}:{S_WS+1}], {VOTES+64}")
            VS += list(range(80, 96))
        e(f"s_mov_b32 {sA}, 0\ns_mov_b32 {sB}, 0\ns_xor_b32 {sC}, {sT}, 0x80000000\ns_waitcnt lgkmcnt(0)")
        for k in VS:
            e(f"s_cmp_eq_u32 s{k}, {sT}\ns_addc_u32 {sA}, {sA}, 0\ns_cmp_eq_u32 s{k}, {sC}\ns_addc_u32 {sB}, {sB}, 0")
        e(f"s_load_dwordx2 s[{S_OUT}:{S_OUT+1}], s[0:1], 80")
        if o.get("vprobe"):
            e(f"s_mul_i32 s94, {sA if o['vprobe'] == 1 else sB}, 1000\ns_cmp_eq_u32 {sA}, {sA}\ns_memrealtime s[96:97]\ns_waitcnt lgkmcnt(0)")
        if o["stamps"]:
            e(f"s_lshl_b32 s3, {sA}, 8\ns_or_b32 s3, s3, {sB}\nv_mov_b32 v10, s3")
        e(f"s_cmp_gt_u32 {sB}, {sA}\ns_cselect_b32 {sA}, 8, 0\ns_and_b32 {sB}, {sXCC}, 7\ns_or_b32 {sA}, {sA}, {sB}")
        if o["forcec"] >= 0:
            e(f"s_andn2_b32 {sA}, {sA}, 8\ns_or_b32 {sA}, {sA}, {8*o['forcec']}")
        e(f"v_mov_b32 v9, {sA}\nv_mov_b32 v8, {vT}\nv_mov_b32 v6, {WADR}\ns_mov_b64 exec, 1\nbuffer_store_dwordx2 v[8:9], v6, {srd(S_WS)}, 0 offen sc1")
        if o["stamps"]:
            e(f"buffer_store_dword v10, v6, {srd(S_WS)}, 0 offen offset:128")
        e(f"s_mov_b64 exec, -1\ns_waitcnt lgkmcnt(0)")
        if o.get("vprobe"):
            e("L_spin2:\ns_sleep 8\ns_memrealtime s[92:93]\ns_waitcnt lgkmcnt(0)\ns_sub_u32 s95, s92, s96\ns_cmp_lt_u32 s95, s94\ns_cbranch_scc1 L_spin2")
        e(f"{ld}:")

        for L in range(2):
            X = "'" * L
            if L == 1 and o["wqf"]:
                for k in range(16):
                    e(f"v_mov_b32 v{212+k}, 0")
                for k in range(4):
                    e(f"v_mov_b32 v{16+k}, 0")
                lsk, l = self.lab("k"), self.lab("xg")
                e(f"s_mov_b32 {sA}, {I0R(1)}\ns_cmp_ge_u32 {sW}, 4\ns_cbranch_scc1 {lsk}")
                if o["xd"]:
                    e(f"s_sleep {o['xd']}")
                e(f"{l}:")
                self.guard()
                e(f"buffer_load_dwordx4 v[8:11], {aI0LD}, {srd(S_WS)}, {sA} offen sc1\ns_waitcnt vmcnt(0)")
                self.xcheck(list(range(8, 12)), sTB, sFF, "v6", mid=f"v_cvt_pk_bf16_f32 v12, v8, v9\nv_cvt_pk_bf16_f32 v13, v10, v11\nds_write_b32 {aCSLD}, v12\nds_write_b32 {aCSLD}, v13 offset:576")
                e(f"s_cbranch_vccnz {l}\n{lsk}:")
                self.stamp("I0got'")
                self.bar()
                self.stamp("Xb")
                XB = [20, 24, 228, 232]
                for U in range(4):
                    e(f"ds_read_b128 {R(XB[U],4)}, {aSTLD} offset:{U*64}")
                fill = [f"v_add_f32_dpp v6, v6, v6 {DP[k]} {DPPM}\nv_add_f32_dpp v7, v7, v7 {DP[k]} {DPPM}" for k in (1, 2, 4)]
                fill += ["v_mov_b32 v12, v6\nv_mov_b32 v13, v7", "v_permlane16_swap_b32 v6, v12\nv_permlane16_swap_b32 v7, v13", "v_add_f32 v6, v6, v12\nv_add_f32 v7, v7, v13\nv_mov_b32 v12, v6\nv_mov_b32 v13, v7",
                         "v_permlane32_swap_b32 v6, v12\nv_permlane32_swap_b32 v7, v13", "v_add_f32 v6, v6, v12\nv_add_f32 v7, v7, v13"]

                def qpass(stats):
                    for U in range(8):
                        e(f"s_waitcnt lgkmcnt({min(3, 7-U)})")
                        self.smf(16, XB[U & 3], 32 + 8 * U, vIDX)
                        if U < 4:
                            e(f"ds_read_b128 {R(XB[U],4)}, {aSTLD} offset:{(U+4)*64}")
                        if stats:
                            e(fill[U])
                    self.stamp("Qs")
                lsk, lsk2 = self.lab("k"), self.lab("k")
                e(f"s_cmp_ge_u32 {sW}, 4\ns_cbranch_scc1 {lsk}")
                e("v_add_f32 v7, v8, v9\nv_mul_f32 v6, v8, v8\nv_add_f32 v12, v10, v11\nv_fmac_f32 v6, v9, v9\nv_add_f32 v7, v7, v12\nv_fmac_f32 v6, v10, v10\nv_fmac_f32 v6, v11, v11")
                qpass(True)
                e(f"ds_write_b64 {aSTST}, v[6:7]\ns_branch {lsk2}\n{lsk}:")
                qpass(False)
                e(f"s_cmp_ge_u32 {sW}, 6\ns_cbranch_scc1 {lsk2}")
                for t in range(2, 4):
                    for u in range(2, 4):
                        e(f"ds_read_b128 {R(wuk(t, u),4)}, {aI0ST0} offset:{t*256+u*64}")
                e(f"{lsk2}:\nv_add_f32 v16, v16, v17\nv_add_f32 v18, v18, v19\nv_cvt_pk_bf16_f32 v16, v16, v18\ns_mov_b32 exec_hi, 0")
                e(f"ds_write_b16 {aQW}, v16\ns_mov_b64 exec, 0xffff\nds_write_b16_d16_hi {aQW}, v16 offset:512\ns_mov_b64 exec, -1")
                self.stamp("Qw")
                self.bar()
                self.stamp("Qb")
                self.canary_set(L, aCANW, o["lead_s1"] == 1)
                l = self.lab("p1b")
                e(f"s_and_b32 {sA}, {sW}, 6\ns_cmp_lg_u32 {sA}, 4\ns_cbranch_scc1 {l}")
                e(f"ds_read_b128 v[8:11], {aQR}\nds_read_b128 v[12:15], {aQR} offset:64\nds_read_b128 v[16:19], {aI0ST1}\nds_read_b128 v[20:23], {aI0ST1} offset:16")
                e(f"s_mov_b32 {sA}, {S1R(L)}\ns_mov_b32 {sB}, {f32(128**-0.5*math.log2(math.e))}")
                for u in range(2):
                    e(f"s_waitcnt lgkmcnt({3-u})")
                    for t in range(4):
                        self.smf(212 + 4 * t, 8 + 4 * u, KG[t, u], vIDX)
                e("s_waitcnt lgkmcnt(0)\nv_add_f32 v16, v16, v18\nv_add_f32 v17, v17, v19\nv_add_f32 v20, v20, v22\nv_add_f32 v21, v21, v23\nv_add_f32 v16, v16, v20\nv_add_f32 v17, v17, v21")
                e(f"v_mul_f32 v17, {f32(1/512)}, v17\nv_mov_b32 v18, {f32(1e-5)}\nv_fmac_f32 v18, {f32(1/512)}, v16\nv_fma_f32 v18, -v17, v17, v18\nv_rsq_f32 v18, v18\ns_nop 0\nv_mul_f32 v18, {sB}, v18")
                for t in range(4):
                    e(f"v_add_f32 v{24+t}, v{212+4*t}, v{213+4*t}\nv_add_f32 v{20+t}, v{214+4*t}, v{215+4*t}")
                for t in range(4):
                    e(f"v_fma_f32 v{24+t}, -v17, v{20+t}, v{24+t}")
                for t in range(4):
                    e(f"v_mul_f32 v{24+t}, v18, v{24+t}")
            else:
                lsk = self.lab("k")
                e(f"s_cmp_ge_u32 {sW}, 4\ns_cbranch_scc1 {lsk}")
                D = [8, 12, 16, 20, 212, 216, 220, 224]
                self.mfma(228, XOP, XOP)
                for t in range(8):
                    self.mfma(D[t], XOP, WQ + 4 * t)
                e(f"s_mov_b32 {sB}, {I0R(L)-I0R(0)}\ns_mov_b32 {sC}, {I0S(L)}\nv_mov_b32 v229, {vT}")
                if L == 0:
                    e(f"v_mov_b32 v6, {sXCC}\nv_bfi_b32 v228, 15, v6, v228")
                for t in range(8):
                    e(f"v_bfi_b32 v{232+t}, {sFF}, {TB[t & 3]}, v{D[t]}")
                if L == 0:
                    first = [f"buffer_store_dwordx4 v[232:235], {aI0ST0}, {srd(S_WS)}, 0 offen", f"buffer_store_dwordx4 v[236:239], {aOUT}, {srd(S_WS)}, 0 offen",
                             f"buffer_store_dwordx2 v[228:229], {aSTST}, {srd(S_WS)}, {sC} offen"]
                    e("\n".join(x + (" sc1" if o.get("allsc1") else "") for x in first))
                else:
                    self.store_intra([f"buffer_store_dwordx4 v[232:235], {aI0ST1}, {srd(S_WS)}, {sB} offen",
                                      f"buffer_store_dwordx4 v[236:239], {aI0ST1}, {srd(S_WS)}, {sB} offen offset:512",
                                      f"buffer_store_dwordx2 v[228:229], {aSTST}, {srd(S_WS)}, {sC} offen"])
                e(f"{lsk}:")
                self.stamp("P1a" + X)
                lp, lr, lm = self.lab("i0p"), self.lab("i0r"), self.lab("i0m")
                e(f"s_mov_b32 {sA}, {I0R(L)}\ns_mov_b32 {sB}, {I0R(L)+32768}\ns_mov_b32 {sC}, {I0S(L)}\ns_movk_i32 {sD}, 16384")
                probe = f"s_mov_b64 exec, 0xffff\nbuffer_load_dwordx4 v[16:19], {aSTLD}, {srd(S_WS)}, {sC} offen sc1"
                ptest = f"v_xor_b32 v7, {vT}, v17\nv_bitop3_b32 v7, v19, {vT}, v7 bitop3:0xbe\nv_cmp_ne_u32 vcc, 0, v7"
                if L == 0:
                    restore = "\n".join(x + " sc1" for x in first)
                    e(f"s_movk_i32 {sE}, {o['i0tries']}\ns_mov_b32 s73, 0")

                def stub():
                    e(f"{lr}:")
                    self.guard()
                    if L == 0:
                        e(f"s_sub_u32 {sE}, {sE}, 1\ns_cmp_lg_u32 {sE}, 0\ns_cbranch_scc1 {lp}\ns_cmp_ge_u32 {sW}, 4\ns_cbranch_scc1 {lp}\ns_mov_b64 exec, -1\n{restore}\n{lp}:")
                    e(f"{probe}\ns_waitcnt vmcnt(0)\n{ptest}\ns_cbranch_vccnz {lr}\ns_branch {lm}")
                self.oob(stub)
                if L == 0 or o["i0d"] < 0:
                    e(f"s_branch {lr}")
                else:
                    e("s_barrier")
                    if o["i0d"]:
                        e(f"s_sleep {o['i0d']}")
                e(f"{lm}:\n{probe}\ns_mov_b64 exec, -1")
                self.stamp("I0pr" + X)
                e(f"buffer_load_dwordx4 v[8:11], {aI0LD}, {srd(S_WS)}, {sA} offen sc1\nbuffer_load_dwordx4 v[12:15], {aI0LD}, {srd(S_WS)}, {sB} offen sc1")
                if L == 0:
                    e(f"buffer_load_dwordx4 v[20:23], {aCSLD}, {srd(S_WS)}, 0 offen sc1\nbuffer_load_dwordx4 v[24:27], {aCSLD}, {srd(S_WS)}, {sD} offen sc1")
                nd = 4 if L == 0 else 2
                if L == 0 and o["wuklate"]:
                    lk, lk2 = self.lab("wk"), self.lab("wl")
                    e(f"s_and_b32 s72, {sW}, 6\ns_xor_b32 s72, s72, 4\ns_or_b32 s72, s72, s73\ns_cbranch_scc1 {lk}\ns_mov_b32 s73, 1")
                    wukdma()
                    e(f"s_waitcnt vmcnt({nd+16})\ns_branch {lk2}\n{lk}:\ns_mov_b32 s73, 2\ns_waitcnt vmcnt({nd})\n{lk2}:")
                    e(f"s_mov_b64 exec, 0xffff\n{ptest}\ns_cbranch_vccnz {lr}")
                else:
                    e(f"s_waitcnt vmcnt({nd})\ns_mov_b64 exec, 0xffff\n{ptest}\ns_cbranch_vccnz {lr}")
                if L == 0:
                    e(f"v_and_b32 v7, 15, v16\nv_cmp_ne_u32 vcc, {sXCC}, v7\ns_cmp_eq_u64 vcc, 0\ns_cselect_b32 {sPLAIN}, {0 if o.get('allsc1') else 1}, 0\nv_and_b32 v16, -16, v16\nv_and_b32 v18, -16, v18")
                e("s_mov_b64 exec, -1")
                for k in (1, 2, 4, 8):
                    e(f"v_add_f32_dpp v16, v16, v16 {DP[k]} {DPPM}\nv_add_f32_dpp v18, v18, v18 {DP[k]} {DPPM}")
                e(f"v_mul_f32 v18, {f32(1/512)}, v18\nv_mov_b32 v17, {f32(1e-5)}\nv_fmac_f32 v17, {f32(1/512)}, v16\nv_fma_f32 v17, -v18, v18, v17\nv_rsq_f32 v17, v17")
                if L == 0 and o["wuklate"]:
                    lk, lk2 = self.lab("wm"), self.lab("wn")
                    e(f"s_cmp_eq_u32 s73, 1\ns_cbranch_scc1 {lk}\ns_waitcnt vmcnt(0)\n{lk}:\ns_waitcnt vmcnt(16)")
                    e(f"v_readfirstlane_b32 s70, v18\nv_readfirstlane_b32 s71, v17")
                else:
                    e(f"v_readfirstlane_b32 s70, v18\nv_readfirstlane_b32 s71, v17")
                    e("s_waitcnt vmcnt(0)")
                self.xcheck(list(range(8, 16)) + (list(range(20, 28)) if L == 0 else []), sTB, sFF, "v6")
                e(f"s_cbranch_vccnz {lr}")
                self.stamp("I0got" + X)
                if L == 0:
                    l1, l2 = self.lab("rs"), self.lab("rt")
                    e(f"s_cmp_eq_u32 {sPLAIN}, 0\ns_cbranch_scc1 {l1}\n{l2}:")
                    self.cold.append(f"{l1}:\ns_cmp_ge_u32 {sW}, 4\ns_cbranch_scc1 {l2}\n{restore}\ns_branch {l2}")
                self.canary_set(L, aCANW, o["lead_s1"] == 1)
                grp = [8] + ([20] if L == 0 else [])
                for b in grp:
                    for k in range(4):
                        e(f"v_add_f32 v{b+k}, v{b+k}, v{b+4+k}")
                for b in grp:
                    e(f"v_permlane32_swap_b32 v{b}, v{b+2}\nv_permlane32_swap_b32 v{b+1}, v{b+3}")
                for b in grp:
                    e(f"v_add_f32 v{b}, v{b}, v{b+2}\nv_add_f32 v{b+1}, v{b+1}, v{b+3}")
                for b in grp:
                    e(f"v_permlane16_swap_b32 v{b}, v{b+1}")
                for b in grp:
                    e(f"v_add_f32 v{b}, v{b}, v{b+1}")
                e(f"v_add_f32_dpp v8, v8, v8 row_ror:8 {DPPM}")
                if L == 0:
                    e(f"v_add_f32_dpp {vCS}, v20, v20 row_ror:8 {DPPM}")
                e(f"v_fma_f32 v8, -s70, {vCS}, v8\nv_mul_f32 v8, s71, v8\nv_cvt_pk_bf16_f32 v8, v8, v8\nds_write_b16 {aQW}, v8")
                self.bar()
                l = self.lab("p1b")
                e(f"s_and_b32 {sA}, {sW}, 6\ns_cmp_lg_u32 {sA}, 4\ns_cbranch_scc1 {l}")
                if L == 0 and o["wuklate"]:
                    wukfill()
                for u in range(2 if o["smf"] & 1 else 4):
                    e(f"ds_read_b128 {R(8+4*u,4)}, {aQR} offset:{u*64}")
                e(f"s_mov_b32 {sA}, {S1R(L)}\ns_mov_b32 {sB}, {f32(128**-0.5*math.log2(math.e))}")
                if o["smf"] & 1:
                    for t in range(4):
                        e(f"v_mov_b32 v{212+4*t}, 0\nv_mov_b32 v{213+4*t}, 0")
                    for u in range(2):
                        e(f"s_waitcnt lgkmcnt({1-u})")
                        for t in range(4):
                            self.smf(212 + 4 * t, 8 + 4 * u, KG[t, u], vIDX)
                    for t in range(4):
                        e(f"v_add_f32 v{24+t}, v{212+4*t}, v{213+4*t}")
                    for t in range(4):
                        e(f"v_mul_f32 v{24+t}, {sB}, v{24+t}")
                else:
                    for u in range(4):
                        e(f"s_waitcnt lgkmcnt({3-u})")
                        for t in range(4):
                            self.mfma(212 + 4 * t, 8 + 4 * u, wuk(t, u), None if u == 0 else 212 + 4 * t)
                    for t in range(4):
                        e(f"v_mul_f32 v{24+t}, {sB}, v{212+4*t}")
            self.pack_near("v8", "v24", "v25", "v10", "v11", Q0)
            self.pack_near("v9", "v26", "v27", "v12", "v13", Q1)
            e(f"s_mov_b32 {sB}, {S1R(L)+8192}\nbuffer_store_dwordx2 v[8:9], {aS1ST}, {srd(S_WS)}, {sA} offen sc1\nbuffer_store_dwordx2 v[8:9], {aS1ST}, {srd(S_WS)}, {sB} offen sc1")
            e(f"{l}:")
            self.stamp("S1pub" + X)
            if L == 0:
                for b, sz in ((S_WUV, 4 << 20), (S_WO, 4 << 20), (S_OUT, 2048)):
                    self.fin_srd(b, sz)
                if o["adelay"]:
                    e(f"s_sleep {o['adelay']}")
                e(f"s_lshl_b32 {sA}, {sCS}, 3\ns_add_u32 {sA}, {sA}, {sW}\ns_lshl_b32 {sA}, {sA}, 9\ns_add_u32 {sA}, {sA}, {sH}\ns_lshl_b32 {sA}, {sA}, 8")
                e(f"v_lshlrev_b32 v6, 13, {vG}\nv_lshl_add_u32 v6, {vC}, 4, v6\nv_add_u32 v6, {sA}, v6\ns_mul_i32 {sC}, {sW}, 4224")
                for q in range(4):
                    e(f"s_mov_b32 {sA}, {q*32768}\ns_add_u32 m0, {sC}, {A_WUV + q*1056}\nbuffer_load_dwordx4 v6, {srd(S_WUV)}, {sA} offen{NT(3)} lds")
                e(f"v_lshlrev_b32 v7, 4, {vL}\nv_bfe_u32 {vr}, {vL}, 2, 2\nv_and_b32 {vq}, 3, {vL}\nv_mov_b32 v13, {OOB}")
                e(f"v_bfe_u32 v10, {vC}, 2, 1\nv_lshlrev_b32 v11, 4, {vG}\nv_and_b32 v9, 7, {vL}\nv_lshlrev_b32 v9, 4, v9")
                if o["smf"] & 2:
                    e(f"v_and_b32 v6, 1, {vC}\nv_lshl_add_u32 v6, v6, 7, v11\nv_lshl_add_u32 v6, v10, 8, v6\nv_add_u32 {aCCR}, {A_CC}, v6")
                else:
                    e(f"v_lshl_add_u32 v6, v10, 8, v11\nv_add_u32 {aCCR}, {A_CC}, v6")
                self.cons_pats(PC)
                e(f"v_lshlrev_b32 v6, 3, {vq}\nv_lshrrev_b32 {vTL}, v6, {vT}")
                e(f"s_and_b32 {sA}, {sH}, 15\ns_lshl_b32 {sA}, {sA}, 2\ns_add_u32 {sA}, {sA}, {sCS}\ns_lshl_b32 {sA}, {sA}, 4\ns_and_b32 {sC}, {sW}, 4\ns_add_u32 {sA}, {sA}, {sC}\ns_add_u32 {sA}, {sA}, {sW}\ns_lshl_b32 {sA}, {sA}, 11\nv_add_u32 {aS2LD}, {sA}, v7")
                if o["dma2"]:
                    e(f"v_lshlrev_b32 v6, 5, {vG}\nv_xor_b32 {aS2LD}, v6, {aS2LD}\nv_xor_b32 {aS2B}, 128, {aS2LD}\ns_lshl_b32 s75, {sW}, 11\nv_add_u32 {aOSW}, s75, v7")
                    e(f"v_lshlrev_b32 v6, 1, {vG}\nv_xor_b32 v6, v6, {vL}\nv_and_b32 v6, 3, v6\nv_lshlrev_b32 v6, 3, v6\nv_lshrrev_b32 v6, v6, {vT}")
                    for k in range(4):
                        self.pat(PS[k], "v6", 2 * k)
                else:
                    e(f"s_mul_i32 {sA}, {sW}, {8*288}\nv_mul_u32_u24 v6, 288, {vG}\nv_lshl_add_u32 v6, {vC}, 4, v6\nv_add_u32 {aOSW}, {sA}, v6")
                e(f"s_lshr_b32 {sA}, {sJ}, 2\ns_lshl_b32 {sA}, {sA}, 12\ns_and_b32 {sC}, {sH}, 15\ns_lshl_b32 {sC}, {sC}, 3\ns_add_u32 {sA}, {sA}, {sC}")
                e(f"v_lshrrev_b32 v6, 5, {vL}\nv_and_b32 v12, 31, {vL}\nv_lshlrev_b32 v12, 7, v12\nv_lshl_add_u32 v12, v6, 14, v12\nv_add_u32 {aLSE}, {sA}, v12")
                e(f"v_lshlrev_b32 v6, 6, v6\nv_lshl_add_u32 v6, {vr}, 4, v6\nv_and_b32 v12, 1, {vG}\nv_lshl_add_u32 v6, v12, 3, v6\nv_lshl_add_u32 v6, {vq}, 1, v6\nv_add_u32 {aWW}, {A_WW}, v6")
                e(f"v_add_u32 v6, {A_WW}, v11\nv_add_u32 v12, {A_WW+128}, v11")
                self.sel(aWA0, f"v_cmp_eq_u32 vcc, 0, {vC}", "v12", "v6")
                e("v_add_u32 v6, 64, v6")
                self.sel(aWA1, f"v_cmp_eq_u32 vcc, 4, {vC}", "v12", "v6")
                e("s_barrier")
                e(f"s_lshl_b32 {sA}, {sJ}, 19\ns_lshl_b32 {sB}, {sW}, 16\ns_add_u32 {sA}, {sA}, {sB}\ns_lshl_b32 {sB}, {sI}, 6\ns_add_u32 {sA}, {sA}, {sB}")
                e(f"v_lshrrev_b32 v12, 2, {vL}\nv_lshlrev_b32 v6, 10, v12\nv_lshl_add_u32 v6, {vq}, 4, v6\nv_add_u32 v6, {sA}, v6\ns_lshl_b32 {sC}, {sW}, 12")
                e(f"s_and_b32 {sD}, {sI}, 1\ns_lshl_b32 {sD}, {sD}, 11\nv_mov_b32 v23, v6")

                def wo(qs):
                    for q in qs:
                        e(f"s_xor_b32 {sA}, {sD}, {q*1024}\ns_add_u32 m0, {sA}, s74\ns_lshl_b32 {sA}, {sA}, 4\nbuffer_load_dwordx4 v23, {srd(S_WO)}, {sA} offen lds")
                e(f"s_add_u32 s74, {sC}, {A_WO}")
                wo((0, 1))
                for k in range(len(PRET2)):
                    e(f"v_mov_b32 v{24+k}, {PRET2[k]}\nbuffer_load_dword v{24+k}, v{24+k}, {srd(S_WS)}, 0 offen")
                self.fin_srd(S_X, 2048)
                e(f"v_and_b32 v8, 1, {vG}\nv_lshlrev_b32 v8, 10, v8\nv_lshl_add_u32 v8, {vC}, 1, v8\nv_add_u32 v8, {sB}, v8")
                e(f"buffer_load_ushort v18, v8, {srd(S_X)}, 0 offen\nbuffer_load_ushort v19, v8, {srd(S_X)}, 0 offen offset:32")
                e(f"s_lshl_b32 {sA}, {sW}, 5")
                if o["dma2"]:
                    e(f"v_and_b32 v6, 7, v12\nv_xor_b32 v6, {sW}, v6\nv_lshlrev_b32 v6, 5, v6\nv_lshl_add_u32 v6, v12, 8, v6\nv_lshl_add_u32 {aOTR}, {vq}, 3, v6")
                else:
                    e(f"v_mul_u32_u24 v6, 288, v12\nv_lshl_add_u32 v6, {vq}, 3, v6\nv_add_u32 {aOTR}, {sA}, v6")
                if o["dma45"]:
                    e(f"v_bfe_u32 v6, v12, 1, 2\nv_lshlrev_b32 v6, 5, v6\nv_lshl_add_u32 v6, v12, 7, v6\nv_lshl_add_u32 v6, {vq}, 3, v6\nv_add_u32 {aXTR}, {A_XR}, v6")
                    for T in range(1, 4):
                        e(f"v_xor_b32 v{100+T}, {32*T}, {aXTR}")
                else:
                    e(f"v_mul_u32_u24 v6, 160, v12\nv_lshl_add_u32 v6, {vq}, 3, v6\nv_add_u32 {aXTR}, {A_XR}, v6")
                if o["smf"] & 2:
                    e(f"s_lshl_b32 {sA}, {sW}, 4\ns_add_u32 {sA}, {sA}, {A_CC}\nv_bfe_u32 v6, {vC}, 1, 1\nv_lshlrev_b32 v6, 7, v6\nv_lshl_add_u32 v6, {vG}, 8, v6\nv_and_b32 v8, 12, {vC}\nv_add_u32 v6, v6, v8\nv_and_b32 v8, 1, {vC}\nv_lshl_add_u32 v6, v8, 1, v6\nv_add_u32 v6, {sA}, v6\nv_mov_b32 v12, {A_DUM}")
                else:
                    e(f"s_add_u32 {sA}, {sA}, {A_CC}\nv_lshlrev_b32 v6, 8, {vG}\nv_lshl_add_u32 v6, {vC}, 1, v6\nv_add_u32 v6, {sA}, v6\nv_mov_b32 v12, {A_DUM}")
                self.sel(aCCW, f"v_cmp_gt_u32 vcc, 32, {vL}", "v12", "v6")
                e(f"s_lshl_b32 {sB}, {sW}, 8\ns_add_u32 {sB}, {sB}, {A_RR}\nv_lshlrev_b32 v6, 3, {vL}\nv_add_u32 v6, {sB}, v6\nv_cndmask_b32 {aRRW}, v12, v6, vcc")
                e(f"v_lshlrev_b32 v6, 3, {vL}\nv_lshrrev_b32 v8, 5, {vL}\nv_mul_u32_u24 v8, 768, v8\nv_add3_u32 {aRRR}, v6, v8, 0\nv_add_u32 {aRRR}, {A_RR}, {aRRR}\nv_lshlrev_b32 v8, 2, {vL}")
                if o["i1b"]:
                    e(f"v_and_b32 v16, 1, {vC}\nv_lshlrev_b32 v16, 2, v16\nv_bfe_u32 v17, {vC}, 1, 2\nv_and_or_b32 v17, {vC}, 8, v17\nv_add_u32 v16, v16, v17")
                    e(f"s_lshl_b32 {sB}, {sPA}, 2\ns_add_u32 {sB}, {sB}, {sW}\ns_lshl_b32 {sB}, {sB}, 7\nv_lshl_add_u32 v6, {vG}, 4, v16\nv_lshl_add_u32 v6, v6, 2, {sB}\nv_cndmask_b32 {aI1ST}, v13, v6, vcc")
                    e(f"v_lshlrev_b32 v16, 1, v16\nv_lshrrev_b32 v16, v16, {vT}")
                    self.pat(P1, "v16", 0)
                else:
                    e(f"s_lshl_b32 {sB}, {sPA}, 10\ns_lshl_b32 {sC}, {sW}, 7\ns_add_u32 {sB}, {sB}, {sC}\nv_add_u32 v6, {sB}, v8\nv_cndmask_b32 {aI1ST}, v13, v6, vcc")
                if o["warm"]:
                    for rg in (I1R(0), I1R(1)):
                        e(f"s_mov_b32 {sB}, {rg}\nbuffer_load_dword v27, {aI1ST}, {srd(S_WS)}, {sB} offen")
                    if o["wqf"]:
                        e(f"s_lshl_b32 {sB}, {sPA}, 8\ns_add_u32 {sB}, {sB}, {I0R(1)}\nbuffer_load_dword v27, v8, {srd(S_WS)}, {sB} offen")
                    else:
                        e(f"s_mov_b32 {sB}, {I0S(1)}\nbuffer_load_dword v27, {aSTST}, {srd(S_WS)}, {sB} offen")
                        e(f"s_lshl_b32 {sB}, {sPA}, 12\ns_add_u32 {sB}, {sB}, {I0R(1)}\nv_lshlrev_b32 v6, 3, v0\nbuffer_load_dword v27, v6, {srd(S_WS)}, {sB} offen")
                e(f"s_and_b32 {sB}, {sPA}, 64\ns_add_u32 {sB}, {sB}, {sPA}\ns_lshl_b32 {sB}, {sB}, 7\nv_add_u32 v6, {sB}, v8\nv_cndmask_b32 {aS3ST}, v13, v6, vcc")
                if o["i1b"]:
                    e(f"s_lshl_b32 {sB}, {sJ}, 13\ns_lshl_b32 {sC}, {sW}, 8\ns_add_u32 {sB}, {sB}, {sC}")
                    e(f"v_lshrrev_b32 v6, 2, {vC}\nv_lshlrev_b32 v6, 11, v6\nv_lshrrev_b32 v16, 1, {vG}\nv_lshl_add_u32 v6, v16, 7, v6\nv_bfe_u32 v16, {vC}, 1, 1\nv_lshl_add_u32 v6, v16, 6, v6")
                    e(f"v_and_b32 v16, 1, {vG}\nv_and_b32 v17, 1, {vC}\nv_lshl_add_u32 v16, v16, 1, v17\nv_lshl_add_u32 v6, v16, 4, v6\nv_add_u32 {aI1LD}, {sB}, v6")
                    e(f"v_lshlrev_b32 v16, 3, v16\nv_lshrrev_b32 v16, v16, {vT}")
                    for k in range(4):
                        self.pat(PD[k], "v16", 2 * k)
                    e(f"s_lshl_b32 {sB}, {sW}, 8\ns_add_u32 {sB}, {sB}, {A_RR}\nv_lshrrev_b32 v6, 1, {vG}\nv_lshl_add_u32 v6, v6, 4, {vC}\nv_and_b32 v16, 1, {vG}\nv_lshl_add_u32 v6, v6, 1, v16\nv_lshl_add_u32 {aRRW}, v6, 2, {sB}")
                else:
                    e(f"s_lshl_b32 {sB}, {sJ}, 14\ns_lshl_b32 {sC}, {sW}, 9\ns_add_u32 {sB}, {sB}, {sC}")
                    e(f"v_lshlrev_b32 v6, 12, {vG}\nv_lshl_add_u32 v6, {vC}, 4, v6\nv_add_u32 {aI1LD}, {sB}, v6")
                e(f"s_lshl_b32 {sA}, {sW}, 8\ns_add_u32 {sA}, {sA}, {A_CT}\nv_lshlrev_b32 v6, 7, v10\nv_add_u32 v6, {sA}, v6")
                if o["smf"] & 4:
                    e(f"v_and_b32 v8, 1, {vC}\nv_lshl_add_u32 v8, v8, 6, v11\nv_add_u32 {aCTR}, v6, v8")
                    e(f"v_lshrrev_b32 v8, 1, {vG}\nv_lshl_add_u32 v6, v8, 5, v6\nv_lshrrev_b32 v8, 3, {vC}\nv_lshl_add_u32 v6, v8, 4, v6\nv_lshl_add_u32 v6, {vq}, 2, v6\nv_and_b32 v8, 1, {vG}\nv_lshl_add_u32 {aCTW}, v8, 6, v6")
                else:
                    e(f"v_add_u32 {aCTR}, v6, v11")
                    e(f"v_lshrrev_b32 v8, 1, {vG}\nv_lshl_add_u32 v6, v8, 6, v6\nv_lshrrev_b32 v8, 3, {vC}\nv_lshl_add_u32 v6, v8, 5, v6\nv_lshl_add_u32 v6, {vq}, 3, v6\nv_and_b32 v8, 1, {vG}\nv_lshl_add_u32 {aCTW}, v8, 2, v6")
                if o["dma45"]:
                    e(f"v_lshrrev_b32 v8, 3, v0\nv_lshlrev_b32 v6, 4, v0\nv_add_u32 {aXRW}, {A_XR}, v6\nv_lshlrev_b32 v6, 5, {vG}\nv_xor_b32 v9, v9, v6")
                else:
                    e(f"v_lshrrev_b32 v8, 3, v0\nv_mul_u32_u24 v6, 160, v8\nv_add_u32 v6, v6, v9\nv_add_u32 {aXRW}, {A_XR}, v6")
                e(f"s_lshl_b32 {sA}, {sI}, 7\nv_and_b32 v6, 60, v8\nv_add_u32 v6, v6, v8\nv_lshl_add_u32 v6, v6, 11, v9\nv_add_u32 {aXLD}, {sA}, v6")
                e(f"v_cmp_gt_u32 {sMASK}, 43, v8\nv_lshrrev_b32 v8, 3, v8\nv_cmp_eq_u32 vcc, 6, v8\ns_or_b64 {sMASK}, {sMASK}, vcc")
                e(f"v_lshlrev_b32 v6, 7, v10\nv_lshl_add_u32 v6, {vG}, 4, v6\nv_add_u32 v6, {A_XS}, v6\nv_and_b32 v8, 11, {vC}")
                self.sel(aXSW, "v_cmp_eq_u32 vcc, 0, v8", "v12", "v6")
                l = self.lab("k")
                e(f"s_cmp_lg_u32 {sW}, 0\ns_cbranch_scc1 {l}\nv_cndmask_b32 {aOUT}, v13, {aXOFF}, vcc\n{l}:")
                e(f"v_mov_b32 v6, 0x3f803f80\nv_mov_b32 v8, 0\nv_mov_b32 v9, 0\nv_mov_b32 v10, 0\nv_mov_b32 v11, 0")
                e(f"v_lshlrev_b32 v6, 2, {vC}\nv_add_u32 v6, {A_WW+128}, v6\nds_write_b32 v6, v8")
                e(f"s_mov_b64 exec, {sMASK}\ns_not_b64 exec, exec\nds_write_b128 {aXRW}, v[8:11]\ns_mov_b64 exec, -1")
                e("s_barrier")
                wo((2, 3))
                if o["stamps"] and "Wuv" in self.names:
                    self.stamp("Wuv")
                self.place_wait(26)
                e(f"v_add_u32 {aLSE}, {sSIDE}, {aLSE}\nv_add_u32 {aXLD}, {sSIDE}, {aXLD}\nv_add_u32 {aCANR}, {sSIDE}, {aCANR}")
                e(f"s_add_u32 {sA}, {sWW}, {sJ}\ns_lshl_b32 {sA}, {sA}, 1\ns_xor_b32 {sA}, {sA}, {sWW}\ns_and_b32 {sA}, {sA}, 8\ns_lshl_b32 {sA}, {sA}, 10\nv_add_u32 {aS2LD}, {sA}, {aS2LD}\nv_add_u32 {aS2B}, {sA}, {aS2B}")
                e("s_waitcnt lgkmcnt(0)\ns_barrier")
                lw4 = self.lab("k")
                e(f"s_cmp_ge_u32 {sW}, 4\ns_cbranch_scc1 {lw4}")
                e(f"v_lshlrev_b32 v18, 16, v18\nv_lshlrev_b32 v19, 16, v19\nv_mul_f32 v244, {f32(0.125)}, v18\nv_mul_f32 v245, {f32(0.125)}, v19")
                e(f"v_mov_b32 v6, 0x3f803f80\nv_mov_b32 v8, 0")
                self.sel(R(SEL0), f"v_cmp_eq_u32 vcc, 0, {vC}", "v8", "v6")
                self.sel(R(SEL4), f"v_cmp_eq_u32 vcc, 4, {vC}", "v8", "v6")
                for k in range(1, 4):
                    e(f"v_mov_b32 v{SEL0+k}, v{SEL0}\nv_mov_b32 v{SEL4+k}, v{SEL4}")
                e(f"v_lshrrev_b32 v6, 1, {vG}\nv_lshl_add_u32 v6, {vr}, 2, v6\nv_mul_u32_u24 v6, 1056, v6\nv_and_b32 v7, 1, {vG}\nv_lshl_add_u32 v6, v7, 9, v6")
                if o["i1b"]:
                    e(f"s_and_b32 {sA}, {sW}, 3\ns_lshl_b32 {sA}, {sA}, 6\ns_add_u32 {sA}, {sA}, {A_WUV}\nv_lshl_add_u32 v6, {vq}, 3, v6\nv_add_u32 v6, {sA}, v6")
                else:
                    e(f"s_lshl_b32 {sA}, {sW}, 5\ns_add_u32 {sA}, {sA}, {A_WUV}\nv_lshl_add_u32 v6, {vq}, 3, v6\nv_add_u32 v6, {sA}, v6")
                for t in range(2 if o["i1b"] else 1):
                    for u in range(4):
                        off = (16 * (u >> 1) + 2 * (u & 1)) * 1056 + 32 * t
                        e(f"ds_read_b64_tr_b16 {R(WUV+16*t+4*u,2)}, v6 offset:{off}\nds_read_b64_tr_b16 {R(WUV+16*t+4*u+2,2)}, v6 offset:{off+256}")
                e(f"{lw4}:")
                if o["i1b"]:
                    e(f"v_and_b32 v8, 1, {vr}\nv_lshlrev_b32 v8, 4, v8\nv_lshl_add_u32 v8, {vG}, 2, v8\nv_lshrrev_b32 v9, 1, {vr}\nv_add_u32 v8, v8, v9")
                else:
                    e(f"v_lshl_add_u32 v8, {vG}, 3, {vr}")
                e(f"v_lshlrev_b32 v8, 6, v8\nv_lshl_add_u32 v8, {vq}, 3, v8\ns_lshl_b32 {sA}, {sW}, 12\ns_add_u32 {sA}, {sA}, {A_WO}\nv_add_u32 v8, {sA}, v8")
                for t in range(2):
                    for u in range(2):
                        off = u * 2048 + t * 32
                        e(f"ds_read_b64_tr_b16 {R(WO+8*t+4*u,2)}, v8 offset:{off}\nds_read_b64_tr_b16 {R(WO+8*t+4*u+2,2)}, v8 offset:{off+(128 if o['i1b'] else 256)}")
                e("s_waitcnt lgkmcnt(0)")
                self.stamp("Wo")
            else:
                if o["wqf"]:
                    l = self.lab("k")
                    e(f"s_cmp_lg_u32 {sW}, 0\ns_cbranch_scc1 {l}\nv_and_b32 v6, 31, {vL}\nv_lshlrev_b32 v6, 3, v6\nv_add_u32 v6, {A_XS}, v6\nds_read_b64 v[244:245], v6\n{l}:")
                else:
                    l = self.lab("k")
                    e(f"s_cmp_lg_u32 {sW}, 0\ns_cbranch_scc1 {l}")
                    for hf in range(2):
                        for r in range(4):
                            e(f"v_mul_f32 v{244+4*hf+r}, {f32(0.125)}, v{244+4*hf+r}\nds_write_b32 {aXSW}, v{244+4*hf+r} offset:{(r&1)*4 + (8*hf + (r>>1))*8}")
                    e(f"v_and_b32 v6, 31, {vL}\nv_lshlrev_b32 v6, 3, v6\nv_add_u32 v6, {A_XS}, v6\nds_read_b64 v[244:245], v6\n{l}:")
            if L == 1:
                e(f"s_lshl_b32 {sA}, s2, 9\nv_add_u32 v6, {sA}, v0\nv_mov_b32 v7, {OOB}\nv_cmp_eq_u32 vcc, 0, v6\nv_cndmask_b32 v6, v7, v6, vcc\nbuffer_store_dword {vT}, v6, {srd(S_WS)}, 0 offen sc1")
            if L == 0:
                e(f"v_lshlrev_b32 v6, 1, {vC}\nv_lshrrev_b32 v6, v6, {vT}")
                self.pat(P3, "v6", 0)
            self.canary_wait(2 + L, aCANR, o["d_s2" if L == 0 else "e_s2"])
            self.stamp("S2can" + X)
            l, l0, l1 = self.lab("s2"), self.lab("s2w"), self.lab("s2x")
            e(f"s_mov_b32 {sA}, {S2R(L)}\ns_mov_b32 {sB}, {LSE(L)}\ns_cmp_eq_u32 {sW}, 0\ns_cbranch_scc1 {l0}")
            if o["dma2"]:
                ld2 = f"s_mov_b32 m0, s75\nbuffer_load_dwordx4 {aS2LD}, {srd(S_WS)}, {sA} offen sc1 lds\nbuffer_load_dwordx4 {aS2B}, {srd(S_WS)}, {sA} offen offset:1024 sc1 lds"
                st2 = f"ds_read_b128 v[8:11], {aOSW}\nds_read_b128 v[12:15], {aOSW} offset:1024\ns_waitcnt lgkmcnt(0)"
                P2_, RS = PS, 256
            else:
                ld2 = f"buffer_load_dwordx4 v[8:11], {aS2LD}, {srd(S_WS)}, {sA} offen sc1\nbuffer_load_dwordx4 v[12:15], {aS2LD}, {srd(S_WS)}, {sA} offen offset:1024 sc1"
                st2 = f"ds_write_b128 {aOSW}, v[8:11] offset:{A_OS}\nds_write_b128 {aOSW}, v[12:15] offset:{A_OS+4*288}"
                P2_, RS = PC, 288
            self.retry_head(l)
            e(f"{ld2}\ns_waitcnt vmcnt(0)\n{st2}")
            self.check(list(range(8, 16)), P2_, sM, "v6")
            e(f"s_cbranch_vccnz {l}\ns_branch {l1}")
            e(f"{l0}:")
            l0 = self.lab("s2v")
            self.retry_head(l0)
            e(f"buffer_load_dwordx2 v[16:17], {aLSE}, {srd(S_WS)}, {sB} offen sc1\n{ld2}\ns_waitcnt vmcnt(2)")
            e(f"v_xor_b32 v7, {vT}, v17\nv_mov_b32 v18, v16")
            self.allred(["v18"], "v_max_f32", ["v19"], [1, 2, 4, 8, 16])
            e("v_sub_f32 v16, v16, v18\nv_exp_f32 v16, v16\ns_nop 0\nv_mov_b32 v18, v16")
            self.allred(["v18"], "v_add_f32", ["v19"], [1, 2, 4, 8, 16])
            e(f"v_rcp_f32 v18, v18\ns_nop 0\nv_mul_f32 v16, v16, v18\nv_cvt_pk_bf16_f32 v16, v16, v16\nds_write_b16 {aWW}, v16\ns_waitcnt vmcnt(0)\n{st2}")
            self.check(list(range(8, 16)), P2_, sM, "v6", extra="v7")
            e(f"s_cbranch_vccnz {l0}")
            e(f"{l1}:")
            self.stamp("S2got" + X)
            self.bar()
            e(f"ds_read_b128 v[8:11], {aWA0}\nds_read_b64_tr_b16 v[16:17], {aOTR} offset:{A_OS}\nds_read_b64_tr_b16 v[18:19], {aOTR} offset:{A_OS+16*RS}")
            e(f"ds_read_b128 v[12:15], {aWA1}\nds_read_b64_tr_b16 v[20:21], {aOTR} offset:{A_OS+32*RS}\nds_read_b64_tr_b16 v[22:23], {aOTR} offset:{A_OS+48*RS}")
            e("s_waitcnt lgkmcnt(3)")
            for k in range(4):
                e(f"v_and_b32 v{16+k}, {sNM}, v{16+k}")
            e("s_waitcnt lgkmcnt(0)")
            for k in range(4):
                e(f"v_and_b32 v{20+k}, {sNM}, v{20+k}")
            self.mfma(24, 8, 16)
            self.mfma(24, 12, 20, 24)
            e(f"s_mov_b32 {sB}, {I1R(L)}")
            e(f"v_cvt_pk_bf16_f32 v8, v24, v24\nds_write_b16 {aCCW}, v8")
            self.bar()
            if o["i1b"]:
                lsk = self.lab("k")
                e(f"s_cmp_ge_u32 {sW}, 4\ns_cbranch_scc1 {lsk}")
                e(f"ds_read_b128 v[8:11], {aCCR}\nds_read_b128 v[12:15], {aCCR} offset:64\nv_mov_b32 v16, 0\nv_mov_b32 v17, 0\nv_mov_b32 v20, 0\nv_mov_b32 v21, 0\ns_waitcnt lgkmcnt(1)")
                self.smf(16, 8, WUV, vIDX)
                self.smf(20, 8, WUV + 16, vIDX)
                e("s_waitcnt lgkmcnt(0)")
                self.smf(16, 12, WUV + 8, vIDX)
                self.smf(20, 12, WUV + 24, vIDX)
                e("v_add_f32 v16, v16, v17\nv_add_f32 v20, v20, v21")
                self.pack_ovw("v8", "v16", "v20", P1)
                self.store_intra([f"buffer_store_dword v8, {aI1ST}, {srd(S_WS)}, {sB} offen"])
                e(f"{lsk}:")
                self.stamp("I1pub" + X)
                for k in range(8):
                    e(f"v_mov_b32 v{16+k}, 0")
                l = self.lab("i1")
                e(f"{l}:")
                self.guard()
                e(f"buffer_load_dwordx4 v[8:11], {aI1LD}, {srd(S_WS)}, {sB} offen sc1\ns_waitcnt vmcnt(0)")
                self.xcheck(list(range(8, 12)), PD, sM, "v6")
                e(f"s_cbranch_vccnz {l}")
                self.stamp("I1got" + X)
                self.smf(16, 8, WO, vIDX)
                self.smf(20, 8, WO + 8, vIDX)
                self.canary_set(4 + L, aCANW, o["lead_s3"] == 1)
                e("v_add_f32 v16, v16, v17\nv_add_f32 v18, v18, v19\nv_add_f32 v20, v20, v21\nv_add_f32 v22, v22, v23")
                e("v_permlane32_swap_b32 v16, v18\nv_permlane32_swap_b32 v20, v22\nv_add_f32 v16, v16, v18\nv_add_f32 v20, v20, v22")
                e(f"v_permlane16_swap_b32 v16, v20\nv_add_f32 v16, v16, v20\nds_write_b32 {aRRW}, v16")
            else:
                if o["smf"] & 2:
                    e(f"ds_read_b128 v[8:11], {aCCR}\nds_read_b128 v[12:15], {aCCR} offset:64\nv_mov_b32 v24, 0\nv_mov_b32 v25, 0\ns_waitcnt lgkmcnt(1)")
                    self.smf(24, 8, WUV, vIDX)
                    e("s_waitcnt lgkmcnt(0)")
                    self.smf(24, 12, WUV + 8, vIDX)
                    e("v_add_f32 v24, v24, v25")
                else:
                    for u in range(4):
                        e(f"ds_read_b128 {R(8+4*u,4)}, {aCCR} offset:{u*64}")
                    for u in range(4):
                        e(f"s_waitcnt lgkmcnt({3-u})")
                        self.mfma(24, 8 + 4 * u, WUV + 4 * u, None if u == 0 else 24)
                e(f"v_bfi_b32 v8, {sFF}, {vTL}, v24")
                self.store_intra([f"buffer_store_dword v8, {aI1ST}, {srd(S_WS)}, {sB} offen"])
                self.stamp("I1pub" + X)
                l = self.lab("i1")
                e(f"{l}:")
                self.guard()
                e(f"buffer_load_dwordx4 v[8:11], {aI1LD}, {srd(S_WS)}, {sB} offen sc1\nbuffer_load_dwordx4 v[12:15], {aI1LD}, {srd(S_WS)}, {sB} offen offset:256 sc1\ns_waitcnt vmcnt(0)")
                self.check(list(range(8, 16)), sTB, sFF, "v6")
                e(f"s_cbranch_vccnz {l}")
                self.stamp("I1got" + X)
                self.canary_set(4 + L, aCANW, o["lead_s3"] == 1)
                for k in range(4):
                    e(f"v_permlane32_swap_b32 v{8+k}, v{12+k}")
                for k in range(4):
                    e(f"v_add_f32 v{8+k}, v{8+k}, v{12+k}")
                e("v_permlane16_swap_b32 v8, v10\nv_permlane16_swap_b32 v9, v11\nv_add_f32 v8, v8, v10\nv_add_f32 v9, v9, v11")
                e(f"v_cvt_pk_bf16_f32 v8, v8, v9\nds_write_b32 {aCTW}, v8")
                if o["smf"] & 4:
                    e(f"ds_read_b128 v[8:11], {aCTR}\nv_mov_b32 v16, 0\nv_mov_b32 v17, 0\nv_mov_b32 v20, 0\nv_mov_b32 v21, 0\ns_waitcnt lgkmcnt(0)")
                    self.smf(16, 8, WO, vIDX)
                    self.smf(20, 8, WO + 8, vIDX)
                    e(f"v_add_f32 v16, v16, v17\nv_add_f32 v17, v20, v21\nds_write_b64 {aRRW}, v[16:17]")
                else:
                    e(f"ds_read_b128 v[8:11], {aCTR}\nds_read_b128 v[12:15], {aCTR} offset:64\ns_waitcnt lgkmcnt(1)")
                    self.mfma(16, 8, WO)
                    self.mfma(20, 8, WO + 8)
                    e("s_waitcnt lgkmcnt(0)")
                    self.mfma(16, 12, WO + 4, 16)
                    self.mfma(20, 12, WO + 12, 20)
                    e(f"v_mov_b32 v17, v20\nds_write_b64 {aRRW}, v[16:17]")
            self.bar()
            l = self.lab("fin")
            e(f"s_cmp_lg_u32 {sW}, 0\ns_cbranch_scc1 {l}")
            for k in range(4):
                e(f"ds_read_b64 {R(8+2*k,2)}, {aRRR} offset:{k*256}")
            e(f"s_mov_b32 {sA}, {S3R(L)}\ns_waitcnt lgkmcnt(2)\nv_add_f32 v8, v8, v10\nv_add_f32 v9, v9, v11\ns_waitcnt lgkmcnt(0)\nv_add_f32 v12, v12, v14\nv_add_f32 v13, v13, v15")
            e("v_add_f32 v8, v8, v12\nv_add_f32 v9, v9, v13\nv_mov_b32 v10, v8\nv_mov_b32 v11, v9\nv_permlane32_swap_b32 v8, v10\nv_permlane32_swap_b32 v9, v11")
            e("v_add_f32 v8, v8, v244\nv_add_f32 v9, v9, v245\nv_add_f32 v24, v8, v10\nv_add_f32 v25, v9, v11")
            self.pack_near("v8", "v24", "v25", "v10", "v11", P3)
            e(f"s_mov_b32 {sB}, {S3R(L)+8192}\nbuffer_store_dword v8, {aS3ST}, {srd(S_WS)}, {sA} offen sc1\nbuffer_store_dword v8, {aS3ST}, {srd(S_WS)}, {sB} offen sc1")
            self.canary_set(4 + L, aCANW, o["lead_s3"] == 0)
            e(f"{l}:")
            self.stamp("S3pub" + X)
            if L == 1:
                l = self.lab("ex")
                e(f"s_and_b32 {sA}, {sI}, 7\ns_cmp_eq_u32 {sA}, {sJ}\ns_cbranch_scc1 {l}")
                self.dump_stamps()
                e(f"s_endpgm\n{l}:")
            if L == 0 and o["wqf"]:
                e(f"s_lshl_b32 {sA}, {sW}, 9\ns_add_u32 {sA}, {sA}, {sH}\ns_lshl_b32 {sA}, {sA}, 8\nv_lshlrev_b32 v9, 4, {vC}\nv_lshl_add_u32 v9, {vG}, 15, v9\nv_add_u32 v9, {sA}, v9\ns_mul_i32 {sD}, {sW}, 4160\ns_barrier")

                def wqdma(n):
                    for q in range(4):
                        e(f"s_mov_b32 {sA}, {q*8192 + (n << 20)}\ns_add_u32 m0, {sD}, {A_WUV + (n & 1)*33280 + q*1040}\nbuffer_load_dwordx4 v9, {srd(S_WQ)}, {sA} offen lds")

                def wqfill(n):
                    e(f"s_waitcnt vmcnt({4 if n < 3 else 0})\ns_barrier")
                    for sl in range(4):
                        off = (n & 1) * 33280 + sl * 8320
                        e(f"ds_read_b64_tr_b16 {R(32+16*n+4*sl,2)}, v10 offset:{off}\nds_read_b64_tr_b16 {R(34+16*n+4*sl,2)}, v10 offset:{off+512}")
                    e("s_waitcnt lgkmcnt(0)")
                wqdma(0)
                wqdma(1)
                e(f"v_bfe_u32 {vr}, {vL}, 2, 2\nv_and_b32 {vq}, 3, {vL}\nv_mov_b32 v13, {OOB}\nv_lshlrev_b32 v11, 4, {vG}\nv_bfe_u32 v12, {vC}, 2, 1")
                e(f"v_and_b32 v6, 1, {vr}\nv_lshlrev_b32 v6, 2, v6\nv_lshrrev_b32 v8, 1, {vr}\nv_add_u32 v6, v6, v8\nv_and_b32 v8, 1, {vG}\nv_lshl_add_u32 v6, v8, 1, v6\nv_mul_u32_u24 v6, 1040, v6")
                e(f"v_lshrrev_b32 v8, 1, {vG}\nv_lshl_add_u32 v6, v8, 8, v6\nv_lshl_add_u32 v6, {vq}, 3, v6\ns_lshl_b32 {sA}, {sW}, 5\ns_add_u32 {sA}, {sA}, {A_WUV}\nv_add_u32 v10, {sA}, v6")
                e(f"s_and_b32 {sA}, {sW}, 1\ns_lshl_b32 {sB}, {sA}, 5\nv_xor_b32 v110, {sB}, {aXTR}\nv_xor_b32 v111, 64, v110\ns_lshl_b32 {sB}, {sA}, 6\nv_add_u32 {aXSW}, {sB}, {aXSW}")
                e(f"s_lshl_b32 {sB}, {sPA}, 8\ns_lshl_b32 {sA}, {sA}, 4\ns_add_u32 {sB}, {sB}, {sA}\ns_add_u32 {sB}, {sB}, {I0R(1)}\nv_lshlrev_b32 v6, 7, v12\nv_lshl_add_u32 v6, {vG}, 5, v6\nv_add_u32 v6, {sB}, v6\nv_and_b32 v8, 11, {vC}\nv_cmp_eq_u32 vcc, 0, v8\nv_cndmask_b32 {aWROW}, v13, v6, vcc")
                e(f"v_add_u32 v6, {sA}, {aXOFF}\nv_cndmask_b32 {aOUT}, v13, v6, vcc")
                e(f"s_lshl_b32 {sA}, {sJ}, 12\nv_lshlrev_b32 v6, 4, v0\nv_add_u32 {aI0LD}, {sA}, v6")
                e(f"v_bfe_u32 v6, v0, 3, 1\nv_mul_u32_u24 v6, 1152, v6\nv_lshrrev_b32 v8, 4, v0\nv_lshl_add_u32 v6, v8, 5, v6\nv_bfe_u32 v8, v0, 2, 1\nv_lshl_add_u32 v6, v8, 4, v6\nv_lshl_add_u32 v6, {vq}, 2, v6\nv_add_u32 {aCSLD}, {A_CT}, v6")
                e(f"v_and_b32 v8, 1, {vC}\nv_lshl_add_u32 v6, v12, 1, v8\nv_mul_u32_u24 v6, 576, v6\nv_add_u32 v6, v6, v11\nv_add_u32 v6, {A_CT}, v6\nv_mov_b32 v16, {A_ONE}\nv_lshrrev_b32 v17, 1, {vC}")
                self.sel(aSTLD, "v_cmp_eq_u32 vcc, 1, v17", "v6", "v16")
                e(f"v_lshl_add_u32 v6, v8, 7, v11\nv_lshlrev_b32 v16, 8, v12\nv_mov_b32 v17, 0x200\nv_and_b32 v8, 2, {vC}\nv_cmp_ne_u32 vcc, 0, v8\nv_cndmask_b32 v16, v16, v17, vcc\nv_add3_u32 {aQR}, v6, v16, 0\nv_add_u32 {aQR}, {A_Q}, {aQR}")
                e(f"v_add_u32 {aQW}, {A_Q - A_CC + (1 << 32)}, {aCCW}")
                e(f"s_lshl_b32 {sA}, {sW}, 3\ns_add_u32 {sA}, {sA}, {A_ST}\nv_lshlrev_b32 v6, 2, {vL}\nv_add_u32 v6, {sA}, v6\nv_mov_b32 v8, {A_DUM}\ns_cmp_lt_u32 {sW}, 4\ns_cselect_b32 vcc_lo, 0x101, 0\ns_mov_b32 vcc_hi, 0\nv_cndmask_b32 {aSTST}, v8, v6, vcc")
                e(f"v_and_b32 v6, 1, {vG}\nv_lshlrev_b32 v6, 5, v6\nv_add_u32 {aI0ST1}, {A_ST}, v6")
                e(f"s_and_b32 {sA}, {sW}, 1\ns_mul_i32 {sA}, {sA}, {16*1056}\ns_add_u32 {sA}, {sA}, {A_WUK}\nv_mul_u32_u24 v6, 1056, {vC}\nv_add3_u32 {aI0ST0}, {sA}, v6, v11")
                e(f"v_and_b32 v6, 127, v0\nv_lshlrev_b32 v6, 2, v6\nv_add_u32 v6, {A_ONE}, v6\nv_mov_b32 v8, 0x3f803f80\nds_write_b32 v6, v8")
                for n in range(4):
                    wqfill(n)
                    if n < 2:
                        e("s_barrier")
                        wqdma(n + 2)
                self.stamp("WqF")
            e(f"s_mov_b32 {sB}, {S45(L)}\ns_cmp_eq_u32 {sW}, 6\ns_cselect_b32 {sB}, {S3R(L) - 12*16384}, {sB}\ns_lshl_b32 {sC}, {sW}, 10\ns_add_u32 {sC}, {sC}, {A_XR}")
            self.canary_wait(6 + L, aCANR, o["d_s45" if L == 0 else "e_s45"])
            self.stamp("S45can" + X)
            l, l2 = self.lab("s45"), self.lab("s45n")
            e(f"s_mov_b64 exec, {sMASK}\ns_cbranch_execz {l2}")
            self.retry_head(l)
            if o["dma45"]:
                e(f"buffer_load_dwordx4 v[8:11], {aXLD}, {srd(S_WS)}, {sB} offen sc1\ns_waitcnt vmcnt(0)")
                self.xcheck(list(range(8, 12)), PS, sM, "v6", mid=f"ds_write_b128 {aXRW}, v[8:11]")
            else:
                e(f"buffer_load_dwordx4 v[8:11], {aXLD}, {srd(S_WS)}, {sB} offen sc1\ns_waitcnt vmcnt(0)")
                e(f"ds_write_b128 {aXRW}, v[8:11]")
                self.check(list(range(8, 12)), PC, sM, "v6")
            e(f"s_cbranch_vccnz {l}")
            e(f"{l2}:\ns_mov_b64 exec, -1")
            self.stamp("S45got" + X)
            self.bar()
            if o["wqf"]:
                lsk = self.lab("k")
                if L == 1:
                    e(f"s_cmp_lt_u32 {sW}, 2\ns_cbranch_scc1 {lsk}")
                    self.dump_stamps()
                    e(f"s_endpgm\n{lsk}:")
                else:
                    e(f"s_cmp_ge_u32 {sW}, 2\ns_cbranch_scc1 {lsk}")
                for n in range(4):
                    e(f"ds_read_b64_tr_b16 {R(8+4*n,2)}, v{110+(n&1)} offset:{(n >> 1)*4096}\nds_read_b64_tr_b16 {R(10+4*n,2)}, v{110+(n&1)} offset:{(n >> 1)*4096 + 2048}")
                for n in range(4):
                    e(f"s_waitcnt lgkmcnt({6-2*n})")
                    self.mfma(244, 8 + 4 * n, SEL4 if n & 1 else SEL0, None if n == 0 else 244)
                if L == 0:
                    for k in range(4):
                        e(f"v_bfi_b32 v{8+k}, {sFF}, {TB[k]}, v{244+k}")
                    self.store_intra([f"buffer_store_dwordx4 v[8:11], {aWROW}, {srd(S_WS)}, 0 offen"])
                    self.stamp("P1a'")
                    for r in range(4):
                        e(f"v_mul_f32 v{244+r}, {f32(0.125)}, v{244+r}\nds_write_b32 {aXSW}, v{244+r} offset:{(r&1)*4 + (r>>1)*8}")
                    e(f"{lsk}:")
                else:
                    e("v_cvt_pk_bf16_f32 v8, v244, v246\nv_cvt_pk_bf16_f32 v9, v245, v247")
                    e(f"buffer_store_dword v8, {aOUT}, {srd(S_OUT)}, 0 offen\nbuffer_store_dword v9, {aOUT}, {srd(S_OUT)}, 0 offen offset:32")
            else:
                lsk = self.lab("k")
                if L == 1:
                    e(f"s_cmp_eq_u32 {sW}, 0\ns_cbranch_scc1 {lsk}")
                    self.dump_stamps()
                    e(f"s_endpgm\n{lsk}:")
                else:
                    e(f"s_cmp_ge_u32 {sW}, 4\ns_cbranch_scc1 {lsk}")
                XT = [8, 12, 16, 20, 212, 216, 220, 224]
                for n in range(8):
                    if o["dma45"]:
                        ad = aXTR if n & 3 == 0 else f"v{100 + (n & 3)}"
                        e(f"ds_read_b64_tr_b16 {R(XT[n],2)}, {ad} offset:{(n >> 2)*4096}\nds_read_b64_tr_b16 {R(XT[n]+2,2)}, {ad} offset:{(n >> 2)*4096 + 2048}")
                    else:
                        off = (n >> 2) * 5120 + 32 * (n & 3)
                        e(f"ds_read_b64_tr_b16 {R(XT[n],2)}, {aXTR} offset:{off}\nds_read_b64_tr_b16 {R(XT[n]+2,2)}, {aXTR} offset:{off+2560}")
                    if n >= 5:
                        T = n - 5
                        e("s_waitcnt lgkmcnt(10)")
                        self.mfma(244 + 4 * (T & 1), XT[T], SEL0 if T < 2 else SEL4, None if T < 2 else 244 + 4 * (T & 1))
                for n in range(3, 8):
                    T = n & 3
                    e(f"s_waitcnt lgkmcnt({14-2*n})")
                    self.mfma(244 + 4 * (T & 1), XT[n], SEL0 if T < 2 else SEL4, 244 + 4 * (T & 1))
                if L == 0:
                    for k in range(4):
                        e(f"v_cvt_pk_bf16_f32 v{XOP+k}, v{244+2*k}, v{245+2*k}")
                    for k in range(4):
                        e(f"v_or_b32 v{XOP+k}, {vONE}, v{XOP+k}")
                    e(f"{lsk}:")
                else:
                    e("v_cvt_pk_bf16_f32 v8, v244, v246\nv_cvt_pk_bf16_f32 v9, v245, v247\nv_cvt_pk_bf16_f32 v10, v248, v250\nv_cvt_pk_bf16_f32 v11, v249, v251")
                    for k, off in enumerate((0, 32, 16, 48)):
                        e(f"buffer_store_dword v{8+k}, {aOUT}, {srd(S_OUT)}, 0 offen offset:{off}")
            if L == 1:
                self.stamp("end")
                if o["amp"]:
                    e(f"s_waitcnt vmcnt(0)\ns_memrealtime s[96:97]\ns_waitcnt lgkmcnt(0)\ns_sub_u32 s94, s96, s98\ns_mul_i32 s94, s94, {o['amp']}\nL_spin:\ns_sleep 8\ns_memrealtime s[92:93]\ns_waitcnt lgkmcnt(0)\ns_sub_u32 s95, s92, s96\ns_cmp_lt_u32 s95, s94\ns_cbranch_scc1 L_spin")
                self.dump_stamps()
                e("s_endpgm")

    def roleB(self):
        e, o = self.e, self.o
        NT = lambda b: ' nt' if o['nt'] >> b & 1 else ''
        CS_, CP, FG, FD = 32, 96, 160, 192
        (aS1LD, aQAW, aQAR, aMX, aLR, aPW, aPR, aS2ST, aLSEST, aCAN, aCANR, aS3LD, aXPW, aXPR, aRBW, aRBR, aSTW, aSTR, aHW, aHR, aS45,
         vCG, vCU, Q0, Q1, P45, aTCH) = ["v%d" % (224 + k) for k in range(27)]
        PC = ["v251", "v252", "v253", "v254"]
        sB_, sHG, sSP, sF = "s68", "s69", "s76", "s77"
        vr, vq = "v14", "v15"
        for b, slot in ((S_WUK, 3), (S_CKV, 1)):
            e(f"s_load_dwordx2 s[{b}:{b+1}], s[0:1], {slot*8}")
        e(f"v_lshrrev_b32 v6, 6, v0\nv_and_b32 {vL}, 63, v0\ns_and_b32 {sJ}, s2, 7\nv_readfirstlane_b32 {sW}, v6\ns_sub_u32 {sI}, {sI}, 16")
        e(f"v_lshrrev_b32 v6, 3, v0\nv_lshlrev_b32 v6, 13, v6\nv_and_b32 v8, 7, v0\nv_lshl_add_u32 v8, v8, 7, v6\ns_lshl_b32 {sE}, {sI}, 8\ns_add_u32 {sE}, {sE}, {sJ}\ns_lshl_b32 {sE}, {sE}, 10")
        self.fin_srd(S_WUK, 4 << 20)
        self.fin_srd(S_CKV, 8 << 20)
        e(f"s_lshr_b32 {sB_}, {sJ}, 2\ns_and_b32 {sHG}, {sI}, 1\ns_and_b32 {sA}, {sJ}, 3\ns_lshl_b32 {sA}, {sA}, 3\ns_lshr_b32 {sSP}, {sI}, 1\ns_add_u32 {sSP}, {sSP}, {sA}")
        e(f"v_lshlrev_b32 v7, 4, {vL}\ns_lshl_b32 {sA}, {sB_}, 22\ns_lshl_b32 {sB}, {sSP}, 17\ns_add_u32 {sA}, {sA}, {sB}\ns_and_b32 s74, {sW}, 3\ns_lshl_b32 {sB}, s74, 14\ns_add_u32 {sA}, {sA}, {sB}\nv_add_u32 v31, {sA}, v7")
        e(f"s_mul_i32 s74, s74, {16*1056}\ns_lshl_b32 s75, {sHG}, 12")
        e(f"s_sub_u32 {sF}, s2, 128\ns_getreg_b32 {sXCC}, hwreg(HW_REG_XCC_ID)\ns_and_b32 {sXCC}, {sXCC}, 15")
        self.calib(sF)
        e("s_waitcnt lgkmcnt(0)")
        self.stamp('karg')
        l, l2 = self.lab("nv"), self.lab("nw")
        e(f"s_cmp_eq_u32 {sW}, 7\ns_cbranch_scc1 {l}")
        self.calib_run()
        e(f"v_mov_b32 v6, {sC}\ns_lshl_b32 {sA}, {sW}, 2\ns_add_u32 {sA}, {sA}, {B_DUM}\nv_mov_b32 v9, {sA}\nds_write_b32 v9, v6\ns_waitcnt lgkmcnt(0)\ns_barrier")
        if o["bdelay"]:
            e(f"s_sleep {o['bdelay']}")
        if o["bhelp"]:
            lh = self.lab("nh")
            e(f"s_cmp_ge_u32 {sW}, {o['bhelp']}\ns_cbranch_scc1 {lh}\nbuffer_load_dword v255, v8, {srd(S_WUK)}, {sE} offen\n{lh}:")
        self.epoch_load()
        self.fin_srd(S_WS, 0x10000000)
        e(f"s_branch {l2}\n{l}:")
        self.epoch_load()
        e(f"s_getpc_b64 s[72:73]\nL_pc:\ns_sub_u32 s72, s72, L_pc-{NAME}_kernel\ns_subb_u32 s73, s73, 0\ns_lshl_b32 {sA}, {sI}, 11")
        e(f"v_lshlrev_b32 v6, 5, {vL}\nv_add_u32 v6, {sA}, v6\nv_min_u32 v6, L_code_end-{NAME}_kernel-4, v6\nglobal_load_dword v255, v6, s[72:73]")
        self.fin_srd(S_WS, 0x10000000)
        e(f"v_mov_b32 v6, {B_DUM}\ns_lshr_b32 {sA}, {sXCC}, 2\ns_lshl_b32 {sB}, {sF}, 2\ns_waitcnt lgkmcnt(0)")
        self.tags()
        e(f"s_barrier\nds_read_b128 v[8:11], v6\nds_read_b128 v[12:15], v6 offset:16\nv_mov_b32 v6, {VOTES}\ns_waitcnt lgkmcnt(0)")
        e(f"v_min3_u32 v8, v8, v10, v12\nv_min3_u32 v9, v9, v11, v13\nv_min_u32 v8, v8, v14\nv_cmp_lt_u32 vcc, v9, v8\nv_cndmask_b32 v8, 0, 1, vcc\nv_xor_b32 v8, {sA}, v8\nv_lshlrev_b32 v8, 31, v8\nv_xor_b32 v8, {vT}, v8")
        e(f"s_mov_b64 exec, 1\nbuffer_store_dword v8, v6, {srd(S_WS)}, {sB} offen sc1\ns_mov_b64 exec, -1\ns_sub_u32 {sT}, {sT}, 1\n{l2}:")
        for b, slot in ((S_WO, 5), (S_WG, 7), (S_WU, 8), (S_WD, 9)):
            e(f"s_load_dwordx2 s[{b}:{b+1}], s[0:1], {slot*8}")

        def ckv(qs):
            for q in qs:
                for hi in range(2):
                    e(f"s_xor_b32 {sA}, s75, {((q & 3) + 8*((q >> 2) & 1) + 4*(q >> 3) + 64*hi)*1024}\ns_add_u32 m0, s74, {B_CKV + (q + 64*hi)*1056}\nbuffer_load_dwordx4 v31, {srd(S_CKV)}, {sA} offen lds")
        lh1 = self.lab("h1")
        e(f"s_cmp_ge_u32 {sW}, 4\ns_cbranch_scc1 {lh1}")
        if o["bdelay2"]:
            e(f"s_sleep {o['bdelay2']}")
        self.stamp("ckv0")
        ckv(range(8))
        self.stamp("ckv8")
        e(f"s_barrier\n{lh1}:")
        self.consts()
        e(f"v_and_b32 {vC}, 15, v0\nv_bfe_u32 {vG}, v0, 4, 2\nv_mov_b32 v13, {OOB}\nv_mov_b32 v12, {B_DUM}\nv_bfe_u32 {vr}, {vL}, 2, 2\nv_and_b32 {vq}, 3, {vL}")
        for b, sz in ((S_WO, 4 << 20), (S_WG, 1409024), (S_WU, 1409024), (S_WD, 1409024)):
            self.fin_srd(b, sz)
        e(f"s_lshl_b32 {sA}, {sB_}, 16\ns_lshl_b32 {sB}, {sHG}, 15\ns_add_u32 {sA}, {sA}, {sB}\ns_and_b32 {sB}, {sW}, 4\ns_add_u32 {sB}, {sB}, {sW}\ns_lshl_b32 {sB}, {sB}, 11\ns_add_u32 {sA}, {sA}, {sB}\nv_add_u32 {aS1LD}, {sA}, v7")
        e(f"s_mul_i32 {sA}, {sW}, 2112\ns_add_u32 {sA}, {sA}, {B_QA}\nv_add_u32 {aQAW}, {sA}, v7")
        e(f"v_lshlrev_b32 v11, 4, {vG}\nv_mul_u32_u24 v6, 1056, {vC}\nv_add_u32 v6, v6, v11\nv_add_u32 {aQAR}, {B_QA}, v6")
        e(f"s_mul_i32 {sA}, {sW}, {16*1056}\nv_add_u32 v30, {sA}, v6")
        e(f"v_lshlrev_b32 v6, 5, {vC}\nv_add_u32 {aMX}, {B_MX}, v6\ns_lshl_b32 {sA}, {sW}, 6\ns_add_u32 {sA}, {sA}, {B_LI}\nv_add_u32 {aLR}, {sA}, v11")
        if o["pv2"]:
            e(f"v_mov_b32 {aLR}, v11")
        e(f"v_mul_u32_u24 v6, 288, {vC}\nv_add_u32 v6, v6, v11\nv_add_u32 {aPR}, {B_P}, v6")
        e(f"s_lshr_b32 {sA}, {sW}, 1\ns_lshl_b32 {sA}, {sA}, 6\ns_and_b32 {sB}, {sW}, 1\ns_lshl_b32 {sC}, {sB}, 3\ns_add_u32 {sA}, {sA}, {sC}\nv_add_u32 {aPW}, {sA}, {aPR}")
        e(f"s_lshr_b32 {sC}, {sW}, 1\ns_lshl_b32 {sA}, {sC}, 15\ns_lshl_b32 {sC}, {sB_}, 14\ns_add_u32 {sA}, {sA}, {sC}")
        e(f"s_lshl_b32 {sC}, {sSP}, 8\ns_add_u32 {sA}, {sA}, {sC}\ns_lshl_b32 {sC}, {sB}, 7\ns_add_u32 {sA}, {sA}, {sC}")
        e(f"v_lshlrev_b32 v6, 19, {vG}\nv_lshl_add_u32 v6, {vC}, 3, v6\nv_add_u32 {aS2ST}, {sA}, v6")
        e(f"s_lshl_b32 {sA}, {sB_}, 2\ns_add_u32 {sA}, {sA}, {sHG}\ns_lshl_b32 {sA}, {sA}, 5\ns_add_u32 {sA}, {sA}, {sSP}\ns_lshl_b32 {sA}, {sA}, 7\nv_lshlrev_b32 v6, 3, {vC}\nv_lshl_add_u32 v6, {vG}, 13, v6\nv_add_u32 {aLSEST}, {sA}, v6")
        self.can_addr(aCAN, aCANR, sI)
        e(f"s_lshl_b32 {sA}, {sW}, 8\nv_lshlrev_b32 v6, 11, {vG}\nv_lshl_add_u32 v6, {vC}, 4, v6\nv_add_u32 {aS3LD}, {sA}, v6")
        e(f"v_bfe_u32 v10, {vC}, 2, 1\ns_add_u32 {sB}, {sA}, {B_XP}\nv_lshlrev_b32 v6, 7, v10\nv_add_u32 v6, {sB}, v6\nv_add_u32 v9, v6, v11")
        e(f"v_lshrrev_b32 v8, 3, {vC}\nv_lshl_add_u32 v6, v8, 6, v6\nv_lshl_add_u32 v6, {vq}, 4, v6\nv_lshl_add_u32 {aXPW}, {vG}, 2, v6")
        if o["smf"] & 8:
            e(f"v_lshlrev_b32 v6, 7, v10\nv_add_u32 v6, {sB}, v6\nv_and_b32 v9, 1, {vC}\nv_lshl_add_u32 v9, v9, 6, v11\nv_add_u32 v9, v9, v6")
            e(f"v_and_b32 v16, 1, {vG}\nv_lshl_add_u32 v6, v16, 6, v6\nv_lshl_add_u32 v6, v8, 5, v6\nv_lshrrev_b32 v16, 1, {vq}\nv_lshl_add_u32 v6, v16, 4, v6\nv_and_b32 v16, 1, {vq}\nv_lshl_add_u32 v6, v16, 3, v6\nv_lshrrev_b32 v16, 1, {vG}\nv_lshl_add_u32 {aXPW}, v16, 2, v6")
            e(f"v_mov_b32 v6, {B_ONES}\nv_lshrrev_b32 v16, 1, {vC}")
            self.sel(aXPR, "v_cmp_eq_u32 vcc, 4, v16", "v9", "v6")
        else:
            e(f"v_mov_b32 v6, {B_ONES}")
            self.sel(aXPR, f"v_cmp_eq_u32 vcc, 8, {vC}", "v9", "v6")
        e(f"s_mul_i32 {sB}, {sW}, 768\ns_add_u32 {sB}, {sB}, {B_RB}\nv_add_u32 v6, {sB}, v7\nv_lshlrev_b32 v9, 2, {vL}")
        self.sel(aRBW, f"v_cmp_gt_u32 vcc, 48, {vL}", "v12", "v6")
        e(f"v_and_b32 v8, 1, {vG}\nv_lshlrev_b32 v8, 3, v8\nv_lshl_add_u32 v8, {vC}, 4, v8\nv_lshrrev_b32 v6, 5, {vL}\nv_lshl_add_u32 v8, v6, 8, v8\nv_add_u32 {aRBR}, {B_RB}, v8")
        e(f"v_lshlrev_b32 v6, 6, v6\nv_add_u32 {aSTR}, {B_ST}, v6")
        e(f"v_lshrrev_b32 v6, 3, {vL}\nv_lshlrev_b32 v6, 5, v6\ns_lshl_b32 {sB}, {sW}, 2\ns_add_u32 {sB}, {sB}, {B_ST}\nv_add_u32 v6, {sB}, v6\ns_mov_b32 vcc_lo, 0x01100101\ns_mov_b32 vcc_hi, 0\nv_cndmask_b32 {aSTW}, v12, v6, vcc")
        if o["smf"] & 8:
            e(f"v_lshlrev_b32 v6, 4, {vL}\nv_add_u32 v6, {sB}, v6\ns_mov_b32 vcc_lo, 0x11\nv_cndmask_b32 {aSTW}, v12, v6, vcc")
            e(f"v_and_b32 v6, 1, {vC}\nv_mul_u32_u24 {aTCH}, 0xaaaa, v6\nv_add_u32 {aTCH}, 0x4444, {aTCH}")
        e(f"s_lshl_b32 {sB}, {sW}, 7\ns_add_u32 {sB}, {sB}, {B_H}\nv_lshlrev_b32 v6, 1, {vL}\nv_add_u32 {aHW}, {sB}, v6")
        e(f"v_lshl_add_u32 v6, v10, 6, v11\nv_add_u32 {aHR}, {sB}, v6")
        e(f"s_and_b32 {sB}, {sF}, 60\ns_add_u32 {sB}, {sB}, {sF}\ns_lshl_b32 {sB}, {sB}, 11\ns_lshl_b32 {sA}, {sW}, 9\ns_add_u32 {sB}, {sB}, {sA}\nv_add_u32 {aS45}, {sB}, v9")
        e(f"v_mov_b32 v8, 0x3f803f80\nv_and_b32 v6, 31, {vL}\nv_lshlrev_b32 v6, 2, v6\nv_add_u32 v6, {B_ONES}, v6\nds_write_b32 v6, v8")
        e(f"v_lshrrev_b32 v6, 2, {vL}\nv_mul_u32_u24 v6, 1056, v6\nv_lshl_add_u32 v6, {vq}, 3, v6\ns_lshl_b32 {sA}, {sW}, 7\nv_add_u32 v28, {sA}, v6\nv_add_u32 v29, {64*1056}, v28")
        e("s_waitcnt lgkmcnt(0)")
        self.stamp("E")
        self.tags()
        self.cons_pats(PC)
        e(f"v_and_b32 v6, 7, {vC}\nv_lshlrev_b32 v6, 2, v6\nv_lshrrev_b32 v6, v6, {vT}")
        self.pat(Q0, "v6", 0)
        self.pat(Q1, "v6", 2)
        e(f"v_lshlrev_b32 v6, 1, {vC}\nv_lshrrev_b32 v6, v6, {vT}")
        self.pat(P45, "v6", 0)
        lh2 = self.lab("h2")
        e(f"s_cmp_lt_u32 {sW}, 4\ns_cbranch_scc1 {lh2}\ns_barrier")
        ckv(range(8, 16))
        e(f"{lh2}:")
        for k, a in enumerate((PRET,) + PRET2):
            e(f"v_mov_b32 v{16+k}, {a}\nbuffer_load_dword v{16+k}, v{16+k}, {srd(S_WS)}, 0 offen")
        self.place_load(20)
        e(f"s_mul_i32 s74, {sW}, 2112\ns_add_u32 s74, s74, {B_QA}")
        if o["prio"] & 1:
            l = self.lab("pr")
            e(f"s_cmp_lt_u32 {sW}, 4\ns_cbranch_scc1 {l}\ns_setprio 1\n{l}:")
        self.stamp('ckviss')
        for L in range(2):
            X = "'" * L
            l = self.lab("s1")
            if L == 0:
                e(f"s_lshl_b32 {sE}, {sJ}, 4\ns_add_u32 {sE}, {sE}, {sI}\ns_lshl_b32 {sE}, {sE}, 15")

            def apply_place():
                e(f"s_lshr_b32 {sA}, {sWW}, 3\ns_lshr_b32 {sB}, {sXCC}, 2\ns_xor_b32 {sA}, {sA}, {sB}\ns_and_b32 {sA}, {sA}, 1\ns_lshl_b32 {sSIDE}, {sA}, 13")
                e(f"v_add_u32 {aS1LD}, {sSIDE}, {aS1LD}\nv_add_u32 {aS3LD}, {sSIDE}, {aS3LD}\nv_add_u32 {aCANR}, {sSIDE}, {aCANR}")
                e(f"s_lshl_b32 {sA}, {sHG}, 2\ns_add_u32 {sA}, {sA}, {sWW}\nv_add_u32 v6, {sA}, {vG}\nv_lshlrev_b32 v6, 1, v6\nv_xor_b32 v6, {sWW}, v6\nv_and_b32 v6, 8, v6\nv_lshl_add_u32 {aS2ST}, v6, 10, {aS2ST}")

            def place():
                lq = self.lab("pq")
                lt, lu = self.lab("pt"), self.lab("pu")
                e(f"s_cmp_lt_u32 {sW}, 4\ns_cselect_b32 {sC}, {o['wtries']}, 0\n{lu}:\ns_waitcnt vmcnt(0)")
                e(f"v_readfirstlane_b32 {sPLAIN}, v20\nv_readfirstlane_b32 {sWW}, v21\ns_cmp_lg_u32 {sPLAIN}, {sT}\ns_cbranch_scc1 {lt}")
                apply_place()
                e(f"{lq}:")

                def again():
                    e(f"{lt}:\ns_sub_u32 {sC}, {sC}, 1\ns_cbranch_scc1 {lq}\ns_sleep 2")
                    self.place_load(20)
                    e(f"s_branch {lu}")
                self.oob(again)
            self.canary_wait(L, aCANR, o["d_s1" if L == 0 else "e_s1"], pre=place if L == 0 else None, wsel=7 if L == 0 else 0, both=(L == 0 and o['both']))
            self.stamp("S1can" + X)
            e(f"s_mov_b32 {sA}, {S1R(L)}")
            ld = f"buffer_load_dwordx4 v[8:11], {aS1LD}, {srd(S_WS)}, {sA} offen sc1\nbuffer_load_dwordx4 v[12:15], {aS1LD}, {srd(S_WS)}, {sA} offen offset:1024 sc1"
            if o["dma1"]:
                ld = f"s_mov_b32 m0, s74\nbuffer_load_dwordx4 {aS1LD}, {srd(S_WS)}, {sA} offen sc1 lds\ns_add_u32 m0, s74, 32\nbuffer_load_dwordx4 {aS1LD}, {srd(S_WS)}, {sA} offen offset:1024 sc1 lds"
            if L == 0:
                e(ld)
                for u in range(16):
                    e(f"ds_read_b128 {R(CS_+4*u,4)}, v30 offset:{B_CKV+u*64}")
                if o["early"] == 1:
                    lx = self.lab("wx")
                    e(f"s_cmp_ge_u32 {sW}, 4\ns_cbranch_scc1 {lx}\nv_lshlrev_b32 v6, 7, v0\nbuffer_load_dword v255, v6, {srd(S_WO)}, {sE} offen\n{lx}:")
                if o["early"] == 2:
                    self.ffn_touch(sI, "v255")
                    e(f"s_mov_b32 {sA}, {S1R(L)}")
                for u in range(4):
                    for t in range(4):
                        base, off = ("v28", u * 32 * 1056) if u < 2 else ("v29", (u - 2) * 32 * 1056)
                        e(f"ds_read_b64_tr_b16 {R(CP+16*u+4*t,2)}, {base} offset:{off+32*t}\nds_read_b64_tr_b16 {R(CP+16*u+4*t+2,2)}, {base} offset:{off+32*t+16*1056}")
                l2 = self.lab("in")
                e(f"{l2}:")

                def stub():
                    e(f"{l}:")
                    self.guard()
                    e(f"s_sleep {o['backoff']}\n{ld}\ns_waitcnt vmcnt(0)\ns_branch {l2}")
                self.oob(stub)
            else:
                self.retry_head(l)
                e(ld)
            if L == 0 and o["early"]:
                lz = self.lab("wz")
                e(f"s_cmp_ge_u32 {sW}, 4\ns_cbranch_scc1 {lz}\ns_waitcnt vmcnt(1)\ns_branch {lz}_\n{lz}:\ns_waitcnt vmcnt(0)\n{lz}_:")
            else:
                e("s_waitcnt vmcnt(0)")
            if o["dma1"]:
                e(f"ds_read_b128 v[8:11], {aQAW}\nds_read_b128 v[12:15], {aQAW} offset:1056\ns_waitcnt lgkmcnt(0)")
            self.xcheck(list(range(8, 16)), PC, sM, "v6", mid=f"ds_write_b128 {aQAW}, v[8:11]\nds_write_b128 {aQAW}, v[12:15] offset:1056")
            e(f"s_cbranch_vccnz {l}")
            self.stamp('S1got' + X)
            self.bar()
            for u in range(4):
                e(f"ds_read_b128 {R(8+4*u,4)}, {aQAR} offset:{u*64}")
            for u in range(16):
                e(f"s_waitcnt lgkmcnt({min(3, 15-u)})")
                self.mfma(24, CS_ + 4 * u, 8 + 4 * (u & 3), None if u == 0 else 24)
                if u + 4 < 16:
                    e(f"ds_read_b128 {R(8+4*(u&3),4)}, {aQAR} offset:{(u+4)*64}")
            if o["pv2"]:
                e(f"v_mul_u32_u24 v28, 144, {vC}\ns_lshl_b32 {sA}, {sW}, 4\nv_add_u32 v28, {B_LS}, v28\nv_lshl_add_u32 v29, {vG}, 5, v28\nv_lshl_add_u32 v28, {vG}, 2, v28\nv_add_u32 v28, {sA}, v28")
            e(f"s_lshl_b32 {sA}, {sW}, 2\nv_add_u32 v7, {sA}, {aMX}\nv_max3_f32 v8, v24, v25, v26\nv_max_f32 v8, v8, v27")
            self.allred(["v8"], "v_max_f32", ["v9"], [16, 32])
            e(f"ds_write_b32 v7, v8")
            self.bar()
            self.stamp('Y2' + X)
            if L == 0 and o["wohelp"] == 2:
                if o["early"] == 2:
                    lx = self.lab("fy")
                    e(f"s_add_u32 {sE}, {sI}, 10\ns_cmp_lt_u32 {sE}, 16\ns_cbranch_scc1 {lx}\ns_cmp_ge_u32 {sE}, 24\ns_cbranch_scc1 {lx}")
                    self.ffn_touch(sE, "v255")
                    e(f"{lx}:")
                else:
                    self.ffn_touch(sI, vCG)
            if L == 0:
                l1, l2 = self.lab("lp"), self.lab("lq")
                e(f"s_cmp_lg_u32 {sPLAIN}, {sT}\ns_cbranch_scc1 {l1}\n{l2}:")

                def late():
                    e(f"{l1}:")
                    self.guard()
                    self.place_load(20)
                    e(f"s_waitcnt vmcnt(0)\nv_readfirstlane_b32 {sPLAIN}, v20\nv_readfirstlane_b32 {sWW}, v21\ns_cmp_lg_u32 {sPLAIN}, {sT}\ns_cbranch_scc1 {l1}")
                    apply_place()
                    e(f"s_branch {l2}")
                self.oob(late)
            self.canary_set(2 + L, aCAN, o['lead_s2'] == 2)
            e(f"ds_read_b128 v[8:11], {aMX}\nds_read_b128 v[12:15], {aMX} offset:16\ns_waitcnt lgkmcnt(1)")
            e("v_max3_f32 v8, v8, v9, v10\ns_waitcnt lgkmcnt(0)\nv_max3_f32 v12, v12, v13, v14\nv_max3_f32 v8, v8, v11, v15\nv_max_f32 v5, v8, v12")
            for r in range(4):
                e(f"v_sub_f32 v{24+r}, v{24+r}, v5")
            for r in range(4):
                e(f"v_exp_f32 v{24+r}, v{24+r}")
            e("v_cvt_pk_bf16_f32 v8, v24, v25\nv_cvt_pk_bf16_f32 v9, v26, v27\nv_add_f32 v10, v24, v25\nv_add_f32 v11, v26, v27")
            e(f"ds_write_b64 {aPW}, v[8:9]\nv_add_f32 v10, v10, v11")
            if o["pv2"]:
                e("ds_write_b32 v28, v10")
                self.bar()
                self.stamp('Y3' + X)
                self.canary_set(2 + L, aCAN, o['lead_s2'] == 1)
                IV = ["v5", "v6", "v7", "v255"]
                rdP = lambda u: e(f"ds_read_b128 {R(8+4*(u&1),4)}, {aPR} offset:{(u&3)*64}")
                mm = lambda u, t0: [self.mfma(16 + 4 * t, 8 + 4 * (u & 1), CP + 16 * (u & 3) + 4 * t, None if u & 3 == 0 else 16 + 4 * t) for t in (t0, t0 + 1)]
                rdP(0)
                e("ds_read_b128 v[24:27], v29\nds_read_b128 v[28:31], v29 offset:16")
                rdP(1)
                e("s_waitcnt lgkmcnt(3)")
                mm(0, 0)
                rdP(2)
                e("s_waitcnt lgkmcnt(1)\nv_add_f32 v24, v24, v25\nv_add_f32 v26, v26, v27\nv_add_f32 v28, v28, v29\nv_add_f32 v30, v30, v31")
                mm(1, 0)
                rdP(3)
                e("v_add_f32 v24, v24, v26\nv_add_f32 v28, v28, v30\nv_add_f32 v24, v24, v28\nv_mov_b32 v25, v24\ns_waitcnt lgkmcnt(1)")
                mm(2, 0)
                rdP(4)
                e("v_permlane16_swap_b32 v24, v25\nv_add_f32 v24, v24, v25\nv_mov_b32 v25, v24\ns_waitcnt lgkmcnt(1)")
                mm(3, 0)
                rdP(5)
                e("v_permlane32_swap_b32 v24, v25\nv_add_f32 v6, v24, v25\nv_rcp_f32 v255, v6")
                l = self.lab("k")
                e(f"s_cmp_lg_u32 {sW}, 0\ns_cbranch_scc1 {l}\nv_log_f32 v6, v6\nv_mov_b32 v7, {vT}\ns_mov_b32 {sA}, {LSE(L)}\nv_add_f32 v6, v6, v5\ns_mov_b32 exec_hi, 0")
                e(f"buffer_store_dwordx2 v[6:7], {aLSEST}, {srd(S_WS)}, {sA} offen sc1\ns_mov_b64 exec, -1\n{l}:")
                e("s_waitcnt lgkmcnt(1)")
                mm(4, 2)
                for r in range(4):
                    e(f"ds_bpermute_b32 {IV[r]}, {aLR}, v255 offset:{4*r}")
                rdP(6)
                e("s_waitcnt lgkmcnt(5)")
                mm(5, 2)
                rdP(7)
                e("s_waitcnt lgkmcnt(1)")
                for r in range(4):
                    e(f"v_mul_f32 v{16+r}, v{16+r}, {IV[r]}\nv_mul_f32 v{20+r}, v{20+r}, {IV[r]}")
                mm(6, 2)
                self.pack_ovw("v16", "v16", "v20", Q0)
                self.pack_ovw("v20", "v18", "v22", Q0)
                e("s_waitcnt lgkmcnt(0)")
                mm(7, 2)
                self.pack_ovw("v18", "v17", "v21", Q0)
                self.pack_ovw("v22", "v19", "v23", Q0)
                for r in range(4):
                    e(f"s_mov_b32 {sA}, {S2R(L) + r*131072}\nv_mul_f32 v{24+r}, v{24+r}, {IV[r]}\nv_mul_f32 v{28+r}, v{28+r}, {IV[r]}")
                    self.pack_ovw(f"v{17+2*r}", f"v{24+r}", f"v{28+r}", Q1)
                    e(f"buffer_store_dwordx2 {R(16+2*r,2)}, {aS2ST}, {srd(S_WS)}, {sA} offen sc1")
            else:
                self.allred(["v10"], "v_add_f32", ["v11"], [16, 32])
                e(f"ds_write_b32 v7, v10 offset:512")
                self.bar()
                self.stamp('Y3' + X)
                self.canary_set(2 + L, aCAN, o['lead_s2'] == 1)
                e(f"ds_read_b128 v[24:27], {aMX} offset:512\nds_read_b128 v[28:31], {aMX} offset:528\nds_read_b128 v[8:11], {aPR}\nds_read_b128 v[12:15], {aPR} offset:64")
                e(f"v_lshlrev_b32 v7, 2, {vC}\ns_lshl_b32 {sA}, {sW}, 6\ns_add_u32 {sA}, {sA}, {B_LI}\nv_add_u32 v7, {sA}, v7\ns_waitcnt lgkmcnt(1)")
                D = [16, 20, 24, 28]
                self.mfma(D[0], 8, CP)
                self.mfma(D[1], 8, CP + 4)
                e("v_add_f32 v24, v24, v25\nv_add_f32 v26, v26, v27\nv_add_f32 v28, v28, v29\nv_add_f32 v30, v30, v31\nv_add_f32 v24, v24, v26\nv_add_f32 v28, v28, v30\nv_add_f32 v6, v24, v28")
                self.mfma(D[2], 8, CP + 8)
                self.mfma(D[3], 8, CP + 12)
                e(f"ds_read_b128 v[8:11], {aPR} offset:128\ns_waitcnt lgkmcnt(1)")
                for t in range(4):
                    self.mfma(D[t], 12, CP + 16 + 4 * t, D[t])
                e(f"ds_read_b128 v[12:15], {aPR} offset:192\nds_write_b32 v7, v6")
                l = self.lab("k")
                e(f"s_cmp_lg_u32 {sW}, 0\ns_cbranch_scc1 {l}\nv_log_f32 v6, v6\nv_mov_b32 v7, {vT}\ns_mov_b32 {sA}, {LSE(L)}\nv_add_f32 v6, v6, v5\ns_mov_b32 exec_hi, 0")
                e(f"buffer_store_dwordx2 v[6:7], {aLSEST}, {srd(S_WS)}, {sA} offen sc1\ns_mov_b64 exec, -1\n{l}:")
                e("s_waitcnt lgkmcnt(2)")
                for t in range(4):
                    self.mfma(D[t], 8, CP + 32 + 4 * t, D[t])
                e(f"ds_read_b128 v[8:11], {aLR}\ns_waitcnt lgkmcnt(2)")
                for t in range(4):
                    self.mfma(D[t], 12, CP + 48 + 4 * t, D[t])
                self.canary_set(2 + L, aCAN, o['lead_s2'] == 3)
                e("s_waitcnt lgkmcnt(0)")
                for r in range(4):
                    e(f"v_rcp_f32 v{8+r}, v{8+r}")
                for r in range(4):
                    e(f"s_mov_b32 {sA}, {S2R(L) + r*131072}")
                    for t in range(4):
                        e(f"v_mul_f32 v{D[t]+r}, v{D[t]+r}, v{8+r}")
                    self.pack_ovw(f"v{12+2*(r&1)}", f"v{D[0]+r}", f"v{D[1]+r}", Q0)
                    self.pack_ovw(f"v{13+2*(r&1)}", f"v{D[2]+r}", f"v{D[3]+r}", Q1)
                    e(f"buffer_store_dwordx2 {R(12+2*(r&1),2)}, {aS2ST}, {srd(S_WS)}, {sA} offen sc1")
            self.canary_set(2 + L, aCAN, o['lead_s2'] == 0)
            self.stamp('S2pub' + X)
            lnf = self.lab("nf")
            if L == 0:
                e("s_barrier")
                if o["fhelp"] and o["early"] != 2:
                    lx = self.lab("fy")
                    e(f"s_add_u32 {sE}, {sI}, 10\ns_cmp_lt_u32 {sE}, 16\ns_cbranch_scc1 {lx}\ns_cmp_ge_u32 {sE}, 24\ns_cbranch_scc1 {lx}")
                    self.ffn_touch(sE, "v255")
                    e(f"{lx}:")
            if L == 0 and o["retouch"]:
                lx = self.lab("rt")
                e(f"s_cmp_lg_u32 {sW}, 7\ns_cbranch_scc1 {lx}\ns_getpc_b64 s[72:73]\nL_pc2:\ns_sub_u32 s72, s72, L_pc2-{NAME}_kernel\ns_subb_u32 s73, s73, 0\ns_lshl_b32 {sA}, {sI}, 11")
                e(f"v_lshlrev_b32 v6, 5, {vL}\nv_add_u32 v6, {sA}, v6\nv_min_u32 v6, L_code_end-{NAME}_kernel-4, v6\nglobal_load_dword v255, v6, s[72:73] sc1\n{lx}:")
            e(f"s_cmp_ge_u32 {sF}, 43\ns_cbranch_scc1 {lnf}")
            if L == 0:
                e(f"v_lshrrev_b32 v6, 2, {vL}\ns_lshl_b32 {sA}, {sW}, 6\nv_add_u32 v6, {sA}, v6\nv_mul_u32_u24 v6, 2752, v6\nv_and_b32 v15, 3, {vL}\nv_lshl_add_u32 v6, v15, 4, v6\ns_lshl_b32 {sA}, {sF}, 6\nv_add_u32 v6, {sA}, v6")
                e(f"s_lshl_b32 {sC}, {sW}, 12")
                for sr, base in ((S_WG, B_FG), (S_WU, B_FU)):
                    for q in range(4):
                        e(f"s_mov_b32 {sA}, {q*16*2752}\ns_add_u32 m0, {sC}, {base + q*1024}\nbuffer_load_dwordx4 v6, {srd(sr)}, {sA} offen{NT(4)} lds")
                    e("s_barrier")
                e(f"v_lshrrev_b32 v6, 3, {vL}\nv_lshlrev_b32 v6, 10, v6\nv_and_b32 v7, 7, {vL}\nv_lshl_add_u32 v6, v7, 4, v6\ns_lshl_b32 {sA}, {sF}, 15\ns_lshl_b32 {sB}, {sW}, 7\ns_add_u32 {sA}, {sA}, {sB}\nv_add_u32 v6, {sA}, v6")
                for q in range(4):
                    e(f"s_mov_b32 {sA}, {q*8192}\ns_add_u32 m0, {sC}, {B_FD + q*1024}\nbuffer_load_dwordx4 v6, {srd(S_WD)}, {sA} offen{NT(4)} lds")
                e(f"v_bfe_u32 v14, {vL}, 2, 2\nv_and_b32 v6, 1, v14\nv_lshlrev_b32 v6, 4, v6\nv_lshl_add_u32 v6, {vG}, 2, v6\nv_lshrrev_b32 v7, 1, v14\nv_add_u32 v6, v6, v7\nv_lshlrev_b32 v6, 6, v6\nv_lshl_add_u32 v6, v15, 3, v6\nv_add_u32 v6, {sC}, v6")
                e(f"v_lshl_add_u32 v7, {vG}, 3, v14\nv_lshlrev_b32 v7, 7, v7\nv_lshl_add_u32 v7, v15, 3, v7\ns_and_b32 {sA}, {sW}, 3\ns_lshl_b32 {sA}, {sA}, 13\ns_add_u32 {sA}, {sA}, {B_FD}\nv_add_u32 v7, {sA}, v7")
                e("s_waitcnt vmcnt(4)")
                for mi, base in enumerate((B_FG, B_FU)):
                    for tt in range(2):
                        for u in range(2):
                            rg = FG + 8 * (2 * tt + mi) + 4 * u
                            off = base + u * 2048 + 32 * tt
                            e(f"ds_read_b64_tr_b16 {R(rg,2)}, v6 offset:{off}\nds_read_b64_tr_b16 {R(rg+2,2)}, v6 offset:{off+128}")
                e("s_waitcnt vmcnt(0)\ns_barrier")
                for tt in range(8):
                    off = (tt >> 2) * 4096 + 32 * (tt & 3)
                    e(f"ds_read_b64_tr_b16 {R(FD+4*tt,2)}, v7 offset:{off}\nds_read_b64_tr_b16 {R(FD+4*tt+2,2)}, v7 offset:{off+512}")
                e("s_waitcnt lgkmcnt(0)")
                self.stamp('ffnW')
            self.canary_wait(4 + L, aCANR, o["d_s3" if L == 0 else "e_s3"])
            self.stamp('S3can' + X)
            l = self.lab("s3")
            e(f"s_mov_b32 {sA}, {S3R(L)}\ns_mov_b32 {sB}, {S3R(L)+16384}\ns_mov_b32 {sC}, 0xfffe")
            self.retry_head(l)
            e(f"buffer_load_dwordx4 v[8:11], {aS3LD}, {srd(S_WS)}, {sA} offen sc1\nbuffer_load_dwordx4 v[12:15], {aS3LD}, {srd(S_WS)}, {sB} offen sc1\ns_waitcnt vmcnt(0)")
            self.check(list(range(8, 16)), PC, sM, "v6")
            e(f"s_cbranch_vccnz {l}")
            self.canary_set(6 + L, aCAN, o['lead_s45'] == 2)
            self.stamp('S3got' + X)
            for k in range(4):
                SD = "dst_sel:WORD_1 dst_unused:UNUSED_PAD src0_sel:WORD_0 src1_sel:WORD_0"
                e(f"v_and_b32_sdwa v{16+2*k}, {sC}, v{8+k} {SD}\nv_and_b32 v{17+2*k}, 0xfffe0000, v{8+k}\nv_and_b32_sdwa v{24+2*k}, {sC}, v{12+k} {SD}\nv_and_b32 v{25+2*k}, 0xfffe0000, v{12+k}")
            for k in range(8):
                e(f"v_add_f32 v{16+k}, v{16+k}, v{24+k}")
            for k in range(4):
                e(f"v_permlane32_swap_b32 v{16+k}, v{20+k}")
            for k in range(4):
                e(f"v_add_f32 v{16+k}, v{16+k}, v{20+k}")
            e("v_permlane16_swap_b32 v16, v18\nv_permlane16_swap_b32 v17, v19\nv_add_f32 v16, v16, v18\nv_add_f32 v17, v17, v19")
            e(f"v_cvt_pk_bf16_f32 v6, v16, v17\nds_write_b32 {aXPW}, v6")
            DD = [16, 20, 24, 28]
            if o["smf"] & 8:
                e(f"ds_read_b128 v[8:11], {aXPR}")
                e("v_lshlrev_b32 v12, 16, v6\nv_and_b32 v13, 0xffff0000, v6\nv_add_f32 v7, v12, v13\nv_mul_f32 v6, v12, v12\nv_fmac_f32 v6, v13, v13")
                for t in range(4):
                    e(f"v_mov_b32 v{DD[t]}, 0\nv_mov_b32 v{DD[t]+1}, 0")
                e("s_waitcnt lgkmcnt(0)")
                for t in range(4):
                    self.smf(DD[t], 8, FG + 8 * t, aTCH)
                self.allred(["v6", "v7"], "v_add_f32", ["v12", "v13"], [1, 2, 8, 16, 32])
                e(f"v_add_f32 v16, v16, v17\nv_add_f32 v17, v20, v21\nv_add_f32 v18, v24, v25\nv_add_f32 v19, v28, v29\nds_write_b128 {aRBW}, v[16:19]\nds_write_b32 {aSTW}, v6\nds_write_b32 {aSTW}, v7 offset:32")
            else:
                e(f"ds_read_b128 v[8:11], {aXPR}\nds_read_b128 v[12:15], {aXPR} offset:64\ns_waitcnt lgkmcnt(1)")
                for t in range(4):
                    self.mfma(DD[t], 8, FG + 8 * t)
                e("s_waitcnt lgkmcnt(0)")
                for t in range(4):
                    self.mfma(DD[t], 12, FG + 8 * t + 4, DD[t])
                e("v_mfma_f32_16x16x32_bf16 v[8:11], v[8:11], v[8:11], 0")
                e("v_mfma_f32_16x16x32_bf16 v[8:11], v[12:15], v[12:15], v[8:11]")
                e(f"v_mov_b32 v17, v20\nv_mov_b32 v18, v24\nv_mov_b32 v19, v28\nds_write_b128 {aRBW}, v[16:19]\nds_write_b32 {aSTW}, v8")
            self.bar()
            self.stamp('Z1' + X)
            self.canary_set(6 + L, aCAN, o['lead_s45'] == 1)
            e(f"s_cmp_ge_u32 {sW}, 4\ns_cbranch_scc1 {lnf}")
            if L == 0:
                e(f"v_lshrrev_b32 v6, 5, {vL}\nv_lshlrev_b32 v6, 8, v6\nv_sub_u32 v6, {aRBR}, v6")
                for k in range(8):
                    e(f"ds_read_b64 {R(8+2*k,2)}, v6 offset:{768*k+512}")
                e(f"s_waitcnt lgkmcnt(0)\nv_add_f32 {vCG}, v8, v10\nv_add_f32 {vCU}, v9, v11")
                for k in range(2, 8):
                    e(f"v_add_f32 {vCG}, {vCG}, v{8+2*k}\nv_add_f32 {vCU}, {vCU}, v{9+2*k}")
            e(f"ds_read_b128 v[24:27], {aSTR}\nds_read_b128 v[28:31], {aSTR} offset:16")
            for k in range(4):
                e(f"ds_read_b64 {R(8+2*k,2)}, {aRBR} offset:{768*k}")
            e("s_waitcnt lgkmcnt(4)\nv_add_f32 v24, v24, v25\nv_add_f32 v26, v26, v27\nv_add_f32 v28, v28, v29\nv_add_f32 v30, v30, v31\nv_add_f32 v24, v24, v26\nv_add_f32 v28, v28, v30\nv_add_f32 v6, v24, v28")
            e(f"ds_read_b128 v[24:27], {aSTR} offset:32\nds_read_b128 v[28:31], {aSTR} offset:48")
            for k in range(4, 8):
                e(f"ds_read_b64 {R(8+2*k,2)}, {aRBR} offset:{768*k}")
            e("s_waitcnt lgkmcnt(6)\nv_add_f32 v8, v8, v10\nv_add_f32 v9, v9, v11\nv_add_f32 v12, v12, v14\nv_add_f32 v13, v13, v15\nv_add_f32 v8, v8, v12\nv_add_f32 v9, v9, v13")
            e("s_waitcnt lgkmcnt(4)\nv_add_f32 v24, v24, v25\nv_add_f32 v26, v26, v27\nv_add_f32 v28, v28, v29\nv_add_f32 v30, v30, v31\nv_add_f32 v24, v24, v26\nv_add_f32 v28, v28, v30\nv_add_f32 v7, v24, v28")
            e(f"v_mul_f32 v7, {f32(1/512)}, v7\nv_mov_b32 v12, {f32(1e-5)}\nv_fmac_f32 v12, {f32(1/512)}, v6\nv_fma_f32 v12, -v7, v7, v12\nv_rsq_f32 v12, v12\ns_waitcnt lgkmcnt(0)")
            e("v_add_f32 v16, v16, v18\nv_add_f32 v17, v17, v19\nv_add_f32 v20, v20, v22\nv_add_f32 v21, v21, v23\nv_add_f32 v8, v8, v16\nv_add_f32 v9, v9, v17\nv_add_f32 v8, v8, v20\nv_add_f32 v9, v9, v21")
            e(f"v_fma_f32 v8, -v7, {vCG}, v8\nv_fma_f32 v9, -v7, {vCU}, v9\nv_mul_f32 v8, v8, v12\nv_mul_f32 v9, v9, v12")
            c1 = -2 * 0.7978845608028654 * math.log2(math.e)
            e(f"v_mul_f32 v10, v8, v8\nv_mov_b32 v11, {f32(c1)}\nv_fmac_f32 v11, {f32(c1*0.044715)}, v10\nv_mul_f32 v10, v11, v8\nv_exp_f32 v10, v10")
            e(f"v_mul_f32 v8, v8, v9\nv_add_f32 v10, 1.0, v10\nv_rcp_f32 v10, v10\ns_mov_b32 {sA}, {S45(L)}\ns_mov_b32 {sB}, {S45(L)+8192}\nv_mul_f32 v8, v8, v10")
            e(f"v_cvt_pk_bf16_f32 v8, v8, v8\nds_write_b16 {aHW}, v8\nds_read_b128 v[8:11], {aHR}\ns_waitcnt lgkmcnt(0)")
            for t in range(8):
                self.mfma(12 + 2 * t, 8, FD + 4 * t)
            for hf in range(2):
                self.pack_ovw(f"v{8+2*hf}", f"v{12+8*hf}", f"v{14+8*hf}", P45)
                self.pack_ovw(f"v{9+2*hf}", f"v{16+8*hf}", f"v{18+8*hf}", P45)
                e(f"v_permlane32_swap_b32 v{8+2*hf}, v{9+2*hf}\nbuffer_store_dword v{8+2*hf}, {aS45}, {srd(S_WS)}, {sA} offen offset:{256*hf} sc1\nbuffer_store_dword v{8+2*hf}, {aS45}, {srd(S_WS)}, {sB} offen offset:{256*hf} sc1")
            self.canary_set(6 + L, aCAN, o['lead_s45'] == 0)
            self.stamp('S45pub' + X)
            e(f"{lnf}:")
        self.dump_stamps()


if __name__ == "__main__":
    import argparse
    ap = argparse.ArgumentParser()
    ap.add_argument("-o", default=f"cdna_kernels/{NAME}.s")
    ap.add_argument("--opt", action="append", default=[])
    a = ap.parse_args()
    opts = {k: int(v) for k, v in (x.split("=") for x in a.opt)}
    open(a.o, "w").write(Gen(**opts).build())
```

```python
import sys, math, struct
sys.path.insert(0, "scratch")
from asmlib import hazard_pass

NAME = "interleave_layers__compressed_kv_cla__glu_gated_geglu__decode"
f32 = lambda x: "0x%08x" % struct.unpack("<I", struct.pack("<f", x))[0]

WADR = 0x80
VOTES = 0x400
PRET = 0x900
CAN = 0x4000
LSE = lambda L: 0x8000 + L * 0x8000
S1R = lambda L: 0x18000 + L * 0x20000
S3R = lambda L: 0x58000 + L * 0x8000
S45 = lambda L: 0x68000 + L * 0x2C000
CAL = 0x100000
I0R = lambda L: 0x200000 + L * 0x80000
COLS = 0x300000
I1R = lambda L: 0x340000 + L * 0x20000
I0S = lambda L: 0x380000 + L * 0x4000
S2R = lambda L: 0x400000 + L * 0x400000
PRET2 = (0x3F0000,)
STAMP = 0xE000000
OOB = 0x7FFFFF00
A_WQ = 0
A_OS = 0
A_XR = 18432
A_WUK = 34048
A_WUV = 67840
A_WO = 101632
A_Q = 134400
A_WW = A_Q + 768
A_CC = A_WW + 256
A_CT = A_CC + 512
A_RR = A_CT + 2304
A_XS = A_RR + 2048
A_ST = A_XS + 256
A_ONE = A_ST + 64
A_DUM = A_ONE + 512
B_CKV = 0
B_QA = 135168
B_MX = 152064
B_LI = B_MX + 1024
B_LS = B_LI + 512
B_P = B_LS + 2304
B_ONES = B_P + 4608
B_DUM = B_ONES + 128
LDS_BYTES = B_DUM + 256
B_FG = 0
B_FU = 32768
B_FD = 65536
B_XP = 98304
B_H = B_XP + 2048
B_RB = B_H + 1024
B_ST = B_RB + 6144

S_WS, S_X, S_CKV, S_WQ, S_WUK, S_WUV, S_WO, S_WG, S_WU, S_WD, S_OUT = [4 + 4 * k for k in range(11)]
sT1, sT2, sT3, sBW = "s48", "s49", "s50", "s51"
sJ, sI, sW, sT, sM, sFF, sSEL, sGUARD, sPLAIN, sXCC, sPA, sE = ["s%d" % (52 + k) for k in range(12)]
sA, sB, sC, sD = "s64", "s65", "s66", "s67"
sH, sCS = "s68", "s69"
sMASK = "s[70:71]"
sMEAN, sRSTD = "s72", "s73"
sSIDE, sWW = "s100", "s101"
STAMP0 = 78
srd = lambda b: f"s[{b}:{b+3}]"
vL, vC, vG, vT = "v1", "v2", "v3", "v4"
DPPM = "row_mask:0xf bank_mask:0xf"
DP = {1: "quad_perm:[1,0,3,2]", 2: "quad_perm:[2,3,0,1]", 4: "row_half_mirror", 8: "row_ror:8"}

PROFILES = [
    (["start", "Wq", "P1a", "I0got", "S1pub", "Wo", "S2can", "S2got", "I1got", "S3pub", "S45got"],
     ["start", "ckv", "S1can", "S1got", "Y2", "Y3", "S2pub", "ffnW", "S3can", "S3got", "S45pub"]),
    (["start", "S45got", "P1a'", "I0got'", "S1pub'", "S2can'", "S2got'", "I1pub'", "I1got'", "S3pub'", "end"],
     ["start", "S45pub", "S1can'", "S1got'", "Y2'", "Y3'", "S2pub'", "S3can'", "S3got'", "Z1'", "S45pub'"]),
    (["start", "karg", "E", "Wq", "Wuk", "P1a", "I0pr", "I0got", "S1pub", "Wo", "S2can"],
     ["start", "karg", "E", "ckv0", "ckv8", "ckviss", "ckv", "S1can", "S1got", "Y2", "S2pub"]),
    (["start", "end", "S45got"], ["start"]),
    (["start", "S45can", "S45got", "I0got'", "S2can'", "S2got'", "I1got'", "S2can", "S2got", "I1got", "I0got"],
     ["start", "S1can", "S1got", "S3can", "S3got", "S1can'", "S1got'", "S3can'", "S3got'", "Y2", "Y3"]),
    (["start", "S45got", "P1a'", "I0got'", "Xb", "Qs", "Qw", "Qb", "S1pub'", "S2got'", "end"], ["start"] + ["x"] * 10),
    (["start", "S1pub", "Wuv", "WqF", "Wo", "S2can", "S2got", "I1pub", "I1got", "S3pub", "S45got"],
     ["start", "ckviss", "ckv", "S1can", "S1got", "Y2", "S2pub", "ffnW", "S3can", "S3got", "S45pub"]),
]


def R(a, n=1):
    return f"v{a}" if n == 1 else f"v[{a}:{a+n-1}]"


class Gen:
    def __init__(self, **o):
        self.o = dict(stamps=0, bdelay=2, bdelay2=4, adelay=12, d_s1=0, d_s2=3, d_s3=4, d_s45=3, e_s1=3, e_s2=11, e_s3=5, e_s45=3, guard=0x400000, backoff=1,
                      lead_s1=1, lead_s2=1, lead_s3=1, lead_s45=1, prof=0, i0tries=24, bhelp=4, wohelp=2, fhelp=1, amp=0, warm=1, wukdelay=20, vdelay=2, forcec=-1, i0d=1, dma1=0, dma2=1, dma45=1, smf=15, early=0, i1b=1, wqf=1, xd=1, retouch=1, nt=0, prio=0, both=0, pv2=0, cdepth=2, cgap=15, wuklate=1, wtries=2, vmargin=5, vrounds=3, split=1)
        self.o.update(o)
        for h in ('s1', 's2', 's3', 's45'):
            self.o.setdefault('e_' + h, self.o['d_' + h])
        self.L = []
        self.uid = 0
        self.nst = 0
        self.cold = []
        self.NA, self.NB = PROFILES[self.o["prof"]]
        self.names = self.NA

    def e(self, s):
        for ln in s.split("\n"):
            self.L.append(ln)

    def lab(self, p):
        self.uid += 1
        return f"L_{p}_{self.uid}"

    def stamp(self, name):
        if self.o["stamps"] and name in self.names:
            k = self.names.index(name)
            if self.o.get("gst") and name != "start":
                self.e(f"s_mov_b32 s{STAMP0+2*k}, {sGUARD}")
            else:
                self.e(f"s_memrealtime s[{STAMP0+2*k}:{STAMP0+2*k+1}]")

    def dump_stamps(self):
        if not self.o["stamps"]:
            return
        e = self.e
        e("s_waitcnt lgkmcnt(0)")
        for k in range(11):
            e(f"v_mov_b32 v{8+k}, s{STAMP0+2*k}")
        e(f"s_lshl_b32 {sA}, s2, 9\ns_lshl_b32 {sB}, {sW}, 6\ns_add_u32 {sA}, {sA}, {sB}\ns_add_u32 {sA}, {sA}, {STAMP}")
        e(f"v_mov_b32 v6, {OOB}\nv_cmp_eq_u32 vcc, 0, {vL}\nv_cndmask_b32 v6, v6, {vL}, vcc")
        e(f"v_mov_b32 v20, {sGUARD}\nv_mov_b32 v21, {sT}\nv_mov_b32 v22, {sPLAIN}\nv_mov_b32 v23, s3")
        for k in range(4):
            e(f"buffer_store_dwordx4 v[{8+4*k}:{11+4*k}], v6, {srd(S_WS)}, {sA} offen offset:{16*k}")

    def mfma(self, d, a, b, c=None):
        self.e(f"v_mfma_f32_16x16x32_bf16 {R(d,4)}, {R(a,4)}, {R(b,4)}, {'0' if c is None else R(c,4)}")

    def smf(self, d, a, b, idx):
        self.e(f"v_smfmac_f32_16x16x64_bf16 {R(d,4)}, {R(a,4)}, {R(b,8)}, {idx}")

    def bar(self):
        self.e("s_waitcnt lgkmcnt(0)\ns_barrier")

    def bar_split(self, cond, skip, cold=None):
        l = self.lab("bs")
        if not self.o["split"]:
            self.e(f"s_waitcnt lgkmcnt(0)\ns_barrier\n{cond}\ns_cbranch_scc0 {l}")
            if cold:
                cold()
            if skip:
                self.e(f"s_branch {skip}")
            self.e(f"{l}:")
            return
        self.e(f"{cond}\ns_cbranch_scc0 {l}\ns_waitcnt lgkmcnt(0)\ns_barrier")
        if cold:
            cold()
        if skip:
            self.e(f"s_branch {skip}")
        self.e(f"{l}:\ns_waitcnt lgkmcnt(0)\ns_barrier")

    def both_ways(self, ins, stores):
        l1, l2 = self.lab("sc"), self.lab("sd")
        self.e(f"s_cmp_eq_u32 {sPLAIN}, 0\ns_cbranch_scc1 {l1}\n{ins}\n" + "\n".join(stores) + f"\n{l2}:")
        self.cold.append(f"{l1}:\n{ins}\n" + "\n".join(i + " sc1" for i in stores) + f"\ns_branch {l2}")

    def spin_head(self, l):
        self.e(f"{l}:")
        self.guard()

    def near_stub(self, n=1):
        lo, out = self.lab("ov"), []
        self.e(f"s_branch {lo}")
        for _ in range(n):
            l, l2 = self.lab("rs"), self.lab("in")
            self.e(f"{l}:")
            self.guard()
            self.e(f"s_sleep {self.o['backoff']}\ns_branch {l2}")
            out.append((l, l2))
        self.e(f"{lo}:")
        return out

    def guard(self):
        if self.o["stamps"]:
            self.nst += 1
            self.e(f"s_movk_i32 s3, {self.nst}")
        self.e(f"s_sub_u32 {sGUARD}, {sGUARD}, 1\ns_cbranch_scc1 {'L_bail' if self.o['stamps'] else 'L_end'}")

    def sel(self, dst, cond, a, b):
        self.e(cond)
        self.e(f"v_cndmask_b32 {dst}, {a}, {b}, vcc")

    def check(self, regs, pats, mask, acc, extra=None):
        e = self.e
        e(f"v_xor_b32 {acc}, {pats[0]}, v{regs[0]}")
        for n, r in enumerate(regs[1:], 1):
            e(f"v_bitop3_b32 {acc}, v{r}, {pats[n & 3]}, {acc} bitop3:0xbe")
        e(f"v_and_or_b32 {acc}, {acc}, {mask}, {extra}" if extra else f"v_and_b32 {acc}, {mask}, {acc}")
        e(f"v_cmp_ne_u32 vcc, 0, {acc}")

    def xcheck(self, regs, pats, mask, acc, mid=None):
        e = self.e
        for n, r in enumerate(regs):
            e(f"v_xor_b32 v{r}, {pats[n & 3]}, v{r}")
        if mid:
            e(mid)
        e(f"v_or3_b32 {acc}, v{regs[0]}, v{regs[1]}, v{regs[2]}")
        rest = regs[3:]
        while len(rest) > 1:
            e(f"v_or3_b32 {acc}, v{rest[0]}, v{rest[1]}, {acc}")
            rest = rest[2:]
        e(f"v_bitop3_b32 {acc}, v{rest[0]}, {acc}, {mask} bitop3:0xa8\nv_cmp_ne_u32 vcc, 0, {acc}")

    def pat(self, dst, src, sh):
        self.e(f"v_bfe_u32 {dst}, {src}, {sh}, 2\nv_lshl_or_b32 {dst}, {dst}, 15, {dst}\nv_and_b32 {dst}, {sM}, {dst}")

    def cons_pats(self, P):
        self.e(f"v_and_b32 v6, 3, {vL}\nv_lshlrev_b32 v6, 3, v6\nv_lshrrev_b32 v6, v6, {vT}")
        for k in range(4):
            self.pat(P[k], "v6", 2 * k)

    def pack_near(self, dst, lo, hi, t0, t1, p):
        e = self.e
        e(f"v_add_u32 {t0}, 0x10000, {lo}\nv_add_u32 {t1}, 0x10000, {hi}")
        e(f"v_perm_b32 {t0}, {t1}, {t0}, {sSEL}\nv_bfi_b32 {dst}, {sM}, {p}, {t0}")

    def pack_ovw(self, dst, lo, hi, p):
        self.e(f"v_cvt_pk_bf16_f32 {dst}, {lo}, {hi}\nv_bfi_b32 {dst}, {sM}, {p}, {dst}")

    def allred(self, regs, op, tmps, steps):
        e = self.e
        for s in steps:
            if s in DP:
                for r in regs:
                    e(f"{op}_dpp {r}, {r}, {r} {DP[s]} {DPPM}")
            else:
                for r, t in zip(regs, tmps):
                    e(f"v_mov_b32 {t}, {r}")
                for r, t in zip(regs, tmps):
                    e(f"v_permlane{s}_swap_b32 {r}, {t}")
                for r, t in zip(regs, tmps):
                    e(f"{op} {r}, {r}, {t}")

    def can_addr(self, vw, vr, sidx, t0=0):
        e = self.e
        e(f"s_lshl_b32 {sA}, {sidx}, 9\nv_xor_b32 v6, {t0}, v0\nv_add_u32 v6, {sA}, v6\ns_lshl_b32 {sA}, {sJ}, 7\ns_add_u32 {sA}, {sA}, {CAN}\nv_lshl_add_u32 v8, v6, 13, {sA}\nv_cmp_gt_u32 vcc, 2, v6\nv_cndmask_b32 {vw}, v13, v8, vcc")
        e(f"v_and_b32 v6, 7, v0\nv_lshlrev_b32 v6, 7, v6\nv_add_u32 {vr}, {CAN}, v6")

    def place_load(self, v):
        self.e(f"v_mov_b32 v{v}, {WADR}\nbuffer_load_dwordx2 v[{v}:{v+1}], v{v}, {srd(S_WS)}, 0 offen sc1")

    def place_wait(self, v, first=False):
        e = self.e
        l, l2 = self.lab("pw"), self.lab("px")
        if not first:
            self.place_load(v)
        e(f"{l2}:\ns_waitcnt vmcnt(0)\nv_readfirstlane_b32 {sA}, v{v}\nv_readfirstlane_b32 {sWW}, v{v+1}\ns_cmp_lg_u32 {sA}, {sT}\ns_cbranch_scc1 {l}")

        def stub():
            e(f"{l}:")
            self.guard()
            e("s_sleep 2")
            self.place_load(v)
            e(f"s_branch {l2}")
        self.oob(stub)
        e(f"s_lshr_b32 {sA}, {sWW}, 3\ns_lshr_b32 {sB}, {sXCC}, 2\ns_xor_b32 {sA}, {sA}, {sB}\ns_and_b32 {sA}, {sA}, 1\ns_lshl_b32 {sSIDE}, {sA}, 13")

    def canary_wait(self, idx, vr, delay, pre=None, wsel=0, both=False):
        e = self.e
        l, l2 = self.lab("can"), self.lab("cb")
        e(f"s_cmp_lg_u32 {sW}, {wsel}\ns_cbranch_scc1 {l2}\ns_movk_i32 {sA}, {idx*1024}")
        if both:
            e(f"v_and_b32 v7, 8, v0\nv_lshl_add_u32 v7, v7, 10, {vr}\ns_mov_b64 exec, 0xffff")
            vr = "v7"
        else:
            e("s_mov_b64 exec, 0xff")
        dp = self.o["cdepth"]
        if dp > 1 and not pre:
            lo = self.lab("co")
            regs = [f"v{16+k}" for k in range(dp)]
            ld = lambda r: f"buffer_load_dword {r}, {vr}, {srd(S_WS)}, {sA} offen sc1"
            e("s_waitcnt vmcnt(0)")
            for r in regs[:-1]:
                e(ld(r) + f"\ns_nop {self.o['cgap']}")
            e(f"{l}:")
            self.guard()
            for k in range(dp):
                e(f"{ld(regs[k-1])}\ns_waitcnt vmcnt({dp-1})\nv_cmp_ne_u32 vcc, {regs[k]}, {vT}\n" + (f"s_cbranch_vccz {lo}" if k < dp - 1 else f"s_cbranch_vccnz {l}"))
            e(f"{lo}:\ns_mov_b64 exec, -1")
            if delay:
                e(f"s_sleep {delay}")
            e(f"{l2}:\ns_barrier")
            return
        e(f"{l}:")
        self.guard()
        e(f"buffer_load_dword v6, {vr}, {srd(S_WS)}, {sA} offen sc1\ns_waitcnt vmcnt(0)\nv_cmp_ne_u32 vcc, v6, {vT}")
        if both:
            e(f"s_and_b32 {sB}, vcc_lo, 0xff\ns_lshr_b32 {sC}, vcc_lo, 8\ns_min_u32 {sB}, {sB}, {sC}\ns_cmp_lg_u32 {sB}, 0\ns_cbranch_scc1 {l}\ns_mov_b64 exec, -1")
        else:
            e(f"s_cbranch_vccnz {l}\ns_mov_b64 exec, -1")
        if delay:
            e(f"s_sleep {delay}")
        e(f"{l2}:")
        if pre:
            pre()
            self.stamp("ckv")
        e("s_barrier")

    def canary_set(self, idx, vw, cond=True):
        if cond:
            self.e(f"s_movk_i32 {sD}, {idx*1024}\nbuffer_store_dword {vT}, {vw}, {srd(S_WS)}, {sD} offen sc1")

    def oob(self, fn):
        keep, self.L = self.L, []
        fn()
        self.cold.append("\n".join(self.L))
        self.L = keep

    def retry_head(self, l, mult=1):
        l2 = self.lab("in")
        self.e(f"{l2}:")

        def stub():
            self.e(f"{l}:")
            self.guard()
            self.e(f"s_sleep {mult*self.o['backoff']}\ns_branch {l2}")
        self.oob(stub)

    def store_intra(self, ins):
        e = self.e
        l1, l2 = self.lab("sc"), self.lab("sd")
        e(f"s_cmp_eq_u32 {sPLAIN}, 0\ns_cbranch_scc1 {l1}")
        for i in ins:
            e(i)
        e(f"{l2}:")
        self.cold.append(f"{l1}:\n" + "\n".join(i + " sc1" for i in ins) + f"\ns_branch {l2}")

    def consts(self):
        self.e(f"s_mov_b32 {sM}, 0x00010001\ns_movk_i32 {sFF}, 0xff\ns_mov_b32 {sSEL}, 0x07060302\ns_mov_b32 {sGUARD}, {self.o['guard']}")

    def fin_srd(self, b, size):
        self.e(f"s_mov_b32 s{b+2}, {size}\ns_mov_b32 s{b+3}, 0x20000")

    def epoch_load(self):
        self.e(f"s_load_dword {sT}, s[{S_WS}:{S_WS+1}], 0")

    def calib(self, sidx):
        e = self.e
        e(f"s_lshl_b32 {sA}, {sidx}, 2\ns_lshr_b32 {sB}, {sW}, 1\ns_add_u32 {sA}, {sA}, {sB}\ns_lshr_b32 {sB}, {sA}, 6\ns_lshl_b32 {sB}, {sB}, 1\ns_and_b32 {sC}, {sW}, 1\ns_add_u32 {sB}, {sB}, {sC}\ns_lshl_b32 {sB}, {sB}, 6")
        e(f"s_and_b32 {sA}, {sA}, 63\ns_add_u32 {sA}, {sA}, {sB}\ns_lshl_b32 {sA}, {sA}, 7\ns_add_u32 {sA}, {sA}, {CAL}")

    def calib_run(self):
        self.e(f"s_memtime s[72:73]\ns_load_dword {sB}, s[{S_WS}:{S_WS+1}], {sA}\ns_waitcnt lgkmcnt(0)\ns_memtime s[70:71]\ns_waitcnt lgkmcnt(0)\ns_sub_u32 {sC}, s70, s72")

    def ffn_touch(self, sK, dst):
        e = self.e
        lx, l1, l2 = self.lab("fx"), self.lab("fa"), self.lab("fb")
        e(f"s_cmp_ge_u32 {sW}, 4\ns_cbranch_scc1 {lx}\ns_mul_i32 {sA}, {sK}, 43\ns_lshr_b32 {sA}, {sA}, 8\ns_mul_i32 {sB}, {sA}, 6\ns_sub_u32 {sB}, {sK}, {sB}\ns_lshl_b32 {sB}, {sB}, 3\ns_add_u32 {sB}, {sB}, {sJ}")
        e(f"s_cmp_ge_u32 {sB}, 43\ns_cselect_b32 {sB}, 0x8000, {sB}\ns_cmp_eq_u32 {sA}, 3\ns_cbranch_scc1 {l1}")
        e(f"v_mul_u32_u24 v6, 2752, v0\ns_lshl_b32 {sB}, {sB}, 6\ns_cmp_eq_u32 {sA}, 1\ns_cselect_b32 {sC}, 0, {256*2752}\ns_add_u32 {sB}, {sB}, {sC}\ns_cmp_eq_u32 {sA}, 0\ns_cbranch_scc1 {l2}")
        e(f"buffer_load_dword {dst}, v6, {srd(S_WU)}, {sB} offen\ns_branch {lx}\n{l2}:\nbuffer_load_dword {dst}, v6, {srd(S_WG)}, {sB} offen\ns_branch {lx}")
        e(f"{l1}:\nv_lshlrev_b32 v6, 7, v0\ns_lshl_b32 {sB}, {sB}, 15\nbuffer_load_dword {dst}, v6, {srd(S_WD)}, {sB} offen\n{lx}:")

    def tags(self):
        self.e(f"s_add_u32 {sT}, {sT}, 1\nv_mov_b32 {vT}, {sT}")

    def build(self):
        e = self.e
        K = NAME + "_kernel"
        e(f"; @launch grid=(256,1,1) block=(512,1,1) lds={LDS_BYTES}")
        e('.amdgcn_target "amdgcn-amd-amdhsa--gfx950"\n.text')
        e(f".globl {K}\n.p2align 8\n.type {K},@function\n{K}:")
        self.stamp('start')
        if self.o["amp"]:
            e("s_memrealtime s[98:99]")
        e("s_cmp_ge_u32 s2, 256\ns_cbranch_scc1 L_end")
        e(f"s_load_dwordx2 s[{S_WS}:{S_WS+1}], s[0:1], 96")
        e(f"s_lshr_b32 {sI}, s2, 3\ns_cmp_ge_u32 {sI}, 16\ns_cbranch_scc1 L_roleB")
        self.roleA()
        e("L_roleB:")
        self.names = self.NB
        self.roleB()
        e("s_endpgm")
        for c in self.cold:
            e(c)
        if self.o["stamps"]:
            e("L_bail:\ns_mov_b64 exec, -1")
            e(f"s_lshl_b32 {sA}, s2, 14\ns_add_u32 {sA}, {sA}, 0xC000000\nv_lshlrev_b32 v6, 5, v0\nbuffer_store_dwordx4 v[8:11], v6, {srd(S_WS)}, {sA} offen\nbuffer_store_dwordx4 v[12:15], v6, {srd(S_WS)}, {sA} offen offset:16\ns_waitcnt vmcnt(0)")
            self.dump_stamps()
        e("L_end:\ns_endpgm\nL_code_end:")
        body = hazard_pass(self.L)
        body.append(f""".section .rodata,"a"
.p2align 6
.amdhsa_kernel {K}
  .amdhsa_next_free_vgpr 256
  .amdhsa_next_free_sgpr 102
  .amdhsa_accum_offset 256
  .amdhsa_group_segment_fixed_size 0
  .amdhsa_kernarg_size 104
  .amdhsa_user_sgpr_count 2
  .amdhsa_user_sgpr_kernarg_segment_ptr 1
  .amdhsa_system_sgpr_workgroup_id_x 1
.end_amdhsa_kernel""")
        return "\n".join(body) + "\n"

    def roleA(self):
        e, o = self.e, self.o
        NT = lambda b: ' nt' if o['nt'] >> b & 1 else ''
        WQ, WUK, WUV, WO, XOP, SEL0, SEL4 = 32, 32, 128, 144, 160, 164, 168
        vCS, vONE, vTL = "v172", "v173", "v28"
        (aXOFF, aWROW, aI0ST0, aI0ST1, aI0LD, aCSLD, aSTLD, aSTST, aQW, aQR, aS1ST, aS2LD, aOSW, aLSE, aWW, aWA0, aWA1,
         aOTR, aCCW, aCCR, aI1ST, aI1LD, aCTW, aCTR, aRRW, aRRR, aS3ST, aXLD, aXRW, aXTR, aXSW, aCANW, aCANR, aOUT) = ["v%d" % (174 + k) for k in range(34)]
        TB = [vT, "v208", "v209", "v210"]
        PC = ["v240", "v241", "v242", "v243"]
        PS, aS2B, PX = ["v96", "v97", "v98", "v99"], "v100", ["v104", "v105", "v106", "v107"]
        vIDX, P1, PD = "v108", "v109", ["v104", "v105", "v106", "v107"]
        if o["i1b"]:
            WUV = 112
        KG = {(0, 0): 112, (1, 0): 120, (2, 0): 128, (3, 0): 136, (0, 1): 160, (1, 1): 244, (2, 1): 32, (3, 1): 40}
        wuk = lambda t, u: KG[t, u >> 1] + 4 * (u & 1)
        Q0, Q1 = "v252", "v253"
        P3 = "v254"
        sTB, sNM = ["s76", sT1, sT2, sT3], "s77"
        vr, vq = "v14", "v15"
        e(f"s_load_dwordx2 s[{S_WQ}:{S_WQ+1}], s[0:1], 16\ns_load_dwordx2 s[{S_WUK}:{S_WUK+1}], s[0:1], 24\ns_load_dwordx2 s[{S_X}:{S_X+1}], s[0:1], 0")
        e(f"v_lshrrev_b32 v6, 6, v0\nv_and_b32 {vC}, 15, v0\ns_and_b32 {sJ}, s2, 7\nv_readfirstlane_b32 {sW}, v6\nv_bfe_u32 {vG}, v0, 4, 2\nv_lshlrev_b32 v7, 4, {vC}")
        self.fin_srd(S_WQ, 4 << 20)
        self.fin_srd(S_WUK, 4 << 20)
        e(f"s_and_b32 {sBW}, {sI}, 3\ns_lshl_b32 {sH}, {sJ}, 2\ns_add_u32 {sH}, {sH}, {sBW}\ns_lshr_b32 {sCS}, {sI}, 2\ns_mul_i32 {sD}, {sW}, 8448")
        ljn = self.lab("jn")
        e(f"s_cmp_ge_u32 {sW}, 4\ns_cbranch_scc1 {ljn}")
        e(f"s_lshl_b32 {sA}, {sI}, 8\ns_add_u32 {sA}, {sA}, {sJ}\ns_lshl_b32 {sA}, {sA}, 2\ns_add_u32 {sA}, {sA}, {sW}\ns_lshl_b32 {sA}, {sA}, 8\nv_lshl_add_u32 v9, {vG}, 15, v7\nv_add_u32 v9, {sA}, v9")
        e(f"v_bfe_u32 v10, {vC}, 2, 1\nv_lshlrev_b32 v6, 10, v10\nv_lshl_add_u32 v6, {vG}, 2, v6\ns_lshl_b32 {sB}, {sI}, 6\nv_add_u32 {aXOFF}, {sB}, v6")
        self.fin_srd(S_X, 2048)
        e("s_waitcnt lgkmcnt(0)")
        self.stamp("karg")
        for k, off in enumerate((0, 32, 16, 48)):
            e(f"buffer_load_dword v{24+k}, {aXOFF}, {srd(S_X)}, 0 offen offset:{off}")
        for q in range(8):
            e(f"s_mov_b32 {sA}, {((q & 3) + 16*(q >> 2))*8192}\ns_add_u32 m0, {sD}, {A_WQ + q*1056}\nbuffer_load_dwordx4 v9, {srd(S_WQ)}, {sA} offen{NT(0)} lds")
        e(f"{ljn}:\ns_waitcnt lgkmcnt(0)")
        self.epoch_load()
        for b, slot in ((S_WUV, 4), (S_WO, 5), (S_OUT, 10)):
            e(f"s_load_dwordx2 s[{b}:{b+1}], s[0:1], {slot*8}")
        self.fin_srd(S_WS, 0x10000000)
        e(f"v_and_b32 {vL}, 63, v0\nv_mov_b32 v13, {OOB}")
        self.consts()
        e(f"s_getreg_b32 {sXCC}, hwreg(HW_REG_XCC_ID)\ns_and_b32 {sXCC}, {sXCC}, 15\ns_lshl_b32 {sPA}, {sJ}, 4\ns_add_u32 {sPA}, {sPA}, {sI}\ns_mov_b32 {sPLAIN}, 0")
        e(f"v_lshlrev_b32 v7, 4, {vL}\nv_bfe_u32 v10, {vC}, 2, 1\nv_lshlrev_b32 v11, 4, {vG}\nv_bfe_u32 {vr}, {vL}, 2, 2\nv_and_b32 {vq}, 3, {vL}")
        e(f"v_and_b32 v6, 1, {vr}\nv_lshlrev_b32 v6, 2, v6\nv_lshrrev_b32 v8, 1, {vr}\nv_add_u32 v6, v6, v8\nv_and_b32 v8, 1, {vG}\nv_lshl_add_u32 v6, v8, 1, v6\nv_mul_u32_u24 v6, 1056, v6")
        e(f"v_lshrrev_b32 v8, 1, {vG}\nv_lshl_add_u32 v6, v8, 8, v6\nv_lshl_add_u32 v6, {vq}, 3, v6\nv_add_u32 v31, {sD}, v6")
        e(f"s_lshl_b32 {sA}, {sPA}, 2\ns_add_u32 {sA}, {sA}, {sW}\ns_lshl_b32 {sB}, {sA}, 10\ns_add_u32 {sB}, {sB}, {I0R(0)}\nv_add_u32 v6, {sB}, v7\nv_cmp_gt_u32 vcc, 32, {vL}")
        e(f"s_lshl_b32 {sB}, {sA}, 9\ns_add_u32 {sB}, {sB}, {COLS - 512}\nv_cndmask_b32 {aI0ST1}, v13, v6, vcc\nv_add_u32 v6, {sB}, v7")
        e(f"s_and_b32 {sA}, {sH}, 24\ns_add_u32 {sA}, {sA}, {sH}\ns_lshl_b32 {sA}, {sA}, 2\ns_add_u32 {sA}, {sA}, {sCS}\ns_lshl_b32 {sB}, {sA}, 1\ns_and_b32 {sC}, {sW}, 1\ns_add_u32 {sB}, {sB}, {sC}\ns_lshl_b32 {sB}, {sB}, 7")
        e(f"v_lshlrev_b32 v8, 16, {vG}\nv_lshl_add_u32 v8, {vC}, 3, v8\nv_add_u32 v8, {sB}, v8\nv_cndmask_b32 {aS1ST}, v13, v8, vcc")
        self.sel(aI0ST0, f"v_cmp_eq_u32 vcc, 2, {vG}", aI0ST1, "v6")
        e(f"v_add_u32 v6, 256, {aI0ST0}\nv_add_u32 v8, 512, {aI0ST0}\nv_cndmask_b32 {aOUT}, v8, v6, vcc")
        e(f"v_lshrrev_b32 v6, 3, {vL}\nv_sub_u32 v8, {vL}, v6\nv_add_u32 v8, 3, v8\ns_mov_b32 vcc_lo, 0x01100101\ns_mov_b32 vcc_hi, 0\nv_cndmask_b32 v6, v8, v6, vcc")
        e(f"s_lshl_b32 {sA}, {sPA}, 7\nv_lshl_add_u32 v6, v6, 3, {sA}\ns_cmp_eq_u32 {sW}, 0\ns_cselect_b32 vcc_lo, 0x01103fff, 0\nv_cndmask_b32 {aSTST}, v13, v6, vcc")
        e(f"v_lshrrev_b32 v8, 3, {vL}\nv_and_b32 v9, 7, {vL}\nv_lshlrev_b32 v9, 4, v9")
        e(f"s_lshl_b32 {sA}, {sJ}, 6\ns_add_u32 {sA}, {sA}, {sBW}\ns_lshl_b32 {sB}, {sA}, 3\ns_add_u32 {sB}, {sB}, {sW}\ns_lshl_b32 {sB}, {sB}, 7")
        e(f"v_lshl_add_u32 v6, v8, 12, v9\nv_add_u32 {aI0LD}, {sB}, v6")
        e(f"s_lshr_b32 {sC}, {sW}, 2\ns_lshl_b32 {sA}, {sA}, 1\ns_add_u32 {sA}, {sA}, {sC}\ns_lshl_b32 {sA}, {sA}, 1\ns_and_b32 {sE}, {sW}, 1\ns_add_u32 {sA}, {sA}, {sE}\ns_lshl_b32 {sA}, {sA}, 7\ns_add_u32 {sA}, {sA}, {COLS}")
        e(f"v_lshl_add_u32 v6, v8, 11, v9\nv_add_u32 {aCSLD}, {sA}, v6")
        e(f"s_bfe_u32 {sB}, {sW}, 0x10001\ns_lshl_b32 {sA}, {sJ}, 7\ns_add_u32 {sA}, {sA}, {sB}\ns_lshl_b32 {sA}, {sA}, 4\nv_lshlrev_b32 v6, 7, {vC}\nv_add_u32 {aSTLD}, {sA}, v6")
        e(f"v_and_b32 v6, 1, {vC}\nv_mul_u32_u24 {vIDX}, 0xaaaa, v6\nv_add_u32 {vIDX}, 0x4444, {vIDX}")
        if o["smf"] & 1:
            e(f"s_lshl_b32 {sA}, {sB}, 2\ns_add_u32 {sA}, {sA}, {sC}\ns_lshl_b32 {sA}, {sA}, 3\ns_add_u32 {sA}, {sA}, {sE}\ns_lshl_b32 {sA}, {sA}, 3\ns_add_u32 {sA}, {sA}, {A_Q}")
            e(f"v_bfe_u32 v8, {vL}, 1, 1\nv_lshl_add_u32 v8, v8, 7, v11\nv_lshl_add_u32 v8, v6, 1, v8\nv_and_b32 v12, 4, {vL}\nv_add3_u32 {aQW}, v8, v12, {sA}")
            e(f"v_lshl_add_u32 v6, v6, 7, v11\nv_lshl_add_u32 v6, v10, 8, v6\nv_add_u32 {aQR}, {A_Q}, v6")
        else:
            e(f"s_lshl_b32 {sA}, {sB}, 1\ns_add_u32 {sA}, {sA}, {sC}\ns_lshl_b32 {sA}, {sA}, 3\ns_add_u32 {sA}, {sA}, {sE}\ns_lshl_b32 {sA}, {sA}, 4\ns_add_u32 {sA}, {sA}, {A_Q}")
            e(f"v_lshrrev_b32 v6, 3, v9\nv_lshl_add_u32 v6, {vG}, 5, v6\nv_add_u32 {aQW}, {sA}, v6")
            e(f"v_lshl_add_u32 v6, v10, 8, v11\nv_add_u32 {aQR}, {A_Q}, v6")
        e(f"v_mov_b32 v6, 0x3f803f80\nv_cmp_eq_u32 vcc, 8, {vC}\nv_mov_b32 v8, 0\nv_cndmask_b32 {vONE}, v8, v6, vcc")
        self.can_addr(aCANW, aCANR, sI)
        lsk = self.lab("k")
        e(f"v_mov_b32 v30, v13\ns_mov_b32 s74, 0\ns_cmp_lt_u32 {sW}, 4\ns_cbranch_scc1 {lsk}")
        lw = self.lab("k")
        e(f"s_cmp_lg_u32 {sW}, 4\ns_cbranch_scc1 {lw}\ns_lshl_b32 {sA}, {sPA}, 12\ns_add_u32 {sA}, {sA}, {I0R(0)}\ns_lshl_b32 {sB}, {sPA}, 11\ns_add_u32 {sB}, {sB}, {COLS - 4096}\ns_lshl_b32 {sC}, {sPA}, 7\ns_add_u32 {sC}, {sC}, {I0S(0)}")
        e(f"v_lshlrev_b32 v6, 7, {vL}\nv_add_u32 v8, {sA}, v6\nv_add_u32 v6, {sB}, v6\nv_cmp_gt_u32 vcc, 32, {vL}\nv_cndmask_b32 v6, v6, v8, vcc\nv_mov_b32 v8, {sC}\nv_cmp_gt_u32 vcc, 48, {vL}\nv_cndmask_b32 v6, v8, v6, vcc")
        e(f"buffer_load_dword v28, v6, {srd(S_WS)}, 0 offen\n{lw}:")
        e(f"s_cmp_ge_u32 {sW}, 6\ns_cbranch_scc1 {lsk}")
        e(f"s_lshl_b32 {sA}, {sCS}, 1\ns_add_u32 {sA}, {sA}, {sW}\ns_sub_u32 {sA}, {sA}, 4\ns_lshl_b32 {sA}, {sA}, 11\ns_add_u32 {sA}, {sA}, {sH}\ns_lshl_b32 {sA}, {sA}, 8\nv_lshlrev_b32 v9, 4, {vC}\nv_lshl_add_u32 v9, {vG}, 13, v9\nv_add_u32 v9, {sA}, v9")
        e(f"s_lshl_b32 {sD}, {sD}, 1\ns_sub_u32 {sD}, {sD}, {8*8448 - A_WUK}")
        e(f"v_mov_b32 v30, v9\ns_mov_b32 s74, {sD}")

        def wukdma():
            for q in range(16):
                e(f"s_mov_b32 s75, {q*32768}\ns_add_u32 m0, s74, {q*1056}\nbuffer_load_dwordx4 v30, {srd(S_WUK)}, s75 offen lds")

        def wukfill():
            e(f"v_mul_u32_u24 v6, 1056, {vC}\nv_lshlrev_b32 v7, 4, {vG}\nv_add3_u32 v6, s74, v6, v7\ns_waitcnt vmcnt(0)")
            self.stamp("Wuk")
            for u in range(4):
                for t in range(4):
                    e(f"ds_read_b128 {R(wuk(t, u),4)}, v6 offset:{t*256+u*64}")
        if not o["wuklate"]:
            if o["wukdelay"]:
                e(f"s_sleep {o['wukdelay']}")
            wukdma()
        e(f"{lsk}:\ns_waitcnt lgkmcnt(0)")
        self.stamp("E")
        self.tags()
        for k in range(1, 4):
            e(f"v_lshrrev_b32 {TB[k]}, {8*k}, {vT}\ns_bfe_u32 {sTB[k]}, {sT}, {0x80000 + 8*k}")
        e(f"s_and_b32 {sTB[0]}, {sT}, 0xff\ns_mov_b32 {sNM}, 0xfffefffe")
        e(f"v_and_b32 v6, 7, {vC}\nv_lshlrev_b32 v6, 2, v6\nv_lshrrev_b32 v6, v6, {vT}")
        self.pat(Q0, "v6", 0)
        self.pat(Q1, "v6", 2)
        lsk = self.lab("k")
        e(f"s_cmp_ge_u32 {sW}, 4\ns_cbranch_scc1 {lsk}\ns_waitcnt vmcnt(0)")
        self.stamp("Wq")
        for t in range(8):
            e(f"ds_read_b64_tr_b16 {R(WQ+4*t,2)}, v31 offset:{A_WQ+32*t}\nds_read_b64_tr_b16 {R(WQ+4*t+2,2)}, v31 offset:{A_WQ+32*t+512}")
        e(f"s_mov_b32 {sA}, 0x05040100\nv_mov_b32 v6, 0x3f803f80\nv_cmp_eq_u32 vcc, 8, {vC}")
        e(f"v_perm_b32 v20, v25, v24, {sA}\nv_perm_b32 v21, v25, v24, {sSEL}\nv_perm_b32 v22, v27, v26, {sA}\nv_perm_b32 v23, v27, v26, {sSEL}")
        for k in range(4):
            e(f"v_cndmask_b32 v{XOP+k}, v{20+k}, v6, vcc")
        lsk2 = self.lab("k")
        e(f"s_waitcnt lgkmcnt(0)\ns_branch {lsk2}\n{lsk}:\ns_cmp_ge_u32 {sW}, 6\ns_cbranch_scc1 {lsk2}")
        if not o["wuklate"]:
            wukfill()
        e(f"{lsk2}:")

        for L in range(2):
            X = "'" * L
            if L == 1 and o["wqf"]:
                for k in range(16):
                    e(f"v_mov_b32 v{212+k}, 0")
                for k in range(4):
                    e(f"v_mov_b32 v{16+k}, 0")
                lsk, l = self.lab("k"), self.lab("xg")
                e(f"s_mov_b32 {sA}, {I0R(1)}\ns_cmp_ge_u32 {sW}, 4\ns_cbranch_scc1 {lsk}")
                if o["xd"]:
                    e(f"s_sleep {o['xd']}")
                self.spin_head(l)
                e(f"buffer_load_dwordx4 v[8:11], {aI0LD}, {srd(S_WS)}, {sA} offen sc1\ns_waitcnt vmcnt(0)")
                self.xcheck(list(range(8, 12)), sTB, sFF, "v6", mid=f"v_cvt_pk_bf16_f32 v12, v8, v9\nv_cvt_pk_bf16_f32 v13, v10, v11\nds_write_b32 {aCSLD}, v12\nds_write_b32 {aCSLD}, v13 offset:576")
                e(f"s_cbranch_vccnz {l}\n{lsk}:")
                self.stamp("I0got'")
                self.bar()
                self.stamp("Xb")
                XB = [20, 24, 228, 232]
                for U in range(4):
                    e(f"ds_read_b128 {R(XB[U],4)}, {aSTLD} offset:{U*64}")
                fill = [f"v_add_f32_dpp v6, v6, v6 {DP[k]} {DPPM}\nv_add_f32_dpp v7, v7, v7 {DP[k]} {DPPM}" for k in (1, 2, 4)]
                fill += ["v_mov_b32 v12, v6\nv_mov_b32 v13, v7", "v_permlane16_swap_b32 v6, v12\nv_permlane16_swap_b32 v7, v13", "v_add_f32 v6, v6, v12\nv_add_f32 v7, v7, v13\nv_mov_b32 v12, v6\nv_mov_b32 v13, v7",
                         "v_permlane32_swap_b32 v6, v12\nv_permlane32_swap_b32 v7, v13", "v_add_f32 v6, v6, v12\nv_add_f32 v7, v7, v13"]

                def qpass(stats):
                    for U in range(8):
                        e(f"s_waitcnt lgkmcnt({min(3, 7-U)})")
                        self.smf(16, XB[U & 3], 32 + 8 * U, vIDX)
                        if U < 4:
                            e(f"ds_read_b128 {R(XB[U],4)}, {aSTLD} offset:{(U+4)*64}")
                        if stats:
                            e(fill[U])
                    self.stamp("Qs")
                lsk, lsk2 = self.lab("k"), self.lab("k")
                e(f"s_cmp_ge_u32 {sW}, 4\ns_cbranch_scc1 {lsk}")
                e("v_add_f32 v7, v8, v9\nv_mul_f32 v6, v8, v8\nv_add_f32 v12, v10, v11\nv_fmac_f32 v6, v9, v9\nv_add_f32 v7, v7, v12\nv_fmac_f32 v6, v10, v10\nv_fmac_f32 v6, v11, v11")
                qpass(True)
                e(f"ds_write_b64 {aSTST}, v[6:7]\ns_branch {lsk2}\n{lsk}:")
                qpass(False)
                e(f"s_cmp_ge_u32 {sW}, 6\ns_cbranch_scc1 {lsk2}")
                for t in range(2, 4):
                    for u in range(2, 4):
                        e(f"ds_read_b128 {R(wuk(t, u),4)}, {aI0ST0} offset:{t*256+u*64}")
                e(f"{lsk2}:\nv_add_f32 v16, v16, v17\nv_add_f32 v18, v18, v19\nv_cvt_pk_bf16_f32 v16, v16, v18\ns_mov_b32 exec_hi, 0")
                e(f"ds_write_b16 {aQW}, v16\ns_mov_b64 exec, 0xffff\nds_write_b16_d16_hi {aQW}, v16 offset:512\ns_mov_b64 exec, -1")
                self.stamp("Qw")
                l = self.lab("p1b")
                self.bar_split(f"s_and_b32 {sA}, {sW}, 6\ns_cmp_lg_u32 {sA}, 4", l, lambda: self.canary_set(L, aCANW))
                self.stamp("Qb")
                e(f"ds_read_b128 v[8:11], {aQR}\nds_read_b128 v[12:15], {aQR} offset:64\nds_read_b128 v[16:19], {aI0ST1}\nds_read_b128 v[20:23], {aI0ST1} offset:16")
                e(f"s_mov_b32 {sA}, {S1R(L)}\ns_mov_b32 {sB}, {f32(128**-0.5*math.log2(math.e))}")
                for u in range(2):
                    e(f"s_waitcnt lgkmcnt({3-u})")
                    for t in range(4):
                        self.smf(212 + 4 * t, 8 + 4 * u, KG[t, u], vIDX)
                e("s_waitcnt lgkmcnt(0)\nv_add_f32 v16, v16, v18\nv_add_f32 v17, v17, v19\nv_add_f32 v20, v20, v22\nv_add_f32 v21, v21, v23\nv_add_f32 v16, v16, v20\nv_add_f32 v17, v17, v21")
                e(f"v_mul_f32 v17, {f32(1/512)}, v17\nv_mov_b32 v18, {f32(1e-5)}\nv_fmac_f32 v18, {f32(1/512)}, v16\nv_fma_f32 v18, -v17, v17, v18\nv_rsq_f32 v18, v18\ns_nop 0\nv_mul_f32 v18, {sB}, v18")
                for t in range(4):
                    e(f"v_add_f32 v{24+t}, v{212+4*t}, v{213+4*t}\nv_add_f32 v{20+t}, v{214+4*t}, v{215+4*t}")
                for t in range(4):
                    e(f"v_fma_f32 v{24+t}, -v17, v{20+t}, v{24+t}")
                for t in range(4):
                    e(f"v_mul_f32 v{24+t}, v18, v{24+t}")
            else:
                lsk = self.lab("k")
                e(f"s_cmp_ge_u32 {sW}, 4\ns_cbranch_scc1 {lsk}")
                D = [8, 12, 16, 20, 212, 216, 220, 224]
                self.mfma(228, XOP, XOP)
                for t in range(8):
                    self.mfma(D[t], XOP, WQ + 4 * t)
                e(f"s_mov_b32 {sB}, {I0R(L)-I0R(0)}\ns_mov_b32 {sC}, {I0S(L)}\nv_mov_b32 v229, {vT}")
                if L == 0:
                    e(f"v_mov_b32 v6, {sXCC}\nv_bfi_b32 v228, 15, v6, v228")
                for t in range(8):
                    e(f"v_bfi_b32 v{232+t}, {sFF}, {TB[t & 3]}, v{D[t]}")
                if L == 0:
                    first = [f"buffer_store_dwordx4 v[232:235], {aI0ST0}, {srd(S_WS)}, 0 offen", f"buffer_store_dwordx4 v[236:239], {aOUT}, {srd(S_WS)}, 0 offen",
                             f"buffer_store_dwordx2 v[228:229], {aSTST}, {srd(S_WS)}, {sC} offen"]
                    e("\n".join(x + (" sc1" if o.get("allsc1") else "") for x in first))
                else:
                    self.store_intra([f"buffer_store_dwordx4 v[232:235], {aI0ST1}, {srd(S_WS)}, {sB} offen",
                                      f"buffer_store_dwordx4 v[236:239], {aI0ST1}, {srd(S_WS)}, {sB} offen offset:512",
                                      f"buffer_store_dwordx2 v[228:229], {aSTST}, {srd(S_WS)}, {sC} offen"])
                e(f"{lsk}:")
                self.stamp("P1a" + X)
                lp, lr, lm = self.lab("i0p"), self.lab("i0r"), self.lab("i0m")
                e(f"s_mov_b32 {sA}, {I0R(L)}\ns_mov_b32 {sB}, {I0R(L)+32768}\ns_mov_b32 {sC}, {I0S(L)}\ns_movk_i32 {sD}, 16384")
                probe = f"s_mov_b64 exec, 0xffff\nbuffer_load_dwordx4 v[16:19], {aSTLD}, {srd(S_WS)}, {sC} offen sc1"
                ptest = f"v_xor_b32 v7, {vT}, v17\nv_bitop3_b32 v7, v19, {vT}, v7 bitop3:0xbe\nv_cmp_ne_u32 vcc, 0, v7"
                if L == 0:
                    restore = "\n".join(x + " sc1" for x in first)
                    e(f"s_movk_i32 {sE}, {o['i0tries']}\ns_mov_b32 s73, 0")

                def stub():
                    e(f"{lr}:")
                    self.guard()
                    if L == 0:
                        e(f"s_sub_u32 {sE}, {sE}, 1\ns_cmp_lg_u32 {sE}, 0\ns_cbranch_scc1 {lp}\ns_cmp_ge_u32 {sW}, 4\ns_cbranch_scc1 {lp}\ns_mov_b64 exec, -1\n{restore}\n{lp}:")
                    e(f"{probe}\ns_waitcnt vmcnt(0)\n{ptest}\ns_cbranch_vccnz {lr}\ns_branch {lm}")
                self.oob(stub)
                if L == 0 or o["i0d"] < 0:
                    e(f"s_branch {lr}")
                else:
                    e("s_barrier")
                    if o["i0d"]:
                        e(f"s_sleep {o['i0d']}")
                e(f"{lm}:\n{probe}\ns_mov_b64 exec, -1")
                self.stamp("I0pr" + X)
                e(f"buffer_load_dwordx4 v[8:11], {aI0LD}, {srd(S_WS)}, {sA} offen sc1\nbuffer_load_dwordx4 v[12:15], {aI0LD}, {srd(S_WS)}, {sB} offen sc1")
                if L == 0:
                    e(f"buffer_load_dwordx4 v[20:23], {aCSLD}, {srd(S_WS)}, 0 offen sc1\nbuffer_load_dwordx4 v[24:27], {aCSLD}, {srd(S_WS)}, {sD} offen sc1")
                nd = 4 if L == 0 else 2
                if L == 0 and o["wuklate"]:
                    lk, lk2 = self.lab("wk"), self.lab("wl")
                    e(f"s_and_b32 s72, {sW}, 6\ns_xor_b32 s72, s72, 4\ns_or_b32 s72, s72, s73\ns_cbranch_scc1 {lk}\ns_mov_b32 s73, 1")
                    wukdma()
                    e(f"s_waitcnt vmcnt({nd+16})\ns_branch {lk2}\n{lk}:\ns_mov_b32 s73, 2\ns_waitcnt vmcnt({nd})\n{lk2}:")
                    e(f"s_mov_b64 exec, 0xffff\n{ptest}\ns_cbranch_vccnz {lr}")
                else:
                    e(f"s_waitcnt vmcnt({nd})\ns_mov_b64 exec, 0xffff\n{ptest}\ns_cbranch_vccnz {lr}")
                if L == 0:
                    e(f"v_and_b32 v7, 15, v16\nv_cmp_ne_u32 vcc, {sXCC}, v7\ns_cmp_eq_u64 vcc, 0\ns_cselect_b32 {sPLAIN}, {0 if o.get('allsc1') else 1}, 0\nv_and_b32 v16, -16, v16\nv_and_b32 v18, -16, v18")
                e("s_mov_b64 exec, -1")
                for k in (1, 2, 4, 8):
                    e(f"v_add_f32_dpp v16, v16, v16 {DP[k]} {DPPM}\nv_add_f32_dpp v18, v18, v18 {DP[k]} {DPPM}")
                e(f"v_mul_f32 v18, {f32(1/512)}, v18\nv_mov_b32 v17, {f32(1e-5)}\nv_fmac_f32 v17, {f32(1/512)}, v16\nv_fma_f32 v17, -v18, v18, v17\nv_rsq_f32 v17, v17")
                if L == 0 and o["wuklate"]:
                    lk, lk2 = self.lab("wm"), self.lab("wn")
                    e(f"s_cmp_eq_u32 s73, 1\ns_cbranch_scc1 {lk}\ns_waitcnt vmcnt(0)\n{lk}:\ns_waitcnt vmcnt(16)")
                    e(f"v_readfirstlane_b32 s70, v18\nv_readfirstlane_b32 s71, v17")
                else:
                    e(f"v_readfirstlane_b32 s70, v18\nv_readfirstlane_b32 s71, v17")
                    e("s_waitcnt vmcnt(0)")
                self.xcheck(list(range(8, 16)) + (list(range(20, 28)) if L == 0 else []), sTB, sFF, "v6")
                e(f"s_cbranch_vccnz {lr}")
                self.stamp("I0got" + X)
                if L == 0:
                    l1, l2 = self.lab("rs"), self.lab("rt")
                    e(f"s_cmp_eq_u32 {sPLAIN}, 0\ns_cbranch_scc1 {l1}\n{l2}:")
                    self.cold.append(f"{l1}:\ns_cmp_ge_u32 {sW}, 4\ns_cbranch_scc1 {l2}\n{restore}\ns_branch {l2}")
                self.canary_set(L, aCANW, o["lead_s1"] == 1)
                grp = [8] + ([20] if L == 0 else [])
                for b in grp:
                    for k in range(4):
                        e(f"v_add_f32 v{b+k}, v{b+k}, v{b+4+k}")
                for b in grp:
                    e(f"v_permlane32_swap_b32 v{b}, v{b+2}\nv_permlane32_swap_b32 v{b+1}, v{b+3}")
                for b in grp:
                    e(f"v_add_f32 v{b}, v{b}, v{b+2}\nv_add_f32 v{b+1}, v{b+1}, v{b+3}")
                for b in grp:
                    e(f"v_permlane16_swap_b32 v{b}, v{b+1}")
                for b in grp:
                    e(f"v_add_f32 v{b}, v{b}, v{b+1}")
                e(f"v_add_f32_dpp v8, v8, v8 row_ror:8 {DPPM}")
                if L == 0:
                    e(f"v_add_f32_dpp {vCS}, v20, v20 row_ror:8 {DPPM}")
                e(f"v_fma_f32 v8, -s70, {vCS}, v8\nv_mul_f32 v8, s71, v8\nv_cvt_pk_bf16_f32 v8, v8, v8\nds_write_b16 {aQW}, v8")
                l = self.lab("p1b")
                self.bar_split(f"s_and_b32 {sA}, {sW}, 6\ns_cmp_lg_u32 {sA}, 4", l)
                if L == 0 and o["wuklate"]:
                    wukfill()
                for u in range(2 if o["smf"] & 1 else 4):
                    e(f"ds_read_b128 {R(8+4*u,4)}, {aQR} offset:{u*64}")
                e(f"s_mov_b32 {sA}, {S1R(L)}\ns_mov_b32 {sB}, {f32(128**-0.5*math.log2(math.e))}")
                if o["smf"] & 1:
                    for t in range(4):
                        e(f"v_mov_b32 v{212+4*t}, 0\nv_mov_b32 v{213+4*t}, 0")
                    for u in range(2):
                        e(f"s_waitcnt lgkmcnt({1-u})")
                        for t in range(4):
                            self.smf(212 + 4 * t, 8 + 4 * u, KG[t, u], vIDX)
                    for t in range(4):
                        e(f"v_add_f32 v{24+t}, v{212+4*t}, v{213+4*t}")
                    for t in range(4):
                        e(f"v_mul_f32 v{24+t}, {sB}, v{24+t}")
                else:
                    for u in range(4):
                        e(f"s_waitcnt lgkmcnt({3-u})")
                        for t in range(4):
                            self.mfma(212 + 4 * t, 8 + 4 * u, wuk(t, u), None if u == 0 else 212 + 4 * t)
                    for t in range(4):
                        e(f"v_mul_f32 v{24+t}, {sB}, v{212+4*t}")
            self.pack_near("v8", "v24", "v25", "v10", "v11", Q0)
            self.pack_near("v9", "v26", "v27", "v12", "v13", Q1)
            e(f"s_mov_b32 {sB}, {S1R(L)+8192}\nbuffer_store_dwordx2 v[8:9], {aS1ST}, {srd(S_WS)}, {sA} offen sc1\nbuffer_store_dwordx2 v[8:9], {aS1ST}, {srd(S_WS)}, {sB} offen sc1")
            e(f"{l}:")
            self.stamp("S1pub" + X)
            if L == 0:
                for b, sz in ((S_WUV, 4 << 20), (S_WO, 4 << 20), (S_OUT, 2048)):
                    self.fin_srd(b, sz)
                if o["adelay"]:
                    e(f"s_sleep {o['adelay']}")
                e(f"s_lshl_b32 {sA}, {sCS}, 3\ns_add_u32 {sA}, {sA}, {sW}\ns_lshl_b32 {sA}, {sA}, 9\ns_add_u32 {sA}, {sA}, {sH}\ns_lshl_b32 {sA}, {sA}, 8")
                e(f"v_lshlrev_b32 v6, 13, {vG}\nv_lshl_add_u32 v6, {vC}, 4, v6\nv_add_u32 v6, {sA}, v6\ns_mul_i32 {sC}, {sW}, 4224")
                for q in range(4):
                    e(f"s_mov_b32 {sA}, {q*32768}\ns_add_u32 m0, {sC}, {A_WUV + q*1056}\nbuffer_load_dwordx4 v6, {srd(S_WUV)}, {sA} offen{NT(3)} lds")
                e(f"v_lshlrev_b32 v7, 4, {vL}\nv_bfe_u32 {vr}, {vL}, 2, 2\nv_and_b32 {vq}, 3, {vL}\nv_mov_b32 v13, {OOB}")
                e(f"v_bfe_u32 v10, {vC}, 2, 1\nv_lshlrev_b32 v11, 4, {vG}\nv_and_b32 v9, 7, {vL}\nv_lshlrev_b32 v9, 4, v9")
                if o["smf"] & 2:
                    e(f"v_and_b32 v6, 1, {vC}\nv_lshl_add_u32 v6, v6, 7, v11\nv_lshl_add_u32 v6, v10, 8, v6\nv_add_u32 {aCCR}, {A_CC}, v6")
                else:
                    e(f"v_lshl_add_u32 v6, v10, 8, v11\nv_add_u32 {aCCR}, {A_CC}, v6")
                self.cons_pats(PC)
                e(f"v_lshlrev_b32 v6, 3, {vq}\nv_lshrrev_b32 {vTL}, v6, {vT}")
                e(f"s_and_b32 {sA}, {sH}, 15\ns_lshl_b32 {sA}, {sA}, 2\ns_add_u32 {sA}, {sA}, {sCS}\ns_lshl_b32 {sA}, {sA}, 4\ns_and_b32 {sC}, {sW}, 4\ns_add_u32 {sA}, {sA}, {sC}\ns_add_u32 {sA}, {sA}, {sW}\ns_lshl_b32 {sA}, {sA}, 11\nv_add_u32 {aS2LD}, {sA}, v7")
                if o["dma2"]:
                    e(f"v_lshlrev_b32 v6, 5, {vG}\nv_xor_b32 {aS2LD}, v6, {aS2LD}\nv_xor_b32 {aS2B}, 128, {aS2LD}\ns_lshl_b32 s75, {sW}, 11\nv_add_u32 {aOSW}, s75, v7")
                    e(f"v_lshlrev_b32 v6, 1, {vG}\nv_xor_b32 v6, v6, {vL}\nv_and_b32 v6, 3, v6\nv_lshlrev_b32 v6, 3, v6\nv_lshrrev_b32 v6, v6, {vT}")
                    for k in range(4):
                        self.pat(PS[k], "v6", 2 * k)
                else:
                    e(f"s_mul_i32 {sA}, {sW}, {8*288}\nv_mul_u32_u24 v6, 288, {vG}\nv_lshl_add_u32 v6, {vC}, 4, v6\nv_add_u32 {aOSW}, {sA}, v6")
                e(f"s_lshr_b32 {sA}, {sJ}, 2\ns_lshl_b32 {sA}, {sA}, 12\ns_and_b32 {sC}, {sH}, 15\ns_lshl_b32 {sC}, {sC}, 3\ns_add_u32 {sA}, {sA}, {sC}")
                e(f"v_lshrrev_b32 v6, 5, {vL}\nv_and_b32 v12, 31, {vL}\nv_lshlrev_b32 v12, 7, v12\nv_lshl_add_u32 v12, v6, 14, v12\nv_add_u32 {aLSE}, {sA}, v12")
                e(f"v_lshlrev_b32 v6, 6, v6\nv_lshl_add_u32 v6, {vr}, 4, v6\nv_and_b32 v12, 1, {vG}\nv_lshl_add_u32 v6, v12, 3, v6\nv_lshl_add_u32 v6, {vq}, 1, v6\nv_add_u32 {aWW}, {A_WW}, v6")
                e(f"v_add_u32 v6, {A_WW}, v11\nv_add_u32 v12, {A_WW+128}, v11")
                self.sel(aWA0, f"v_cmp_eq_u32 vcc, 0, {vC}", "v12", "v6")
                e("v_add_u32 v6, 64, v6")
                self.sel(aWA1, f"v_cmp_eq_u32 vcc, 4, {vC}", "v12", "v6")
                e("s_barrier")
                e(f"s_lshl_b32 {sA}, {sJ}, 19\ns_lshl_b32 {sB}, {sW}, 16\ns_add_u32 {sA}, {sA}, {sB}\ns_lshl_b32 {sB}, {sI}, 6\ns_add_u32 {sA}, {sA}, {sB}")
                e(f"v_lshrrev_b32 v12, 2, {vL}\nv_lshlrev_b32 v6, 10, v12\nv_lshl_add_u32 v6, {vq}, 4, v6\nv_add_u32 v6, {sA}, v6\ns_lshl_b32 {sC}, {sW}, 12")
                e(f"s_and_b32 {sD}, {sI}, 1\ns_lshl_b32 {sD}, {sD}, 11\nv_mov_b32 v23, v6")

                def wo(qs):
                    for q in qs:
                        e(f"s_xor_b32 {sA}, {sD}, {q*1024}\ns_add_u32 m0, {sA}, s74\ns_lshl_b32 {sA}, {sA}, 4\nbuffer_load_dwordx4 v23, {srd(S_WO)}, {sA} offen lds")
                e(f"s_add_u32 s74, {sC}, {A_WO}")
                wo((0, 1))
                for k in range(len(PRET2)):
                    e(f"v_mov_b32 v{24+k}, {PRET2[k]}\nbuffer_load_dword v{24+k}, v{24+k}, {srd(S_WS)}, 0 offen")
                self.fin_srd(S_X, 2048)
                e(f"v_and_b32 v8, 1, {vG}\nv_lshlrev_b32 v8, 10, v8\nv_lshl_add_u32 v8, {vC}, 1, v8\nv_add_u32 v8, {sB}, v8")
                e(f"buffer_load_ushort v18, v8, {srd(S_X)}, 0 offen\nbuffer_load_ushort v19, v8, {srd(S_X)}, 0 offen offset:32")
                e(f"s_lshl_b32 {sA}, {sW}, 5")
                if o["dma2"]:
                    e(f"v_and_b32 v6, 7, v12\nv_xor_b32 v6, {sW}, v6\nv_lshlrev_b32 v6, 5, v6\nv_lshl_add_u32 v6, v12, 8, v6\nv_lshl_add_u32 {aOTR}, {vq}, 3, v6")
                else:
                    e(f"v_mul_u32_u24 v6, 288, v12\nv_lshl_add_u32 v6, {vq}, 3, v6\nv_add_u32 {aOTR}, {sA}, v6")
                if o["dma45"]:
                    e(f"v_bfe_u32 v6, v12, 1, 2\nv_lshlrev_b32 v6, 5, v6\nv_lshl_add_u32 v6, v12, 7, v6\nv_lshl_add_u32 v6, {vq}, 3, v6\nv_add_u32 {aXTR}, {A_XR}, v6")
                    for T in range(1, 4):
                        e(f"v_xor_b32 v{100+T}, {32*T}, {aXTR}")
                else:
                    e(f"v_mul_u32_u24 v6, 160, v12\nv_lshl_add_u32 v6, {vq}, 3, v6\nv_add_u32 {aXTR}, {A_XR}, v6")
                if o["smf"] & 2:
                    e(f"s_lshl_b32 {sA}, {sW}, 4\ns_add_u32 {sA}, {sA}, {A_CC}\nv_bfe_u32 v6, {vC}, 1, 1\nv_lshlrev_b32 v6, 7, v6\nv_lshl_add_u32 v6, {vG}, 8, v6\nv_and_b32 v8, 12, {vC}\nv_add_u32 v6, v6, v8\nv_and_b32 v8, 1, {vC}\nv_lshl_add_u32 v6, v8, 1, v6\nv_add_u32 v6, {sA}, v6\nv_mov_b32 v12, {A_DUM}")
                else:
                    e(f"s_add_u32 {sA}, {sA}, {A_CC}\nv_lshlrev_b32 v6, 8, {vG}\nv_lshl_add_u32 v6, {vC}, 1, v6\nv_add_u32 v6, {sA}, v6\nv_mov_b32 v12, {A_DUM}")
                self.sel(aCCW, f"v_cmp_gt_u32 vcc, 32, {vL}", "v12", "v6")
                e(f"s_lshl_b32 {sB}, {sW}, 8\ns_add_u32 {sB}, {sB}, {A_RR}\nv_lshlrev_b32 v6, 3, {vL}\nv_add_u32 v6, {sB}, v6\nv_cndmask_b32 {aRRW}, v12, v6, vcc")
                e(f"v_lshlrev_b32 v6, 3, {vL}\nv_lshrrev_b32 v8, 5, {vL}\nv_mul_u32_u24 v8, 768, v8\nv_add3_u32 {aRRR}, v6, v8, 0\nv_add_u32 {aRRR}, {A_RR}, {aRRR}\nv_lshlrev_b32 v8, 2, {vL}")
                if o["i1b"]:
                    e(f"v_and_b32 v16, 1, {vC}\nv_lshlrev_b32 v16, 2, v16\nv_bfe_u32 v17, {vC}, 1, 2\nv_and_or_b32 v17, {vC}, 8, v17\nv_add_u32 v16, v16, v17")
                    e(f"s_lshl_b32 {sB}, {sPA}, 2\ns_add_u32 {sB}, {sB}, {sW}\ns_lshl_b32 {sB}, {sB}, 7\nv_lshl_add_u32 v6, {vG}, 4, v16\nv_lshl_add_u32 v6, v6, 2, {sB}\nv_cndmask_b32 {aI1ST}, v13, v6, vcc")
                    e(f"v_lshlrev_b32 v16, 1, v16\nv_lshrrev_b32 v16, v16, {vT}")
                    self.pat(P1, "v16", 0)
                else:
                    e(f"s_lshl_b32 {sB}, {sPA}, 10\ns_lshl_b32 {sC}, {sW}, 7\ns_add_u32 {sB}, {sB}, {sC}\nv_add_u32 v6, {sB}, v8\nv_cndmask_b32 {aI1ST}, v13, v6, vcc")
                if o["warm"]:
                    for rg in (I1R(0), I1R(1)):
                        e(f"s_mov_b32 {sB}, {rg}\nbuffer_load_dword v27, {aI1ST}, {srd(S_WS)}, {sB} offen")
                    if o["wqf"]:
                        e(f"s_lshl_b32 {sB}, {sPA}, 8\ns_add_u32 {sB}, {sB}, {I0R(1)}\nbuffer_load_dword v27, v8, {srd(S_WS)}, {sB} offen")
                    else:
                        e(f"s_mov_b32 {sB}, {I0S(1)}\nbuffer_load_dword v27, {aSTST}, {srd(S_WS)}, {sB} offen")
                        e(f"s_lshl_b32 {sB}, {sPA}, 12\ns_add_u32 {sB}, {sB}, {I0R(1)}\nv_lshlrev_b32 v6, 3, v0\nbuffer_load_dword v27, v6, {srd(S_WS)}, {sB} offen")
                e(f"s_and_b32 {sB}, {sPA}, 64\ns_add_u32 {sB}, {sB}, {sPA}\ns_lshl_b32 {sB}, {sB}, 7\nv_add_u32 v6, {sB}, v8\nv_cndmask_b32 {aS3ST}, v13, v6, vcc")
                if o["i1b"]:
                    e(f"s_lshl_b32 {sB}, {sJ}, 13\ns_lshl_b32 {sC}, {sW}, 8\ns_add_u32 {sB}, {sB}, {sC}")
                    e(f"v_lshrrev_b32 v6, 2, {vC}\nv_lshlrev_b32 v6, 11, v6\nv_lshrrev_b32 v16, 1, {vG}\nv_lshl_add_u32 v6, v16, 7, v6\nv_bfe_u32 v16, {vC}, 1, 1\nv_lshl_add_u32 v6, v16, 6, v6")
                    e(f"v_and_b32 v16, 1, {vG}\nv_and_b32 v17, 1, {vC}\nv_lshl_add_u32 v16, v16, 1, v17\nv_lshl_add_u32 v6, v16, 4, v6\nv_add_u32 {aI1LD}, {sB}, v6")
                    e(f"v_lshlrev_b32 v16, 3, v16\nv_lshrrev_b32 v16, v16, {vT}")
                    for k in range(4):
                        self.pat(PD[k], "v16", 2 * k)
                    e(f"s_lshl_b32 {sB}, {sW}, 8\ns_add_u32 {sB}, {sB}, {A_RR}\nv_lshrrev_b32 v6, 1, {vG}\nv_lshl_add_u32 v6, v6, 4, {vC}\nv_and_b32 v16, 1, {vG}\nv_lshl_add_u32 v6, v6, 1, v16\nv_lshl_add_u32 {aRRW}, v6, 2, {sB}")
                else:
                    e(f"s_lshl_b32 {sB}, {sJ}, 14\ns_lshl_b32 {sC}, {sW}, 9\ns_add_u32 {sB}, {sB}, {sC}")
                    e(f"v_lshlrev_b32 v6, 12, {vG}\nv_lshl_add_u32 v6, {vC}, 4, v6\nv_add_u32 {aI1LD}, {sB}, v6")
                e(f"s_lshl_b32 {sA}, {sW}, 8\ns_add_u32 {sA}, {sA}, {A_CT}\nv_lshlrev_b32 v6, 7, v10\nv_add_u32 v6, {sA}, v6")
                if o["smf"] & 4:
                    e(f"v_and_b32 v8, 1, {vC}\nv_lshl_add_u32 v8, v8, 6, v11\nv_add_u32 {aCTR}, v6, v8")
                    e(f"v_lshrrev_b32 v8, 1, {vG}\nv_lshl_add_u32 v6, v8, 5, v6\nv_lshrrev_b32 v8, 3, {vC}\nv_lshl_add_u32 v6, v8, 4, v6\nv_lshl_add_u32 v6, {vq}, 2, v6\nv_and_b32 v8, 1, {vG}\nv_lshl_add_u32 {aCTW}, v8, 6, v6")
                else:
                    e(f"v_add_u32 {aCTR}, v6, v11")
                    e(f"v_lshrrev_b32 v8, 1, {vG}\nv_lshl_add_u32 v6, v8, 6, v6\nv_lshrrev_b32 v8, 3, {vC}\nv_lshl_add_u32 v6, v8, 5, v6\nv_lshl_add_u32 v6, {vq}, 3, v6\nv_and_b32 v8, 1, {vG}\nv_lshl_add_u32 {aCTW}, v8, 2, v6")
                if o["dma45"]:
                    e(f"v_lshrrev_b32 v8, 3, v0\nv_lshlrev_b32 v6, 4, v0\nv_add_u32 {aXRW}, {A_XR}, v6\nv_lshlrev_b32 v6, 5, {vG}\nv_xor_b32 v9, v9, v6")
                else:
                    e(f"v_lshrrev_b32 v8, 3, v0\nv_mul_u32_u24 v6, 160, v8\nv_add_u32 v6, v6, v9\nv_add_u32 {aXRW}, {A_XR}, v6")
                e(f"s_lshl_b32 {sA}, {sI}, 7\nv_and_b32 v6, 60, v8\nv_add_u32 v6, v6, v8\nv_lshl_add_u32 v6, v6, 11, v9\nv_add_u32 {aXLD}, {sA}, v6")
                e(f"v_cmp_gt_u32 {sMASK}, 43, v8\nv_lshrrev_b32 v8, 3, v8\nv_cmp_eq_u32 vcc, 6, v8\ns_or_b64 {sMASK}, {sMASK}, vcc")
                e(f"v_lshlrev_b32 v6, 7, v10\nv_lshl_add_u32 v6, {vG}, 4, v6\nv_add_u32 v6, {A_XS}, v6\nv_and_b32 v8, 11, {vC}")
                self.sel(aXSW, "v_cmp_eq_u32 vcc, 0, v8", "v12", "v6")
                l = self.lab("k")
                e(f"s_cmp_lg_u32 {sW}, 0\ns_cbranch_scc1 {l}\nv_cndmask_b32 {aOUT}, v13, {aXOFF}, vcc\n{l}:")
                e(f"v_mov_b32 v6, 0x3f803f80\nv_mov_b32 v8, 0\nv_mov_b32 v9, 0\nv_mov_b32 v10, 0\nv_mov_b32 v11, 0")
                e(f"v_lshlrev_b32 v6, 2, {vC}\nv_add_u32 v6, {A_WW+128}, v6\nds_write_b32 v6, v8")
                e(f"s_mov_b64 exec, {sMASK}\ns_not_b64 exec, exec\nds_write_b128 {aXRW}, v[8:11]\ns_mov_b64 exec, -1")
                e("s_barrier")
                wo((2, 3))
                if o["stamps"] and "Wuv" in self.names:
                    self.stamp("Wuv")
                self.place_wait(26)
                e(f"v_add_u32 {aLSE}, {sSIDE}, {aLSE}\nv_add_u32 {aXLD}, {sSIDE}, {aXLD}\nv_add_u32 {aCANR}, {sSIDE}, {aCANR}")
                e(f"s_add_u32 {sA}, {sWW}, {sJ}\ns_lshl_b32 {sA}, {sA}, 1\ns_xor_b32 {sA}, {sA}, {sWW}\ns_and_b32 {sA}, {sA}, 8\ns_lshl_b32 {sA}, {sA}, 10\nv_add_u32 {aS2LD}, {sA}, {aS2LD}\nv_add_u32 {aS2B}, {sA}, {aS2B}")
                e("s_waitcnt lgkmcnt(0)\ns_barrier")
                lw4 = self.lab("k")
                e(f"s_cmp_ge_u32 {sW}, 4\ns_cbranch_scc1 {lw4}")
                e(f"v_lshlrev_b32 v18, 16, v18\nv_lshlrev_b32 v19, 16, v19\nv_mul_f32 v244, {f32(0.125)}, v18\nv_mul_f32 v245, {f32(0.125)}, v19")
                e(f"v_mov_b32 v6, 0x3f803f80\nv_mov_b32 v8, 0")
                self.sel(R(SEL0), f"v_cmp_eq_u32 vcc, 0, {vC}", "v8", "v6")
                self.sel(R(SEL4), f"v_cmp_eq_u32 vcc, 4, {vC}", "v8", "v6")
                for k in range(1, 4):
                    e(f"v_mov_b32 v{SEL0+k}, v{SEL0}\nv_mov_b32 v{SEL4+k}, v{SEL4}")
                e(f"v_lshrrev_b32 v6, 1, {vG}\nv_lshl_add_u32 v6, {vr}, 2, v6\nv_mul_u32_u24 v6, 1056, v6\nv_and_b32 v7, 1, {vG}\nv_lshl_add_u32 v6, v7, 9, v6")
                if o["i1b"]:
                    e(f"s_and_b32 {sA}, {sW}, 3\ns_lshl_b32 {sA}, {sA}, 6\ns_add_u32 {sA}, {sA}, {A_WUV}\nv_lshl_add_u32 v6, {vq}, 3, v6\nv_add_u32 v6, {sA}, v6")
                else:
                    e(f"s_lshl_b32 {sA}, {sW}, 5\ns_add_u32 {sA}, {sA}, {A_WUV}\nv_lshl_add_u32 v6, {vq}, 3, v6\nv_add_u32 v6, {sA}, v6")
                for t in range(2 if o["i1b"] else 1):
                    for u in range(4):
                        off = (16 * (u >> 1) + 2 * (u & 1)) * 1056 + 32 * t
                        e(f"ds_read_b64_tr_b16 {R(WUV+16*t+4*u,2)}, v6 offset:{off}\nds_read_b64_tr_b16 {R(WUV+16*t+4*u+2,2)}, v6 offset:{off+256}")
                e(f"{lw4}:")
                if o["i1b"]:
                    e(f"v_and_b32 v8, 1, {vr}\nv_lshlrev_b32 v8, 4, v8\nv_lshl_add_u32 v8, {vG}, 2, v8\nv_lshrrev_b32 v9, 1, {vr}\nv_add_u32 v8, v8, v9")
                else:
                    e(f"v_lshl_add_u32 v8, {vG}, 3, {vr}")
                e(f"v_lshlrev_b32 v8, 6, v8\nv_lshl_add_u32 v8, {vq}, 3, v8\ns_lshl_b32 {sA}, {sW}, 12\ns_add_u32 {sA}, {sA}, {A_WO}\nv_add_u32 v8, {sA}, v8")
                for t in range(2):
                    for u in range(2):
                        off = u * 2048 + t * 32
                        e(f"ds_read_b64_tr_b16 {R(WO+8*t+4*u,2)}, v8 offset:{off}\nds_read_b64_tr_b16 {R(WO+8*t+4*u+2,2)}, v8 offset:{off+(128 if o['i1b'] else 256)}")
                e("s_waitcnt lgkmcnt(0)")
                self.stamp("Wo")
            else:
                if o["wqf"]:
                    l = self.lab("k")
                    e(f"s_cmp_lg_u32 {sW}, 0\ns_cbranch_scc1 {l}\nv_and_b32 v6, 31, {vL}\nv_lshlrev_b32 v6, 3, v6\nv_add_u32 v6, {A_XS}, v6\nds_read_b64 v[244:245], v6\n{l}:")
                else:
                    l = self.lab("k")
                    e(f"s_cmp_lg_u32 {sW}, 0\ns_cbranch_scc1 {l}")
                    for hf in range(2):
                        for r in range(4):
                            e(f"v_mul_f32 v{244+4*hf+r}, {f32(0.125)}, v{244+4*hf+r}\nds_write_b32 {aXSW}, v{244+4*hf+r} offset:{(r&1)*4 + (8*hf + (r>>1))*8}")
                    e(f"v_and_b32 v6, 31, {vL}\nv_lshlrev_b32 v6, 3, v6\nv_add_u32 v6, {A_XS}, v6\nds_read_b64 v[244:245], v6\n{l}:")
            if L == 1:
                e(f"s_lshl_b32 {sA}, s2, 9\nv_add_u32 v6, {sA}, v0\nv_mov_b32 v7, {OOB}\nv_cmp_eq_u32 vcc, 0, v6\nv_cndmask_b32 v6, v7, v6, vcc\nbuffer_store_dword {vT}, v6, {srd(S_WS)}, 0 offen sc1")
            if L == 0:
                e(f"v_lshlrev_b32 v6, 1, {vC}\nv_lshrrev_b32 v6, v6, {vT}")
                self.pat(P3, "v6", 0)
            (l, lin), (lv, lvin) = self.near_stub(2)
            self.canary_wait(2 + L, aCANR, o["d_s2" if L == 0 else "e_s2"])
            self.stamp("S2can" + X)
            l0, l1 = self.lab("s2w"), self.lab("s2x")
            e(f"s_mov_b32 {sA}, {S2R(L)}\ns_mov_b32 {sB}, {LSE(L)}\ns_cmp_eq_u32 {sW}, 0\ns_cbranch_scc1 {l0}")
            if o["dma2"]:
                ld2 = f"s_mov_b32 m0, s75\nbuffer_load_dwordx4 {aS2LD}, {srd(S_WS)}, {sA} offen sc1 lds\nbuffer_load_dwordx4 {aS2B}, {srd(S_WS)}, {sA} offen offset:1024 sc1 lds"
                st2 = f"ds_read_b128 v[8:11], {aOSW}\nds_read_b128 v[12:15], {aOSW} offset:1024\ns_waitcnt lgkmcnt(0)"
                P2_, RS = PS, 256
            else:
                ld2 = f"buffer_load_dwordx4 v[8:11], {aS2LD}, {srd(S_WS)}, {sA} offen sc1\nbuffer_load_dwordx4 v[12:15], {aS2LD}, {srd(S_WS)}, {sA} offen offset:1024 sc1"
                st2 = f"ds_write_b128 {aOSW}, v[8:11] offset:{A_OS}\nds_write_b128 {aOSW}, v[12:15] offset:{A_OS+4*288}"
                P2_, RS = PC, 288
            e(f"{lin}:\n{ld2}\ns_waitcnt vmcnt(0)\n{st2}")
            self.check(list(range(8, 16)), P2_, sM, "v6")
            e(f"s_cbranch_vccnz {l}\ns_branch {l1}")
            e(f"{l0}:")
            l0 = lv
            e(f"{lvin}:")
            e(f"buffer_load_dwordx2 v[16:17], {aLSE}, {srd(S_WS)}, {sB} offen sc1\n{ld2}\ns_waitcnt vmcnt(2)")
            e(f"v_xor_b32 v7, {vT}, v17\nv_mov_b32 v18, v16")
            self.allred(["v18"], "v_max_f32", ["v19"], [1, 2, 4, 8, 16])
            e("v_sub_f32 v16, v16, v18\nv_exp_f32 v16, v16\ns_nop 0\nv_mov_b32 v18, v16")
            self.allred(["v18"], "v_add_f32", ["v19"], [1, 2, 4, 8, 16])
            e(f"v_rcp_f32 v18, v18\ns_nop 0\nv_mul_f32 v16, v16, v18\nv_cvt_pk_bf16_f32 v16, v16, v16\nds_write_b16 {aWW}, v16\ns_waitcnt vmcnt(0)\n{st2}")
            self.check(list(range(8, 16)), P2_, sM, "v6", extra="v7")
            e(f"s_cbranch_vccnz {l0}")
            e(f"{l1}:")
            self.stamp("S2got" + X)
            self.bar()
            e(f"ds_read_b128 v[8:11], {aWA0}\nds_read_b64_tr_b16 v[16:17], {aOTR} offset:{A_OS}\nds_read_b64_tr_b16 v[18:19], {aOTR} offset:{A_OS+16*RS}")
            e(f"ds_read_b128 v[12:15], {aWA1}\nds_read_b64_tr_b16 v[20:21], {aOTR} offset:{A_OS+32*RS}\nds_read_b64_tr_b16 v[22:23], {aOTR} offset:{A_OS+48*RS}")
            e("s_waitcnt lgkmcnt(3)")
            for k in range(4):
                e(f"v_and_b32 v{16+k}, {sNM}, v{16+k}")
            e("s_waitcnt lgkmcnt(0)")
            for k in range(4):
                e(f"v_and_b32 v{20+k}, {sNM}, v{20+k}")
            self.mfma(24, 8, 16)
            self.mfma(24, 12, 20, 24)
            e(f"s_mov_b32 {sB}, {I1R(L)}")
            e(f"v_cvt_pk_bf16_f32 v8, v24, v24\nds_write_b16 {aCCW}, v8")
            if o["i1b"]:
                lsk = self.lab("k")
                self.bar_split(f"s_cmp_ge_u32 {sW}, 4", lsk)
                e(f"ds_read_b128 v[8:11], {aCCR}\nds_read_b128 v[12:15], {aCCR} offset:64\nv_mov_b32 v16, 0\nv_mov_b32 v17, 0\nv_mov_b32 v20, 0\nv_mov_b32 v21, 0\ns_waitcnt lgkmcnt(1)")
                self.smf(16, 8, WUV, vIDX)
                self.smf(20, 8, WUV + 16, vIDX)
                e("s_waitcnt lgkmcnt(0)")
                self.smf(16, 12, WUV + 8, vIDX)
                self.smf(20, 12, WUV + 24, vIDX)
                self.both_ways(f"v_add_f32 v16, v16, v17\nv_add_f32 v20, v20, v21\nv_cvt_pk_bf16_f32 v8, v16, v20\nv_bfi_b32 v8, {sM}, {P1}, v8",
                               [f"buffer_store_dword v8, {aI1ST}, {srd(S_WS)}, {sB} offen"])
                e(f"{lsk}:")
                self.stamp("I1pub" + X)
                for k in range(8):
                    e(f"v_mov_b32 v{16+k}, 0")
                l = self.lab("i1")
                self.spin_head(l)
                e(f"buffer_load_dwordx4 v[8:11], {aI1LD}, {srd(S_WS)}, {sB} offen sc1\ns_waitcnt vmcnt(0)")
                self.xcheck(list(range(8, 12)), PD, sM, "v6")
                e(f"s_cbranch_vccnz {l}")
                self.stamp("I1got" + X)
                self.smf(16, 8, WO, vIDX)
                self.smf(20, 8, WO + 8, vIDX)
                self.canary_set(4 + L, aCANW, o["lead_s3"] == 1)
                e("v_add_f32 v16, v16, v17\nv_add_f32 v18, v18, v19\nv_add_f32 v20, v20, v21\nv_add_f32 v22, v22, v23")
                e("v_permlane32_swap_b32 v16, v18\nv_permlane32_swap_b32 v20, v22\nv_add_f32 v16, v16, v18\nv_add_f32 v20, v20, v22")
                e(f"v_permlane16_swap_b32 v16, v20\nv_add_f32 v16, v16, v20\nds_write_b32 {aRRW}, v16")
            else:
                if o["smf"] & 2:
                    e(f"ds_read_b128 v[8:11], {aCCR}\nds_read_b128 v[12:15], {aCCR} offset:64\nv_mov_b32 v24, 0\nv_mov_b32 v25, 0\ns_waitcnt lgkmcnt(1)")
                    self.smf(24, 8, WUV, vIDX)
                    e("s_waitcnt lgkmcnt(0)")
                    self.smf(24, 12, WUV + 8, vIDX)
                    e("v_add_f32 v24, v24, v25")
                else:
                    for u in range(4):
                        e(f"ds_read_b128 {R(8+4*u,4)}, {aCCR} offset:{u*64}")
                    for u in range(4):
                        e(f"s_waitcnt lgkmcnt({3-u})")
                        self.mfma(24, 8 + 4 * u, WUV + 4 * u, None if u == 0 else 24)
                e(f"v_bfi_b32 v8, {sFF}, {vTL}, v24")
                self.store_intra([f"buffer_store_dword v8, {aI1ST}, {srd(S_WS)}, {sB} offen"])
                self.stamp("I1pub" + X)
                l = self.lab("i1")
                e(f"{l}:")
                self.guard()
                e(f"buffer_load_dwordx4 v[8:11], {aI1LD}, {srd(S_WS)}, {sB} offen sc1\nbuffer_load_dwordx4 v[12:15], {aI1LD}, {srd(S_WS)}, {sB} offen offset:256 sc1\ns_waitcnt vmcnt(0)")
                self.check(list(range(8, 16)), sTB, sFF, "v6")
                e(f"s_cbranch_vccnz {l}")
                self.stamp("I1got" + X)
                self.canary_set(4 + L, aCANW, o["lead_s3"] == 1)
                for k in range(4):
                    e(f"v_permlane32_swap_b32 v{8+k}, v{12+k}")
                for k in range(4):
                    e(f"v_add_f32 v{8+k}, v{8+k}, v{12+k}")
                e("v_permlane16_swap_b32 v8, v10\nv_permlane16_swap_b32 v9, v11\nv_add_f32 v8, v8, v10\nv_add_f32 v9, v9, v11")
                e(f"v_cvt_pk_bf16_f32 v8, v8, v9\nds_write_b32 {aCTW}, v8")
                if o["smf"] & 4:
                    e(f"ds_read_b128 v[8:11], {aCTR}\nv_mov_b32 v16, 0\nv_mov_b32 v17, 0\nv_mov_b32 v20, 0\nv_mov_b32 v21, 0\ns_waitcnt lgkmcnt(0)")
                    self.smf(16, 8, WO, vIDX)
                    self.smf(20, 8, WO + 8, vIDX)
                    e(f"v_add_f32 v16, v16, v17\nv_add_f32 v17, v20, v21\nds_write_b64 {aRRW}, v[16:17]")
                else:
                    e(f"ds_read_b128 v[8:11], {aCTR}\nds_read_b128 v[12:15], {aCTR} offset:64\ns_waitcnt lgkmcnt(1)")
                    self.mfma(16, 8, WO)
                    self.mfma(20, 8, WO + 8)
                    e("s_waitcnt lgkmcnt(0)")
                    self.mfma(16, 12, WO + 4, 16)
                    self.mfma(20, 12, WO + 12, 20)
                    e(f"v_mov_b32 v17, v20\nds_write_b64 {aRRW}, v[16:17]")
            l = self.lab("fin")
            self.bar_split(f"s_cmp_lg_u32 {sW}, 0", l)
            for k in range(4):
                e(f"ds_read_b64 {R(8+2*k,2)}, {aRRR} offset:{k*256}")
            e(f"s_mov_b32 {sA}, {S3R(L)}\ns_waitcnt lgkmcnt(2)\nv_pk_add_f32 v[8:9], v[8:9], v[10:11]\ns_waitcnt lgkmcnt(0)\nv_pk_add_f32 v[12:13], v[12:13], v[14:15]")
            e("v_pk_add_f32 v[8:9], v[8:9], v[12:13]\nv_pk_add_f32 v[10:11], v[8:9], v[244:245]\nv_permlane32_swap_b32 v10, v8\nv_permlane32_swap_b32 v11, v9".replace("v_permlane32_swap_b32 v10, v8\nv_permlane32_swap_b32 v11, v9", "v_permlane32_swap_b32 v8, v12\nv_permlane32_swap_b32 v9, v13"))
            e("v_pk_add_f32 v[24:25], v[10:11], v[12:13]")
            self.pack_near("v8", "v24", "v25", "v10", "v11", P3)
            e(f"s_mov_b32 {sB}, {S3R(L)+8192}\nbuffer_store_dword v8, {aS3ST}, {srd(S_WS)}, {sA} offen sc1\nbuffer_store_dword v8, {aS3ST}, {srd(S_WS)}, {sB} offen sc1")
            self.canary_set(4 + L, aCANW, o["lead_s3"] == 0)
            e(f"{l}:")
            self.stamp("S3pub" + X)
            if L == 1:
                l = self.lab("ex")
                e(f"s_and_b32 {sA}, {sI}, 7\ns_cmp_eq_u32 {sA}, {sJ}\ns_cbranch_scc1 {l}")
                self.dump_stamps()
                e(f"s_endpgm\n{l}:")
            if L == 0 and o["wqf"]:
                e(f"s_lshl_b32 {sA}, {sW}, 9\ns_add_u32 {sA}, {sA}, {sH}\ns_lshl_b32 {sA}, {sA}, 8\nv_lshlrev_b32 v9, 4, {vC}\nv_lshl_add_u32 v9, {vG}, 15, v9\nv_add_u32 v9, {sA}, v9\ns_mul_i32 {sD}, {sW}, 4160\ns_barrier")

                def wqdma(n):
                    for q in range(4):
                        e(f"s_mov_b32 {sA}, {q*8192 + (n << 20)}\ns_add_u32 m0, {sD}, {A_WUV + (n & 1)*33280 + q*1040}\nbuffer_load_dwordx4 v9, {srd(S_WQ)}, {sA} offen lds")

                def wqfill(n):
                    e(f"s_waitcnt vmcnt({4 if n < 3 else 0})\ns_barrier")
                    for sl in range(4):
                        off = (n & 1) * 33280 + sl * 8320
                        e(f"ds_read_b64_tr_b16 {R(32+16*n+4*sl,2)}, v10 offset:{off}\nds_read_b64_tr_b16 {R(34+16*n+4*sl,2)}, v10 offset:{off+512}")
                    e("s_waitcnt lgkmcnt(0)")
                wqdma(0)
                wqdma(1)
                e(f"v_bfe_u32 {vr}, {vL}, 2, 2\nv_and_b32 {vq}, 3, {vL}\nv_mov_b32 v13, {OOB}\nv_lshlrev_b32 v11, 4, {vG}\nv_bfe_u32 v12, {vC}, 2, 1")
                e(f"v_and_b32 v6, 1, {vr}\nv_lshlrev_b32 v6, 2, v6\nv_lshrrev_b32 v8, 1, {vr}\nv_add_u32 v6, v6, v8\nv_and_b32 v8, 1, {vG}\nv_lshl_add_u32 v6, v8, 1, v6\nv_mul_u32_u24 v6, 1040, v6")
                e(f"v_lshrrev_b32 v8, 1, {vG}\nv_lshl_add_u32 v6, v8, 8, v6\nv_lshl_add_u32 v6, {vq}, 3, v6\ns_lshl_b32 {sA}, {sW}, 5\ns_add_u32 {sA}, {sA}, {A_WUV}\nv_add_u32 v10, {sA}, v6")
                e(f"s_and_b32 {sA}, {sW}, 1\ns_lshl_b32 {sB}, {sA}, 5\nv_xor_b32 v110, {sB}, {aXTR}\nv_xor_b32 v111, 64, v110\ns_lshl_b32 {sB}, {sA}, 6\nv_add_u32 {aXSW}, {sB}, {aXSW}")
                e(f"s_lshl_b32 {sB}, {sPA}, 8\ns_lshl_b32 {sA}, {sA}, 4\ns_add_u32 {sB}, {sB}, {sA}\ns_add_u32 {sB}, {sB}, {I0R(1)}\nv_lshlrev_b32 v6, 7, v12\nv_lshl_add_u32 v6, {vG}, 5, v6\nv_add_u32 v6, {sB}, v6\nv_and_b32 v8, 11, {vC}\nv_cmp_eq_u32 vcc, 0, v8\nv_cndmask_b32 {aWROW}, v13, v6, vcc")
                e(f"v_add_u32 v6, {sA}, {aXOFF}\nv_cndmask_b32 {aOUT}, v13, v6, vcc")
                e(f"s_lshl_b32 {sA}, {sJ}, 12\nv_lshlrev_b32 v6, 4, v0\nv_add_u32 {aI0LD}, {sA}, v6")
                e(f"v_bfe_u32 v6, v0, 3, 1\nv_mul_u32_u24 v6, 1152, v6\nv_lshrrev_b32 v8, 4, v0\nv_lshl_add_u32 v6, v8, 5, v6\nv_bfe_u32 v8, v0, 2, 1\nv_lshl_add_u32 v6, v8, 4, v6\nv_lshl_add_u32 v6, {vq}, 2, v6\nv_add_u32 {aCSLD}, {A_CT}, v6")
                e(f"v_and_b32 v8, 1, {vC}\nv_lshl_add_u32 v6, v12, 1, v8\nv_mul_u32_u24 v6, 576, v6\nv_add_u32 v6, v6, v11\nv_add_u32 v6, {A_CT}, v6\nv_mov_b32 v16, {A_ONE}\nv_lshrrev_b32 v17, 1, {vC}")
                self.sel(aSTLD, "v_cmp_eq_u32 vcc, 1, v17", "v6", "v16")
                e(f"v_lshl_add_u32 v6, v8, 7, v11\nv_lshlrev_b32 v16, 8, v12\nv_mov_b32 v17, 0x200\nv_and_b32 v8, 2, {vC}\nv_cmp_ne_u32 vcc, 0, v8\nv_cndmask_b32 v16, v16, v17, vcc\nv_add3_u32 {aQR}, v6, v16, 0\nv_add_u32 {aQR}, {A_Q}, {aQR}")
                e(f"v_add_u32 {aQW}, {A_Q - A_CC + (1 << 32)}, {aCCW}")
                e(f"s_lshl_b32 {sA}, {sW}, 3\ns_add_u32 {sA}, {sA}, {A_ST}\nv_lshlrev_b32 v6, 2, {vL}\nv_add_u32 v6, {sA}, v6\nv_mov_b32 v8, {A_DUM}\ns_cmp_lt_u32 {sW}, 4\ns_cselect_b32 vcc_lo, 0x101, 0\ns_mov_b32 vcc_hi, 0\nv_cndmask_b32 {aSTST}, v8, v6, vcc")
                e(f"v_and_b32 v6, 1, {vG}\nv_lshlrev_b32 v6, 5, v6\nv_add_u32 {aI0ST1}, {A_ST}, v6")
                e(f"s_and_b32 {sA}, {sW}, 1\ns_mul_i32 {sA}, {sA}, {16*1056}\ns_add_u32 {sA}, {sA}, {A_WUK}\nv_mul_u32_u24 v6, 1056, {vC}\nv_add3_u32 {aI0ST0}, {sA}, v6, v11")
                e(f"v_and_b32 v6, 127, v0\nv_lshlrev_b32 v6, 2, v6\nv_add_u32 v6, {A_ONE}, v6\nv_mov_b32 v8, 0x3f803f80\nds_write_b32 v6, v8")
                for n in range(4):
                    wqfill(n)
                    if n < 2:
                        e("s_barrier")
                        wqdma(n + 2)
                self.stamp("WqF")
            e(f"s_mov_b32 {sB}, {S45(L)}\ns_cmp_eq_u32 {sW}, 6\ns_cselect_b32 {sB}, {S3R(L) - 12*16384}, {sB}\ns_lshl_b32 {sC}, {sW}, 10\ns_add_u32 {sC}, {sC}, {A_XR}")
            (l, lin), = self.near_stub()
            self.canary_wait(6 + L, aCANR, o["d_s45" if L == 0 else "e_s45"])
            self.stamp("S45can" + X)
            l2 = self.lab("s45n")
            e(f"s_mov_b64 exec, {sMASK}\ns_cbranch_execz {l2}\n{lin}:")
            if o["dma45"]:
                e(f"buffer_load_dwordx4 v[8:11], {aXLD}, {srd(S_WS)}, {sB} offen sc1\ns_waitcnt vmcnt(0)")
                self.xcheck(list(range(8, 12)), PS, sM, "v6", mid=f"ds_write_b128 {aXRW}, v[8:11]")
            else:
                e(f"buffer_load_dwordx4 v[8:11], {aXLD}, {srd(S_WS)}, {sB} offen sc1\ns_waitcnt vmcnt(0)")
                e(f"ds_write_b128 {aXRW}, v[8:11]")
                self.check(list(range(8, 12)), PC, sM, "v6")
            e(f"s_cbranch_vccnz {l}")
            e(f"{l2}:\ns_mov_b64 exec, -1")
            self.stamp("S45got" + X)
            if o["wqf"]:
                lsk = self.lab("k")

                def leave():
                    self.dump_stamps()
                    e("s_endpgm")
                self.bar_split(f"s_cmp_ge_u32 {sW}, 2", None if L == 1 else lsk, leave if L == 1 else None)
                for n in range(4):
                    e(f"ds_read_b64_tr_b16 {R(8+4*n,2)}, v{110+(n&1)} offset:{(n >> 1)*4096}\nds_read_b64_tr_b16 {R(10+4*n,2)}, v{110+(n&1)} offset:{(n >> 1)*4096 + 2048}")
                for n in range(4):
                    e(f"s_waitcnt lgkmcnt({6-2*n})")
                    self.mfma(244, 8 + 4 * n, SEL4 if n & 1 else SEL0, None if n == 0 else 244)
                if L == 0:
                    self.both_ways("\n".join(f"v_bfi_b32 v{8+k}, {sFF}, {TB[k]}, v{244+k}" for k in range(4)), [f"buffer_store_dwordx4 v[8:11], {aWROW}, {srd(S_WS)}, 0 offen"])
                    self.stamp("P1a'")
                    for r in range(4):
                        e(f"v_mul_f32 v{244+r}, {f32(0.125)}, v{244+r}\nds_write_b32 {aXSW}, v{244+r} offset:{(r&1)*4 + (r>>1)*8}")
                    e(f"{lsk}:")
                else:
                    e("v_cvt_pk_bf16_f32 v8, v244, v246\nv_cvt_pk_bf16_f32 v9, v245, v247")
                    e(f"buffer_store_dword v8, {aOUT}, {srd(S_OUT)}, 0 offen\nbuffer_store_dword v9, {aOUT}, {srd(S_OUT)}, 0 offen offset:32")
            else:
                lsk = self.lab("k")
                if L == 1:
                    e(f"s_cmp_eq_u32 {sW}, 0\ns_cbranch_scc1 {lsk}")
                    self.dump_stamps()
                    e(f"s_endpgm\n{lsk}:")
                else:
                    e(f"s_cmp_ge_u32 {sW}, 4\ns_cbranch_scc1 {lsk}")
                XT = [8, 12, 16, 20, 212, 216, 220, 224]
                for n in range(8):
                    if o["dma45"]:
                        ad = aXTR if n & 3 == 0 else f"v{100 + (n & 3)}"
                        e(f"ds_read_b64_tr_b16 {R(XT[n],2)}, {ad} offset:{(n >> 2)*4096}\nds_read_b64_tr_b16 {R(XT[n]+2,2)}, {ad} offset:{(n >> 2)*4096 + 2048}")
                    else:
                        off = (n >> 2) * 5120 + 32 * (n & 3)
                        e(f"ds_read_b64_tr_b16 {R(XT[n],2)}, {aXTR} offset:{off}\nds_read_b64_tr_b16 {R(XT[n]+2,2)}, {aXTR} offset:{off+2560}")
                    if n >= 5:
                        T = n - 5
                        e("s_waitcnt lgkmcnt(10)")
                        self.mfma(244 + 4 * (T & 1), XT[T], SEL0 if T < 2 else SEL4, None if T < 2 else 244 + 4 * (T & 1))
                for n in range(3, 8):
                    T = n & 3
                    e(f"s_waitcnt lgkmcnt({14-2*n})")
                    self.mfma(244 + 4 * (T & 1), XT[n], SEL0 if T < 2 else SEL4, 244 + 4 * (T & 1))
                if L == 0:
                    for k in range(4):
                        e(f"v_cvt_pk_bf16_f32 v{XOP+k}, v{244+2*k}, v{245+2*k}")
                    for k in range(4):
                        e(f"v_or_b32 v{XOP+k}, {vONE}, v{XOP+k}")
                    e(f"{lsk}:")
                else:
                    e("v_cvt_pk_bf16_f32 v8, v244, v246\nv_cvt_pk_bf16_f32 v9, v245, v247\nv_cvt_pk_bf16_f32 v10, v248, v250\nv_cvt_pk_bf16_f32 v11, v249, v251")
                    for k, off in enumerate((0, 32, 16, 48)):
                        e(f"buffer_store_dword v{8+k}, {aOUT}, {srd(S_OUT)}, 0 offen offset:{off}")
            if L == 1:
                self.stamp("end")
                if o["amp"]:
                    e(f"s_waitcnt vmcnt(0)\ns_memrealtime s[96:97]\ns_waitcnt lgkmcnt(0)\ns_sub_u32 s94, s96, s98\ns_mul_i32 s94, s94, {o['amp']}\nL_spin:\ns_sleep 8\ns_memrealtime s[92:93]\ns_waitcnt lgkmcnt(0)\ns_sub_u32 s95, s92, s96\ns_cmp_lt_u32 s95, s94\ns_cbranch_scc1 L_spin")
                self.dump_stamps()
                e("s_endpgm")

    def roleB(self):
        e, o = self.e, self.o
        NT = lambda b: ' nt' if o['nt'] >> b & 1 else ''
        CS_, CP, FG, FD = 32, 96, 160, 192
        (aS1LD, aQAW, aQAR, aMX, aLR, aPW, aPR, aS2ST, aLSEST, aCAN, aCANR, aS3LD, aXPW, aXPR, aRBW, aRBR, aSTW, aSTR, aHW, aHR, aS45,
         vCG, vCU, Q0, Q1, P45, aTCH) = ["v%d" % (224 + k) for k in range(27)]
        PC = ["v251", "v252", "v253", "v254"]
        sB_, sHG, sSP, sF = "s68", "s69", "s76", "s77"
        vr, vq = "v14", "v15"
        for b, slot in ((S_WUK, 3), (S_CKV, 1)):
            e(f"s_load_dwordx2 s[{b}:{b+1}], s[0:1], {slot*8}")
        e(f"v_lshrrev_b32 v6, 6, v0\nv_and_b32 {vL}, 63, v0\ns_and_b32 {sJ}, s2, 7\nv_readfirstlane_b32 {sW}, v6\ns_sub_u32 {sI}, {sI}, 16")
        e(f"v_lshrrev_b32 v6, 3, v0\nv_lshlrev_b32 v6, 13, v6\nv_and_b32 v8, 7, v0\nv_lshl_add_u32 v8, v8, 7, v6\ns_lshl_b32 {sE}, {sI}, 8\ns_add_u32 {sE}, {sE}, {sJ}\ns_lshl_b32 {sE}, {sE}, 10")
        self.fin_srd(S_WUK, 4 << 20)
        self.fin_srd(S_CKV, 8 << 20)
        e(f"s_lshr_b32 {sB_}, {sJ}, 2\ns_and_b32 {sHG}, {sI}, 1\ns_and_b32 {sA}, {sJ}, 3\ns_lshl_b32 {sA}, {sA}, 3\ns_lshr_b32 {sSP}, {sI}, 1\ns_add_u32 {sSP}, {sSP}, {sA}")
        e(f"v_lshlrev_b32 v7, 4, {vL}\ns_lshl_b32 {sA}, {sB_}, 22\ns_lshl_b32 {sB}, {sSP}, 17\ns_add_u32 {sA}, {sA}, {sB}\ns_and_b32 s74, {sW}, 3\ns_lshl_b32 {sB}, s74, 14\ns_add_u32 {sA}, {sA}, {sB}\nv_add_u32 v31, {sA}, v7")
        e(f"s_mul_i32 s74, s74, {16*1056}\ns_lshl_b32 s75, {sHG}, 12")
        e(f"s_sub_u32 {sF}, s2, 128\ns_getreg_b32 {sXCC}, hwreg(HW_REG_XCC_ID)\ns_and_b32 {sXCC}, {sXCC}, 15")
        self.calib(sF)
        e("s_waitcnt lgkmcnt(0)")
        self.stamp('karg')
        l, l2 = self.lab("nv"), self.lab("nw")
        e(f"s_cmp_eq_u32 {sW}, 7\ns_cbranch_scc1 {l}")
        self.calib_run()
        e(f"v_mov_b32 v6, {sC}\ns_lshl_b32 {sA}, {sW}, 2\ns_add_u32 {sA}, {sA}, {B_DUM}\nv_mov_b32 v9, {sA}\nds_write_b32 v9, v6\ns_waitcnt lgkmcnt(0)\ns_barrier")
        if o["bdelay"]:
            e(f"s_sleep {o['bdelay']}")
        if o["bhelp"]:
            lh = self.lab("nh")
            e(f"s_cmp_ge_u32 {sW}, {o['bhelp']}\ns_cbranch_scc1 {lh}\nbuffer_load_dword v255, v8, {srd(S_WUK)}, {sE} offen\n{lh}:")
        self.epoch_load()
        self.fin_srd(S_WS, 0x10000000)
        e(f"s_branch {l2}\n{l}:")
        self.epoch_load()
        e(f"s_getpc_b64 s[72:73]\nL_pc:\ns_sub_u32 s72, s72, L_pc-{NAME}_kernel\ns_subb_u32 s73, s73, 0\ns_lshl_b32 {sA}, {sI}, 11")
        e(f"v_lshlrev_b32 v6, 5, {vL}\nv_add_u32 v6, {sA}, v6\nv_min_u32 v6, L_code_end-{NAME}_kernel-4, v6\nglobal_load_dword v255, v6, s[72:73]")
        self.fin_srd(S_WS, 0x10000000)
        e(f"v_mov_b32 v6, {B_DUM}\ns_lshr_b32 {sA}, {sXCC}, 2\ns_and_b32 {sB}, {sF}, 0x70\ns_add_u32 {sB}, {sB}, {sF}\ns_lshl_b32 {sB}, {sB}, 2\ns_waitcnt lgkmcnt(0)")
        self.tags()
        e(f"s_barrier\nds_read_b128 v[8:11], v6\nds_read_b128 v[12:15], v6 offset:16\nv_mov_b32 v6, {VOTES}\ns_waitcnt lgkmcnt(0)")
        e(f"v_min3_u32 v8, v8, v10, v12\nv_min3_u32 v9, v9, v11, v13\nv_min_u32 v8, v8, v14\nv_cmp_lt_u32 vcc, v9, v8\nv_cndmask_b32 v8, 0, 1, vcc\nv_xor_b32 v8, {sA}, v8\nv_lshlrev_b32 v8, 31, v8\nv_xor_b32 v8, {vT}, v8")
        e(f"s_mov_b64 exec, 1\nbuffer_store_dword v8, v6, {srd(S_WS)}, {sB} offen sc1\ns_mov_b64 exec, -1\ns_sub_u32 {sT}, {sT}, 1\n{l2}:")
        for b, slot in ((S_WO, 5), (S_WG, 7), (S_WU, 8), (S_WD, 9)):
            e(f"s_load_dwordx2 s[{b}:{b+1}], s[0:1], {slot*8}")

        def ckv(qs):
            for q in qs:
                for hi in range(2):
                    e(f"s_xor_b32 {sA}, s75, {((q & 3) + 8*((q >> 2) & 1) + 4*(q >> 3) + 64*hi)*1024}\ns_add_u32 m0, s74, {B_CKV + (q + 64*hi)*1056}\nbuffer_load_dwordx4 v31, {srd(S_CKV)}, {sA} offen lds")
        lh1 = self.lab("h1")
        e(f"s_cmp_ge_u32 {sW}, 4\ns_cbranch_scc1 {lh1}")
        if o["bdelay2"]:
            e(f"s_sleep {o['bdelay2']}")
        self.stamp("ckv0")
        ckv(range(8))
        self.stamp("ckv8")
        e(f"s_barrier\n{lh1}:")
        self.consts()
        e(f"v_and_b32 {vC}, 15, v0\nv_bfe_u32 {vG}, v0, 4, 2\nv_mov_b32 v13, {OOB}\nv_mov_b32 v12, {B_DUM}\nv_bfe_u32 {vr}, {vL}, 2, 2\nv_and_b32 {vq}, 3, {vL}")
        for b, sz in ((S_WO, 4 << 20), (S_WG, 1409024), (S_WU, 1409024), (S_WD, 1409024)):
            self.fin_srd(b, sz)
        e(f"s_lshl_b32 {sA}, {sB_}, 16\ns_lshl_b32 {sB}, {sHG}, 15\ns_add_u32 {sA}, {sA}, {sB}\ns_and_b32 {sB}, {sW}, 4\ns_add_u32 {sB}, {sB}, {sW}\ns_lshl_b32 {sB}, {sB}, 11\ns_add_u32 {sA}, {sA}, {sB}\nv_add_u32 {aS1LD}, {sA}, v7")
        e(f"s_mul_i32 {sA}, {sW}, 2112\ns_add_u32 {sA}, {sA}, {B_QA}\nv_add_u32 {aQAW}, {sA}, v7")
        e(f"v_lshlrev_b32 v11, 4, {vG}\nv_mul_u32_u24 v6, 1056, {vC}\nv_add_u32 v6, v6, v11\nv_add_u32 {aQAR}, {B_QA}, v6")
        e(f"s_mul_i32 {sA}, {sW}, {16*1056}\nv_add_u32 v30, {sA}, v6")
        e(f"v_lshlrev_b32 v6, 5, {vC}\nv_add_u32 {aMX}, {B_MX}, v6\ns_lshl_b32 {sA}, {sW}, 6\ns_add_u32 {sA}, {sA}, {B_LI}\nv_add_u32 {aLR}, {sA}, v11")
        if o["pv2"]:
            e(f"v_mov_b32 {aLR}, v11")
        e(f"v_mul_u32_u24 v6, 288, {vC}\nv_add_u32 v6, v6, v11\nv_add_u32 {aPR}, {B_P}, v6")
        e(f"s_lshr_b32 {sA}, {sW}, 1\ns_lshl_b32 {sA}, {sA}, 6\ns_and_b32 {sB}, {sW}, 1\ns_lshl_b32 {sC}, {sB}, 3\ns_add_u32 {sA}, {sA}, {sC}\nv_add_u32 {aPW}, {sA}, {aPR}")
        e(f"s_lshr_b32 {sC}, {sW}, 1\ns_lshl_b32 {sA}, {sC}, 15\ns_lshl_b32 {sC}, {sB_}, 14\ns_add_u32 {sA}, {sA}, {sC}")
        e(f"s_lshl_b32 {sC}, {sSP}, 8\ns_add_u32 {sA}, {sA}, {sC}\ns_lshl_b32 {sC}, {sB}, 7\ns_add_u32 {sA}, {sA}, {sC}")
        e(f"v_lshlrev_b32 v6, 19, {vG}\nv_lshl_add_u32 v6, {vC}, 3, v6\nv_add_u32 {aS2ST}, {sA}, v6")
        e(f"s_lshl_b32 {sA}, {sB_}, 2\ns_add_u32 {sA}, {sA}, {sHG}\ns_lshl_b32 {sA}, {sA}, 5\ns_add_u32 {sA}, {sA}, {sSP}\ns_lshl_b32 {sA}, {sA}, 7\nv_lshlrev_b32 v6, 3, {vC}\nv_lshl_add_u32 v6, {vG}, 13, v6\nv_add_u32 {aLSEST}, {sA}, v6")
        self.can_addr(aCAN, aCANR, sI, 448)
        e(f"s_lshl_b32 {sA}, {sW}, 8\nv_lshlrev_b32 v6, 11, {vG}\nv_lshl_add_u32 v6, {vC}, 4, v6\nv_add_u32 {aS3LD}, {sA}, v6")
        e(f"v_bfe_u32 v10, {vC}, 2, 1\ns_add_u32 {sB}, {sA}, {B_XP}\nv_lshlrev_b32 v6, 7, v10\nv_add_u32 v6, {sB}, v6\nv_add_u32 v9, v6, v11")
        e(f"v_lshrrev_b32 v8, 3, {vC}\nv_lshl_add_u32 v6, v8, 6, v6\nv_lshl_add_u32 v6, {vq}, 4, v6\nv_lshl_add_u32 {aXPW}, {vG}, 2, v6")
        if o["smf"] & 8:
            e(f"v_lshlrev_b32 v6, 7, v10\nv_add_u32 v6, {sB}, v6\nv_and_b32 v9, 1, {vC}\nv_lshl_add_u32 v9, v9, 6, v11\nv_add_u32 v9, v9, v6")
            e(f"v_and_b32 v16, 1, {vG}\nv_lshl_add_u32 v6, v16, 6, v6\nv_lshl_add_u32 v6, v8, 5, v6\nv_lshrrev_b32 v16, 1, {vq}\nv_lshl_add_u32 v6, v16, 4, v6\nv_and_b32 v16, 1, {vq}\nv_lshl_add_u32 v6, v16, 3, v6\nv_lshrrev_b32 v16, 1, {vG}\nv_lshl_add_u32 {aXPW}, v16, 2, v6")
            e(f"v_mov_b32 v6, {B_ONES}\nv_lshrrev_b32 v16, 1, {vC}")
            self.sel(aXPR, "v_cmp_eq_u32 vcc, 4, v16", "v9", "v6")
        else:
            e(f"v_mov_b32 v6, {B_ONES}")
            self.sel(aXPR, f"v_cmp_eq_u32 vcc, 8, {vC}", "v9", "v6")
        e(f"s_mul_i32 {sB}, {sW}, 768\ns_add_u32 {sB}, {sB}, {B_RB}\nv_add_u32 v6, {sB}, v7\nv_lshlrev_b32 v9, 2, {vL}")
        self.sel(aRBW, f"v_cmp_gt_u32 vcc, 48, {vL}", "v12", "v6")
        e(f"v_and_b32 v8, 1, {vG}\nv_lshlrev_b32 v8, 3, v8\nv_lshl_add_u32 v8, {vC}, 4, v8\nv_lshrrev_b32 v6, 5, {vL}\nv_lshl_add_u32 v8, v6, 8, v8\nv_add_u32 {aRBR}, {B_RB}, v8")
        e(f"v_lshlrev_b32 v6, 6, v6\nv_add_u32 {aSTR}, {B_ST}, v6")
        e(f"v_lshrrev_b32 v6, 3, {vL}\nv_lshlrev_b32 v6, 5, v6\ns_lshl_b32 {sB}, {sW}, 2\ns_add_u32 {sB}, {sB}, {B_ST}\nv_add_u32 v6, {sB}, v6\ns_mov_b32 vcc_lo, 0x01100101\ns_mov_b32 vcc_hi, 0\nv_cndmask_b32 {aSTW}, v12, v6, vcc")
        if o["smf"] & 8:
            e(f"s_lshl_b32 {sB}, {sW}, 3\ns_add_u32 {sB}, {sB}, {B_ST}\nv_lshlrev_b32 v6, 4, {vL}\nv_add_u32 v6, {sB}, v6\ns_mov_b32 vcc_lo, 0x11\nv_cndmask_b32 {aSTW}, v12, v6, vcc")
            e(f"v_and_b32 v6, 1, {vC}\nv_mul_u32_u24 {aTCH}, 0xaaaa, v6\nv_add_u32 {aTCH}, 0x4444, {aTCH}")
        e(f"s_lshl_b32 {sB}, {sW}, 7\ns_add_u32 {sB}, {sB}, {B_H}\nv_lshlrev_b32 v6, 1, {vL}\nv_add_u32 {aHW}, {sB}, v6")
        e(f"v_lshl_add_u32 v6, v10, 6, v11\nv_add_u32 {aHR}, {sB}, v6")
        e(f"s_and_b32 {sB}, {sF}, 60\ns_add_u32 {sB}, {sB}, {sF}\ns_lshl_b32 {sB}, {sB}, 11\ns_lshl_b32 {sA}, {sW}, 9\ns_add_u32 {sB}, {sB}, {sA}\nv_add_u32 {aS45}, {sB}, v9")
        e(f"v_mov_b32 v8, 0x3f803f80\nv_and_b32 v6, 31, {vL}\nv_lshlrev_b32 v6, 2, v6\nv_add_u32 v6, {B_ONES}, v6\nds_write_b32 v6, v8")
        e(f"v_lshrrev_b32 v6, 2, {vL}\nv_mul_u32_u24 v6, 1056, v6\nv_lshl_add_u32 v6, {vq}, 3, v6\ns_lshl_b32 {sA}, {sW}, 7\nv_add_u32 v28, {sA}, v6\nv_add_u32 v29, {64*1056}, v28")
        e("s_waitcnt lgkmcnt(0)")
        self.stamp("E")
        self.tags()
        self.cons_pats(PC)
        e(f"v_and_b32 v6, 7, {vC}\nv_lshlrev_b32 v6, 2, v6\nv_lshrrev_b32 v6, v6, {vT}")
        self.pat(Q0, "v6", 0)
        self.pat(Q1, "v6", 2)
        e(f"v_lshlrev_b32 v6, 1, {vC}\nv_lshrrev_b32 v6, v6, {vT}")
        self.pat(P45, "v6", 0)
        ld = self.lab("nd")
        e(f"s_lshl_b32 {sA}, s2, 3\ns_add_u32 {sA}, {sA}, {sW}\ns_cmp_lg_u32 {sA}, {128*8+6}\ns_cbranch_scc1 {ld}")
        lv, lz = self.lab("vt"), self.lab("vz")
        e(f"s_sleep {o['vdelay']}\ns_mov_b32 {sA}, 0\ns_mov_b32 {sB}, 0\ns_xor_b32 {sC}, {sT}, 0x80000000\ns_movk_i32 {sD}, {VOTES}\n{lv}:")
        e(f"s_load_dwordx16 s[16:31], s[{S_WS}:{S_WS+1}], {sD}\ns_add_u32 {sD}, {sD}, 128\ns_waitcnt lgkmcnt(0)")
        for k in range(16, 32):
            e(f"s_cmp_eq_u32 s{k}, {sT}\ns_addc_u32 {sA}, {sA}, 0\ns_cmp_eq_u32 s{k}, {sC}\ns_addc_u32 {sB}, {sB}, 0")
        e(f"s_sub_i32 {sE}, {sA}, {sB}\ns_abs_i32 {sE}, {sE}\ns_cmp_ge_u32 {sE}, {o['vmargin']}\ns_cbranch_scc1 {lz}\ns_cmp_lt_u32 {sD}, {VOTES + 128*o['vrounds']}\ns_cbranch_scc1 {lv}\n{lz}:")
        e(f"s_load_dwordx2 s[{S_WUK}:{S_WUK+1}], s[0:1], 24\ns_load_dwordx2 s[{S_WO}:{S_WO+1}], s[0:1], 40")
        if o.get("vprobe"):
            e(f"s_mul_i32 s94, {sA if o['vprobe'] == 1 else sB}, 1000\ns_cmp_eq_u32 {sA}, {sA}\ns_memrealtime s[96:97]\ns_waitcnt lgkmcnt(0)")
        if o["stamps"]:
            e(f"s_lshl_b32 s3, {sA}, 8\ns_or_b32 s3, s3, {sB}\nv_mov_b32 v10, s3")
        e(f"s_cmp_gt_u32 {sB}, {sA}\ns_cselect_b32 {sA}, 8, 0\ns_and_b32 {sB}, {sXCC}, 7\ns_or_b32 {sA}, {sA}, {sB}")
        if o["forcec"] >= 0:
            e(f"s_andn2_b32 {sA}, {sA}, 8\ns_or_b32 {sA}, {sA}, {8*o['forcec']}")
        e(f"v_mov_b32 v9, {sA}\nv_mov_b32 v8, {vT}\nv_mov_b32 v6, {WADR}\ns_mov_b64 exec, 1\nbuffer_store_dwordx2 v[8:9], v6, {srd(S_WS)}, 0 offen sc1")
        if o["stamps"]:
            e(f"buffer_store_dword v10, v6, {srd(S_WS)}, 0 offen offset:128")
        e(f"s_mov_b64 exec, -1\ns_waitcnt lgkmcnt(0)")
        if o.get("vprobe"):
            e("L_spin2:\ns_sleep 8\ns_memrealtime s[92:93]\ns_waitcnt lgkmcnt(0)\ns_sub_u32 s95, s92, s96\ns_cmp_lt_u32 s95, s94\ns_cbranch_scc1 L_spin2")
        self.fin_srd(S_WUK, 4 << 20)
        self.fin_srd(S_WO, 4 << 20)
        e(f"{ld}:")

        lh2 = self.lab("h2")
        e(f"s_cmp_lt_u32 {sW}, 4\ns_cbranch_scc1 {lh2}\ns_barrier")
        ckv(range(8, 16))
        e(f"{lh2}:")
        for k, a in enumerate((PRET,) + PRET2):
            e(f"v_mov_b32 v{16+k}, {a}\nbuffer_load_dword v{16+k}, v{16+k}, {srd(S_WS)}, 0 offen")
        self.place_load(20)
        e(f"s_mul_i32 s74, {sW}, 2112\ns_add_u32 s74, s74, {B_QA}")
        if o["prio"] & 1:
            l = self.lab("pr")
            e(f"s_cmp_lt_u32 {sW}, 4\ns_cbranch_scc1 {l}\ns_setprio 1\n{l}:")
        self.stamp('ckviss')
        for L in range(2):
            X = "'" * L
            l = self.lab("s1")
            if L == 0:
                e(f"s_lshl_b32 {sE}, {sJ}, 4\ns_add_u32 {sE}, {sE}, {sI}\ns_lshl_b32 {sE}, {sE}, 15")

            def apply_place():
                e(f"s_lshr_b32 {sA}, {sWW}, 3\ns_lshr_b32 {sB}, {sXCC}, 2\ns_xor_b32 {sA}, {sA}, {sB}\ns_and_b32 {sA}, {sA}, 1\ns_lshl_b32 {sSIDE}, {sA}, 13")
                e(f"v_add_u32 {aS1LD}, {sSIDE}, {aS1LD}\nv_add_u32 {aS3LD}, {sSIDE}, {aS3LD}\nv_add_u32 {aCANR}, {sSIDE}, {aCANR}")
                e(f"s_lshl_b32 {sA}, {sHG}, 2\ns_add_u32 {sA}, {sA}, {sWW}\nv_add_u32 v6, {sA}, {vG}\nv_lshlrev_b32 v6, 1, v6\nv_xor_b32 v6, {sWW}, v6\nv_and_b32 v6, 8, v6\nv_lshl_add_u32 {aS2ST}, v6, 10, {aS2ST}")

            def place():
                lq = self.lab("pq")
                lt, lu = self.lab("pt"), self.lab("pu")
                e(f"s_cmp_lt_u32 {sW}, 4\ns_cselect_b32 {sC}, {o['wtries']}, 0\n{lu}:\ns_waitcnt vmcnt(0)")
                e(f"v_readfirstlane_b32 {sPLAIN}, v20\nv_readfirstlane_b32 {sWW}, v21\ns_cmp_lg_u32 {sPLAIN}, {sT}\ns_cbranch_scc1 {lt}")
                apply_place()
                e(f"{lq}:")

                def again():
                    e(f"{lt}:\ns_sub_u32 {sC}, {sC}, 1\ns_cbranch_scc1 {lq}\ns_sleep 2")
                    self.place_load(20)
                    e(f"s_branch {lu}")
                self.oob(again)
            if L == 1:
                (l, lin), = self.near_stub()
            self.canary_wait(L, aCANR, o["d_s1" if L == 0 else "e_s1"], pre=place if L == 0 else None, wsel=7 if L == 0 else 0, both=(L == 0 and o['both']))
            self.stamp("S1can" + X)
            e(f"s_mov_b32 {sA}, {S1R(L)}")
            ld = f"buffer_load_dwordx4 v[8:11], {aS1LD}, {srd(S_WS)}, {sA} offen sc1\nbuffer_load_dwordx4 v[12:15], {aS1LD}, {srd(S_WS)}, {sA} offen offset:1024 sc1"
            if o["dma1"]:
                ld = f"s_mov_b32 m0, s74\nbuffer_load_dwordx4 {aS1LD}, {srd(S_WS)}, {sA} offen sc1 lds\ns_add_u32 m0, s74, 32\nbuffer_load_dwordx4 {aS1LD}, {srd(S_WS)}, {sA} offen offset:1024 sc1 lds"
            if L == 0:
                e(ld)
                for u in range(16):
                    e(f"ds_read_b128 {R(CS_+4*u,4)}, v30 offset:{B_CKV+u*64}")
                if o["early"] == 1:
                    lx = self.lab("wx")
                    e(f"s_cmp_ge_u32 {sW}, 4\ns_cbranch_scc1 {lx}\nv_lshlrev_b32 v6, 7, v0\nbuffer_load_dword v255, v6, {srd(S_WO)}, {sE} offen\n{lx}:")
                if o["early"] == 2:
                    self.ffn_touch(sI, "v255")
                    e(f"s_mov_b32 {sA}, {S1R(L)}")
                for u in range(4):
                    for t in range(4):
                        base, off = ("v28", u * 32 * 1056) if u < 2 else ("v29", (u - 2) * 32 * 1056)
                        e(f"ds_read_b64_tr_b16 {R(CP+16*u+4*t,2)}, {base} offset:{off+32*t}\nds_read_b64_tr_b16 {R(CP+16*u+4*t+2,2)}, {base} offset:{off+32*t+16*1056}")
                l2 = self.lab("in")
                e(f"{l2}:")

                def stub():
                    e(f"{l}:")
                    self.guard()
                    e(f"s_sleep {o['backoff']}\n{ld}\ns_waitcnt vmcnt(0)\ns_branch {l2}")
                self.oob(stub)
            else:
                e(f"{lin}:\n{ld}")
            if L == 0 and o["early"]:
                lz = self.lab("wz")
                e(f"s_cmp_ge_u32 {sW}, 4\ns_cbranch_scc1 {lz}\ns_waitcnt vmcnt(1)\ns_branch {lz}_\n{lz}:\ns_waitcnt vmcnt(0)\n{lz}_:")
            else:
                e("s_waitcnt vmcnt(0)")
            if o["dma1"]:
                e(f"ds_read_b128 v[8:11], {aQAW}\nds_read_b128 v[12:15], {aQAW} offset:1056\ns_waitcnt lgkmcnt(0)")
            self.xcheck(list(range(8, 16)), PC, sM, "v6", mid=f"ds_write_b128 {aQAW}, v[8:11]\nds_write_b128 {aQAW}, v[12:15] offset:1056")
            e(f"s_cbranch_vccnz {l}")
            self.stamp('S1got' + X)
            self.bar()
            for u in range(4):
                e(f"ds_read_b128 {R(8+4*u,4)}, {aQAR} offset:{u*64}")
            for u in range(16):
                e(f"s_waitcnt lgkmcnt({min(3, 15-u)})")
                self.mfma(24, CS_ + 4 * u, 8 + 4 * (u & 3), None if u == 0 else 24)
                if u + 4 < 16:
                    e(f"ds_read_b128 {R(8+4*(u&3),4)}, {aQAR} offset:{(u+4)*64}")
            if o["pv2"]:
                e(f"v_mul_u32_u24 v28, 144, {vC}\ns_lshl_b32 {sA}, {sW}, 4\nv_add_u32 v28, {B_LS}, v28\nv_lshl_add_u32 v29, {vG}, 5, v28\nv_lshl_add_u32 v28, {vG}, 2, v28\nv_add_u32 v28, {sA}, v28")
            e(f"s_lshl_b32 {sA}, {sW}, 2\nv_add_u32 v7, {sA}, {aMX}\nv_max3_f32 v8, v24, v25, v26\nv_max_f32 v8, v8, v27")
            self.allred(["v8"], "v_max_f32", ["v9"], [16, 32])
            e(f"ds_write_b32 v7, v8")
            self.bar()
            self.stamp('Y2' + X)
            if L == 0 and o["wohelp"] == 2:
                if o["early"] == 2:
                    lx = self.lab("fy")
                    e(f"s_add_u32 {sE}, {sI}, 10\ns_cmp_lt_u32 {sE}, 16\ns_cbranch_scc1 {lx}\ns_cmp_ge_u32 {sE}, 24\ns_cbranch_scc1 {lx}")
                    self.ffn_touch(sE, "v255")
                    e(f"{lx}:")
                else:
                    self.ffn_touch(sI, vCG)
            if L == 0:
                l1, l2 = self.lab("lp"), self.lab("lq")
                e(f"s_cmp_lg_u32 {sPLAIN}, {sT}\ns_cbranch_scc1 {l1}\n{l2}:")

                def late():
                    e(f"{l1}:")
                    self.guard()
                    self.place_load(20)
                    e(f"s_waitcnt vmcnt(0)\nv_readfirstlane_b32 {sPLAIN}, v20\nv_readfirstlane_b32 {sWW}, v21\ns_cmp_lg_u32 {sPLAIN}, {sT}\ns_cbranch_scc1 {l1}")
                    apply_place()
                    e(f"s_branch {l2}")
                self.oob(late)
            self.canary_set(2 + L, aCAN, o['lead_s2'] == 2)
            e(f"ds_read_b128 v[8:11], {aMX}\nds_read_b128 v[12:15], {aMX} offset:16\ns_waitcnt lgkmcnt(1)")
            e("v_max3_f32 v8, v8, v9, v10\ns_waitcnt lgkmcnt(0)\nv_max3_f32 v12, v12, v13, v14\nv_max3_f32 v8, v8, v11, v15\nv_max_f32 v5, v8, v12")
            for r in range(4):
                e(f"v_sub_f32 v{24+r}, v{24+r}, v5")
            for r in range(4):
                e(f"v_exp_f32 v{24+r}, v{24+r}")
            e("v_cvt_pk_bf16_f32 v8, v24, v25\nv_cvt_pk_bf16_f32 v9, v26, v27\nv_add_f32 v10, v24, v25\nv_add_f32 v11, v26, v27")
            e(f"ds_write_b64 {aPW}, v[8:9]\nv_add_f32 v10, v10, v11")
            if o["pv2"]:
                e("ds_write_b32 v28, v10")
                self.bar()
                self.stamp('Y3' + X)
                self.canary_set(2 + L, aCAN, o['lead_s2'] == 1)
                IV = ["v5", "v6", "v7", "v255"]
                rdP = lambda u: e(f"ds_read_b128 {R(8+4*(u&1),4)}, {aPR} offset:{(u&3)*64}")
                mm = lambda u, t0: [self.mfma(16 + 4 * t, 8 + 4 * (u & 1), CP + 16 * (u & 3) + 4 * t, None if u & 3 == 0 else 16 + 4 * t) for t in (t0, t0 + 1)]
                rdP(0)
                e("ds_read_b128 v[24:27], v29\nds_read_b128 v[28:31], v29 offset:16")
                rdP(1)
                e("s_waitcnt lgkmcnt(3)")
                mm(0, 0)
                rdP(2)
                e("s_waitcnt lgkmcnt(1)\nv_add_f32 v24, v24, v25\nv_add_f32 v26, v26, v27\nv_add_f32 v28, v28, v29\nv_add_f32 v30, v30, v31")
                mm(1, 0)
                rdP(3)
                e("v_add_f32 v24, v24, v26\nv_add_f32 v28, v28, v30\nv_add_f32 v24, v24, v28\nv_mov_b32 v25, v24\ns_waitcnt lgkmcnt(1)")
                mm(2, 0)
                rdP(4)
                e("v_permlane16_swap_b32 v24, v25\nv_add_f32 v24, v24, v25\nv_mov_b32 v25, v24\ns_waitcnt lgkmcnt(1)")
                mm(3, 0)
                rdP(5)
                e("v_permlane32_swap_b32 v24, v25\nv_add_f32 v6, v24, v25\nv_rcp_f32 v255, v6")
                l = self.lab("k")
                e(f"s_cmp_lg_u32 {sW}, 0\ns_cbranch_scc1 {l}\nv_log_f32 v6, v6\nv_mov_b32 v7, {vT}\ns_mov_b32 {sA}, {LSE(L)}\nv_add_f32 v6, v6, v5\ns_mov_b32 exec_hi, 0")
                e(f"buffer_store_dwordx2 v[6:7], {aLSEST}, {srd(S_WS)}, {sA} offen sc1\ns_mov_b64 exec, -1\n{l}:")
                e("s_waitcnt lgkmcnt(1)")
                mm(4, 2)
                for r in range(4):
                    e(f"ds_bpermute_b32 {IV[r]}, {aLR}, v255 offset:{4*r}")
                rdP(6)
                e("s_waitcnt lgkmcnt(5)")
                mm(5, 2)
                rdP(7)
                e("s_waitcnt lgkmcnt(1)")
                for r in range(4):
                    e(f"v_mul_f32 v{16+r}, v{16+r}, {IV[r]}\nv_mul_f32 v{20+r}, v{20+r}, {IV[r]}")
                mm(6, 2)
                self.pack_ovw("v16", "v16", "v20", Q0)
                self.pack_ovw("v20", "v18", "v22", Q0)
                e("s_waitcnt lgkmcnt(0)")
                mm(7, 2)
                self.pack_ovw("v18", "v17", "v21", Q0)
                self.pack_ovw("v22", "v19", "v23", Q0)
                for r in range(4):
                    e(f"s_mov_b32 {sA}, {S2R(L) + r*131072}\nv_mul_f32 v{24+r}, v{24+r}, {IV[r]}\nv_mul_f32 v{28+r}, v{28+r}, {IV[r]}")
                    self.pack_ovw(f"v{17+2*r}", f"v{24+r}", f"v{28+r}", Q1)
                    e(f"buffer_store_dwordx2 {R(16+2*r,2)}, {aS2ST}, {srd(S_WS)}, {sA} offen sc1")
            else:
                self.allred(["v10"], "v_add_f32", ["v11"], [16, 32])
                e(f"ds_write_b32 v7, v10 offset:512")
                self.bar()
                self.stamp('Y3' + X)
                e(f"ds_read_b128 v[24:27], {aMX} offset:512\nds_read_b128 v[28:31], {aMX} offset:528\nds_read_b128 v[8:11], {aPR}\nds_read_b128 v[12:15], {aPR} offset:64")
                e(f"v_lshlrev_b32 v7, 2, {vC}\ns_lshl_b32 {sA}, {sW}, 6\ns_add_u32 {sA}, {sA}, {B_LI}\nv_add_u32 v7, {sA}, v7\ns_waitcnt lgkmcnt(1)")
                D = [16, 20, 24, 28]
                self.mfma(D[0], 8, CP)
                self.mfma(D[1], 8, CP + 4)
                e("v_add_f32 v24, v24, v25\nv_add_f32 v26, v26, v27\nv_add_f32 v28, v28, v29\nv_add_f32 v30, v30, v31\nv_add_f32 v24, v24, v26\nv_add_f32 v28, v28, v30\nv_add_f32 v6, v24, v28")
                self.mfma(D[2], 8, CP + 8)
                self.mfma(D[3], 8, CP + 12)
                self.canary_set(2 + L, aCAN, o['lead_s2'] == 1)
                e(f"ds_read_b128 v[8:11], {aPR} offset:128\ns_waitcnt lgkmcnt(1)")
                for t in range(4):
                    self.mfma(D[t], 12, CP + 16 + 4 * t, D[t])
                e(f"ds_read_b128 v[12:15], {aPR} offset:192\nds_write_b32 v7, v6")
                l = self.lab("k")
                e(f"s_cmp_lg_u32 {sW}, 0\ns_cbranch_scc1 {l}\nv_log_f32 v6, v6\nv_mov_b32 v7, {vT}\ns_mov_b32 {sA}, {LSE(L)}\nv_add_f32 v6, v6, v5\ns_mov_b32 exec_hi, 0")
                e(f"buffer_store_dwordx2 v[6:7], {aLSEST}, {srd(S_WS)}, {sA} offen sc1\ns_mov_b64 exec, -1\n{l}:")
                e("s_waitcnt lgkmcnt(2)")
                for t in range(4):
                    self.mfma(D[t], 8, CP + 32 + 4 * t, D[t])
                e(f"ds_read_b128 v[8:11], {aLR}\ns_waitcnt lgkmcnt(2)")
                for t in range(4):
                    self.mfma(D[t], 12, CP + 48 + 4 * t, D[t])
                self.canary_set(2 + L, aCAN, o['lead_s2'] == 3)
                e("s_waitcnt lgkmcnt(0)")
                for r in range(4):
                    e(f"v_rcp_f32 v{8+r}, v{8+r}")
                for r in range(4):
                    e(f"s_mov_b32 {sA}, {S2R(L) + r*131072}")
                    for t in range(4):
                        e(f"v_mul_f32 v{D[t]+r}, v{D[t]+r}, v{8+r}")
                    self.pack_ovw(f"v{12+2*(r&1)}", f"v{D[0]+r}", f"v{D[1]+r}", Q0)
                    self.pack_ovw(f"v{13+2*(r&1)}", f"v{D[2]+r}", f"v{D[3]+r}", Q1)
                    e(f"buffer_store_dwordx2 {R(12+2*(r&1),2)}, {aS2ST}, {srd(S_WS)}, {sA} offen sc1")
            self.canary_set(2 + L, aCAN, o['lead_s2'] == 0)
            self.stamp('S2pub' + X)
            lnf = self.lab("nf")
            if L == 0:
                e("s_barrier")
                if o["fhelp"] and o["early"] != 2:
                    lx = self.lab("fy")
                    e(f"s_add_u32 {sE}, {sI}, 10\ns_cmp_lt_u32 {sE}, 16\ns_cbranch_scc1 {lx}\ns_cmp_ge_u32 {sE}, 24\ns_cbranch_scc1 {lx}")
                    self.ffn_touch(sE, "v255")
                    e(f"{lx}:")
            if L == 0 and o["retouch"]:
                lx = self.lab("rt")
                e(f"s_cmp_lg_u32 {sW}, 7\ns_cbranch_scc1 {lx}\ns_getpc_b64 s[72:73]\nL_pc2:\ns_sub_u32 s72, s72, L_pc2-{NAME}_kernel\ns_subb_u32 s73, s73, 0\ns_lshl_b32 {sA}, {sI}, 11")
                e(f"v_lshlrev_b32 v6, 5, {vL}\nv_add_u32 v6, {sA}, v6\nv_min_u32 v6, L_code_end-{NAME}_kernel-4, v6\nglobal_load_dword v255, v6, s[72:73] sc1\n{lx}:")
            e(f"s_cmp_ge_u32 {sF}, 43\ns_cbranch_scc1 {lnf}")
            if L == 0:
                e(f"v_lshrrev_b32 v6, 2, {vL}\ns_lshl_b32 {sA}, {sW}, 6\nv_add_u32 v6, {sA}, v6\nv_mul_u32_u24 v6, 2752, v6\nv_and_b32 v15, 3, {vL}\nv_lshl_add_u32 v6, v15, 4, v6\ns_lshl_b32 {sA}, {sF}, 6\nv_add_u32 v6, {sA}, v6")
                e(f"s_lshl_b32 {sC}, {sW}, 12")
                for sr, base in ((S_WG, B_FG), (S_WU, B_FU)):
                    for q in range(4):
                        e(f"s_mov_b32 {sA}, {q*16*2752}\ns_add_u32 m0, {sC}, {base + q*1024}\nbuffer_load_dwordx4 v6, {srd(sr)}, {sA} offen{NT(4)} lds")
                    e("s_barrier")
                e(f"v_lshrrev_b32 v6, 3, {vL}\nv_lshlrev_b32 v6, 10, v6\nv_and_b32 v7, 7, {vL}\nv_lshl_add_u32 v6, v7, 4, v6\ns_lshl_b32 {sA}, {sF}, 15\ns_lshl_b32 {sB}, {sW}, 7\ns_add_u32 {sA}, {sA}, {sB}\nv_add_u32 v6, {sA}, v6")
                for q in range(4):
                    e(f"s_mov_b32 {sA}, {q*8192}\ns_add_u32 m0, {sC}, {B_FD + q*1024}\nbuffer_load_dwordx4 v6, {srd(S_WD)}, {sA} offen{NT(4)} lds")
                e(f"v_bfe_u32 v14, {vL}, 2, 2\nv_and_b32 v6, 1, v14\nv_lshlrev_b32 v6, 4, v6\nv_lshl_add_u32 v6, {vG}, 2, v6\nv_lshrrev_b32 v7, 1, v14\nv_add_u32 v6, v6, v7\nv_lshlrev_b32 v6, 6, v6\nv_lshl_add_u32 v6, v15, 3, v6\nv_add_u32 v6, {sC}, v6")
                e(f"v_lshl_add_u32 v7, {vG}, 3, v14\nv_lshlrev_b32 v7, 7, v7\nv_lshl_add_u32 v7, v15, 3, v7\ns_and_b32 {sA}, {sW}, 3\ns_lshl_b32 {sA}, {sA}, 13\ns_add_u32 {sA}, {sA}, {B_FD}\nv_add_u32 v7, {sA}, v7")
                e("s_waitcnt vmcnt(4)")
                for mi, base in enumerate((B_FG, B_FU)):
                    for tt in range(2):
                        for u in range(2):
                            rg = FG + 8 * (2 * tt + mi) + 4 * u
                            off = base + u * 2048 + 32 * tt
                            e(f"ds_read_b64_tr_b16 {R(rg,2)}, v6 offset:{off}\nds_read_b64_tr_b16 {R(rg+2,2)}, v6 offset:{off+128}")
                e("s_waitcnt vmcnt(0)\ns_barrier")
                for tt in range(8):
                    off = (tt >> 2) * 4096 + 32 * (tt & 3)
                    e(f"ds_read_b64_tr_b16 {R(FD+4*tt,2)}, v7 offset:{off}\nds_read_b64_tr_b16 {R(FD+4*tt+2,2)}, v7 offset:{off+512}")
                e("s_waitcnt lgkmcnt(0)")
                self.stamp('ffnW')
            (l, lin), = self.near_stub()
            self.canary_wait(4 + L, aCANR, o["d_s3" if L == 0 else "e_s3"])
            self.stamp('S3can' + X)
            e(f"s_mov_b32 {sA}, {S3R(L)}\ns_mov_b32 {sB}, {S3R(L)+16384}\ns_mov_b32 {sC}, 0xfffe\n{lin}:")
            e(f"buffer_load_dwordx4 v[8:11], {aS3LD}, {srd(S_WS)}, {sA} offen sc1\nbuffer_load_dwordx4 v[12:15], {aS3LD}, {srd(S_WS)}, {sB} offen sc1\ns_waitcnt vmcnt(0)")
            self.check(list(range(8, 16)), PC, sM, "v6")
            e(f"s_cbranch_vccnz {l}")
            self.canary_set(6 + L, aCAN, o['lead_s45'] == 2)
            self.stamp('S3got' + X)
            for k in range(4):
                SD = "dst_sel:WORD_1 dst_unused:UNUSED_PAD src0_sel:WORD_0 src1_sel:WORD_0"
                e(f"v_and_b32_sdwa v{16+2*k}, {sC}, v{8+k} {SD}\nv_and_b32 v{17+2*k}, 0xfffe0000, v{8+k}\nv_and_b32_sdwa v{24+2*k}, {sC}, v{12+k} {SD}\nv_and_b32 v{25+2*k}, 0xfffe0000, v{12+k}")
            for k in range(8):
                e(f"v_add_f32 v{16+k}, v{16+k}, v{24+k}")
            for k in range(4):
                e(f"v_permlane32_swap_b32 v{16+k}, v{20+k}")
            for k in range(4):
                e(f"v_add_f32 v{16+k}, v{16+k}, v{20+k}")
            e("v_permlane16_swap_b32 v16, v18\nv_permlane16_swap_b32 v17, v19\nv_add_f32 v16, v16, v18\nv_add_f32 v17, v17, v19")
            e(f"v_cvt_pk_bf16_f32 v6, v16, v17\nds_write_b32 {aXPW}, v6")
            DD = [16, 20, 24, 28]
            if o["smf"] & 8:
                e(f"ds_read_b128 v[8:11], {aXPR}")
                e("v_lshlrev_b32 v12, 16, v6\nv_and_b32 v13, 0xffff0000, v6\nv_add_f32 v7, v12, v13\nv_mul_f32 v6, v12, v12\nv_fmac_f32 v6, v13, v13")
                for t in range(4):
                    e(f"v_mov_b32 v{DD[t]}, 0\nv_mov_b32 v{DD[t]+1}, 0")
                e("s_waitcnt lgkmcnt(0)")
                for t in range(4):
                    self.smf(DD[t], 8, FG + 8 * t, aTCH)
                self.allred(["v6", "v7"], "v_add_f32", ["v12", "v13"], [1, 2, 8, 16, 32])
                e(f"v_add_f32 v16, v16, v17\nv_add_f32 v17, v20, v21\nv_add_f32 v18, v24, v25\nv_add_f32 v19, v28, v29\nds_write_b128 {aRBW}, v[16:19]\nds_write_b64 {aSTW}, v[6:7]")
            else:
                e(f"ds_read_b128 v[8:11], {aXPR}\nds_read_b128 v[12:15], {aXPR} offset:64\ns_waitcnt lgkmcnt(1)")
                for t in range(4):
                    self.mfma(DD[t], 8, FG + 8 * t)
                e("s_waitcnt lgkmcnt(0)")
                for t in range(4):
                    self.mfma(DD[t], 12, FG + 8 * t + 4, DD[t])
                e("v_mfma_f32_16x16x32_bf16 v[8:11], v[8:11], v[8:11], 0")
                e("v_mfma_f32_16x16x32_bf16 v[8:11], v[12:15], v[12:15], v[8:11]")
                e(f"v_mov_b32 v17, v20\nv_mov_b32 v18, v24\nv_mov_b32 v19, v28\nds_write_b128 {aRBW}, v[16:19]\nds_write_b32 {aSTW}, v8")
            self.bar_split(f"s_cmp_ge_u32 {sW}, 4", lnf, lambda: self.canary_set(6 + L, aCAN))
            self.stamp('Z1' + X)
            if L == 0:
                e(f"v_lshrrev_b32 v6, 5, {vL}\nv_lshlrev_b32 v6, 8, v6\nv_sub_u32 v6, {aRBR}, v6")
                for k in range(8):
                    e(f"ds_read_b64 {R(8+2*k,2)}, v6 offset:{768*k+512}")
                e("s_waitcnt lgkmcnt(0)")
                for k in (0, 4, 8, 12):
                    e(f"v_pk_add_f32 {R(8+k,2)}, {R(8+k,2)}, {R(10+k,2)}")
                e(f"v_pk_add_f32 v[8:9], v[8:9], v[12:13]\nv_pk_add_f32 v[16:17], v[16:17], v[20:21]\nv_add_f32 {vCG}, v8, v16\nv_add_f32 {vCU}, v9, v17")
            pk = lambda d, a_, b_: e(f"v_pk_add_f32 {R(d,2)}, {R(a_,2)}, {R(b_,2)}")
            e(f"ds_read_b128 v[24:27], {aSTR}\nds_read_b128 v[28:31], {aSTR} offset:16\nds_read_b128 v[8:11], {aSTR} offset:32\nds_read_b128 v[12:15], {aSTR} offset:48")
            for k in range(4):
                e(f"ds_read_b64 {R(16+2*k,2)}, {aRBR} offset:{768*k}")
            e("s_waitcnt lgkmcnt(6)")
            pk(24, 24, 26), pk(28, 28, 30), pk(24, 24, 28)
            e("s_waitcnt lgkmcnt(4)")
            pk(8, 8, 10), pk(12, 12, 14), pk(6, 24, 8)
            for k in range(4, 8):
                e(f"ds_read_b64 {R(16+2*k,2)}, {aRBR} offset:{768*k}")
            pk(6, 6, 12)
            e(f"v_mul_f32 v7, {f32(1/512)}, v7\nv_mov_b32 v12, {f32(1e-5)}\nv_fmac_f32 v12, {f32(1/512)}, v6\nv_fma_f32 v12, -v7, v7, v12\nv_rsq_f32 v12, v12\ns_waitcnt lgkmcnt(4)")
            pk(16, 16, 18), pk(20, 20, 22), pk(16, 16, 20)
            e("s_waitcnt lgkmcnt(0)")
            pk(24, 24, 26), pk(28, 28, 30), pk(16, 16, 24), pk(8, 16, 28)
            e(f"v_fma_f32 v8, -v7, {vCG}, v8\nv_fma_f32 v9, -v7, {vCU}, v9\nv_mul_f32 v8, v8, v12\nv_mul_f32 v9, v9, v12")
            c1 = -2 * 0.7978845608028654 * math.log2(math.e)
            e(f"v_mul_f32 v10, v8, v8\nv_mov_b32 v11, {f32(c1)}\nv_fmac_f32 v11, {f32(c1*0.044715)}, v10\nv_mul_f32 v10, v11, v8\nv_exp_f32 v10, v10")
            e(f"v_mul_f32 v8, v8, v9\nv_add_f32 v10, 1.0, v10\nv_rcp_f32 v10, v10\ns_mov_b32 {sA}, {S45(L)}\ns_mov_b32 {sB}, {S45(L)+8192}\nv_mul_f32 v8, v8, v10")
            e(f"v_cvt_pk_bf16_f32 v8, v8, v8\nds_write_b16 {aHW}, v8\nds_read_b128 v[8:11], {aHR}\ns_waitcnt lgkmcnt(0)")
            for t in range(8):
                self.mfma(12 + 2 * t, 8, FD + 4 * t)
            for hf in range(2):
                self.pack_ovw(f"v{8+2*hf}", f"v{12+8*hf}", f"v{14+8*hf}", P45)
                self.pack_ovw(f"v{9+2*hf}", f"v{16+8*hf}", f"v{18+8*hf}", P45)
                e(f"v_permlane32_swap_b32 v{8+2*hf}, v{9+2*hf}\nbuffer_store_dword v{8+2*hf}, {aS45}, {srd(S_WS)}, {sA} offen offset:{256*hf} sc1\nbuffer_store_dword v{8+2*hf}, {aS45}, {srd(S_WS)}, {sB} offen offset:{256*hf} sc1")
            self.canary_set(6 + L, aCAN, o['lead_s45'] == 0)
            self.stamp('S45pub' + X)
            e(f"{lnf}:")
        self.dump_stamps()


if __name__ == "__main__":
    import argparse
    ap = argparse.ArgumentParser()
    ap.add_argument("-o", default=f"cdna_kernels/{NAME}.s")
    ap.add_argument("--opt", action="append", default=[])
    a = ap.parse_args()
    opts = {k: int(v) for k, v in (x.split("=") for x in a.opt)}
    open(a.o, "w").write(Gen(**opts).build())
```
